```python
import torch

def _softmax(x, axis=-1):
    return torch.softmax(x, dim=axis)
def _gelu(x):
    return torch.nn.functional.gelu(x, approximate="tanh")
def _silu(x):
    return torch.nn.functional.silu(x)
def _sigmoid(x):
    return torch.sigmoid(x)
def _layernorm(x, axis=-1, eps=1e-5):
    m = x.mean(dim=axis, keepdim=True)
    v = x.var(dim=axis, keepdim=True, unbiased=False)
    return (x - m) / torch.sqrt(v + eps)
def _scatter_add(tgt, idx, src, axis=0):
    return tgt.clone().index_add_(axis, idx, src)
def _segment_sum(src, seg, n):
    out = torch.zeros((n,) + src.shape[1:], dtype=src.dtype)
    return out.index_add_(0, seg, src)
def _pad(x, pw):
    flat = tuple(v for pair in reversed(pw) for v in pair)
    return torch.nn.functional.pad(x, flat)

kernel_name = 'standalone__adm_resblock__diffusion'

def setup_inputs():

    _w = (lambda a: (lambda t: t.to(torch.bfloat16) if t.is_floating_point() else t)(torch.as_tensor(a)))
    B, C, HW, E = 2, 512, 64, 384
    sc = (9.0 * C) ** -0.5
    return {
        "x": _w((lambda *s: torch.randn(*s, dtype=torch.bfloat16) * 0.05)(B, C, HW, HW)),
        "t_emb": _w((lambda *s: torch.randn(*s, dtype=torch.bfloat16) * 0.2)(B, E)),
        "g1": _w(1.0 + 0.1 * (lambda *s: torch.randn(*s, dtype=torch.bfloat16) * 0.2)(C)),
        "be1": _w(0.1 * (lambda *s: torch.randn(*s, dtype=torch.bfloat16) * 0.2)(C)),
        "w1": _w((lambda *s: torch.randn(*s, dtype=torch.bfloat16) * 0.2)(C, C, 3, 3) * sc),
        "w_emb": _w((lambda *s: torch.randn(*s, dtype=torch.bfloat16) * 0.2)(E, C) * (E ** -0.5)),
        "g2": _w(1.0 + 0.1 * (lambda *s: torch.randn(*s, dtype=torch.bfloat16) * 0.2)(C)),
        "be2": _w(0.1 * (lambda *s: torch.randn(*s, dtype=torch.bfloat16) * 0.2)(C)),
        "w2": _w((lambda *s: torch.randn(*s, dtype=torch.bfloat16) * 0.2)(C, C, 3, 3) * sc),
    }

def reference(x, t_emb, g1, be1, w1, w_emb, g2, be2, w2):
    B, C, H, W = x.shape
    G, eps = 4, 1e-5
    def gn(z, gamma, beta):
        zr = z.reshape(B, G, (C // G) * H * W)
        mu = zr.mean(-1).reshape(B, G, 1)
        var = ((zr - mu) ** 2).mean(-1).reshape(B, G, 1)
        zn = ((zr - mu) / torch.sqrt(var + eps)).reshape(B, C, H, W)
        return zn * gamma.reshape(1, C, 1, 1) + beta.reshape(1, C, 1, 1)
    def conv3(z, w):
        zp = _pad(z, ((0, 0), (0, 0), (1, 1), (1, 1)))
        taps = [torch.einsum("bchw,oc->bohw", zp[:, :, i:i+H, j:j+W], w[:, :, i, j]) for i in range(3) for j in range(3)]
        out = taps[0]
        for t in taps[1:]:
            out = out + t
        return out
    h = conv3(_silu(gn(x, g1, be1)), w1)
    emb = _silu(t_emb) @ w_emb
    h = h + emb.reshape(B, C, 1, 1)
    h = conv3(_silu(gn(h, g2, be2)), w2)
    return x + h
```

```python
import sys

SC1, SC2, EMB = 0x1000, 0x2000, 0x3000
ASC2 = 0x4000
STAT1, STAT2 = 0x6000, 0x8000
STAMP = 0x100000
D1, D2 = 0x1000000, 0x1800000
U1, U2 = 0x2000000, 0x2800000
WS_BYTES = 0x10000000
OOB = 0x40000000
LOG2E = 0x3fb8aa3b
NLOG2E = 0xbfb8aa3b
SPIN_MAX = 400000


class Asm:
    def __init__(self):
        self.L = []

    def __call__(self, s):
        for line in s.split("\n"):
            line = line.strip()
            if line:
                self.L.append(line if line.endswith(":") or line.startswith(".") or line.startswith(";") else "    " + line)

    def text(self):
        return "\n".join(self.L) + "\n"


def v(a, n=1):
    return f"v{a}" if n == 1 else f"v[{a}:{a+n-1}]"


def acc(a, n=1):
    return f"a{a}" if n == 1 else f"a[{a}:{a+n-1}]"


def s(a, n=1):
    return f"s{a}" if n == 1 else f"s[{a}:{a+n-1}]"


NEG1 = "neg_lo:[0,1] neg_hi:[0,1]"


def srd(A, d, lo, size):
    A(f"s_mov_b32 s{d}, s{lo}\ns_mov_b32 s{d+1}, s{lo+1}\ns_mov_b32 s{d+2}, {size:#x}\ns_mov_b32 s{d+3}, 0x20000")


def wave_reduce(A, regs, op="v_add_f32"):
    steps = ["row_shr:1", "row_shr:2", "row_shr:4", "row_shr:8"]
    pad = max(0, 3 - len(regs))
    for st in steps:
        if pad:
            A(f"s_nop {pad-1}")
        for r in regs:
            A(f"{op}_dpp v{r}, v{r}, v{r} {st} row_mask:0xf bank_mask:0xf bound_ctrl:1")
    for st, m in (("row_bcast:15", "0xa"), ("row_bcast:31", "0xc")):
        if pad:
            A(f"s_nop {pad-1}")
        for r in regs:
            A(f"{op}_dpp v{r}, v{r}, v{r} {st} row_mask:{m} bank_mask:0xf")


def header(A, name):
    A(f".text\n.globl {name}\n.p2align 8\n.type {name},@function\n{name}:")


def descriptor(A, name, nvgpr, accoff):
    A(f""".section .rodata,"a"
.p2align 6
.amdhsa_kernel {name}
.amdhsa_next_free_vgpr {nvgpr}
.amdhsa_next_free_sgpr 102
.amdhsa_accum_offset {accoff}
.amdhsa_group_segment_fixed_size 0
.amdhsa_kernarg_size 96
.amdhsa_user_sgpr_count 2
.amdhsa_user_sgpr_kernarg_segment_ptr 1
.amdhsa_system_sgpr_workgroup_id_x 1
.amdhsa_float_denorm_mode_32 3
.end_amdhsa_kernel""")


class Stamps:
    def __init__(self, on, kid):
        self.on, self.kid, self.n = on, kid, 0

    def mark(self, A):
        if not self.on:
            return
        assert self.n < 7
        A(f"s_memrealtime s[{72+4*self.n}:{73+4*self.n}]\ns_memtime s[{74+4*self.n}:{75+4*self.n}]")
        self.n += 1

    def mark_wait(self, A):
        if not self.on:
            return
        self.mark(A)
        A("s_waitcnt lgkmcnt(0)")

    def flush(self, A, sws, swave, vt):
        if not self.on:
            return
        A("s_waitcnt lgkmcnt(0)")
        A(f"s_lshl_b32 s100, s2, 2\ns_add_u32 s100, s100, s{swave}\ns_lshl_b32 s100, s100, 6")
        A(f"s_add_u32 s100, s100, {STAMP + self.kid*0x20000:#x}")
        A(f"v_mov_b32 v{vt+2}, 0")
        for i in range(self.n):
            A(f"v_mov_b32 v{vt}, s{72+4*i}\nv_mov_b32 v{vt+1}, s{74+4*i}")
            A(f"buffer_store_dwordx2 v[{vt}:{vt+1}], v{vt+2}, s[{sws}:{sws+3}], s100 offen offset:{8*i}")
            A("s_nop 1")


def gn_coeffs(A, vS1, vS2, vG, vB, vA1, vB1, vA2, vB2, asc, t):
    A(f"v_mul_f32 v{t}, 0x36000000, v{vS1}")
    A(f"v_mul_f32 v{t+1}, 0x36000000, v{vS2}")
    A(f"v_fma_f32 v{t+1}, -v{t}, v{t}, v{t+1}")
    A(f"v_max_f32 v{t+1}, 0, v{t+1}")
    A(f"v_add_f32 v{t+1}, 0x3727c5ac, v{t+1}")
    A(f"v_rsq_f32 v{t+1}, v{t+1}")
    A("s_nop 0")
    for k in range(8):
        A(f"v_mul_f32 v{vG+k}, v{vG+k}, v{t+1}")
    for k in range(8):
        A(f"v_fma_f32 v{vB+k}, -v{t}, v{vG+k}, v{vB+k}")
    for k in range(8):
        A(f"v_mul_f32 v{vA1+k}, {NLOG2E:#x}, v{vG+k}")
        A(f"v_mul_f32 v{vB1+k}, {NLOG2E:#x}, v{vB+k}")
        A(f"v_mul_f32 v{vA2+k}, {asc}, v{vG+k}")
        A(f"v_mul_f32 v{vB2+k}, {asc}, v{vB+k}")


def silu8(A, x, vA1, vB1, vA2, vB2, t, out):
    for k in range(0, 8, 2):
        A(f"v_pk_fma_f32 {v(t+k,2)}, {v(x+k,2)}, {v(vA1+k,2)}, {v(vB1+k,2)}")
    for k in range(8):
        A(f"v_exp_f32 v{t+k}, v{t+k}")
    for k in range(0, 8, 2):
        A(f"v_pk_fma_f32 {v(x+k,2)}, {v(x+k,2)}, {v(vA2+k,2)}, {v(vB2+k,2)}")
    for k in range(0, 8, 2):
        A(f"v_pk_add_f32 {v(t+k,2)}, {v(t+k,2)}, 1.0 op_sel_hi:[1,0]")
    for k in range(8):
        A(f"v_rcp_f32 v{t+k}, v{t+k}")
    for k in range(0, 8, 2):
        A(f"v_pk_mul_f32 {v(x+k,2)}, {v(x+k,2)}, {v(t+k,2)}")
    for k in range(0, 8, 2):
        A(f"v_cvt_pk_f16_f32 v{out+k//2}, v{x+k}, v{x+k+1}")


def unpack_bf16(A, src, lo, hi):
    A(f"v_lshlrev_b32 v{lo}, 16, v{src}")
    A(f"v_and_b32 v{hi}, 0xffff0000, v{src}")


def gen_prep(A, stamps):
    name = "adm_prep_kernel"
    st = Stamps(stamps, 0)
    header(A, name)
    st.mark(A)
    A("s_cmp_ge_u32 s2, 264\ns_cbranch_scc1 Lp_exit")
    A("s_load_dwordx16 s[4:19], s[0:1], 0")
    A("s_load_dwordx8 s[20:27], s[0:1], 64")
    A("v_lshrrev_b32 v1, 6, v0\nv_and_b32 v2, 63, v0")
    A("v_readfirstlane_b32 s3, v1")
    A("s_waitcnt lgkmcnt(0)")
    SWS, SX, SW, SDBG = 28, 32, 36, 40
    srd(A, SWS, 26, WS_BYTES)
    A("s_cmp_ge_u32 s2, 256\ns_cbranch_scc1 Lp_emb")
    srd(A, SX, 4, 0x800000)
    srd(A, SDBG, 24, 256)
    A("s_and_b32 s44, s2, 1")
    A("s_cmp_eq_u32 s44, 0\ns_cselect_b32 s36, s12, s20\ns_cselect_b32 s37, s13, s21")
    A(f"s_mov_b32 s38, {512*9216:#x}\ns_mov_b32 s39, 0x20000")
    A("s_and_b32 s45, s2, 7\ns_lshr_b32 s46, s2, 3")
    A("s_lshl_b32 s47, s45, 4\ns_lshr_b32 s48, s46, 1\ns_add_u32 s47, s47, s48")
    A("s_and_b32 s48, s46, 1\ns_lshl_b32 s48, s48, 2\ns_add_u32 s48, s48, s3")
    A("s_lshl_b32 s49, s47, 16\ns_lshl_b32 s50, s48, 10\ns_add_u32 s49, s49, s50")
    XF, G, RW, AX = 8, 72, 168, 144
    A("v_lshlrev_b32 v3, 3, v2")
    for k in range(8):
        for it in range(2):
            r = G + (it*8 + k)*2
            A(f"buffer_load_dwordx2 {v(r,2)}, v3, s[{SX}:{SX+3}], s49 offen offset:{512*it}")
        if k < 7:
            A("s_add_u32 s49, s49, 8192")
    A("v_lshlrev_b32 v4, 2, v0")
    A("global_load_dword v216, v4, s[8:9]\nglobal_load_dword v217, v4, s[10:11]")
    A("global_load_dword v218, v4, s[16:17]\nglobal_load_dword v219, v4, s[18:19]")
    A("s_and_b32 s50, s47, 63\ns_lshl_b32 s50, s50, 4")
    A("s_load_dwordx4 s[52:55], s[8:9], s50\ns_load_dwordx4 s[56:59], s[10:11], s50")
    A("v_and_b32 v5, 3, v2\nv_lshrrev_b32 v6, 2, v2")
    A("v_mul_u32_u24 v7, 9216, v5\nv_mul_u32_u24 v1, 144, v6\nv_add_u32 v7, v7, v1")
    A("s_lshr_b32 s51, s2, 1")
    A("s_mul_i32 s60, s51, 36864\ns_mul_i32 s61, s3, 2304\ns_add_u32 s60, s60, s61")
    for k in range(9):
        A(f"buffer_load_dwordx4 {v(RW+4*k,4)}, v7, s[{SW}:{SW+3}], s60 offen offset:{16*k}")
    P = 220
    for i in range(8):
        A(f"v_mov_b32 v{P+i}, 0")
    for k in range(0, 8, 2):
        A(f"s_waitcnt vmcnt({13 + 12 - 2*k})")
        for kk in (k, k+1):
            for it in range(2):
                r = G + (it*8 + kk)*2
                unpack_bf16(A, r, XF + (it*4 + 0)*8 + kk, XF + (it*4 + 1)*8 + kk)
                unpack_bf16(A, r+1, XF + (it*4 + 2)*8 + kk, XF + (it*4 + 3)*8 + kk)
        for p in range(8):
            x = XF + p*8 + k
            a = P + 2*(p & 1)
            A(f"v_pk_add_f32 {v(a,2)}, {v(a,2)}, {v(x,2)}")
            A(f"v_pk_fma_f32 {v(a+4,2)}, {v(x,2)}, {v(x,2)}, {v(a+4,2)}")
    A(f"v_pk_add_f32 {v(P,2)}, {v(P,2)}, {v(P+2,2)}")
    A(f"v_pk_add_f32 {v(P+4,2)}, {v(P+4,2)}, {v(P+6,2)}")
    A(f"v_add_f32 v{P}, v{P}, v{P+1}\nv_add_f32 v{P+1}, v{P+4}, v{P+5}")
    wave_reduce(A, [P, P+1])
    A(f"v_cmp_eq_u32 vcc, 63, v2\nv_mov_b32 v4, {OOB:#x}")
    A("s_lshl_b32 s61, s46, 2\ns_add_u32 s61, s61, s3\ns_lshl_b32 s61, s61, 3")
    A(f"s_lshl_b32 s62, s45, 10\ns_add_u32 s62, s62, {STAT1:#x}\ns_add_u32 s61, s61, s62")
    A("v_cndmask_b32 v4, v4, 0, vcc")
    A(f"buffer_store_dwordx2 {v(P,2)}, v4, s[{SWS}:{SWS+3}], s61 offen sc0 sc1")
    st.mark(A)
    M = 224
    A("s_waitcnt vmcnt(10)")
    for i, r in enumerate((216, 217, 218, 219)):
        unpack_bf16(A, r, 228 + 2*i, 229 + 2*i)
    A(f"v_max3_f32 v{M+1}, |v228|, |v229|, 0\nv_max3_f32 v{M+2}, |v232|, |v233|, 0")
    A(f"v_max3_f32 v{M+1}, |v230|, |v231|, v{M+1}\nv_max3_f32 v{M+2}, |v234|, |v235|, v{M+2}")
    A(f"v_mov_b32 v{M}, 0")

    def greg(e):
        return G + (e % 9)*8 + e//9
    for k in range(9):
        A(f"s_waitcnt vmcnt({9-k})")
        for d in range(4):
            e = 8*k + 2*d
            unpack_bf16(A, RW + 4*k + d, greg(e), greg(e+1))
        for d in range(4):
            e = 8*k + 2*d
            A(f"v_max3_f32 v{M}, |v{greg(e)}|, |v{greg(e+1)}|, v{M}")
    A("s_nop 1")
    wave_reduce(A, [M, M+1, M+2], "v_max_f32")
    A(f"v_mov_b32 v{M+3}, 0")
    A("s_lshl_b32 s63, s3, 4\nv_mov_b32 v1, s63")
    A("s_mov_b32 exec_lo, 0\ns_mov_b32 exec_hi, 0x80000000")
    A(f"ds_write_b128 v1, {v(M,4)}")
    A("s_mov_b64 exec, -1")
    A("s_waitcnt vmcnt(0) lgkmcnt(0)\ns_barrier")
    A("s_cmp_lg_u32 s3, 0\ns_cbranch_scc1 Lp_noflag")
    A("s_lshl_b32 s63, s45, 5\ns_add_u32 s63, s63, s46\nv_mov_b32 v1, 1")
    A(f"buffer_store_byte v1, v4, s[{SDBG}:{SDBG+3}], s63 offen sc0 sc1")
    A("Lp_noflag:")
    A("v_mov_b32 v1, 0")
    for i in range(4):
        A(f"ds_read_b128 {v(M+4*i,4)}, v1 offset:{16*i}")
    A("s_waitcnt lgkmcnt(0)")
    for c in range(3):
        A(f"v_max3_f32 v{M+c}, v{M+c}, v{M+4+c}, v{M+8+c}")
    for c in range(3):
        A(f"v_max_f32 v{M+c}, v{M+c}, v{M+12+c}")
    A("s_movk_i32 s63, -60\nv_mov_b32 v1, 60")
    for c in range(3):
        A(f"v_frexp_exp_i32_f32 v{M+c}, v{M+c}")
    for c in range(3):
        A(f"v_med3_i32 v{M+c}, v{M+c}, s63, v1")
    A(f"v_sub_u32 v228, 135, v{M}\nv_lshlrev_b32 v228, 23, v228\nv_mov_b32 v229, v228")
    A("v_mul_f32 v230, 0.5, v228\nv_mul_f32 v231, 0.5, v228\nv_mul_f32 v232, 0.5, v230\nv_mul_f32 v233, 0.5, v230")
    A("v_mov_b32 v234, 0.5\nv_mov_b32 v235, 0.5")
    A(f"v_sub_u32 v236, 130, v{M+1}\nv_lshlrev_b32 v236, 23, v236")
    A(f"v_sub_u32 v237, 130, v{M+2}\nv_lshlrev_b32 v237, 23, v237")
    A(f"s_cmp_eq_u32 s44, 0\ns_cselect_b64 vcc, -1, 0\nv_cndmask_b32 v238, v{M+2}, v{M+1}, vcc")
    A(f"v_add_u32 v238, v238, v{M}\nv_add_u32 v238, 116, v238\nv_max_i32 v238, 1, v238\nv_lshlrev_b32 v238, 23, v238")
    for i in range(4):
        A(f"v_mov_b32 v{240+i}, v238")
    A(f"s_lshl_b32 s63, s44, 12\ns_lshl_b32 s64, s51, 4\ns_add_u32 s63, s63, s64\ns_add_u32 s63, s63, {SC1:#x}")
    A(f"buffer_store_dwordx4 v[240:243], v4, s[{SWS}:{SWS+3}], s63 offen")
    A("s_cmp_lg_u32 s2, 0\ns_cbranch_scc1 Lp_noasc")
    A(f"s_mov_b32 s63, {ASC2:#x}\nbuffer_store_dword v237, v4, s[{SWS}:{SWS+3}], s63 offen")
    A("Lp_noasc:")
    T = 244
    for b in range(3):
        sc, sch = (230, 232) if b == 1 else (228, 230)
        for cp in range(0, 8, 2):
            g0, g1, g2, a2 = G + b*8 + cp, G + (3+b)*8 + cp, G + (6+b)*8 + cp, AX + b*8 + cp
            A(f"v_pk_mul_f32 {v(g0,2)}, {v(g0,2)}, {v(sc,2)}")
            A(f"v_pk_mul_f32 {v(g2,2)}, {v(g2,2)}, {v(sc,2)}")
            A(f"v_pk_mul_f32 {v(g1,2)}, {v(g1,2)}, {v(sch,2)}")
            A(f"v_pk_add_f32 {v(T+cp,2)}, {v(g0,2)}, {v(g2,2)}")
        for cp in range(0, 8, 2):
            g1, a2 = G + (3+b)*8 + cp, AX + b*8 + cp
            A(f"v_pk_fma_f32 {v(a2,2)}, {v(T+cp,2)}, v[234:235], {v(g1,2)} neg_lo:[0,0,1] neg_hi:[0,0,1]")
            A(f"v_pk_fma_f32 {v(g1,2)}, {v(T+cp,2)}, v[234:235], {v(g1,2)}")
    rowb = [G, G + 24, AX, G + 48]
    A("s_lshr_b32 s63, s51, 4\ns_mul_i32 s63, s63, 786432")
    A("s_bfe_u32 s64, s51, 0x10003\ns_lshl_b32 s64, s64, 11\ns_add_u32 s63, s63, s64")
    A("s_and_b32 s64, s51, 1\ns_lshl_b32 s64, s64, 10\ns_add_u32 s63, s63, s64")
    A("s_bfe_u32 s64, s51, 0x20001\ns_lshl_b32 s64, s64, 8\ns_add_u32 s63, s63, s64")
    A(f"s_mul_i32 s64, s3, {4*49152}\ns_add_u32 s63, s63, s64")
    A(f"s_lshl_b32 s64, s44, 23\ns_add_u32 s63, s63, s64\ns_add_u32 s63, s63, {U1:#x}")
    A("v_lshrrev_b32 v1, 4, v2\nv_mul_u32_u24 v1, 49152, v1\nv_and_b32 v5, 15, v2\nv_lshl_add_u32 v7, v5, 4, v1")
    for i in range(4):
        a = rowb[i]
        for cp in range(0, 8, 2):
            A(f"v_pk_add_f32 {v(T+cp,2)}, {v(a+cp,2)}, {v(a+16+cp,2)}")
        for cp in range(0, 8, 2):
            A(f"v_pk_fma_f32 {v(a+cp,2)}, {v(T+cp,2)}, v[234:235], {v(a+8+cp,2)}")
            A(f"v_pk_fma_f32 {v(a+8+cp,2)}, {v(T+cp,2)}, v[234:235], {v(a+8+cp,2)} neg_lo:[0,0,1] neg_hi:[0,0,1]")
        for j, src in enumerate((a+16, a, a+8)):
            o = RW + (i*3 + j)*4
            for d in range(4):
                A(f"v_cvt_pk_f16_f32 v{o+d}, v{src+2*d}, v{src+2*d+1}")
            A(f"buffer_store_dwordx4 {v(o,4)}, v7, s[{SWS}:{SWS+3}], s63 offen")
            A("s_add_u32 s63, s63, 4096")
    st.mark(A)
    A("v_and_b32 v1, 7, v2\nv_lshlrev_b32 v1, 2, v1\ns_lshl_b32 s63, s45, 5")
    A(f"s_mov_b32 s64, {SPIN_MAX}\ns_mov_b32 s65, 0x01010101")
    A("Lp_poll:")
    A(f"buffer_load_dword v6, v1, s[{SDBG}:{SDBG+3}], s63 offen sc0 sc1")
    A("s_waitcnt vmcnt(0)\nv_cmp_ne_u32 vcc, s65, v6\ns_nop 1\ns_cmp_eq_u64 vcc, 0\ns_cbranch_scc1 Lp_ready")
    A("s_sleep 2\ns_sub_u32 s64, s64, 1\ns_cmp_lg_u32 s64, 0\ns_cbranch_scc1 Lp_poll")
    A("Lp_ready:")
    A("v_lshlrev_b32 v1, 4, v2")
    A(f"buffer_load_dwordx4 {v(P,4)}, v1, s[{SWS}:{SWS+3}], s62 offen sc0 sc1")
    GA, GB, A1, B1, A2, B2, TT, OUT = 72, 80, 88, 96, 104, 112, 120, 136
    for d in range(4):
        A(f"v_mov_b32 v{TT}, s{52+d}\nv_mov_b32 v{TT+1}, s{56+d}")
        unpack_bf16(A, TT, GA + 2*d, GA + 2*d + 1)
        unpack_bf16(A, TT+1, GB + 2*d, GB + 2*d + 1)
    A("s_waitcnt vmcnt(0)")
    A(f"v_pk_add_f32 {v(P,2)}, {v(P,2)}, {v(P+2,2)}")
    A("s_nop 0")
    wave_reduce(A, [P, P+1])
    A(f"s_nop 0\nv_readlane_b32 s64, v{P}, 63\nv_readlane_b32 s65, v{P+1}, 63\ns_nop 1")
    A(f"v_mov_b32 v{P}, s64\nv_mov_b32 v{P+1}, s65")
    st.mark(A)
    gn_coeffs(A, P, P+1, GA, GB, A1, B1, A2, B2, "v236", TT)
    A(f"s_lshl_b32 s63, s47, 16\ns_lshl_b32 s64, s48, 13\ns_add_u32 s63, s63, s64\ns_add_u32 s63, s63, {D1:#x}")
    A("v_lshrrev_b32 v1, 4, v2\nv_lshlrev_b32 v1, 10, v1\nv_lshl_add_u32 v1, v5, 4, v1")
    for it in range(2):
        for q in range(4):
            p = it*4 + q
            o = OUT + 4*p
            silu8(A, XF + p*8, A1, B1, A2, B2, TT + 8*(p & 1), o)
            A(f"buffer_store_dwordx4 {v(o,4)}, v1, s[{SWS}:{SWS+3}], s63 offen offset:{256*q}")
        if it == 0:
            A("s_add_u32 s63, s63, 4096")
    st.mark(A)
    if stamps:
        A("s_waitcnt vmcnt(0)")
        st.mark(A)
    st.flush(A, SWS, 3, 8)
    A("Lp_exit:\ns_endpgm")

    A("Lp_emb:")
    A("s_sub_u32 s44, s2, 256")
    srd(A, 32, 14, 384*1024)
    srd(A, 36, 6, 1536)
    A("v_and_b32 v3, 7, v0\nv_lshrrev_b32 v4, 3, v0")
    A("v_lshlrev_b32 v5, 10, v4\nv_lshl_add_u32 v5, v3, 4, v5")
    A("v_lshlrev_b32 v6, 1, v4")
    A("s_lshl_b32 s45, s44, 7")
    WE, TE, AC = 8, 56, 80
    for b in range(2):
        for it in range(12):
            A(f"buffer_load_ushort v{TE + b*12 + it}, v6, s[36:39], 0 offen offset:{b*768 + it*64}")
    for it in range(12):
        A(f"buffer_load_dwordx4 {v(WE+4*it,4)}, v5, s[32:35], s45 offen")
        A("s_add_u32 s45, s45, 32768")
    for i in range(4):
        A(f"v_mov_b32 v{100+i}, -1")
    A("s_cmp_lg_u32 s3, 0\ns_cbranch_scc1 Lp_noreset")
    A(f"v_lshlrev_b32 v7, 4, v2\ns_lshl_b32 s46, s44, 10\ns_add_u32 s46, s46, {STAT2:#x}")
    A(f"buffer_store_dwordx4 v[100:103], v7, s[{SWS}:{SWS+3}], s46 offen")
    A("Lp_noreset:")
    for i in range(16):
        A(f"v_mov_b32 v{AC+i}, 0")
    A("s_waitcnt vmcnt(0)")
    for i in range(24):
        A(f"v_lshlrev_b32 v{TE+i}, 16, v{TE+i}")
    for i in range(24):
        A(f"v_mul_f32 v{104+i}, {NLOG2E:#x}, v{TE+i}")
    for i in range(24):
        A(f"v_exp_f32 v{104+i}, v{104+i}")
    for i in range(24):
        A(f"v_add_f32 v{104+i}, 1.0, v{104+i}")
    for i in range(24):
        A(f"v_rcp_f32 v{104+i}, v{104+i}")
    for i in range(24):
        A(f"v_mul_f32 v{TE+i}, v{TE+i}, v{104+i}")
    for it in range(12):
        for d in range(4):
            unpack_bf16(A, WE + 4*it + d, 104 + 2*d, 105 + 2*d)
        for b in range(2):
            for k in range(8):
                A(f"v_fmac_f32 v{AC + b*8 + k}, v{104+k}, v{TE + b*12 + it}")
    A("v_lshlrev_b32 v5, 9, v4\nv_lshl_add_u32 v5, v3, 5, v5")
    for b in range(2):
        for h in range(2):
            A(f"ds_write_b128 v5, {v(AC + b*8 + 4*h, 4)} offset:{b*256 + h*16}")
    A("s_waitcnt lgkmcnt(0)\ns_barrier")
    A("s_cmp_ge_u32 s3, 2\ns_cbranch_scc1 Lp_exit2")
    A("v_lshlrev_b32 v5, 2, v0")
    for half in range(4):
        for e in range(8):
            A(f"ds_read_b32 v{8 + half*8 + e}, v5 offset:{(half*8 + e)*512}")
        A("s_waitcnt lgkmcnt(0)")
    n = 32
    while n > 1:
        n //= 2
        for e in range(n):
            A(f"v_add_f32 v{8+e}, v{8+e}, v{8+n+e}")
    A(f"s_lshl_b32 s45, s3, 11\ns_lshl_b32 s46, s44, 8\ns_add_u32 s45, s45, s46\ns_add_u32 s45, s45, {EMB:#x}")
    A("v_lshlrev_b32 v5, 2, v2")
    A(f"buffer_store_dword v8, v5, s[{SWS}:{SWS+3}], s45 offen")
    A("Lp_exit2:\ns_endpgm")
    descriptor(A, name, 256, 256)


SLOT = 24576
VDMA, VDMA2, VTOP, VBOT, VU, VA, VB = 1, 2, 3, 4, 5, 6, 7
C = [[8, 24], [40, 56]]
PP, TMP = 72, 88
UU = [[104, 120, 136], [152, 168, 184]]
EP = 200
SWS, SD, SX, SO = 28, 32, 36, 40
S_W, S_DMA, S_M0, S_U0, S_U1, S_U2, S_SGN, S_CNT = 3, 44, 45, 46, 47, 48, 49, 50
S_GRP, S_IDX, S_B, S_NB, S_RB = 51, 52, 53, 54, 55


class Seq:
    def __init__(self):
        self.out, self.vm, self.lg = [], [], []

    def raw(self, t):
        self.out.append(t)

    def vmem(self, t, tag):
        self.out.append(t); self.vm.append(tag)

    def lds(self, t, tag):
        self.out.append(t); self.lg.append(tag)

    def _n(self, lst, tag):
        idx = [i for i, x in enumerate(lst) if x == tag]
        if not idx:
            return None
        n = len(lst) - 1 - idx[-1]
        del lst[:idx[-1] + 1]
        return n

    def wait(self, vm=(), lg=()):
        parts = []
        ns = [self._n(self.vm, t) for t in vm]
        ns = [n for n in ns if n is not None]
        if ns:
            assert ns[-1] < 64
            parts.append(f"vmcnt({ns[-1]})")
        ns = [self._n(self.lg, t) for t in lg]
        ns = [n for n in ns if n is not None]
        if ns:
            assert ns[-1] < 16
            parts.append(f"lgkmcnt({ns[-1]})")
        if parts:
            self.out.append("s_waitcnt " + " ".join(parts))


def u_load(Q, k, j, nu):
    sreg = (S_U0, S_U1, S_U2)[j]
    r = UU[k & 1][j] + 4*nu
    Q.vmem(f"buffer_load_dwordx4 {v(r,4)}, v{VU}, s[{SWS}:{SWS+3}], s{sreg} offen offset:{1024*nu}", ("u", k, j))
    if nu == 3:
        Q.raw(f"s_add_u32 s{sreg}, s{sreg}, 49152")


def dma_m0(Q, k, hi):
    Q.raw(f"s_add_u32 m0, s{S_M0}, {(k & 1)*SLOT + 4096*hi}")


def dma(Q, k, p):
    vo = (VTOP, VDMA, VDMA, VDMA, VDMA2, VBOT)[p]
    Q.vmem(f"buffer_load_dwordx4 v{vo}, s[{SD}:{SD+3}], s{S_DMA} offen offset:{1024*(p & 3)} lds", ("raw", k))
    if p == 5:
        Q.raw(f"s_add_u32 s{S_DMA}, s{S_DMA}, 0x40000")


def raw_read(Q, k, par, tb, which):
    off = (k & 1)*SLOT + (tb >> 1)*2048 + (2*(tb & 1) + par)*256
    r = (C[k & 1][par] if which == 0 else (TMP, PP)[par]) + 4*tb
    Q.lds(f"ds_read_b128 {v(r,4)}, v{(VA, VB)[which]} offset:{off}", ("rd", k, par, tb))


def h_op(Q, k, par, tb, d):
    c = C[k & 1][par] + 4*tb + d
    t = (TMP, PP)[par] + 4*tb + d
    Q.raw(f"v_pk_fma_f16 v{c}, v{t}, s{S_SGN}, v{c}")


def step(Q, k, extra=None):
    cs = k & 1
    c0, c1 = C[cs]
    u0, u1, u2 = UU[cs]
    ld_u2 = k + 1 <= 15
    ld_u = k + 2 <= 15
    ld_d = k + 3 <= 16
    rd = k + 1 <= 15
    G = [[] for _ in range(64)]
    at = lambda g, f: G[g].append(f)

    def vops(lst, gaps):
        it = iter(lst)
        for g, n in gaps:
            for _ in range(n):
                at(g, next(it))
        assert next(it, None) is None

    R = lambda t: (lambda: Q.raw(t))
    if rd:
        for tb in range(4):
            at(2*tb, lambda tb=tb: raw_read(Q, k+1, 0, tb, 0))
            at(2*tb, lambda tb=tb: raw_read(Q, k+1, 0, tb, 1))
    if ld_u2:
        for nu in range(4):
            at(2*nu + 1, lambda nu=nu: u_load(Q, k+1, 2, nu))
    pops = [R(f"v_pk_add_f16 v{PP+i}, v{c0+i}, v{c1+i}") for i in range(16)]
    vops(pops, [(8, 2), (10, 3), (12, 3), (13, 3), (14, 3), (15, 2)])
    if ld_d:
        at(8, lambda: dma_m0(Q, k+3, 0))
        at(9, lambda: dma(Q, k+3, 0))
        at(11, lambda: dma(Q, k+3, 1))
        at(17, lambda: dma(Q, k+3, 2))
        at(19, lambda: dma(Q, k+3, 3))
        at(21, lambda: dma_m0(Q, k+3, 1))
        at(22, lambda: dma(Q, k+3, 4))
        at(26, lambda: dma(Q, k+3, 5))
        if cs == 0:
            at(27, R(f"s_xor_b32 s{S_M0}, s{S_M0}, 0x10000"))
    at(15, lambda: Q.wait(vm=[("u", k, 1)]))
    mops = [R(f"v_pk_add_f16 v{c0+i}, v{c0+i}, v{c1+i} {NEG1}") for i in range(16)]
    vops(mops, [(16, 3), (18, 3), (21, 1), (23, 3), (25, 1), (27, 2), (29, 1), (30, 2)])
    tops = [R(f"v_pk_add_f16 v{u1+i}, v{u1+i}, v{u0+i} {NEG1}") for i in range(16)]
    vops(tops, [(20, 3), (21, 1), (24, 3), (25, 1), (28, 3), (29, 1), (31, 2), (32, 2)])
    at(31, lambda: Q.wait(vm=[("u", k, 2)]))
    if rd:
        for g, tb, w in ((32, 0, 0), (34, 0, 1), (34, 1, 0), (34, 1, 1), (37, 2, 0), (37, 2, 1), (39, 3, 0), (39, 3, 1)):
            if g == 32:
                at(g, lambda: Q.wait(lg=[("rd", k+1, 0, 3)]))
            at(g, lambda tb=tb, w=w: raw_read(Q, k+1, 1, tb, w))
        if cs == 0:
            at(39, R(f"v_xor_b32 v{VA}, 0x10000, v{VA}"))
            at(41, R(f"v_xor_b32 v{VB}, 0x10000, v{VB}"))
    if ld_u:
        for nu, g in enumerate((33, 35, 38, 42)):
            at(g, lambda nu=nu: u_load(Q, k+2, 0, nu))
    wops = [R(f"v_pk_add_f16 v{u2+i}, v{u1+i}, v{u2+i}") for i in range(16)]
    vops(wops, [(36, 3), (37, 1), (40, 3), (41, 1), (44, 3), (45, 1), (47, 2), (48, 2)])
    if rd:
        h0 = [(lambda i=i: h_op(Q, k+1, 0, i >> 2, i & 3)) for i in range(16)]
        vops(h0, [(41, 1), (43, 3), (45, 2), (46, 3), (47, 1), (48, 1), (50, 3), (52, 2)])
        at(54, lambda: Q.wait(lg=[("rd", k+1, 1, 3)]))
        h1 = [(lambda i=i: h_op(Q, k+1, 1, i >> 2, i & 3)) for i in range(16)]
        vops(h1, [(54, 2), (56, 2), (57, 2), (58, 2), (59, 2), (60, 2), (61, 2), (62, 2)])
    if ld_u:
        for nu, g in enumerate((49, 51, 53, 55)):
            at(g, lambda nu=nu: u_load(Q, k+2, 1, nu))
    if extra:
        for g, fs in extra.items():
            G[g] += fs
    Q.wait(vm=[("raw", k+1), ("u", k, 0)])
    Q.raw("s_barrier")
    for g in range(64):
        j, nu, tb = g >> 4, (g >> 2) & 3, g & 3
        if nu & 1:
            tb = 3 - tb
        a = (u0, u1, u2, u2)[j] + 4*nu
        b = (c0, PP, c0, c1)[j] + 4*tb
        d = j*64 + nu*16 + tb*4
        Q.raw(f"v_mfma_f32_16x16x32_f16 {acc(d,4)}, {v(a,4)}, {v(b,4)}, {acc(d,4)}")
        for f in G[g]:
            f()


def gen_conv(A, conv, stamps):
    name = f"adm_conv{conv}_kernel"
    L = f"Lc{conv}"
    st = Stamps(stamps, conv)
    DIN, UOFF, SC = (D1, U1, SC1) if conv == 1 else (D2, U2, SC2)
    header(A, name)
    st.mark(A)
    A(f"s_cmp_ge_u32 s2, 256\ns_cbranch_scc1 {L}_exit")
    A("s_load_dwordx2 s[26:27], s[0:1], 88")
    if conv == 1:
        A("s_load_dwordx4 s[16:19], s[0:1], 48")
    else:
        A("s_load_dwordx2 s[4:5], s[0:1], 0\ns_load_dwordx2 s[22:23], s[0:1], 72")
    A("v_lshrrev_b32 v8, 6, v0\nv_and_b32 v0, 63, v0")
    A(f"v_readfirstlane_b32 s{S_W}, v8")
    A(f"s_and_b32 s{S_GRP}, s2, 7\ns_lshr_b32 s{S_IDX}, s2, 3\ns_lshr_b32 s{S_B}, s{S_GRP}, 2")
    A(f"s_and_b32 s{S_NB}, s{S_GRP}, 3\ns_lshl_b32 s{S_NB}, s{S_NB}, 1\ns_and_b32 s56, s{S_IDX}, 1\ns_add_u32 s{S_NB}, s{S_NB}, s56")
    A(f"s_lshr_b32 s{S_RB}, s{S_IDX}, 1")
    A("v_and_b32 v9, 15, v0\nv_lshrrev_b32 v10, 4, v0")
    A(f"v_lshlrev_b32 v{VDMA}, 4, v0\nv_add_u32 v{VDMA2}, 4096, v{VDMA}")
    A(f"s_cmp_eq_u32 s{S_RB}, 0\ns_cselect_b32 s56, {OOB:#x}, 0\nv_add_u32 v{VTOP}, s56, v{VDMA}")
    A(f"s_cmp_eq_u32 s{S_RB}, 15\ns_cselect_b32 s56, {OOB:#x}, 0\nv_add_u32 v{VBOT}, s56, v{VDMA2}")
    A(f"v_lshrrev_b32 v11, 2, v9\nv_lshlrev_b32 v11, 8, v11\nv_lshl_add_u32 v11, v10, 6, v11")
    A(f"v_and_b32 v12, 3, v9\nv_lshl_add_u32 v{VU}, v12, 4, v11")
    A(f"s_lshl_b32 s{S_DMA}, s{S_W}, 16\ns_lshl_b32 s56, s{S_RB}, 12\ns_add_u32 s{S_DMA}, s{S_DMA}, s56")
    A(f"s_mul_i32 s{S_M0}, s{S_W}, 6144")
    A(f"s_mul_i32 s{S_U0}, s{S_NB}, 786432\ns_mul_i32 s56, s{S_W}, 12288\ns_add_u32 s{S_U0}, s{S_U0}, s56")
    A(f"s_add_u32 s{S_U0}, s{S_U0}, {UOFF:#x}\ns_add_u32 s{S_U1}, s{S_U0}, 4096\ns_add_u32 s{S_U2}, s{S_U0}, 8192")
    A(f"s_lshl_b32 s56, s{S_B}, 22\ns_add_u32 s56, s56, {DIN - 1024:#x}")
    A("s_waitcnt lgkmcnt(0)")
    srd(A, SWS, 26, WS_BYTES)
    A(f"s_add_u32 s{SD}, s26, s56\ns_addc_u32 s{SD+1}, s27, 0\ns_mov_b32 s{SD+2}, {0x400000 + 1024:#x}\ns_mov_b32 s{SD+3}, 0x20000")

    Q = Seq()

    def dma_all(k):
        dma_m0(Q, k, 0); Q.raw("s_nop 0")
        for p in range(4):
            dma(Q, k, p)
        dma_m0(Q, k, 1); Q.raw("s_nop 0")
        dma(Q, k, 4); dma(Q, k, 5)
    dma_all(0)
    dma_all(1)
    for j in range(3):
        for nu in range(4):
            u_load(Q, 0, j, nu)
    Q.raw(f"s_xor_b32 s{S_M0}, s{S_M0}, 0x10000")
    dma_all(2)
    for j in range(2):
        for nu in range(4):
            u_load(Q, 1, j, nu)
    Q.raw(f"s_lshl_b32 s56, s{S_W}, 2\ns_lshr_b32 s57, 0x1210, s56\ns_and_b32 s57, s57, 15\ns_lshl_b32 s57, s57, 10")
    Q.raw(f"s_lshr_b32 s58, 0x3122, s56\ns_and_b32 s58, s58, 15\ns_lshl_b32 s58, s58, 10")
    Q.raw(f"v_mul_u32_u24 v11, 6144, v10\nv_lshl_add_u32 v11, v9, 4, v11")
    Q.raw(f"v_add_u32 v{VA}, s57, v11\nv_add_u32 v{VB}, s58, v11")
    Q.raw(f"s_mov_b32 s56, 0xbc00bc00\ns_cmp_eq_u32 s{S_W}, 1\ns_cselect_b32 s{S_SGN}, 0x3c003c00, s56")
    Q.raw(f"s_and_b32 s60, s{S_W}, 1\ns_lshr_b32 s61, s{S_W}, 1")
    Q.raw(f"s_lshl_b32 s62, s{S_NB}, 1\ns_add_u32 s62, s62, s60")
    Q.raw(f"s_lshl_b32 s63, s{S_RB}, 1\ns_add_u32 s63, s63, s61")
    Q.raw(f"v_lshlrev_b32 v248, 5, v10")
    Q.raw(f"s_lshl_b32 s64, s62, 7\ns_add_u32 s64, s64, {SC:#x}")
    if conv == 1:
        Q.raw(f"s_lshl_b32 s65, s62, 7\ns_lshl_b32 s56, s{S_B}, 11\ns_add_u32 s65, s65, s56\ns_add_u32 s65, s65, {EMB:#x}")
        Q.raw("s_lshl_b32 s56, s62, 6\nv_lshlrev_b32 v249, 4, v10\nv_add_u32 v249, s56, v249")
        Q.raw("v_lshlrev_b32 v250, 16, v10\nv_lshl_add_u32 v250, v9, 4, v250")
        Q.raw(f"s_lshl_b32 s66, s{S_B}, 22\ns_lshl_b32 s56, s62, 18\ns_add_u32 s66, s66, s56")
        Q.raw(f"s_lshl_b32 s56, s63, 11\ns_add_u32 s66, s66, s56\ns_add_u32 s66, s66, {D2:#x}")
    else:
        srdq = Asm(); srd(srdq, SX, 4, 0x800000); srd(srdq, SO, 22, 0x800000)
        Q.raw("\n".join(srdq.L))
        Q.raw("v_lshlrev_b32 v250, 16, v10\nv_lshl_add_u32 v250, v9, 3, v250")
        Q.raw(f"s_lshl_b32 s66, s{S_B}, 22\ns_lshl_b32 s56, s62, 18\ns_add_u32 s66, s66, s56")
        Q.raw(f"s_lshl_b32 s56, s63, 8\ns_add_u32 s66, s66, s56\ns_mov_b32 s67, s66")
    for i in range(256):
        Q.raw(f"v_accvgpr_write_b32 a{i}, 0")
    Q.wait(vm=[("raw", 0)])
    Q.raw("s_barrier")
    for par in range(2):
        for tb in range(4):
            raw_read(Q, 0, par, tb, 0); raw_read(Q, 0, par, tb, 1)
    for par in range(2):
        for tb in range(4):
            Q.wait(lg=[("rd", 0, par, tb)])
            for d in range(4):
                h_op(Q, 0, par, tb, d)
    Q.raw(f"s_mov_b32 s{S_CNT}, 7")
    A("\n".join(Q.out)); Q.out = []
    st.mark_wait(A)
    body = None
    for n in range(7):
        step(Q, 2*n)
        step(Q, 2*n + 1, {63: [lambda: Q.raw(f"s_sub_u32 s{S_CNT}, s{S_CNT}, 1\ns_cmp_lg_u32 s{S_CNT}, 0\ns_cbranch_scc1 {L}_loop")]})
        if body is None:
            body = Q.out
        assert Q.out == body, [(a, b) for a, b in zip(Q.out, body) if a != b]
        Q.out = []
    A(f".p2align 6\n{L}_loop:")
    A("\n".join(body))
    SCR, EMR, GR, BR, XR = 200, 208, 216, 220, 208
    ld = []
    for h in range(2):
        ld.append(f"buffer_load_dwordx4 {v(SCR+4*h,4)}, v248, s[{SWS}:{SWS+3}], s64 offen offset:{16*h}")
    if conv == 1:
        for h in range(2):
            ld.append(f"buffer_load_dwordx4 {v(EMR+4*h,4)}, v248, s[{SWS}:{SWS+3}], s65 offen offset:{16*h}")
        ld.append(f"global_load_dwordx4 {v(GR,4)}, v249, s[16:17]")
        ld.append(f"global_load_dwordx4 {v(BR,4)}, v249, s[18:19]")
        ld.append(f"s_mov_b32 s56, {ASC2:#x}\nbuffer_load_dword v251, off, s[{SWS}:{SWS+3}], s56")
    else:
        for kch in range(8):
            for rho in range(2):
                t = f"buffer_load_dwordx2 {v(XR + (rho*8 + kch)*2, 2)}, v250, s[{SX}:{SX+3}], s67 offen offset:{128*rho}"
                if rho == 1:
                    t += "\ns_add_u32 s67, s67, 8192"
                ld.append(t)
    gaps14 = [9, 11, 17, 19, 22, 26, 33, 35, 38, 42, 49, 51, 53, 55]
    gaps15 = [1, 3, 5, 7]
    ex14 = {g: [lambda t=t: Q.vmem(t, "ep")] for g, t in zip(gaps14, ld)}
    ex15 = {g: [lambda t=t: Q.vmem(t, "ep")] for g, t in zip(gaps15, ld[len(gaps14):])}
    step(Q, 14, ex14)
    step(Q, 15, ex15)
    A("\n".join(Q.out)); Q.out = []
    st.mark(A)

    VW, VR = 252, 253
    A(f"s_lshl_b32 s56, s{S_W}, 13\nv_add_u32 v{VW}, s56, v{VDMA}\nv_add_u32 v254, 0x10000, v{VW}")
    A(f"s_lshl_b32 s56, s{S_W}, 15\nv_add_u32 v{VR}, s56, v{VDMA}")
    RB, ZB = [8, 40], [72, 88]
    n = 0
    for dest in range(4):
        sg, nup = dest >> 1, dest & 1
        for nul in range(2):
            nu = 2*nup + nul
            R, Z = RB[n & 1], ZB[n & 1]
            n += 1
            m = lambda j, be, r=0: R + j*8 + be*4 + r
            for j in range(4):
                for be in range(2):
                    for r in range(4):
                        A(f"v_accvgpr_read_b32 v{m(j,be,r)}, a{j*64 + nu*16 + (2*sg + be)*4 + r}")
            if n > 2:
                A("s_waitcnt lgkmcnt(4)")
            for r in (0, 2):
                A(f"v_pk_add_f32 {v(Z+r,2)}, {v(m(1,0,r),2)}, {v(m(2,0,r),2)} {NEG1}")
                A(f"v_pk_add_f32 {v(Z+4+r,2)}, {v(m(1,0,r),2)}, {v(m(2,0,r),2)}")
                A(f"v_pk_add_f32 {v(Z+8+r,2)}, {v(m(1,1,r),2)}, {v(m(2,1,r),2)} {NEG1}")
                A(f"v_pk_add_f32 {v(Z+12+r,2)}, {v(m(1,1,r),2)}, {v(m(2,1,r),2)}")
            for r in (0, 2):
                A(f"v_pk_add_f32 {v(Z+r,2)}, {v(Z+r,2)}, {v(m(3,0,r),2)} {NEG1}")
                A(f"v_pk_add_f32 {v(Z+4+r,2)}, {v(Z+4+r,2)}, {v(m(0,0,r),2)} {NEG1}")
                A(f"v_pk_add_f32 {v(Z+8+r,2)}, {v(Z+8+r,2)}, {v(m(3,1,r),2)} {NEG1}")
                A(f"v_pk_add_f32 {v(Z+12+r,2)}, {v(Z+12+r,2)}, {v(m(0,1,r),2)} {NEG1}")
            for r in (0, 2):
                A(f"v_pk_add_f32 {v(Z+4+r,2)}, {v(Z+4+r,2)}, {v(m(0,1,r),2)}")
                A(f"v_pk_add_f32 {v(Z+8+r,2)}, {v(Z+8+r,2)}, {v(m(3,0,r),2)}")
            for r in range(4):
                A(f"v_add_f32_dpp v{Z+r}, v{m(3,1,r)}, v{Z+r} row_shr:1 row_mask:0xf bank_mask:0xf bound_ctrl:1")
            for r in range(4):
                A(f"v_add_f32_dpp v{Z+12+r}, v{m(0,0,r)}, v{Z+12+r} row_shl:1 row_mask:0xf bank_mask:0xf bound_ctrl:1")
            for q in (1, 2, 0, 3):
                A(f"ds_write_b128 v{VW if dest < 2 else 254}, {v(Z+4*q,4)} offset:{(dest & 1)*32768 + (nul*4 + q)*1024}")
    A("s_waitcnt lgkmcnt(0)\ns_barrier")
    st.mark(A)
    H = 104
    X = 8
    order = [(nul, q) for q in range(4) for nul in range(2)]

    def rd(n):
        nul, q = order[n]
        for i in range(4):
            A(f"ds_read_b128 {v(X + (n % 3)*16 + 4*i, 4)}, v{VR} offset:{i*8192 + (nul*4 + q)*1024}")
    if stamps:
        A("s_waitcnt lgkmcnt(0)")
    rd(0); rd(1)
    for n in range(8):
        if n + 2 < 8:
            rd(n + 2)
        A(f"s_waitcnt lgkmcnt({4*min(2, 7-n)})")
        nul, q = order[n]
        x = X + (n % 3)*16
        h0, h1 = H + q*8 + nul*4, H + 32 + q*8 + nul*4
        for r in (0, 2):
            A(f"v_pk_add_f32 {v(h0+r,2)}, {v(x+r,2)}, {v(x+4+r,2)}")
            A(f"v_pk_add_f32 {v(h1+r,2)}, {v(x+4+r,2)}, {v(x+8+r,2)} {NEG1}")
        for r in (0, 2):
            A(f"v_pk_add_f32 {v(h0+r,2)}, {v(h0+r,2)}, {v(x+8+r,2)}")
            A(f"v_pk_add_f32 {v(h1+r,2)}, {v(h1+r,2)}, {v(x+12+r,2)} {NEG1}")
    A("s_waitcnt vmcnt(0)")
    if conv == 1:
        P = 72
        for i in range(8):
            A(f"v_mov_b32 v{P+i}, 0")
        for p in range(8):
            for k in range(0, 8, 2):
                x = H + p*8 + k
                A(f"v_pk_fma_f32 {v(x,2)}, {v(x,2)}, {v(SCR+k,2)}, {v(EMR+k,2)}")
            for k in range(0, 8, 2):
                x = H + p*8 + k
                a = P + (k & 2)
                A(f"v_pk_add_f32 {v(a,2)}, {v(a,2)}, {v(x,2)}")
                A(f"v_pk_fma_f32 {v(a+4,2)}, {v(x,2)}, {v(x,2)}, {v(a+4,2)}")
        A(f"v_pk_add_f32 {v(P,2)}, {v(P,2)}, {v(P+2,2)}")
        A(f"v_pk_add_f32 {v(P+4,2)}, {v(P+4,2)}, {v(P+6,2)}")
        A(f"v_add_f32 v{P}, v{P}, v{P+1}\nv_add_f32 v{P+1}, v{P+4}, v{P+5}")
        wave_reduce(A, [P, P+1])
        A(f"v_cmp_eq_u32 vcc, 63, v0\nv_mov_b32 v88, {OOB:#x}\nv_and_b32 v{P+1}, 0x7fffffff, v{P+1}")
        A(f"s_lshl_b32 s57, s{S_GRP}, 10\ns_add_u32 s57, s57, {STAT2:#x}")
        A(f"s_lshl_b32 s56, s{S_IDX}, 2\ns_add_u32 s56, s56, s{S_W}\ns_lshl_b32 s56, s56, 3\ns_add_u32 s56, s56, s57")
        A("v_cndmask_b32 v88, v88, 0, vcc")
        A(f"buffer_store_dwordx2 {v(P,2)}, v88, s[{SWS}:{SWS+3}], s56 offen sc0 sc1")
        st.mark(A)
        GA, GB, A1, B1, A2, B2, TT, OUT = 8, 16, 24, 32, 40, 48, 56, 168
        for d in range(4):
            unpack_bf16(A, GR + d, GA + 2*d, GA + 2*d + 1)
            unpack_bf16(A, BR + d, GB + 2*d, GB + 2*d + 1)
        A(f"s_mov_b32 s58, {SPIN_MAX}")
        A(f"{L}_poll:")
        A(f"buffer_load_dwordx4 {v(P+4,4)}, v{VDMA}, s[{SWS}:{SWS+3}], s57 offen sc0 sc1")
        A(f"s_waitcnt vmcnt(0)\nv_or_b32 v{P+8}, v{P+5}, v{P+7}\nv_cmp_gt_i32 vcc, 0, v{P+8}")
        A(f"s_nop 1\ns_cmp_eq_u64 vcc, 0\ns_cbranch_scc1 {L}_ready")
        A(f"s_sleep 2\ns_sub_u32 s58, s58, 1\ns_cmp_lg_u32 s58, 0\ns_cbranch_scc1 {L}_poll")
        A(f"{L}_ready:")
        A(f"v_pk_add_f32 {v(P,2)}, {v(P+4,2)}, {v(P+6,2)}")
        A("s_nop 0")
        wave_reduce(A, [P, P+1])
        A(f"s_nop 0\nv_readlane_b32 s56, v{P}, 63\nv_readlane_b32 s57, v{P+1}, 63\ns_nop 1")
        A(f"v_mov_b32 v{P}, s56\nv_mov_b32 v{P+1}, s57")
        st.mark(A)
        gn_coeffs(A, P, P+1, GA, GB, A1, B1, A2, B2, "v251", TT)
        for p in range(8):
            o = OUT + 4*p
            silu8(A, H + p*8, A1, B1, A2, B2, TT + 8*(p & 1), o)
            A(f"buffer_store_dwordx4 {v(o,4)}, v250, s[{SWS}:{SWS+3}], s66 offen offset:{256*p}")
    else:
        XF, OUT = 8, 168
        for k in range(0, 8, 2):
            for rho in range(2):
                for kk in (k, k+1):
                    r = XR + (rho*8 + kk)*2
                    unpack_bf16(A, r, XF + (rho*4 + 0)*8 + kk, XF + (rho*4 + 1)*8 + kk)
                    unpack_bf16(A, r+1, XF + (rho*4 + 2)*8 + kk, XF + (rho*4 + 3)*8 + kk)
            for p in range(8):
                x = H + p*8 + k
                A(f"v_pk_fma_f32 {v(x,2)}, {v(x,2)}, {v(SCR+k,2)}, {v(XF + p*8 + k,2)}")
            for kk in (k, k+1):
                for rho in range(2):
                    o = OUT + (rho*8 + kk)*2
                    h = H + rho*32 + kk
                    A(f"v_cvt_pk_bf16_f32 v{o}, v{h}, v{h+8}")
                    A(f"v_cvt_pk_bf16_f32 v{o+1}, v{h+16}, v{h+24}")
                    A(f"buffer_store_dwordx2 {v(o,2)}, v250, s[{SO}:{SO+3}], s66 offen offset:{128*rho}")
                A("s_add_u32 s66, s66, 8192")
    if stamps:
        A("s_waitcnt vmcnt(0)")
        st.mark(A)
    st.flush(A, SWS, S_W, 8)
    A(f"{L}_exit:\ns_endpgm")
    descriptor(A, name, 512, 256)


HEAD = """; ADM ResBlock: GN+SiLU -> conv3x3 -> +emb -> GN+SiLU -> conv3x3 -> +x   (B=2, C=512, 64x64, bf16 in/out)
; @launch kernel=adm_prep_kernel grid=(264,1,1) block=(256,1,1) lds=16384
; @launch kernel=adm_conv1_kernel grid=(256,1,1) block=(256,1,1) lds=131072
; @launch kernel=adm_conv2_kernel grid=(256,1,1) block=(256,1,1) lds=131072
.amdgcn_target "amdgcn-amd-amdhsa--gfx950"
"""


def generate(stamps=False):
    A = Asm()
    gen_prep(A, stamps)
    gen_conv(A, 1, stamps)
    gen_conv(A, 2, stamps)
    return HEAD + A.text()


if __name__ == "__main__":
    out = sys.argv[1]
    open(out, "w").write(generate(stamps="stamps" in sys.argv[2:]))
```

```python
import sys

SC1, SC2, EMB = 0x1000, 0x2000, 0x3000
ASC = 0x4000
STAT1, STAT2 = 0x300000, 0x200000
STAMP = 0x100000
D1, D2 = 0x1000000, 0x1800000
U1, U2 = 0x2000000, 0x2800000
WS_BYTES = 0x10000000
OOB = 0x40000000
LOG2E = 0x3fb8aa3b
NLOG2E = 0xbfb8aa3b
SPIN_MAX = 400000
TAGSTEP = 0x9e3779b9
S_MASK = 70
OPT = dict(st="sc1", sto="sc1", hmode="wg", gs=128, grps=4352, poller="one", delay=10, slp=4, hsc="sc1",
           w_in_k1=1, own=1, wfirst=0, ldx="", delay1=0, wdelay=0, pf=0, tlb=0, trimU=0, trimD=0, ldu="", ldd="", morder=0, align=1, wpos=(2, 10, 18, 26))


class Asm:
    def __init__(self):
        self.L = []

    def __call__(self, s):
        for line in s.split("\n"):
            line = line.strip()
            if line:
                self.L.append(line if line.endswith(":") or line.startswith(".") or line.startswith(";") else "    " + line)

    def text(self):
        return "\n".join(self.L) + "\n"


def v(a, n=1):
    return f"v{a}" if n == 1 else f"v[{a}:{a+n-1}]"


def acc(a, n=1):
    return f"a{a}" if n == 1 else f"a[{a}:{a+n-1}]"


def s(a, n=1):
    return f"s{a}" if n == 1 else f"s[{a}:{a+n-1}]"


NEG1 = "neg_lo:[0,1] neg_hi:[0,1]"


def srd(A, d, lo, size):
    A(f"s_mov_b32 s{d}, s{lo}\ns_mov_b32 s{d+1}, s{lo+1}\ns_mov_b32 s{d+2}, {size:#x}\ns_mov_b32 s{d+3}, 0x20000")


def wave_reduce(A, regs, op="v_add_f32"):
    steps = ["row_shr:1", "row_shr:2", "row_shr:4", "row_shr:8"]
    pad = max(0, 3 - len(regs))
    for st in steps:
        if pad:
            A(f"s_nop {pad-1}")
        for r in regs:
            A(f"{op}_dpp v{r}, v{r}, v{r} {st} row_mask:0xf bank_mask:0xf bound_ctrl:1")
    for st, m in (("row_bcast:15", "0xa"), ("row_bcast:31", "0xc")):
        if pad:
            A(f"s_nop {pad-1}")
        for r in regs:
            A(f"{op}_dpp v{r}, v{r}, v{r} {st} row_mask:{m} bank_mask:0xf")


def code_touch(A, start, end, line, va, tag, sp):
    A(f"s_getpc_b64 s[{sp}:{sp+1}]\n{tag}:")
    A(f"s_add_u32 s{sp}, s{sp}, {start}-{tag}\ns_addc_u32 s{sp+1}, s{sp+1}, {'-1' if start.endswith('+0') else '0'}")
    A(f"v_lshlrev_b32 v{va}, 7, v{line}\nv_min_u32 v{va}, {end}-{start}-4, v{va}")
    A(f"v_mov_b32 v{va+1}, s{sp+1}\nv_add_co_u32 v{va}, vcc, s{sp}, v{va}\ns_nop 1\nv_addc_co_u32 v{va+1}, vcc, 0, v{va+1}, vcc")


def header(A, name):
    A(f".text\n.globl {name}\n.p2align 8\n.type {name},@function\n{name}:")


def descriptor(A, name, nvgpr, accoff):
    A(f""".section .rodata,"a"
.p2align 6
.amdhsa_kernel {name}
.amdhsa_next_free_vgpr {nvgpr}
.amdhsa_next_free_sgpr 102
.amdhsa_accum_offset {accoff}
.amdhsa_group_segment_fixed_size 0
.amdhsa_kernarg_size 96
.amdhsa_user_sgpr_count 2
.amdhsa_user_sgpr_kernarg_segment_ptr 1
.amdhsa_system_sgpr_workgroup_id_x 1
.amdhsa_float_denorm_mode_32 3
.end_amdhsa_kernel""")


class Stamps:
    def __init__(self, on, kid):
        self.on, self.kid, self.n = on, kid, 0

    def mark(self, A):
        if not self.on:
            return
        assert self.n < 7
        A(f"s_memrealtime s[{72+4*self.n}:{73+4*self.n}]\ns_memtime s[{74+4*self.n}:{75+4*self.n}]")
        self.n += 1

    def mark_wait(self, A):
        if not self.on:
            return
        self.mark(A)
        A("s_waitcnt lgkmcnt(0)")

    def flush(self, A, sws, swave, vt):
        if not self.on:
            return
        A("s_waitcnt lgkmcnt(0)")
        A(f"s_lshl_b32 s100, s2, 2\ns_add_u32 s100, s100, s{swave}\ns_lshl_b32 s100, s100, 6")
        A(f"s_add_u32 s100, s100, {STAMP + self.kid*0x20000:#x}")
        A(f"v_mov_b32 v{vt+2}, 0")
        for i in range(self.n):
            A(f"v_mov_b32 v{vt}, s{72+4*i}\nv_mov_b32 v{vt+1}, s{74+4*i}")
            A(f"buffer_store_dwordx2 v[{vt}:{vt+1}], v{vt+2}, s[{sws}:{sws+3}], s100 offen offset:{8*i}")
            A("s_nop 1")


def gn_coeffs(A, vS1, vS2, vG, vB, vA1, vB1, vA2, vB2, asc, t):
    A(f"v_mul_f32 v{t}, 0x36000000, v{vS1}")
    A(f"v_mul_f32 v{t+1}, 0x36000000, v{vS2}")
    A(f"v_fma_f32 v{t+1}, -v{t}, v{t}, v{t+1}")
    A(f"v_max_f32 v{t+1}, 0, v{t+1}")
    A(f"v_add_f32 v{t+1}, 0x3727c5ac, v{t+1}")
    A(f"v_rsq_f32 v{t+1}, v{t+1}")
    A("s_nop 0")
    for k in range(8):
        A(f"v_mul_f32 v{vG+k}, v{vG+k}, v{t+1}")
    for k in range(8):
        A(f"v_fma_f32 v{vB+k}, -v{t}, v{vG+k}, v{vB+k}")
    for k in range(8):
        A(f"v_mul_f32 v{vA1+k}, {NLOG2E:#x}, v{vG+k}")
        A(f"v_mul_f32 v{vB1+k}, {NLOG2E:#x}, v{vB+k}")
        A(f"v_mul_f32 v{vA2+k}, {asc}, v{vG+k}")
        A(f"v_mul_f32 v{vB2+k}, {asc}, v{vB+k}")


def silu8(A, x, vA1, vB1, vA2, vB2, t, out):
    for k in range(0, 8, 2):
        A(f"v_pk_fma_f32 {v(t+k,2)}, {v(x+k,2)}, {v(vA1+k,2)}, {v(vB1+k,2)}")
    for k in range(8):
        A(f"v_exp_f32 v{t+k}, v{t+k}")
    for k in range(0, 8, 2):
        A(f"v_pk_fma_f32 {v(x+k,2)}, {v(x+k,2)}, {v(vA2+k,2)}, {v(vB2+k,2)}")
    for k in range(0, 8, 2):
        A(f"v_pk_add_f32 {v(t+k,2)}, {v(t+k,2)}, 1.0 op_sel_hi:[1,0]")
    for k in range(8):
        A(f"v_rcp_f32 v{t+k}, v{t+k}")
    for k in range(0, 8, 2):
        A(f"v_pk_mul_f32 {v(x+k,2)}, {v(x+k,2)}, {v(t+k,2)}")
    for k in range(0, 8, 2):
        A(f"v_cvt_pk_f16_f32 v{out+k//2}, v{x+k}, v{x+k+1}")
    trim(A, out, 4, OPT["trimD"])


def trim(A, r, n, bits):
    if bits:
        h, m = 1 << (bits - 1), 0xffff & ~((1 << bits) - 1)
        for d in range(n):
            A(f"v_add_u32 v{r+d}, {h*0x10001:#x}, v{r+d}")
        for d in range(n):
            A(f"v_and_b32 v{r+d}, {m*0x10001:#x}, v{r+d}")


def unpack_bf16(A, src, lo, hi):
    A(f"v_lshlrev_b32 v{lo}, 16, v{src}")
    A(f"v_and_b32 v{hi}, s{S_MASK}, v{src}")


def act_exp(A, raw, t, out, s_m60):
    A(f"v_mov_b32 v{t}, 0")
    for d in range(8):
        unpack_bf16(A, raw + d, t+1, t+2)
        A(f"v_max3_f32 v{t}, |v{t+1}|, |v{t+2}|, v{t}")
    wave_reduce(A, [t], "v_max_f32")
    A(f"v_frexp_exp_i32_f32 v{t}, v{t}\ns_nop 0\nv_readlane_b32 s{out}, v{t}, 63\ns_nop 1")
    A(f"s_max_i32 s{out}, s{out}, {s_m60}\ns_min_i32 s{out}, s{out}, 60")


WROW = 9280


def wjob_loads(v16, wave, oq, so, srd_w, lds):
    pre = (f"s_lshl_b32 s{so}, s{oq}, 2\ns_add_u32 s{so}, s{so}, s{wave}\ns_mul_i32 s{so}, s{so}, 9216\n"
           f"s_mul_i32 s{so+1}, s{wave}, {WROW}\ns_add_u32 s{so+1}, s{so+1}, {lds}")
    ld = []
    for k in range(9):
        t = ""
        if k in (4, 8):
            t += f"s_add_u32 s{so+1}, s{so+1}, 4096\n"
        if k in (0, 4, 8):
            t += f"s_mov_b32 m0, s{so+1}\n"
            t += f"s_add_u32 s{so}, s{so}, 4096\n" if k else "s_nop 0\n"
        ld.append(t + f"buffer_load_dwordx4 v{v16}, s[{srd_w}:{srd_w+3}], s{so} offen offset:{1024*(k & 3)} {OPT['ldx']} lds")
    return pre, ld


def wjob(A, lane, wave, oq, sws, ubase, scbase, G, AX, RW, K, wlds, lds, sc0, mid=None):
    M, T = K, K + 12

    def greg(e):
        return G + (e % 9)*8 + e//9
    A(f"v_and_b32 v{M}, 3, v{lane}\nv_lshrrev_b32 v{M+1}, 2, v{lane}")
    A(f"v_mul_u32_u24 v{M}, {WROW}, v{M}\nv_mul_u32_u24 v{M+1}, 144, v{M+1}")
    A(f"s_mul_i32 s{sc0}, s{wave}, 2304\ns_add_u32 s{sc0}, s{sc0}, {wlds}\nv_add3_u32 v{M+1}, v{M}, v{M+1}, s{sc0}")
    for k in range(9):
        A(f"ds_read_b128 {v(RW+4*k,4)}, v{M+1} offset:{16*k}")
    A(f"v_mov_b32 v{M}, 0")
    for k in range(9):
        if k in (0, 1, 3, 6):
            A(f"s_waitcnt lgkmcnt({(8, 6, 0, 3, 0, 0, 0)[k]})")
        for d in range(4):
            e = 8*k + 2*d
            unpack_bf16(A, RW + 4*k + d, greg(e), greg(e+1))
        for d in range(4):
            e = 8*k + 2*d
            A(f"v_max3_f32 v{M}, |v{greg(e)}|, |v{greg(e+1)}|, v{M}")
    wave_reduce(A, [M], "v_max_f32")
    A(f"s_lshl_b32 s{sc0}, s{wave}, 2\ns_add_u32 s{sc0}, s{sc0}, {lds:#x}\nv_mov_b32 v{M+1}, s{sc0}")
    A("s_mov_b32 exec_lo, 0\ns_mov_b32 exec_hi, 0x80000000")
    A(f"ds_write_b32 v{M+1}, v{M}")
    A(f"s_mov_b64 exec, -1\nv_mov_b32 v{M+1}, {lds:#x}")
    a, b = sc0, sc0 + 1
    A(f"s_lshr_b32 s{a}, s{oq}, 4\ns_mul_i32 s{a}, s{a}, 786432")
    A(f"s_bfe_u32 s{b}, s{oq}, 0x10003\ns_lshl_b32 s{b}, s{b}, 11\ns_add_u32 s{a}, s{a}, s{b}")
    A(f"s_and_b32 s{b}, s{oq}, 1\ns_lshl_b32 s{b}, s{b}, 10\ns_add_u32 s{a}, s{a}, s{b}")
    A(f"s_bfe_u32 s{b}, s{oq}, 0x20001\ns_lshl_b32 s{b}, s{b}, 8\ns_add_u32 s{a}, s{a}, s{b}")
    A(f"s_mul_i32 s{b}, s{wave}, {4*49152}\ns_add_u32 s{a}, s{a}, s{b}\ns_add_u32 s{a}, s{a}, {ubase}")
    A(f"s_lshl_b32 s{b}, s{oq}, 4\ns_add_u32 s{b}, s{b}, {scbase}")
    A("s_waitcnt lgkmcnt(0)\ns_barrier")
    A(f"ds_read_b128 {v(M+4,4)}, v{M+1}")
    VS = M + 2
    A(f"v_lshrrev_b32 v{VS}, 4, v{lane}\nv_mul_u32_u24 v{VS}, 49152, v{VS}\nv_and_b32 v{M+3}, 15, v{lane}\nv_lshl_add_u32 v{VS}, v{M+3}, 4, v{VS}")
    A(f"v_lshlrev_b32 v{M+3}, 2, v{lane}\nv_cmp_gt_u32 vcc, 4, v{lane}\nv_mov_b32 v{M+1}, {OOB:#x}\nv_mov_b32 v{M}, 60")
    A(f"v_cndmask_b32 v{M+3}, v{M+1}, v{M+3}, vcc")
    A("s_waitcnt lgkmcnt(0)")
    A(f"v_max3_f32 v{M+4}, v{M+4}, v{M+5}, v{M+6}\nv_max_f32 v{M+4}, v{M+4}, v{M+7}")
    A(f"v_frexp_exp_i32_f32 v{M+4}, v{M+4}\nv_min_i32 v{M+4}, v{M+4}, v{M}\nv_max_i32 v{M+4}, 0xffffffc4, v{M+4}")
    A(f"v_add_u32 v{M}, 119, v{M+4}\nv_lshlrev_b32 v{M}, 23, v{M}")
    A(f"buffer_store_dword v{M}, v{M+3}, s[{sws}:{sws+3}], s{b} offen {OPT['st']}")
    S, S2, S4, HF = M + 4, M + 6, M + 8, M + 10
    A(f"v_sub_u32 v{S}, 135, v{S}\nv_lshlrev_b32 v{S}, 23, v{S}\nv_mov_b32 v{S+1}, v{S}")
    A(f"v_mul_f32 v{S2}, 0.5, v{S}\nv_mul_f32 v{S2+1}, 0.5, v{S}\nv_mul_f32 v{S4}, 0.5, v{S2}\nv_mul_f32 v{S4+1}, 0.5, v{S2}")
    A(f"v_mov_b32 v{HF}, 0.5\nv_mov_b32 v{HF+1}, 0.5")
    N3 = "neg_lo:[0,0,1] neg_hi:[0,0,1]"
    for col in range(3):
        sc, sch = (S2, S4) if col == 1 else (S, S2)
        for cp in range(0, 8, 2):
            g0, g1, g2 = G + col*8 + cp, G + (3+col)*8 + cp, G + (6+col)*8 + cp
            A(f"v_pk_mul_f32 {v(g0,2)}, {v(g0,2)}, {v(sc,2)}")
            A(f"v_pk_mul_f32 {v(g2,2)}, {v(g2,2)}, {v(sc,2)}")
            A(f"v_pk_mul_f32 {v(g1,2)}, {v(g1,2)}, {v(sch,2)}")
            A(f"v_pk_add_f32 {v(T+cp,2)}, {v(g0,2)}, {v(g2,2)}")
        for cp in range(0, 8, 2):
            g1, a2 = G + (3+col)*8 + cp, AX + col*8 + cp
            A(f"v_pk_fma_f32 {v(a2,2)}, {v(T+cp,2)}, {v(HF,2)}, {v(g1,2)} {N3}")
            A(f"v_pk_fma_f32 {v(g1,2)}, {v(T+cp,2)}, {v(HF,2)}, {v(g1,2)}")
    if mid:
        mid()
    rowb = [G, G + 24, AX, G + 48]
    for i in range(4):
        r = rowb[i]
        for cp in range(0, 8, 2):
            A(f"v_pk_add_f32 {v(T+cp,2)}, {v(r+cp,2)}, {v(r+16+cp,2)}")
        for cp in range(0, 8, 2):
            A(f"v_pk_fma_f32 {v(r+cp,2)}, {v(T+cp,2)}, {v(HF,2)}, {v(r+8+cp,2)}")
            A(f"v_pk_fma_f32 {v(r+8+cp,2)}, {v(T+cp,2)}, {v(HF,2)}, {v(r+8+cp,2)} {N3}")
        for j, src in enumerate((r+16, r, r+8)):
            o = RW + (i*3 + j)*4
            for d in range(4):
                A(f"v_cvt_pk_f16_f32 v{o+d}, v{src+2*d}, v{src+2*d+1}")
            trim(A, o, 4, OPT["trimU"])
            A(f"buffer_store_dwordx4 {v(o,4)}, v{VS}, s[{sws}:{sws+3}], s{a} offen {OPT['st']}")
            A(f"s_add_u32 s{a}, s{a}, 4096")
        if OPT["own"] and i < 3:
            A(f"s_xor_b32 s{a}, s{a}, 2048")


def gen_prep(A, stamps):
    name = "adm_prep_kernel"
    NW = 128*OPT["w_in_k1"]
    st = Stamps(stamps, 0)
    header(A, name)
    st.mark(A)
    A(f"s_cmp_ge_u32 s2, {264 + NW}\ns_cbranch_scc1 Lp_exit")
    A("s_load_dwordx16 s[4:19], s[0:1], 0")
    A("s_load_dwordx8 s[20:27], s[0:1], 64")
    if OPT["wfirst"]:
        A(f"s_add_u32 s44, s2, 256\ns_sub_u32 s2, s2, {NW + 8}\ns_cselect_b32 s2, s44, s2")
    A("v_lshrrev_b32 v1, 6, v0\nv_and_b32 v2, 63, v0")
    A("v_readfirstlane_b32 s3, v1")
    A(f"s_mov_b32 s{S_MASK}, 0xffff0000")
    SWS, SX, SW = 28, 32, 36
    A("s_cmp_ge_u32 s2, 256\ns_cbranch_scc1 Lp_notx")
    A("s_and_b32 s45, s2, 7\ns_lshr_b32 s46, s2, 3")
    A("s_lshl_b32 s47, s45, 4\ns_lshr_b32 s48, s46, 1\ns_add_u32 s47, s47, s48")
    A("s_and_b32 s48, s46, 1\ns_lshl_b32 s48, s48, 2\ns_add_u32 s48, s48, s3")
    A("s_lshl_b32 s49, s47, 16\ns_lshl_b32 s50, s48, 10\ns_add_u32 s49, s49, s50")
    A("s_and_b32 s50, s47, 63\ns_lshl_b32 s50, s50, 4")
    A(f"s_mul_i32 s62, s45, {OPT['grps']}\ns_add_u32 s62, s62, {STAT1:#x}")
    A(f"s_add_u32 s63, s62, {32*128}")
    XF, RX, GBR, P = 8, 72, 104, 112
    npf = int(OPT["pf"] > 0) + 3*int(OPT["tlb"] > 0)
    A("v_lshlrev_b32 v3, 3, v2\nv_lshlrev_b32 v4, 4, v2")
    A("s_waitcnt lgkmcnt(0)")
    srd(A, SX, 4, 0x800000)
    for k in range(8):
        for it in range(2):
            r = RX + (it*8 + k)*2
            A(f"buffer_load_dwordx2 {v(r,2)}, v3, s[{SX}:{SX+3}], s49 offen offset:{512*it} {OPT['ldx']}")
        if k < 7:
            A("s_add_u32 s49, s49, 8192")
    A(f"global_load_dwordx4 {v(GBR,4)}, v4, s[8:9]\nglobal_load_dwordx4 {v(GBR+4,4)}, v4, s[10:11]")
    if OPT["pf"]:
        A("s_lshl_b32 s64, s46, 2\ns_add_u32 s64, s64, s3\nv_and_b32 v146, 3, v2\nv_lshl_add_u32 v146, v146, 7, s64")
        code_touch(A, "Lp_pf", "Lcode_end", 146, 144, "Lp_pc", 64)
        A("global_load_dword v0, v[144:145], off\nLp_pf:")
    A("s_load_dwordx4 s[52:55], s[8:9], s50\ns_load_dwordx4 s[56:59], s[10:11], s50")
    A("s_load_dword s61, s[26:27], s63")
    srd(A, SWS, 26, WS_BYTES)
    if OPT["tlb"]:
        sh = OPT["tlb"]
        srd(A, 36, 22, 0x800000)
        srd(A, 40, 20, 512*9216)
        A(f"s_lshl_b32 s64, s46, 2\ns_add_u32 s64, s64, s3\ns_and_b32 s64, s64, {(1 << (21 - sh)) - 1}\ns_lshl_b32 s64, s64, {sh}")
        A(f"v_lshlrev_b32 v5, 21, v2\nv_min_u32 v6, 23, v2\nv_lshlrev_b32 v6, 21, v6")
        A(f"buffer_load_dword v0, v6, s[{SWS}:{SWS+3}], s64 offen")
        A("buffer_load_dword v0, v5, s[36:39], s64 offen\nbuffer_load_dword v0, v5, s[40:43], s64 offen")
    for i in range(8):
        A(f"v_mov_b32 v{P+i}, 0")
    A(f"s_lshl_b32 s64, s3, 3\nv_mov_b32 v5, s64\nv_mov_b32 v6, 0")
    A(f"v_cmp_eq_u32 vcc, 63, v2\nv_mov_b32 v7, {OOB:#x}\nv_lshlrev_b32 v3, 7, v2")
    A("v_cndmask_b32 v4, v7, 0, vcc")
    A("v_cmp_gt_u32 vcc, 32, v2\ns_lshl_b32 s64, s46, 7\ns_add_u32 s64, s64, s62")
    A("v_cndmask_b32 v3, v7, v3, vcc")
    for k in range(0, 8, 2):
        A(f"s_waitcnt vmcnt({14 + npf - 2*k})")
        for kk in (k, k+1):
            for it in range(2):
                r = RX + (it*8 + kk)*2
                unpack_bf16(A, r, XF + (it*4 + 0)*8 + kk, XF + (it*4 + 1)*8 + kk)
                unpack_bf16(A, r+1, XF + (it*4 + 2)*8 + kk, XF + (it*4 + 3)*8 + kk)
        for p in range(8):
            x = XF + p*8 + k
            a = P + 2*(p & 1)
            A(f"v_pk_add_f32 {v(a,2)}, {v(a,2)}, {v(x,2)}")
            A(f"v_pk_fma_f32 {v(a+4,2)}, {v(x,2)}, {v(x,2)}, {v(a+4,2)}")
    A(f"v_pk_add_f32 {v(P,2)}, {v(P,2)}, {v(P+2,2)}")
    A(f"v_pk_add_f32 {v(P+4,2)}, {v(P+4,2)}, {v(P+6,2)}")
    A(f"v_add_f32 v{P}, v{P}, v{P+1}\nv_add_f32 v{P+1}, v{P+4}, v{P+5}")
    wave_reduce(A, [P, P+1])
    A("s_mov_b32 exec_lo, 0\ns_mov_b32 exec_hi, 0x80000000")
    A(f"ds_write_b64 v5, {v(P,2)}")
    A("s_mov_b64 exec, -1\ns_waitcnt lgkmcnt(0)\ns_barrier")
    A(f"s_add_u32 s61, s61, {TAGSTEP:#x}")
    A("s_cmp_lg_u32 s3, 0\ns_cbranch_scc1 Lp_nopub")
    A(f"ds_read_b128 {v(P,4)}, v6\nds_read_b128 {v(P+4,4)}, v6 offset:16\ns_waitcnt lgkmcnt(0)")
    A(f"v_pk_add_f32 {v(P,2)}, {v(P,2)}, {v(P+2,2)}\nv_pk_add_f32 {v(P+4,2)}, {v(P+4,2)}, {v(P+6,2)}")
    A(f"v_add_f32 v{P}, v{P}, v{P+4}\nv_add_f32 v{P+2}, v{P+1}, v{P+5}\nv_mov_b32 v{P+1}, s61\nv_mov_b32 v{P+3}, s61")
    A(f"buffer_store_dwordx4 {v(P,4)}, v4, s[{SWS}:{SWS+3}], s64 offen sc1")
    A("Lp_nopub:")
    st.mark(A)
    GA, GB, A1, B1, A2, B2, TT, OUT = 72, 80, 88, 96, 120, 128, 136, 152
    A("s_waitcnt vmcnt(1)") if False else None
    A(f"s_cmp_eq_u32 s3, 0\ns_cbranch_scc1 Lp_w1\ns_waitcnt vmcnt({npf})\nLp_w1:\ns_waitcnt vmcnt({1 + npf})")
    act_exp(A, GBR, TT, 65, "0xffffffc4")
    A("s_sub_u32 s65, 130, s65\ns_lshl_b32 s65, s65, 23")
    for d in range(4):
        A(f"v_mov_b32 v{TT}, s{52+d}\nv_mov_b32 v{TT+1}, s{56+d}")
        unpack_bf16(A, TT, GA + 2*d, GA + 2*d + 1)
        unpack_bf16(A, TT+1, GB + 2*d, GB + 2*d + 1)
    A(f"s_lshl_b32 s66, s47, 16\ns_lshl_b32 s67, s48, 13\ns_add_u32 s66, s66, s67\ns_add_u32 s66, s66, {D1:#x}")
    A("v_lshrrev_b32 v1, 4, v2\nv_lshlrev_b32 v1, 10, v1\nv_and_b32 v5, 15, v2\nv_lshl_add_u32 v1, v5, 4, v1")
    A("s_cmp_lg_u32 s3, 0\ns_cbranch_scc1 Lp_join")
    A(f"s_mov_b32 s67, {SPIN_MAX}")
    if OPT["delay1"]:
        A(f"s_sleep {OPT['delay1']}")
    A("Lp_poll:")
    A(f"buffer_load_dwordx4 {v(P+4,4)}, v3, s[{SWS}:{SWS+3}], s62 offen sc1")
    A(f"s_waitcnt vmcnt(0)\nv_cmp_ne_u32 vcc, s61, v{P+5}\nv_cmp_ne_u32 s[68:69], s61, v{P+7}\ns_nop 1")
    A("s_or_b32 s68, s68, vcc_lo\ns_cbranch_scc0 Lp_ready")
    A(f"s_sleep {OPT['slp']}\ns_sub_u32 s67, s67, 1\ns_cmp_lg_u32 s67, 0\ns_cbranch_scc1 Lp_poll")
    A("Lp_ready:")
    A(f"v_mov_b32 v{P+5}, v{P+6}\ns_nop 0")
    wave_reduce(A, [P+4, P+5])
    A("s_mov_b32 exec_lo, 0\ns_mov_b32 exec_hi, 0x80000000")
    A(f"ds_write_b64 v6, {v(P+4,2)} offset:64")
    A("s_mov_b64 exec, -1")
    A("s_cmp_lg_u32 s46, 0\ns_cbranch_scc1 Lp_nogen")
    A(f"buffer_store_dword v{P+1}, v4, s[{SWS}:{SWS+3}], s63 offen sc1")
    A("Lp_nogen:\ns_waitcnt lgkmcnt(0)")
    A("Lp_join:\ns_barrier")
    A(f"ds_read_b64 {v(P+4,2)}, v6 offset:64\ns_waitcnt lgkmcnt(0)")
    st.mark(A)
    gn_coeffs(A, P+4, P+5, GA, GB, A1, B1, A2, B2, "s65", TT)
    for it in range(2):
        for q in range(4):
            p = it*4 + q
            o = OUT + 4*(p & 3)
            silu8(A, XF + p*8, A1, B1, A2, B2, TT + 8*(p & 1), o)
            A(f"buffer_store_dwordx4 {v(o,4)}, v1, s[{SWS}:{SWS+3}], s66 offen offset:{256*q} {OPT['st']}")
        if it == 0:
            A("s_add_u32 s66, s66, 4096")
    st.mark(A)
    if stamps:
        A("s_waitcnt vmcnt(0)")
        st.mark(A)
    st.flush(A, SWS, 3, 8)
    A("Lp_exit:\ns_endpgm")

    A("Lp_notx:")
    A(f"s_cmp_ge_u32 s2, {256 + NW}\ns_cbranch_scc1 Lp_emb")
    st.n = 1
    A("s_sub_u32 s51, s2, 256\ns_lshr_b32 s44, s51, 7\ns_and_b32 s51, s51, 127")
    pre, lds_ = wjob_loads(3, 3, 51, 60, SW, 64)
    A(pre)
    A("v_lshlrev_b32 v3, 4, v2")
    A(f"s_lshl_b32 s45, s44, 23\ns_add_u32 s45, s45, {U1:#x}\ns_lshl_b32 s46, s44, 12\ns_add_u32 s46, s46, {SC1:#x}")
    A("s_waitcnt lgkmcnt(0)")
    A("s_cmp_eq_u32 s44, 0\ns_cselect_b32 s36, s12, s20\ns_cselect_b32 s37, s13, s21")
    A(f"s_mov_b32 s38, {512*9216:#x}\ns_mov_b32 s39, 0x20000")
    if OPT["wdelay"]:
        A(f"s_sleep {OPT['wdelay']}")
    for t in lds_:
        A(t)
    srd(A, SWS, 26, WS_BYTES)
    A("s_waitcnt vmcnt(0)\ns_barrier")
    st.mark_wait(A)
    wjob(A, 2, 3, 51, SWS, "s45", "s46", 4, 76, 100, 148, 64, 0, 62, mid=lambda: st.mark(A))
    st.mark(A)
    if stamps:
        A("s_waitcnt vmcnt(0)")
        st.mark(A)
    st.flush(A, SWS, 3, 8)
    A("s_endpgm")

    A("Lp_emb:")
    A(f"s_sub_u32 s44, s2, {256 + NW}")
    A("s_waitcnt lgkmcnt(0)")
    srd(A, SWS, 26, WS_BYTES)
    srd(A, 32, 14, 384*1024)
    srd(A, 36, 6, 1536)
    A("v_and_b32 v3, 7, v0\nv_lshrrev_b32 v4, 3, v0")
    A("v_lshlrev_b32 v5, 10, v4\nv_lshl_add_u32 v5, v3, 4, v5")
    A("v_lshlrev_b32 v6, 1, v4\nv_lshlrev_b32 v7, 4, v2")
    A("s_lshl_b32 s45, s44, 7")
    WE, TE, AC = 8, 56, 80
    for b in range(2):
        for it in range(12):
            A(f"buffer_load_ushort v{TE + b*12 + it}, v6, s[36:39], 0 offen offset:{b*768 + it*64}")
    for it in range(12):
        A(f"buffer_load_dwordx4 {v(WE+4*it,4)}, v5, s[32:35], s45 offen")
        A("s_add_u32 s45, s45, 32768")
    for i, p in enumerate((8, 10, 16, 18)):
        A(f"global_load_dwordx4 {v(128+4*i,4)}, v7, s[{p}:{p+1}]")
    A("v_mov_b32 v100, -1\nv_mov_b32 v101, -1")
    A("s_cmp_lg_u32 s3, 0\ns_cbranch_scc1 Lp_noreset")
    A(f"v_and_b32 v7, 31, v2\nv_mul_u32_u24 v7, {OPT['gs']}, v7\ns_mul_i32 s46, s44, {OPT['grps']}\ns_add_u32 s46, s46, {STAT2:#x}")
    A(f"buffer_store_dwordx2 v[100:101], v7, s[{SWS}:{SWS+3}], s46 offen")
    A("Lp_noreset:")
    for i in range(16):
        A(f"v_mov_b32 v{AC+i}, 0")
    A("s_waitcnt vmcnt(0)")
    for i in range(24):
        A(f"v_lshlrev_b32 v{TE+i}, 16, v{TE+i}")
    for i in range(24):
        A(f"v_mul_f32 v{104+i}, {NLOG2E:#x}, v{TE+i}")
    for i in range(24):
        A(f"v_exp_f32 v{104+i}, v{104+i}")
    for i in range(24):
        A(f"v_add_f32 v{104+i}, 1.0, v{104+i}")
    for i in range(24):
        A(f"v_rcp_f32 v{104+i}, v{104+i}")
    for i in range(24):
        A(f"v_mul_f32 v{TE+i}, v{TE+i}, v{104+i}")
    for it in range(12):
        for d in range(4):
            unpack_bf16(A, WE + 4*it + d, 104 + 2*d, 105 + 2*d)
        for b in range(2):
            for k in range(8):
                A(f"v_fmac_f32 v{AC + b*8 + k}, v{104+k}, v{TE + b*12 + it}")
    A("v_lshlrev_b32 v5, 9, v4\nv_lshl_add_u32 v5, v3, 5, v5")
    for b in range(2):
        for h in range(2):
            A(f"ds_write_b128 v5, {v(AC + b*8 + 4*h, 4)} offset:{b*256 + h*16}")
    A("s_waitcnt lgkmcnt(0)\ns_barrier")
    A("s_cmp_ge_u32 s3, 2\ns_cbranch_scc1 Lp_scales")
    A("v_lshlrev_b32 v5, 2, v0")
    for half in range(4):
        for e in range(8):
            A(f"ds_read_b32 v{8 + half*8 + e}, v5 offset:{(half*8 + e)*512}")
        A("s_waitcnt lgkmcnt(0)")
    n = 32
    while n > 1:
        n //= 2
        for e in range(n):
            A(f"v_add_f32 v{8+e}, v{8+e}, v{8+n+e}")
    A(f"s_lshl_b32 s45, s3, 11\ns_lshl_b32 s46, s44, 8\ns_add_u32 s45, s45, s46\ns_add_u32 s45, s45, {EMB:#x}")
    A("v_lshlrev_b32 v5, 2, v2")
    A(f"buffer_store_dword v8, v5, s[{SWS}:{SWS+3}], s45 offen")
    A("s_endpgm")
    A("Lp_scales:")
    A("s_cmp_lg_u32 s3, 2\ns_cbranch_scc1 Lp_exit2\ns_cmp_lg_u32 s44, 0\ns_cbranch_scc1 Lp_exit2")
    act_exp(A, 128, 8, 45, "0xffffffc4")
    act_exp(A, 136, 8, 46, "0xffffffc4")
    A("s_add_u32 s45, s45, 124\ns_lshl_b32 s45, s45, 23")
    A("s_sub_u32 s47, 130, s46\ns_lshl_b32 s47, s47, 23")
    A("s_add_u32 s46, s46, 124\ns_lshl_b32 s46, s46, 23")
    A(f"v_mov_b32 v8, s45\nv_mov_b32 v9, s47\nv_mov_b32 v10, s46\nv_mov_b32 v11, 0\ns_mov_b32 s45, {ASC:#x}")
    A(f"buffer_store_dwordx4 v[8:11], off, s[{SWS}:{SWS+3}], s45")
    A("Lp_exit2:\ns_endpgm")
    descriptor(A, name, 168, 168)


SLOT = 24576
DSTEP = 0x40000
VDMA, VDMA2, VTOP, VBOT, VU, VA, VB, VA1, VB1 = 1, 2, 3, 4, 5, 6, 7, 254, 255
WLDS, XLDS = 114688, 151808
C = [[8, 24], [40, 56]]
PP, TMP = 72, 88
UU = [[104, 120, 136], [152, 168, 184]]
EP = 200
SWS, SD, SX, SO = 28, 32, 36, 40
S_W, S_DMA, S_M0, S_U0, S_U1, S_U2, S_SGN, S_CNT = 3, 44, 45, 46, 47, 48, 49, 50
S_GRP, S_IDX, S_B, S_NB, S_RB = 51, 52, 53, 54, 55


class Seq:
    def __init__(self):
        self.out, self.vm, self.lg = [], [], []

    def raw(self, t):
        self.out.append(t)

    def vmem(self, t, tag):
        self.out.append(t); self.vm.append(tag)

    def lds(self, t, tag):
        self.out.append(t); self.lg.append(tag)

    def _n(self, lst, tag):
        idx = [i for i, x in enumerate(lst) if x == tag]
        if not idx:
            return None
        n = len(lst) - 1 - idx[-1]
        del lst[:idx[-1] + 1]
        return n

    def wait(self, vm=(), lg=()):
        parts = []
        ns = [self._n(self.vm, t) for t in vm]
        ns = [n for n in ns if n is not None]
        if ns:
            assert ns[-1] < 64
            parts.append(f"vmcnt({ns[-1]})")
        ns = [self._n(self.lg, t) for t in lg]
        ns = [n for n in ns if n is not None]
        if ns:
            assert ns[-1] < 16
            parts.append(f"lgkmcnt({ns[-1]})")
        if parts:
            self.out.append("s_waitcnt " + " ".join(parts))


def u_load(Q, k, j, nu):
    sreg = (S_U0, S_U1, S_U2)[j]
    r = UU[k & 1][j] + 4*nu
    Q.vmem(f"buffer_load_dwordx4 {v(r,4)}, v{VU}, s[{SWS}:{SWS+3}], s{sreg} offen offset:{1024*nu} {OPT['ldu']}", ("u", k, j))
    if nu == 3:
        Q.raw(f"s_add_u32 s{sreg}, s{sreg}, 49152")


def dma_m0(Q, k, hi):
    Q.raw(f"s_add_u32 m0, s{S_M0}, {(k & 1)*SLOT + 4096*hi}")


def dma(Q, k, p):
    vo = (VTOP, VDMA, VDMA, VDMA, VDMA2, VBOT)[p]
    Q.vmem(f"buffer_load_dwordx4 v{vo}, s[{SD}:{SD+3}], s{S_DMA} offen offset:{1024*(p & 3)} {OPT['ldd']} lds", ("raw", k))
    if p == 5:
        Q.raw(f"s_add_u32 s{S_DMA}, s{S_DMA}, {DSTEP:#x}")


def raw_read(Q, k, par, tb, which):
    off = (k & 1)*SLOT + (2*(tb & 1) + par)*256
    r = (C[k & 1][par] if which == 0 else (TMP, PP)[par]) + 4*tb
    Q.lds(f"ds_read_b128 {v(r,4)}, v{((VA, VB), (VA1, VB1))[tb >> 1][which]} offset:{off}", ("rd", k, par, tb))


def h_op(Q, k, par, tb, d):
    c = C[k & 1][par] + 4*tb + d
    t = (TMP, PP)[par] + 4*tb + d
    Q.raw(f"v_pk_fma_f16 v{c}, v{t}, s{S_SGN}, v{c}")


def step(Q, k, extra=None):
    cs = k & 1
    c0, c1 = C[cs]
    u0, u1, u2 = UU[cs]
    ld_u2 = k + 1 <= 15
    ld_u = k + 2 <= 15
    ld_d = k + 3 <= 16
    rd = k + 1 <= 15
    G = [[] for _ in range(64)]
    at = lambda g, f: G[g].append(f)

    def vops(lst, gaps):
        it = iter(lst)
        for g, n in gaps:
            for _ in range(n):
                at(g, next(it))
        assert next(it, None) is None

    R = lambda t: (lambda: Q.raw(t))
    if rd:
        for tb in range(4):
            at(2*tb, lambda tb=tb: raw_read(Q, k+1, 0, tb, 0))
            at(2*tb, lambda tb=tb: raw_read(Q, k+1, 0, tb, 1))
    if ld_u2:
        for nu in range(4):
            at(2*nu + 1, lambda nu=nu: u_load(Q, k+1, 2, nu))
    pops = [R(f"v_pk_add_f16 v{PP+i}, v{c0+i}, v{c1+i}") for i in range(16)]
    vops(pops, [(8, 2), (10, 3), (12, 3), (13, 3), (14, 3), (15, 2)])
    if ld_d:
        at(8, lambda: dma_m0(Q, k+3, 0))
        at(9, lambda: dma(Q, k+3, 0))
        at(11, lambda: dma(Q, k+3, 1))
        at(17, lambda: dma(Q, k+3, 2))
        at(19, lambda: dma(Q, k+3, 3))
        at(21, lambda: dma_m0(Q, k+3, 1))
        at(22, lambda: dma(Q, k+3, 4))
        at(26, lambda: dma(Q, k+3, 5))
        if cs == 0:
            at(27, R(f"s_xor_b32 s{S_M0}, s{S_M0}, 0x10000"))
    at(15, lambda: Q.wait(vm=[("u", k, 1)]))
    mops = [R(f"v_pk_add_f16 v{c0+i}, v{c0+i}, v{c1+i} {NEG1}") for i in range(16)]
    vops(mops, [(16, 3), (18, 3), (21, 1), (23, 3), (25, 1), (27, 2), (29, 1), (30, 2)])
    tops = [R(f"v_pk_add_f16 v{u1+i}, v{u1+i}, v{u0+i} {NEG1}") for i in range(16)]
    vops(tops, [(20, 3), (21, 1), (24, 3), (25, 1), (28, 3), (29, 1), (31, 2), (32, 2)])
    at(31, lambda: Q.wait(vm=[("u", k, 2)]))
    if rd:
        for g, tb, w in ((32, 0, 0), (34, 0, 1), (34, 1, 0), (34, 1, 1), (37, 2, 0), (37, 2, 1), (39, 3, 0), (39, 3, 1)):
            if g == 32:
                at(g, lambda: Q.wait(lg=[("rd", k+1, 0, 3)]))
            at(g, lambda tb=tb, w=w: raw_read(Q, k+1, 1, tb, w))
        if cs == 0:
            at(39, R(f"v_xor_b32 v{VA}, 0x10000, v{VA}"))
            at(41, R(f"v_xor_b32 v{VB}, 0x10000, v{VB}"))
            at(63, R(f"v_xor_b32 v{VA1}, 0x10000, v{VA1}"))
            at(63, R(f"v_xor_b32 v{VB1}, 0x10000, v{VB1}"))
    if ld_u:
        for nu, g in enumerate((33, 35, 38, 42)):
            at(g, lambda nu=nu: u_load(Q, k+2, 0, nu))
    wops = [R(f"v_pk_add_f16 v{u2+i}, v{u1+i}, v{u2+i}") for i in range(16)]
    vops(wops, [(36, 3), (37, 1), (40, 3), (41, 1), (44, 3), (45, 1), (47, 2), (48, 2)])
    if rd:
        h0 = [(lambda i=i: h_op(Q, k+1, 0, i >> 2, i & 3)) for i in range(16)]
        vops(h0, [(41, 1), (43, 3), (45, 2), (46, 3), (47, 1), (48, 1), (50, 3), (52, 2)])
        at(54, lambda: Q.wait(lg=[("rd", k+1, 1, 3)]))
        h1 = [(lambda i=i: h_op(Q, k+1, 1, i >> 2, i & 3)) for i in range(16)]
        vops(h1, [(54, 2), (56, 2), (57, 2), (58, 2), (59, 2), (60, 2), (61, 2), (62, 2)])
    if ld_u:
        for nu, g in enumerate((49, 51, 53, 55)):
            at(g, lambda nu=nu: u_load(Q, k+2, 1, nu))
    if extra:
        for g, fs in extra.items():
            G[g] += fs
    Q.wait(vm=[("raw", k+1), ("u", k, 0)])
    Q.raw("s_barrier")
    for g in range(64):
        j, nu, tb = g >> 4, (g >> 2) & 3, g & 3
        if nu & 1 and OPT["morder"] == 0:
            tb = 3 - tb
        a = (u0, u1, u2, u2)[j] + 4*nu
        b = (c0, PP, c0, c1)[j] + 4*tb
        d = j*64 + nu*16 + tb*4
        Q.raw(f"v_mfma_f32_16x16x32_f16 {acc(d,4)}, {v(a,4)}, {v(b,4)}, {acc(d,4)}")
        for f in G[g]:
            f()


def gen_conv(A, conv, stamps):
    name = f"adm_conv{conv}_kernel"
    L = f"Lc{conv}"
    st = Stamps(stamps, conv)
    DIN, UOFF, SC = (D1, U1, SC1) if conv == 1 else (D2, U2, SC2)
    w2job = conv == 1 and OPT["w_in_k1"] == 1
    header(A, name)
    st.mark(A)
    A(f"s_cmp_ge_u32 s2, 256\ns_cbranch_scc1 {L}_exit")
    A("s_load_dwordx2 s[26:27], s[0:1], 88")
    if conv == 1:
        A("s_load_dwordx4 s[16:19], s[0:1], 48\ns_load_dwordx2 s[20:21], s[0:1], 64")
    else:
        A("s_load_dwordx2 s[4:5], s[0:1], 0\ns_load_dwordx2 s[22:23], s[0:1], 72")
    if OPT["pf"]:
        code_touch(A, f"{L}_pf", f"{L}_exit", 0, 244, f"{L}_pc", 56)
        A(f"global_load_dword v246, v[244:245], off\n{L}_pf:")
    A("v_lshrrev_b32 v8, 6, v0\nv_and_b32 v0, 63, v0")
    A(f"v_readfirstlane_b32 s{S_W}, v8")
    A(f"s_mov_b32 s{S_MASK}, 0xffff0000")
    A(f"s_and_b32 s{S_GRP}, s2, 7\ns_lshr_b32 s{S_IDX}, s2, 3\ns_lshr_b32 s{S_B}, s{S_GRP}, 2")
    A(f"s_and_b32 s{S_NB}, s{S_GRP}, 3\ns_lshl_b32 s{S_NB}, s{S_NB}, 1\ns_and_b32 s56, s{S_IDX}, 1\ns_add_u32 s{S_NB}, s{S_NB}, s56")
    A(f"s_lshr_b32 s{S_RB}, s{S_IDX}, 1")
    A("v_and_b32 v9, 15, v0\nv_lshrrev_b32 v10, 4, v0")
    A(f"v_lshlrev_b32 v{VDMA}, 4, v0\nv_add_u32 v{VDMA2}, 4096, v{VDMA}")
    A(f"s_cmp_eq_u32 s{S_RB}, 0\ns_cselect_b32 s56, {OOB:#x}, 0\nv_add_u32 v{VTOP}, s56, v{VDMA}")
    A(f"s_cmp_eq_u32 s{S_RB}, 15\ns_cselect_b32 s56, {OOB:#x}, 0\nv_add_u32 v{VBOT}, s56, v{VDMA2}")
    A(f"v_lshrrev_b32 v11, 2, v9\nv_lshlrev_b32 v11, 8, v11\nv_lshl_add_u32 v11, v10, 6, v11")
    A(f"v_and_b32 v12, 3, v9\nv_lshl_add_u32 v{VU}, v12, 4, v11")
    A(f"s_lshl_b32 s{S_DMA}, s{S_W}, 16\ns_lshl_b32 s56, s{S_RB}, 12\ns_add_u32 s{S_DMA}, s{S_DMA}, s56")
    A(f"s_mul_i32 s{S_M0}, s{S_W}, 6144")
    A(f"s_mul_i32 s{S_U0}, s{S_NB}, 786432\ns_mul_i32 s56, s{S_W}, 12288\ns_add_u32 s{S_U0}, s{S_U0}, s56")
    A(f"s_add_u32 s{S_U0}, s{S_U0}, {UOFF:#x}\ns_add_u32 s{S_U1}, s{S_U0}, 4096\ns_add_u32 s{S_U2}, s{S_U0}, 8192")
    A(f"s_lshl_b32 s56, s{S_B}, 22\ns_add_u32 s56, s56, {DIN - 1024:#x}")
    for i in range(64):
        A(f"v_accvgpr_write_b32 a{i}, 0")
    A("s_waitcnt lgkmcnt(0)")
    srd(A, SWS, 26, WS_BYTES)
    A(f"s_add_u32 s{SD}, s26, s56\ns_addc_u32 s{SD+1}, s27, 0\ns_mov_b32 s{SD+2}, {0x400000 + 1024:#x}\ns_mov_b32 s{SD+3}, 0x20000")

    Q = Seq()

    zi = iter(range(64, 256))

    def zero(n):
        for _ in range(n):
            i = next(zi, None)
            if i is not None:
                Q.raw(f"v_accvgpr_write_b32 a{i}, 0")

    def dma_all(k, z):
        for p in range(6):
            if p in (0, 4):
                dma_m0(Q, k, p >> 2); Q.raw("s_nop 0")
            dma(Q, k, p); z()
    dma_all(0, lambda: None)
    Q.raw(f"s_lshl_b32 s57, s{S_W}, 10\ns_lshr_b32 s56, s{S_W}, 1\ns_sub_u32 s58, 2, s56\ns_lshl_b32 s58, s58, 10\ns_lshl_b32 s56, s56, 11")
    Q.raw(f"v_mul_u32_u24 v11, 6144, v10\nv_lshl_add_u32 v11, v9, 4, v11")
    Q.raw(f"v_add_u32 v12, s56, v11\ns_xor_b32 s56, s56, 2048\nv_add_u32 v11, s56, v11")
    Q.raw(f"v_add_u32 v{VA}, s57, v12\nv_add_u32 v{VB}, s58, v12\nv_add_u32 v{VA1}, s57, v11\nv_add_u32 v{VB1}, s58, v11")
    Q.raw(f"s_mov_b32 s56, 0xbc00bc00\ns_cmp_eq_u32 s{S_W}, 1\ns_cselect_b32 s{S_SGN}, 0x3c003c00, s56")
    Q.raw(f"s_and_b32 s60, s{S_W}, 1\ns_lshr_b32 s61, s{S_W}, 1")
    Q.raw(f"s_lshl_b32 s62, s{S_NB}, 1\ns_add_u32 s62, s62, s60")
    Q.raw(f"s_lshl_b32 s63, s{S_RB}, 1\ns_add_u32 s63, s63, s61")
    Q.raw(f"v_lshlrev_b32 v248, 5, v10")
    Q.raw(f"s_lshl_b32 s64, s62, 7\ns_add_u32 s64, s64, {SC:#x}")
    if conv == 1:
        Q.raw(f"s_lshl_b32 s65, s62, 7\ns_lshl_b32 s56, s{S_B}, 11\ns_add_u32 s65, s65, s56\ns_add_u32 s65, s65, {EMB:#x}")
        Q.raw("s_lshl_b32 s56, s62, 6\nv_lshlrev_b32 v249, 4, v10\nv_add_u32 v249, s56, v249")
        Q.raw("v_lshlrev_b32 v250, 16, v10\nv_lshl_add_u32 v250, v9, 4, v250")
        Q.raw(f"s_lshl_b32 s66, s{S_B}, 22\ns_lshl_b32 s56, s62, 18\ns_add_u32 s66, s66, s56")
        Q.raw(f"s_lshl_b32 s56, s63, 11\ns_add_u32 s66, s66, s56\ns_add_u32 s66, s66, {D2:#x}")
        Q.raw(f"s_cmp_eq_u32 s{S_W}, 3\ns_cselect_b32 s56, 1024, 0\ns_add_u32 s66, s66, s56\ns_xor_b32 s67, s66, 1024")
        if w2job:
            srdq = Asm(); srd(srdq, SX, 20, 512*9216)
            Q.raw("\n".join(srdq.L))
            Q.raw(f"s_lshl_b32 s71, s{S_GRP}, 4\ns_add_u32 s71, s71, s{S_RB}")
            pre, wld = wjob_loads(VDMA, S_W, 71, 68, SX, WLDS)
            Q.raw(pre)
            Q.raw(f"s_bitcmp1_b32 s{S_IDX}, 0\ns_cselect_b32 s68, s68, {OOB:#x}")
    else:
        srdq = Asm(); srd(srdq, SX, 4, 0x800000); srd(srdq, SO, 22, 0x800000)
        Q.raw("\n".join(srdq.L))
        Q.raw("v_lshlrev_b32 v250, 16, v10\nv_lshl_add_u32 v250, v9, 3, v250")
        Q.raw(f"s_lshl_b32 s66, s{S_B}, 22\ns_lshl_b32 s56, s62, 18\ns_add_u32 s66, s66, s56")
        Q.raw(f"s_lshl_b32 s56, s63, 8\ns_add_u32 s66, s66, s56")
        Q.raw(f"s_cmp_eq_u32 s{S_W}, 3\ns_cselect_b32 s56, 128, 0\nv_add_u32 v250, s56, v250\nv_xor_b32 v251, 128, v250\ns_mov_b32 s67, s66")
    dma_all(1, lambda: zero(11))
    for j in range(3):
        for nu in range(4):
            u_load(Q, 0, j, nu); zero(11)
    zero(256)
    Q.raw(f"s_xor_b32 s{S_M0}, s{S_M0}, 0x10000")
    Q.wait(vm=[("raw", 0)])
    Q.raw("s_barrier")
    todo = [(lambda par=par, tb=tb: (raw_read(Q, 0, par, tb, 0), raw_read(Q, 0, par, tb, 1))) for par in range(2) for tb in range(4)]
    todo[0](); todo[1]()
    ti = iter(todo[2:])
    dma_all(2, lambda: next(ti)())
    for j in range(2):
        for nu in range(4):
            u_load(Q, 1, j, nu)
            Q.wait(lg=[("rd", 0, j, nu)])
            for d in range(4):
                h_op(Q, 0, j, nu, d)
    Q.raw(f"s_mov_b32 s{S_CNT}, 7")
    A("\n".join(Q.out)); Q.out = []
    st.mark_wait(A)
    body = None
    for n in range(7):
        step(Q, 2*n)
        step(Q, 2*n + 1, {63: [lambda: Q.raw(f"s_sub_u32 s{S_CNT}, s{S_CNT}, 1\ns_cmp_lg_u32 s{S_CNT}, 0\ns_cbranch_scc1 {L}_loop")]})
        if body is None:
            body = Q.out
        assert Q.out == body, [(a, b) for a, b in zip(Q.out, body) if a != b]
        Q.out = []
    A(f".p2align 6\n{L}_loop:")
    A("\n".join(body))
    if conv == 2:
        st.mark_wait(A)
    SCR, EMR, GR, BR, XR = 200, 208, 216, 220, 208
    ld = ["global_load_dword v246, v[244:245], off"] if OPT["pf"] > 1 else []
    for h in range(2):
        ld.append(f"buffer_load_dwordx4 {v(SCR+4*h,4)}, v248, s[{SWS}:{SWS+3}], s64 offen offset:{16*h}")
    if conv == 1:
        for h in range(2):
            ld.append(f"buffer_load_dwordx4 {v(EMR+4*h,4)}, v248, s[{SWS}:{SWS+3}], s65 offen offset:{16*h}")
        ld.append(f"global_load_dwordx4 {v(GR,4)}, v249, s[16:17]")
        ld.append(f"global_load_dwordx4 {v(BR,4)}, v249, s[18:19]")
        ld.append(f"s_mov_b32 s56, {ASC:#x}\nbuffer_load_dwordx2 v[224:225], off, s[{SWS}:{SWS+3}], s56")
    else:
        ld.append(f"s_mov_b32 s56, {ASC+8:#x}\nbuffer_load_dwordx2 v[240:241], off, s[{SWS}:{SWS+3}], s56")
        for kch in range(8):
            for rho in range(2):
                t = f"buffer_load_dwordx2 {v(XR + (rho*8 + kch)*2, 2)}, v{250+rho}, s[{SX}:{SX+3}], s67 offen"
                if rho == 1:
                    t += "\ns_add_u32 s67, s67, 8192"
                ld.append(t)
    gaps14 = [9, 11, 17, 19, 22, 26, 33, 35, 38, 42, 49, 51, 53, 55]
    gaps15 = [1, 3, 5, 7, 9, 11]
    if OPT.get("noep"):
        ld = ld[:OPT["noep"]]
    nep = len(ld)
    if w2job:
        ld += wld
    assert len(ld) <= len(gaps14) + len(gaps15)
    ex14 = {g: [lambda t=t: Q.vmem(t, "ep")] for g, t in zip(gaps14, ld)}
    ex15 = {g: [lambda t=t: Q.vmem(t, "ep")] for g, t in zip(gaps15, ld[len(gaps14):])}
    step(Q, 14, ex14)
    step(Q, 15, ex15)
    A("\n".join(Q.out)); Q.out = []
    st.mark(A)

    VW, VR = (None, 2, 3, 4), (5, 6, 7)
    for phi in (1, 2, 3):
        A(f"s_xor_b32 s56, s{S_W}, {phi}\ns_mul_i32 s56, s56, 3\ns_add_u32 s56, s56, {phi-1}\ns_lshl_b32 s56, s56, 13\nv_add_u32 v{VW[phi]}, s56, v{VDMA}")
    A(f"s_lshl_b32 s57, s{S_W}, 2\ns_mul_i32 s58, s{S_W}, 3")
    for r, tab in zip(VR, (0x1100, 0x0221, 0x2012)):
        A(f"s_lshr_b32 s56, {tab:#x}, s57\ns_and_b32 s56, s56, 15\ns_add_u32 s56, s56, s58\ns_lshl_b32 s56, s56, 13\nv_add_u32 v{r}, s56, v{VDMA}")
    A(f"s_cmp_eq_u32 s{S_W}, 3\ns_cselect_b32 s44, -1.0, 1.0\ns_cmp_ge_u32 s{S_W}, 2\ns_cselect_b32 s45, 1.0, -1.0")
    A(f"s_xor_b32 s47, s45, 0x80000000\ns_add_u32 s56, s{S_W}, 1\ns_bitcmp1_b32 s56, 1\ns_cselect_b32 s46, 0, 1.0\ns_cselect_b32 s47, s47, 0")
    H = 104
    RB, ZB = [8, 40], [72, 88]
    XB = [8, 20, 72, 84]
    order = [(nul, q) for nul in range(2) for q in range(4)]

    def rd(n):
        nul, q = order[n]
        for i in range(3):
            A(f"ds_read_b128 {v(XB[n & 3] + 4*i, 4)}, v{VR[i]} offset:{(nul*4 + q)*1024}")
    n = 0
    pend = []
    for phi in (1, 2, 3, 0):
        sg, nup = phi >> 1, phi & 1
        for nul in range(2):
            nu = 2*nup + nul
            R = RB[n & 1]
            Z = (lambda q, zb=ZB[n & 1]: zb + 4*q) if phi else (lambda q, nul=nul: H + q*8 + nul*4)
            n += 1
            m = lambda j, be, r=0: R + j*8 + be*4 + r
            cnt = 0
            for j in range(4):
                for be in range(2):
                    for r in range(4):
                        A(f"v_accvgpr_read_b32 v{m(j,be,r)}, a{j*64 + nu*16 + (2*sg + be)*4 + r}")
                        cnt += 1
                        if cnt in OPT["wpos"] and pend:
                            A(pend.pop(0))
            if n > 2 and phi:
                A("s_waitcnt lgkmcnt(4)")
            for r in (0, 2):
                A(f"v_pk_add_f32 {v(Z(0)+r,2)}, {v(m(1,0,r),2)}, {v(m(2,0,r),2)} {NEG1}")
                A(f"v_pk_add_f32 {v(Z(1)+r,2)}, {v(m(1,0,r),2)}, {v(m(2,0,r),2)}")
                A(f"v_pk_add_f32 {v(Z(2)+r,2)}, {v(m(1,1,r),2)}, {v(m(2,1,r),2)} {NEG1}")
                A(f"v_pk_add_f32 {v(Z(3)+r,2)}, {v(m(1,1,r),2)}, {v(m(2,1,r),2)}")
            for r in (0, 2):
                A(f"v_pk_add_f32 {v(Z(0)+r,2)}, {v(Z(0)+r,2)}, {v(m(3,0,r),2)} {NEG1}")
                A(f"v_pk_add_f32 {v(Z(1)+r,2)}, {v(Z(1)+r,2)}, {v(m(0,0,r),2)} {NEG1}")
                A(f"v_pk_add_f32 {v(Z(2)+r,2)}, {v(Z(2)+r,2)}, {v(m(3,1,r),2)} {NEG1}")
                A(f"v_pk_add_f32 {v(Z(3)+r,2)}, {v(Z(3)+r,2)}, {v(m(0,1,r),2)} {NEG1}")
            for r in (0, 2):
                A(f"v_pk_add_f32 {v(Z(1)+r,2)}, {v(Z(1)+r,2)}, {v(m(0,1,r),2)}")
                A(f"v_pk_add_f32 {v(Z(2)+r,2)}, {v(Z(2)+r,2)}, {v(m(3,0,r),2)}")
            for r in range(4):
                A(f"v_add_f32_dpp v{Z(0)+r}, v{m(3,1,r)}, v{Z(0)+r} row_shr:1 row_mask:0xf bank_mask:0xf bound_ctrl:1")
            for r in range(4):
                A(f"v_add_f32_dpp v{Z(3)+r}, v{m(0,0,r)}, v{Z(3)+r} row_shl:1 row_mask:0xf bank_mask:0xf bound_ctrl:1")
            if phi:
                pend = [f"ds_write_b128 v{VW[phi]}, {v(Z(q),4)} offset:{(nul*4 + q)*1024}" for q in (1, 2, 0, 3)]
            elif nul == 0:
                A("s_waitcnt lgkmcnt(0)\ns_barrier")
                for i in range(4):
                    rd(i)
    st.mark(A)
    if stamps:
        A("s_waitcnt lgkmcnt(0)")
    LO, HI = "op_sel_hi:[1,0,1]", "op_sel:[0,1,0] op_sel_hi:[1,1,1]"
    for n in range(8):
        A(f"s_waitcnt lgkmcnt({3*min(3, 7-n)})")
        nul, q = order[n]
        x = XB[n & 3]
        ha, hb = H + q*8 + nul*4, H + 32 + q*8 + nul*4
        for r in (0, 2):
            A(f"v_pk_fma_f32 {v(hb+r,2)}, {v(x+4+r,2)}, s[44:45], {v(x+8+r,2)} {HI}")
        for r in (0, 2):
            A(f"v_pk_fma_f32 {v(x+4+r,2)}, {v(x+4+r,2)}, s[44:45], {v(x+r,2)} {LO}")
        for r in (0, 2):
            A(f"v_pk_fma_f32 {v(hb+r,2)}, {v(x+r,2)}, s[46:47], {v(hb+r,2)} {LO}")
        for r in (0, 2):
            A(f"v_pk_fma_f32 {v(hb+r,2)}, {v(ha+r,2)}, s[46:47], {v(hb+r,2)} {HI}")
        for r in (0, 2):
            A(f"v_pk_add_f32 {v(ha+r,2)}, {v(ha+r,2)}, {v(x+4+r,2)}")
        if n + 4 < 8:
            rd(n + 4)
    A(f"s_waitcnt vmcnt({len(ld) - nep})")
    for k in range(0, 8, 2):
        A(f"v_pk_mul_f32 {v(SCR+k,2)}, {v(SCR+k,2)}, {v(224 if conv == 1 else 240, 2)} op_sel_hi:[1,0]")
    if conv == 1:
        P = 72
        for i in range(8):
            A(f"v_mov_b32 v{P+i}, 0")
        for p in range(8):
            for k in range(0, 8, 2):
                x = H + p*8 + k
                A(f"v_pk_fma_f32 {v(x,2)}, {v(x,2)}, {v(SCR+k,2)}, {v(EMR+k,2)}")
            for k in range(0, 8, 2):
                x = H + p*8 + k
                a = P + (k & 2)
                A(f"v_pk_add_f32 {v(a,2)}, {v(a,2)}, {v(x,2)}")
                A(f"v_pk_fma_f32 {v(a+4,2)}, {v(x,2)}, {v(x,2)}, {v(a+4,2)}")
        A(f"v_pk_add_f32 {v(P,2)}, {v(P,2)}, {v(P+2,2)}")
        A(f"v_pk_add_f32 {v(P+4,2)}, {v(P+4,2)}, {v(P+6,2)}")
        A(f"v_add_f32 v{P}, v{P}, v{P+1}\nv_add_f32 v{P+1}, v{P+4}, v{P+5}")
        wave_reduce(A, [P, P+1])
        gs, hsc = OPT["gs"], OPT["hsc"]
        PL = 246
        A(f"s_lshl_b32 s56, s{S_W}, 3\ns_add_u32 s56, s56, {XLDS}\nv_mov_b32 v89, s56")
        A("s_mov_b32 exec_lo, 0\ns_mov_b32 exec_hi, 0x80000000")
        A(f"ds_write_b64 v89, {v(P,2)}")
        A(f"s_mov_b64 exec, -1\nv_mov_b32 v249, {XLDS}")
        A(f"v_cmp_eq_u32 vcc, 63, v0\nv_mov_b32 v89, {OOB:#x}\nv_mul_u32_u24 v248, {gs}, v0")
        A(f"v_cndmask_b32 v88, v89, 0, vcc\nv_cmp_gt_u32 vcc, 32, v0")
        A(f"s_mul_i32 s57, s{S_GRP}, {OPT['grps']}\ns_add_u32 s57, s57, {STAT2:#x}")
        A(f"v_cndmask_b32 v248, v89, v248, vcc")
        A("s_waitcnt vmcnt(0) lgkmcnt(0)\ns_barrier")
        A(f"s_cmp_lg_u32 s{S_W}, 0\ns_cbranch_scc1 {L}_nopub")
        A(f"ds_read_b128 {v(P,4)}, v249\nds_read_b128 {v(P+4,4)}, v249 offset:16")
        A(f"s_mul_i32 s56, s{S_IDX}, {gs}\ns_add_u32 s56, s56, s57")
        A("s_waitcnt lgkmcnt(0)")
        A(f"v_pk_add_f32 {v(P,2)}, {v(P,2)}, {v(P+2,2)}\nv_pk_add_f32 {v(P+4,2)}, {v(P+4,2)}, {v(P+6,2)}")
        A(f"v_pk_add_f32 {v(252,2)}, {v(P,2)}, {v(P+4,2)}")
        A(f"v_and_b32 v253, 0x7fffffff, v253")
        A(f"buffer_store_dwordx2 v[252:253], v88, s[{SWS}:{SWS+3}], s56 offen {hsc}")
        A(f"{L}_nopub:")
        st.mark_wait(A)
        poll = f"buffer_load_dwordx2 {v(PL,2)}, v248, s[{SWS}:{SWS+3}], s57 offen {hsc}"
        A(f"s_mov_b32 s58, {SPIN_MAX}")
        if w2job:
            A(f"s_bitcmp1_b32 s{S_IDX}, 0\ns_cbranch_scc0 {L}_nojob")
            wjob(A, 0, S_W, 71, SWS, f"{U2:#x}", f"{SC2:#x}", 8, 80, 168, 226, WLDS, XLDS + 128, 68,
                 mid=lambda: A(f"s_cmp_lg_u32 s{S_W}, 0\ns_cbranch_scc1 {L}_mid\n{poll}\n{L}_mid:"))
            A(f"s_cmp_lg_u32 s{S_W}, 0\ns_cbranch_scc1 {L}_join")
            A(f"s_waitcnt vmcnt(12)\ns_branch {L}_check")
            A(f"{L}_nojob:")
        A(f"s_cmp_lg_u32 s{S_W}, 0\ns_cbranch_scc1 {L}_join")
        A(f"s_sleep {OPT['delay']}")
        A(f"{L}_poll:")
        A(poll)
        A(f"s_waitcnt vmcnt(0)\n{L}_check:\nv_cmp_gt_i32 vcc, 0, v{PL+1}")
        A(f"s_nop 1\ns_cmp_eq_u64 vcc, 0\ns_cbranch_scc1 {L}_ready")
        A(f"s_sleep {OPT['slp']}\ns_sub_u32 s58, s58, 1\ns_cmp_lg_u32 s58, 0\ns_cbranch_scc1 {L}_poll")
        A(f"{L}_ready:")
        wave_reduce(A, [PL, PL+1])
        A("s_mov_b32 exec_lo, 0\ns_mov_b32 exec_hi, 0x80000000")
        A(f"ds_write_b64 v249, {v(PL,2)} offset:64")
        A("s_mov_b64 exec, -1\ns_waitcnt lgkmcnt(0)")
        A(f"{L}_join:")
        GA, GB, A1, B1, A2, B2, TT, OUT = 8, 16, 24, 32, 40, 48, 56, 72
        P = PL
        A("s_barrier")
        A(f"ds_read_b64 {v(P,2)}, v249 offset:64")
        for d in range(4):
            unpack_bf16(A, GR + d, GA + 2*d, GA + 2*d + 1)
            unpack_bf16(A, BR + d, GB + 2*d, GB + 2*d + 1)
        A("s_waitcnt lgkmcnt(0)")
        st.mark(A)
        gn_coeffs(A, P, P+1, GA, GB, A1, B1, A2, B2, "v225", TT)
        for p in range(8):
            o = OUT + 4*p
            silu8(A, H + p*8, A1, B1, A2, B2, TT + 8*(p & 1), o)
            A(f"buffer_store_dwordx4 {v(o,4)}, v250, s[{SWS}:{SWS+3}], s{66 + (p >> 2)} offen offset:{256*(p & 3)} {OPT['st']}")
    else:
        XF, OUT = 8, 168
        for k in range(0, 8, 2):
            for rho in range(2):
                for kk in (k, k+1):
                    r = XR + (rho*8 + kk)*2
                    unpack_bf16(A, r, XF + (rho*4 + 0)*8 + kk, XF + (rho*4 + 1)*8 + kk)
                    unpack_bf16(A, r+1, XF + (rho*4 + 2)*8 + kk, XF + (rho*4 + 3)*8 + kk)
            for p in range(8):
                x = H + p*8 + k
                A(f"v_pk_fma_f32 {v(x,2)}, {v(x,2)}, {v(SCR+k,2)}, {v(XF + p*8 + k,2)}")
            for kk in (k, k+1):
                for rho in range(2):
                    o = OUT + (rho*8 + kk)*2
                    h = H + rho*32 + kk
                    A(f"v_cvt_pk_bf16_f32 v{o}, v{h}, v{h+8}")
                    A(f"v_cvt_pk_bf16_f32 v{o+1}, v{h+16}, v{h+24}")
                    A(f"buffer_store_dwordx2 {v(o,2)}, v{250+rho}, s[{SO}:{SO+3}], s66 offen {OPT['sto']}")
                A("s_add_u32 s66, s66, 8192")
    if stamps:
        A("s_waitcnt vmcnt(0)")
        st.mark(A)
    st.flush(A, SWS, S_W, 8)
    A(f"{L}_exit:\ns_endpgm")
    if conv == 2:
        A("Lcode_end:")
    descriptor(A, name, 512, 256)


HEAD = """; ADM ResBlock: GN+SiLU -> conv3x3 -> +emb -> GN+SiLU -> conv3x3 -> +x   (B=2, C=512, 64x64, bf16 in/out)
; @launch kernel=adm_prep_kernel grid=(%d,1,1) block=(256,1,1) lds=37376
; @launch kernel=adm_conv1_kernel grid=(256,1,1) block=(256,1,1) lds=152064
; @launch kernel=adm_conv2_kernel grid=(256,1,1) block=(256,1,1) lds=152064
.amdgcn_target "amdgcn-amd-amdhsa--gfx950"
"""


def align_pass(text):
    import subprocess, re
    r = subprocess.run(["llvm-mc", "-triple", "amdgcn-amd-amdhsa", "-mcpu=gfx950", "-show-encoding"],
                       input=text, capture_output=True, text=True)
    assert r.returncode == 0, r.stderr
    sizes = [m.count(",") + 1 for m in re.findall(r"encoding: \[([^\]]*)\]", r.stdout)]
    lines = text.split("\n")
    idx = [i for i, l in enumerate(lines) if l.startswith("    ")]
    assert len(idx) == len(sizes), (len(idx), len(sizes))
    size = dict(zip(idx, sizes))
    out, off, run = [], 0, []
    for i, l in enumerate(lines):
        if l.startswith(".p2align"):
            off, run = 0, []
        if i not in size:
            out.append(l); continue
        if size[i] == 4:
            run.append(len(out)); out.append(l); off ^= 4
            continue
        if off:
            for p in reversed(run):
                op = out[p].split()[0]
                if op.startswith("v_") and not op.startswith(("v_readfirstlane", "v_nop", "v_fmac", "v_cmp")):
                    out[p] = out[p].replace(op, op + "_e64", 1); off = 0
                    break
            else:
                n, j = 0, i
                while j < len(lines) and size.get(j, 8) == 8 and not lines[j].startswith(".section"):
                    n += j in size; j += 1
                if run and n >= OPT.get("padrun", 6):
                    out.append("    s_nop 0"); off = 0
        run = []
        out.append(l)
    return "\n".join(out)


def generate(stamps=False):
    A = Asm()
    gen_prep(A, stamps)
    gen_conv(A, 1, stamps)
    gen_conv(A, 2, stamps)
    text = HEAD % (264 + 128*OPT["w_in_k1"]) + A.text()
    return align_pass(text) if OPT["align"] else text


if __name__ == "__main__":
    out = sys.argv[1]
    for a in sys.argv[2:]:
        if "=" in a:
            k, val = a.split("=")
            OPT[k] = int(val) if val.lstrip("-").isdigit() else val.replace("+", " ")
    if OPT.get("base"):
        for nm in ("D1", "D2", "U1", "U2"):
            globals()[nm] += OPT["base"] << 20
    open(out, "w").write(generate(stamps="stamps" in sys.argv[2:]))
```

```python
import sys
sys.path.insert(0, "tools")
import gen
from gen import (Asm, v, acc, NEG1, srd, wave_reduce, header, descriptor, gn_coeffs, silu8, unpack_bf16, trim,
                 align_pass, OPT, OOB, NLOG2E, SPIN_MAX, TAGSTEP, S_MASK, WS_BYTES, WROW, STAMP,
                 SLOT, VDMA, VDMA2, VTOP, VBOT, VU, VA, VB, VA1, VB1, WLDS, XLDS, C, PP, TMP, UU,
                 SWS, SD, SX, SO, S_W, S_DMA, S_M0, S_U0, S_U1, S_U2, S_SGN, S_CNT, S_GRP, S_IDX, S_B, S_NB, S_RB,
                 u_load, dma_m0, dma, raw_read, h_op, D1, D2, U1, U2, SC1, SC2)

NAME = "standalone__adm_resblock__diffusion_kernel"
GEN, EMBP = 0x0, 0x10000
STAT, UF, DF = 0x40000, 0x60000, 0x80000
GRPS = 4352
OPT.update(ldu="sc1", ldd="sc1", trimU=3, trimD=3, delay=0, delayd=6, slp=3)

S_IT, S_TAG, S_ASC, S_INV, S_WS, S_E2, S_RA, S_RB2, S_J0, S_J1, S_OQ = 60, 61, 62, 63, 64, 65, 66, 67, 68, 69, 71
S_RET, S_POLL, S_SLOT, S_XO = 24, 25, 12, 13
S_AG, S_BB = 6, 14
VW, VR = (None, 240, 241, 242), (243, 244, 245)
VD, VX, V63, VXL, VPOLL, VT = 246, 247, 249, 250, 251, 252
H, XR, SCR, EMR, GR, BR, PLD, VS = 104, 200, 232, 200, 224, 228, 232, 236
LANE63 = "s_mov_b32 exec_lo, 0\ns_mov_b32 exec_hi, 0x80000000"


class Seq(gen.Seq):
    def wait(self, vm=(), lg=()):
        a = [n for n in (self._n(self.vm, t) for t in vm) if n is not None]
        b = [n for n in (self._n(self.lg, t) for t in lg) if n is not None]
        self.out.append(("wait", a[-1] if a else None, b[-1] if b else None))

    @staticmethod
    def text(out):
        L = []
        for x in out:
            if isinstance(x, tuple):
                p = ([f"vmcnt({x[1]})"] if x[1] is not None else []) + ([f"lgkmcnt({x[2]})"] if x[2] is not None else [])
                assert (x[1] or 0) < 64 and (x[2] or 0) < 16
                if p:
                    L.append("s_waitcnt " + " ".join(p))
            else:
                L.append(x)
        return "\n".join(L)

    def take(self):
        o, self.out = self.out, []
        return o


def merge(bodies):
    res = []
    for items in zip(*bodies):
        if isinstance(items[0], tuple):
            f = lambda i: min([x[i] for x in items if x[i] is not None], default=None)
            res.append(("wait", f(1), f(2)))
            assert res[-1] == bodies[3][len(res) - 1], (res[-1], items)
        else:
            assert all(x == items[0] for x in items), items
            res.append(items[0])
    return res


class Stamps:
    def __init__(self, on):
        self.on = on

    def mark(self, A, name, wait=True):
        sel = OPT.get("marks", "start,pub,tot,silu,loop,end,hh").split(",")
        if self.on and name in sel:
            i = sel.index(name)
            A(f"s_memrealtime s[{72+4*i}:{73+4*i}]\ns_memtime s[{74+4*i}:{75+4*i}]")
            if wait:
                A("s_waitcnt lgkmcnt(0)")

    def flush(self, A, kid, n):
        if self.on:
            A(f"s_lshl_b32 s100, s2, 2\ns_add_u32 s100, s100, s{S_W}\ns_lshl_b32 s100, s100, 6")
            A(f"s_add_u32 s100, s100, {STAMP + kid*0x20000:#x}")
            for i in range(n):
                A(f"v_mov_b32 v{VT}, s{72+4*i}\nv_mov_b32 v{VT+1}, s{74+4*i}")
                A(f"buffer_store_dwordx2 {v(VT,2)}, v{V63}, s[{SWS}:{SWS+3}], s100 offen offset:{8*i}")
                A("s_nop 1")


def w_loads(A, base):
    A(f"s_lshl_b32 s56, s{S_OQ}, 2\ns_add_u32 s56, s56, s{S_W}\ns_mul_i32 s56, s56, 9216")
    A(f"s_mul_i32 s57, s{S_W}, {WROW}")
    for k in range(9):
        if k in (0, 4, 8):
            A(f"s_add_u32 m0, s57, {base + 1024*k}")
            A("s_add_u32 s56, s56, 4096" if k else "s_nop 0")
        A(f"buffer_load_dwordx4 v{VDMA}, s[{SO}:{SO+3}], s56 offen offset:{1024*(k & 3)} lds")


def spin(A, L, load, check, first_in_flight=False):
    A(f"s_mov_b32 s58, {SPIN_MAX}")
    if first_in_flight:
        A(f"s_branch {L}_wait")
    A(f"{L}_poll:\n{load}\n{L}_wait:\ns_waitcnt vmcnt(0)\n{L}_chk:")
    A(check)
    A(f"s_cbranch_scc0 {L}_ok")
    A(f"s_sleep {OPT['slp']}\ns_sub_u32 s58, s58, 1\ns_cmp_lg_u32 s58, 0\ns_cbranch_scc1 {L}_poll")
    A(f"{L}_ok:")


POLL4 = f"buffer_load_dwordx4 {v(PLD,4)}, v{VPOLL}, s[{SWS}:{SWS+3}], s{S_POLL} offen sc1"


def job(A):
    G, M, RW, OUTP = 8, 80, 184, 200
    T = M + 12

    def greg(e):
        return G + (e % 9)*8 + e//9
    A("Ljob:")
    A(f"v_and_b32 v{M}, 3, v0\nv_lshrrev_b32 v{M+1}, 2, v0")
    A(f"v_mul_u32_u24 v{M}, {WROW}, v{M}\nv_mul_u32_u24 v{M+1}, 144, v{M+1}")
    A(f"s_mul_i32 s58, s{S_W}, 2304\ns_add_u32 s58, s58, s57\nv_add3_u32 v{M+1}, v{M}, v{M+1}, s58")
    for k in range(9):
        A(f"ds_read_b128 {v(RW+4*k,4)}, v{M+1} offset:{16*k}")
    A(f"v_mov_b32 v{M}, 0")
    for k in range(9):
        if k in (0, 1, 3, 6):
            A(f"s_waitcnt lgkmcnt({(8, 6, 0, 3, 0, 0, 0)[k]})")
        for d in range(4):
            e = 8*k + 2*d
            unpack_bf16(A, RW + 4*k + d, greg(e), greg(e+1))
        for d in range(4):
            e = 8*k + 2*d
            A(f"v_max3_f32 v{M}, |v{greg(e)}|, |v{greg(e+1)}|, v{M}")
    wave_reduce(A, [M], "v_max_f32")
    A(f"s_lshl_b32 s58, s{S_W}, 2\nv_add_u32 v{M+1}, s58, v{VXL}")
    A(LANE63)
    A(f"ds_write_b32 v{M+1}, v{M} offset:128")
    A("s_mov_b64 exec, -1")
    A(f"s_mul_i32 s58, s{S_GRP}, 786432\ns_add_u32 s56, s56, s58")
    A(f"s_bfe_u32 s58, s{S_RB}, 0x10003\ns_lshl_b32 s58, s58, 11\ns_add_u32 s56, s56, s58")
    A(f"s_and_b32 s58, s{S_RB}, 1\ns_lshl_b32 s58, s58, 10\ns_add_u32 s56, s56, s58")
    A(f"s_bfe_u32 s58, s{S_RB}, 0x20001\ns_lshl_b32 s58, s58, 8\ns_add_u32 s56, s56, s58")
    A(f"s_mul_i32 s58, s{S_W}, {4*49152}\ns_add_u32 s56, s56, s58\ns_xor_b32 s58, s56, 2048")
    A(f"s_bitcmp1_b32 s{S_IDX}, 0\ns_cselect_b32 s{S_J0}, s58, s56\ns_cselect_b32 s{S_J1}, s56, s58")
    A(f"s_cselect_b32 s58, {3*12288}, 0\ns_cselect_b32 s59, 12288, 0")
    A(f"s_add_u32 s{S_J0}, s{S_J0}, s58\ns_add_u32 s{S_J1}, s{S_J1}, s59\ns_add_u32 s{S_J1}, s{S_J1}, 12288")
    A("s_waitcnt lgkmcnt(0)\ns_barrier")
    A(f"ds_read_b128 {v(M+4,4)}, v{VXL} offset:128")
    A(f"v_lshrrev_b32 v{VS}, 4, v0\nv_mul_u32_u24 v{VS}, 49152, v{VS}\nv_and_b32 v{M+3}, 15, v0\nv_lshl_add_u32 v{VS}, v{M+3}, 4, v{VS}")
    A(f"s_bitcmp1_b32 s{S_IDX}, 0\ns_cselect_b32 s58, 0, 1.0\ns_cselect_b32 s59, 1.0, 0\ns_cselect_b32 s56, -0.5, 0.5")
    A("s_waitcnt lgkmcnt(0)")
    A(f"v_max3_f32 v{M+4}, v{M+4}, v{M+5}, v{M+6}\nv_max_f32 v{M+4}, v{M+4}, v{M+7}")
    A(f"v_frexp_exp_i32_f32 v{M+4}, v{M+4}\nv_min_i32 v{M+4}, 60, v{M+4}\nv_max_i32 v{M+4}, 0xffffffc4, v{M+4}")
    A(f"v_add_u32 v{M}, 119, v{M+4}\nv_lshlrev_b32 v{M}, 23, v{M}")
    K0, K1, K2, K3 = M + 4, M + 6, M + 8, M + 10
    A(f"v_sub_u32 v{T}, 135, v{M+4}\nv_lshlrev_b32 v{T}, 23, v{T}\nv_readfirstlane_b32 s{S_WS}, v{M}")
    A(f"v_mul_f32 v{K0}, s58, v{T}\nv_mul_f32 v{K0+1}, s59, v{T}\nv_mul_f32 v{K1}, 0.5, v{T}\nv_mul_f32 v{K1+1}, s56, v{T}")
    A(f"v_pk_mul_f32 {v(K2,2)}, {v(K0,2)}, 0.5 op_sel_hi:[1,0]\nv_pk_mul_f32 {v(K3,2)}, {v(K1,2)}, 0.5 op_sel_hi:[1,0]")
    LO2, HI2 = "op_sel_hi:[1,0]", "op_sel:[0,1] op_sel_hi:[1,1]"
    LO3, HI3 = "op_sel_hi:[1,0,1]", "op_sel:[0,1,0] op_sel_hi:[1,1,1]"
    for col in range(3):
        ka, kb = (K2, K3) if col == 1 else (K0, K1)
        regs = [(G + col*8 + cp, G + (3+col)*8 + cp, G + (6+col)*8 + cp, T + cp) for cp in range(0, 8, 2)]
        for g0, g1, g2, t in regs:
            A(f"v_pk_add_f32 {v(t,2)}, {v(g0,2)}, {v(g2,2)}")
            A(f"v_pk_mul_f32 {v(g0,2)}, {v(g0,2)}, {v(ka,2)} {LO2}")
            A(f"v_pk_mul_f32 {v(g1,2)}, {v(g1,2)}, {v(kb,2)} {HI2}")
        for g0, g1, g2, t in regs:
            A(f"v_pk_fma_f32 {v(g0,2)}, {v(g2,2)}, {v(ka,2)}, {v(g0,2)} {HI3}")
            A(f"v_pk_fma_f32 {v(g1,2)}, {v(t,2)}, {v(kb,2)}, {v(g1,2)} {LO3}")
        if col == OPT.get("hook", 1):
            A(f"s_cmp_lg_u32 s{S_W}, 0\ns_cbranch_scc1 Ljob_mid\n{POLL4}\nLjob_mid:")
    N3 = "neg_lo:[0,0,1] neg_hi:[0,0,1]"
    for i, r in enumerate((G, G + 24)):
        for cp in range(0, 8, 2):
            A(f"v_pk_add_f32 {v(T+cp,2)}, {v(r+cp,2)}, {v(r+16+cp,2)}")
        for cp in range(0, 8, 2):
            A(f"v_pk_fma_f32 {v(r+cp,2)}, {v(T+cp,2)}, 0.5, {v(r+8+cp,2)} {LO3}")
            A(f"v_pk_fma_f32 {v(r+8+cp,2)}, {v(T+cp,2)}, 0.5, {v(r+8+cp,2)} {LO3} {N3}")
        for j, src in enumerate((r+16, r, r+8)):
            o = OUTP + (i*3 + j)*4
            for d in range(4):
                A(f"v_cvt_pk_f16_f32 v{o+d}, v{src+2*d}, v{src+2*d+1}")
            if i or j:
                trim(A, o, 4, OPT["trimU"])
    A(f"s_cmp_eq_u32 s{S_RET}, 0\ns_cbranch_scc1 Lret0\ns_branch Lret1")


def job_stores(A):
    for i in range(2):
        for j in range(3):
            A(f"buffer_store_dwordx4 {v(200 + (i*3 + j)*4, 4)}, v{VS}, s[{SWS}:{SWS+3}], s{S_J0+i} offen sc1")
            if j < 2:
                A(f"s_add_u32 s{S_J0+i}, s{S_J0+i}, 4096")


def x_loads():
    ld = []
    for k in range(8):
        for rho in range(2):
            t = f"buffer_load_dwordx2 {v(XR + (rho*8 + k)*2, 2)}, v{VX+rho}, s[{SX}:{SX+3}], s59 offen"
            if rho == 1 and k < 7:
                t += "\ns_add_u32 s59, s59, 8192"
            ld.append(t)
    ld[0] = f"s_mov_b32 s59, s{S_XO}\n" + ld[0]
    return ld


def kernel(stamps):
    A = Asm()
    st = Stamps(stamps)
    header(A, NAME)
    st.mark(A, "start", False)
    A("s_cmp_ge_u32 s2, 256\ns_cbranch_scc1 Lexit")
    A("s_load_dwordx16 s[4:19], s[0:1], 0")
    A("s_load_dwordx8 s[20:27], s[0:1], 64")
    A("v_lshrrev_b32 v8, 6, v0\nv_and_b32 v0, 63, v0")
    A(f"v_readfirstlane_b32 s{S_W}, v8")
    A(f"s_and_b32 s{S_GRP}, s2, 7\ns_lshr_b32 s{S_IDX}, s2, 3\ns_lshr_b32 s{S_B}, s{S_GRP}, 2")
    A(f"s_and_b32 s{S_NB}, s{S_GRP}, 3\ns_lshl_b32 s{S_NB}, s{S_NB}, 1\ns_and_b32 s56, s{S_IDX}, 1\ns_add_u32 s{S_NB}, s{S_NB}, s56")
    A(f"s_lshr_b32 s{S_RB}, s{S_IDX}, 1\ns_lshl_b32 s{S_OQ}, s{S_GRP}, 4\ns_add_u32 s{S_OQ}, s{S_OQ}, s{S_RB}")
    A("v_and_b32 v9, 15, v0\nv_lshrrev_b32 v10, 4, v0")
    A(f"v_lshlrev_b32 v{VDMA}, 4, v0")
    A(f"s_and_b32 s44, s{S_W}, 1\ns_lshl_b32 s56, s{S_NB}, 1\ns_add_u32 s44, s44, s56")
    A(f"s_lshr_b32 s45, s{S_W}, 1\ns_lshl_b32 s56, s{S_RB}, 1\ns_add_u32 s45, s45, s56")
    A(f"s_lshl_b32 s46, s{S_B}, 22\ns_lshl_b32 s56, s44, 18\ns_add_u32 s46, s46, s56")
    A(f"s_lshl_b32 s47, s45, 8\ns_add_u32 s47, s47, s46")
    A(f"v_lshlrev_b32 v11, 16, v10\nv_lshl_add_u32 v{VD}, v9, 4, v11\nv_lshl_add_u32 v11, v9, 3, v11")
    A(f"s_cmp_eq_u32 s{S_W}, 3\ns_cselect_b32 s56, 128, 0\nv_add_u32 v{VX}, s56, v11\nv_xor_b32 v{VX+1}, 128, v{VX}")
    A(f"s_mov_b32 s{S_MASK}, 0xffff0000")
    A("s_waitcnt lgkmcnt(0)")
    srd(A, SX, 4, 0x800000)
    srd(A, SO, 12, 512*9216)
    A(f"s_load_dword s{S_TAG}, s[26:27], {GEN}")
    A(f"s_cmp_lt_u32 s{S_W}, 2\ns_cbranch_scc1 Lside0\ns_cmp_eq_u32 s{S_W}, 3\ns_cbranch_scc1 Lside3")
    for i, p in enumerate((8, 10, 16, 18)):
        A(f"global_load_dwordx4 {v(16+4*i,4)}, v{VDMA}, s[{p}:{p+1}]")
    A("s_branch Lside0\nLside3:")
    A(f"v_lshrrev_b32 v12, 3, v0\ns_mul_i32 s56, s{S_RB}, 24\nv_add_u32 v12, s56, v12")
    A(f"s_and_b32 s56, s{S_IDX}, 1\ns_mul_i32 s56, s56, 768\nv_lshl_add_u32 v13, v12, 1, s56")
    for i in range(3):
        A(f"global_load_ushort v{16+i}, v13, s[6:7] offset:{16*i}")
    A(f"v_and_b32 v13, 7, v0\nv_lshlrev_b32 v13, 4, v13\nv_lshl_add_u32 v13, v12, 10, v13\ns_lshl_b32 s56, s{S_GRP}, 7\nv_add_u32 v13, s56, v13")
    for i in range(3):
        A(f"global_load_dwordx4 {v(20+4*i,4)}, v13, s[14:15]")
        if i < 2:
            A("v_add_u32 v13, 8192, v13")
    A("Lside0:")
    A(f"s_mov_b32 s{S_XO}, s47")
    for t in x_loads():
        A(t)
    srd(A, SWS, 26, WS_BYTES)
    A(f"s_lshl_b32 s56, s{S_B}, 22\ns_add_u32 s56, s56, {D1 - 1024:#x}")
    A(f"s_add_u32 s{SD}, s26, s56\ns_addc_u32 s{SD+1}, s27, 0\ns_mov_b32 s{SD+2}, {0x400000 + 1024:#x}\ns_mov_b32 s{SD+3}, 0x20000")
    A(f"s_lshl_b32 s56, s45, 11\ns_add_u32 s{S_RA}, s46, s56\ns_add_u32 s{S_RA}, s{S_RA}, {D1:#x}")
    A(f"s_cmp_eq_u32 s{S_W}, 3\ns_cselect_b32 s56, 1024, 0\ns_add_u32 s{S_RA}, s{S_RA}, s56\ns_xor_b32 s{S_RB2}, s{S_RA}, 1024")
    A(f"s_mul_i32 s{S_SLOT}, s{S_GRP}, {GRPS}\ns_lshl_b32 s56, s{S_IDX}, 7\ns_add_u32 s{S_SLOT}, s{S_SLOT}, s56")
    A(f"s_lshl_b32 s56, s44, 6\nv_lshlrev_b32 v237, 4, v10\nv_add_u32 v237, s56, v237")
    A(f"v_add_u32 v{VDMA2}, 4096, v{VDMA}")
    A(f"s_cmp_eq_u32 s{S_RB}, 0\ns_cselect_b32 s56, {OOB:#x}, 0\nv_add_u32 v{VTOP}, s56, v{VDMA}")
    A(f"s_cmp_eq_u32 s{S_RB}, 15\ns_cselect_b32 s56, {OOB:#x}, 0\nv_add_u32 v{VBOT}, s56, v{VDMA2}")
    A(f"v_lshrrev_b32 v11, 2, v9\nv_lshlrev_b32 v11, 8, v11\nv_lshl_add_u32 v11, v10, 6, v11")
    A(f"v_and_b32 v14, 3, v9\nv_lshl_add_u32 v{VU}, v14, 4, v11")
    A(f"s_lshl_b32 s57, s{S_W}, 10\ns_lshr_b32 s56, s{S_W}, 1\ns_sub_u32 s58, 2, s56\ns_lshl_b32 s58, s58, 10\ns_lshl_b32 s56, s56, 11")
    A(f"v_mul_u32_u24 v11, 6144, v10\nv_lshl_add_u32 v11, v9, 4, v11")
    A(f"v_add_u32 v14, s56, v11\ns_xor_b32 s56, s56, 2048\nv_add_u32 v11, s56, v11")
    A(f"v_add_u32 v{VA}, s57, v14\nv_add_u32 v{VB}, s58, v14\nv_add_u32 v{VA1}, s57, v11\nv_add_u32 v{VB1}, s58, v11")
    A(f"s_mov_b32 s56, 0xbc00bc00\ns_cmp_eq_u32 s{S_W}, 1\ns_cselect_b32 s{S_SGN}, 0x3c003c00, s56")
    A(f"s_mul_i32 s{S_M0}, s{S_W}, 6144")
    for phi in (1, 2, 3):
        A(f"s_xor_b32 s56, s{S_W}, {phi}\ns_mul_i32 s56, s56, 3\ns_add_u32 s56, s56, {phi-1}\ns_lshl_b32 s56, s56, 13\nv_add_u32 v{VW[phi]}, s56, v{VDMA}")
    A(f"s_lshl_b32 s57, s{S_W}, 2\ns_mul_i32 s58, s{S_W}, 3")
    for r, tab in zip(VR, (0x1100, 0x0221, 0x2012)):
        A(f"s_lshr_b32 s56, {tab:#x}, s57\ns_and_b32 s56, s56, 15\ns_add_u32 s56, s56, s58\ns_lshl_b32 s56, s56, 13\nv_add_u32 v{r}, s56, v{VDMA}")
    A(f"s_cmp_eq_u32 s{S_W}, 3\ns_cselect_b32 s{S_AG}, -1.0, 1.0\ns_cmp_ge_u32 s{S_W}, 2\ns_cselect_b32 s{S_AG+1}, 1.0, -1.0")
    A(f"s_xor_b32 s{S_BB+1}, s{S_AG+1}, 0x80000000\ns_add_u32 s56, s{S_W}, 1\ns_bitcmp1_b32 s56, 1")
    A(f"s_cselect_b32 s{S_BB}, 0, 1.0\ns_cselect_b32 s{S_BB+1}, s{S_BB+1}, 0")
    A(f"v_cmp_eq_u32 vcc, 63, v0\nv_mov_b32 v11, {OOB:#x}\nv_mov_b32 v{VXL}, {XLDS}\nv_cndmask_b32 v{V63}, v11, 0, vcc")
    A(f"s_mov_b32 s{S_IT}, 0\ns_waitcnt lgkmcnt(0)\ns_add_u32 s{S_TAG}, s{S_TAG}, {TAGSTEP:#x}")
    if OPT.get("wwait") is not None:
        A(f"s_waitcnt vmcnt({OPT['wwait']})")
    w_loads(A, WLDS)
    A(f"s_mov_b32 s{SO}, s20\ns_mov_b32 s{SO+1}, s21")
    A(f"s_cmp_lt_u32 s{S_W}, 2\ns_cbranch_scc1 Lside1\ns_waitcnt vmcnt(25)\ns_cmp_eq_u32 s{S_W}, 3\ns_cbranch_scc1 Lside4")
    A("v_mov_b32 v12, 0\nv_mov_b32 v13, 0")
    for d in range(16):
        unpack_bf16(A, 16 + d, 14, 15)
        A(f"v_max3_f32 v{12 + d//8}, |v14|, |v15|, v{12 + d//8}")
    A("s_nop 0")
    wave_reduce(A, [12, 13], "v_max_f32")
    for r in (12, 13):
        A(f"v_frexp_exp_i32_f32 v{r}, v{r}\nv_min_i32 v{r}, 60, v{r}\nv_max_i32 v{r}, 0xffffffc4, v{r}")
    A(LANE63)
    A(f"ds_write_b64 v{VXL}, v[12:13] offset:72\ns_mov_b64 exec, -1\ns_branch Lside1")
    A("Lside4:")
    for i in range(3):
        A(f"v_lshlrev_b32 v{16+i}, 16, v{16+i}")
    for op in (f"v_mul_f32 v{{t}}, {NLOG2E:#x}, v{{x}}", "v_exp_f32 v{t}, v{t}", "v_add_f32 v{t}, 1.0, v{t}",
               "v_rcp_f32 v{t}, v{t}", "v_mul_f32 v{x}, v{x}, v{t}"):
        for i in range(3):
            A(op.format(t=32+i, x=16+i))
    for i in range(3):
        for d in range(4):
            unpack_bf16(A, 20 + 4*i + d, 44 + 2*d, 45 + 2*d)
        for k in range(8):
            A(f"v_mul_f32 v{36+k}, v{44+k}, v{16+i}" if i == 0 else f"v_fmac_f32 v{36+k}, v{44+k}, v{16+i}")
    for k in range(8):
        A(f"v_add_f32_dpp v{36+k}, v{36+k}, v{36+k} row_ror:8 row_mask:0xf bank_mask:0xf")
    A("s_nop 1")
    for k in (0, 1, 4, 5):
        A(f"v_permlane16_swap_b32 v{36+k}, v{38+k}")
    for k in (0, 1, 4, 5):
        A(f"v_add_f32 v{36+k}, v{36+k}, v{38+k}")
    A("s_nop 1")
    for k in (0, 1):
        A(f"v_permlane32_swap_b32 v{36+k}, v{40+k}")
    for k in (0, 1):
        A(f"v_add_f32 v{36+k}, v{36+k}, v{40+k}")
    A("v_and_b32 v12, 7, v0\nv_lshlrev_b32 v12, 5, v12\nv_lshl_add_u32 v12, v10, 3, v12")
    A(f"s_and_b32 s56, s{S_IDX}, 1\ns_lshl_b32 s56, s56, 7\ns_add_u32 s56, s56, s{S_OQ}\ns_lshl_b32 s56, s56, 8\ns_add_u32 s56, s56, {EMBP:#x}")
    A(f"s_waitcnt vmcnt(9)\nbuffer_store_dwordx2 v[36:37], v12, s[{SWS}:{SWS+3}], s56 offen sc1\ns_branch Lside2")
    A("Lside1:\ns_waitcnt vmcnt(9)\nLside2:")
    st.mark(A, "xin")
    for k in range(8):
        for rho in range(2):
            r = XR + (rho*8 + k)*2
            unpack_bf16(A, r, H + (rho*4 + 0)*8 + k, H + (rho*4 + 1)*8 + k)
            unpack_bf16(A, r+1, H + (rho*4 + 2)*8 + k, H + (rho*4 + 3)*8 + k)

    A("Lstats:")
    P = 72
    for p in range(8):
        for k in range(0, 8, 2):
            x = H + p*8 + k
            a = P + (k & 2)
            if p == 0 and k < 4:
                A(f"v_pk_add_f32 {v(a,2)}, {v(x,2)}, {v(x+4,2)}")
                A(f"v_pk_mul_f32 {v(a+4,2)}, {v(x,2)}, {v(x,2)}")
                continue
            if p:
                A(f"v_pk_add_f32 {v(a,2)}, {v(a,2)}, {v(x,2)}")
            A(f"v_pk_fma_f32 {v(a+4,2)}, {v(x,2)}, {v(x,2)}, {v(a+4,2)}")
    A(f"v_pk_add_f32 {v(P,2)}, {v(P,2)}, {v(P+2,2)}")
    A(f"v_pk_add_f32 {v(P+4,2)}, {v(P+4,2)}, {v(P+6,2)}")
    A(f"v_add_f32 v{P}, v{P}, v{P+1}\nv_add_f32 v{P+1}, v{P+4}, v{P+5}")
    wave_reduce(A, [P, P+1])
    A(f"s_lshl_b32 s56, s{S_W}, 3\nv_add_u32 v{P+2}, s56, v{VXL}")
    A(LANE63)
    A(f"ds_write_b64 v{P+2}, {v(P,2)}")
    A("s_mov_b64 exec, -1")
    A(f"s_lshl_b32 s59, s{S_IT}, 16\ns_add_u32 s56, s59, s{S_SLOT}\ns_add_u32 s56, s56, {STAT:#x}")
    A("s_waitcnt lgkmcnt(0)\ns_barrier")
    A(f"s_cmp_lg_u32 s{S_W}, 0\ns_cbranch_scc1 Lnopub")
    A(f"ds_read_b128 {v(P,4)}, v{VXL}\nds_read_b128 {v(P+4,4)}, v{VXL} offset:16")
    A(f"v_mov_b32 v101, s{S_TAG}\nv_mov_b32 v103, s{S_TAG}\ns_waitcnt lgkmcnt(0)")
    A(f"v_pk_add_f32 {v(P,2)}, {v(P,2)}, {v(P+2,2)}\nv_pk_add_f32 {v(P+4,2)}, {v(P+4,2)}, {v(P+6,2)}")
    A(f"v_add_f32 v100, v{P}, v{P+4}\nv_add_f32 v102, v{P+1}, v{P+5}")
    A(f"buffer_store_dwordx4 v[100:103], v{V63}, s[{SWS}:{SWS+3}], s56 offen sc1")
    A("Lnopub:")
    st.mark(A, "pub")
    A(f"global_load_dwordx4 {v(GR,4)}, v237, s[8:9]\nglobal_load_dwordx4 {v(BR,4)}, v237, s[10:11]")
    A(f"s_mul_i32 s{S_POLL}, s{S_GRP}, {GRPS}\ns_add_u32 s{S_POLL}, s{S_POLL}, s59\ns_add_u32 s{S_POLL}, s{S_POLL}, {STAT:#x}")
    A(f"v_cmp_gt_u32 vcc, 32, v0\nv_mov_b32 v{P}, {OOB:#x}\nv_lshlrev_b32 v{VPOLL}, 7, v0\nv_cndmask_b32 v{VPOLL}, v{P}, v{VPOLL}, vcc")
    A(f"s_cmp_lg_u32 s{S_IT}, 0\ns_cbranch_scc1 Lnojob0")
    A(f"s_bitcmp1_b32 0x9, s{S_W}\ns_cbranch_scc1 Lw3\ns_waitcnt vmcnt(2)\nLw3:\ns_waitcnt vmcnt(3)\ns_barrier")
    st.mark(A, "win")
    w_loads(A, 0)
    A(f"s_mov_b32 s{S_RET}, 0\ns_mov_b32 s56, {U1:#x}\ns_mov_b32 s57, {WLDS}\ns_branch Ljob")
    A("Lret0:")
    job_stores(A)
    st.mark(A, "job0")
    A(f"s_cmp_lg_u32 s{S_W}, 0\ns_cbranch_scc1 Ljoin0")
    A(f"s_mov_b32 s58, {SPIN_MAX}\ns_waitcnt vmcnt(6)\ns_branch Ls_chk")
    A("Ljoin0:\ns_waitcnt vmcnt(15)\ns_branch Ljoin")
    A("Lnojob0:")
    A(f"s_waitcnt vmcnt(0)\ns_cmp_lg_u32 s{S_W}, 0\ns_cbranch_scc1 Ljoin")
    if OPT["delay"]:
        A(f"s_sleep {OPT['delay']}")
    spin(A, "Ls", POLL4, f"v_cmp_ne_u32 vcc, s{S_TAG}, v{PLD+1}\nv_cmp_ne_u32 s[56:57], s{S_TAG}, v{PLD+3}\ns_nop 1\ns_or_b32 s56, s56, vcc_lo")
    A(f"v_mov_b32 v{PLD+1}, v{PLD+2}\ns_nop 0")
    wave_reduce(A, [PLD, PLD+1])
    A(LANE63)
    A(f"ds_write_b64 v{VXL}, {v(PLD,2)} offset:64")
    A("s_mov_b64 exec, -1\ns_waitcnt lgkmcnt(0)")
    A("Ljoin:")
    GA, GB, A1, B1, A2, B2, TT, OUT = 8, 16, 24, 32, 40, 48, 56, 72
    for d in range(4):
        unpack_bf16(A, GR + d, GA + 2*d, GA + 2*d + 1)
        unpack_bf16(A, BR + d, GB + 2*d, GB + 2*d + 1)
    A("s_barrier")
    st.mark(A, "b4")
    A(f"ds_read_b128 {v(PLD,4)}, v{VXL} offset:64")
    A(f"s_cmp_lg_u32 s{S_IT}, 0\ns_cselect_b64 vcc, -1, 0\ns_waitcnt lgkmcnt(0)")
    A(f"v_cndmask_b32 v{PLD+3}, v{PLD+2}, v{PLD+3}, vcc\ns_nop 0")
    st.mark(A, "tot")
    A(f"v_readfirstlane_b32 s56, v{PLD+3}\ns_nop 1")
    A(f"s_sub_u32 s{S_ASC}, 130, s56\ns_lshl_b32 s{S_ASC}, s{S_ASC}, 23")
    A(f"s_add_u32 s{S_INV}, s56, 124\ns_lshl_b32 s{S_INV}, s{S_INV}, 23")
    gn_coeffs(A, PLD, PLD+1, GA, GB, A1, B1, A2, B2, f"s{S_ASC}", TT)
    A(f"v_mov_b32 v{VT}, s{S_TAG}\nv_mov_b32 v{VT+1}, s{S_TAG}")
    A(f"s_lshl_b32 s59, s{S_IT}, 16\ns_add_u32 s57, s59, s{S_SLOT}\ns_lshl_b32 s56, s{S_W}, 4\ns_add_u32 s56, s56, s57\ns_add_u32 s56, s56, {UF:#x}")
    A(f"v_mov_b32 v{PLD}, s{S_TAG}\nv_mov_b32 v{PLD+1}, s{S_TAG}\nv_mov_b32 v{PLD+2}, s{S_WS}")
    ufp = OPT.get("ufp", 4)
    for p in range(8):
        o = OUT + 4*p
        silu8(A, H + p*8, A1, B1, A2, B2, TT + 8*(p & 1), o)
        A(f"buffer_store_dwordx4 {v(o,4)}, v{VD}, s[{SWS}:{SWS+3}], s{S_RA + (p >> 2)} offen offset:{256*(p & 3)} sc1")
        if p == ufp:
            A(f"s_waitcnt vmcnt({ufp + 1})")
            A(f"buffer_store_dwordx4 {v(PLD,4)}, v{V63}, s[{SWS}:{SWS+3}], s56 offen sc1")
    st.mark(A, "silu")
    A(f"v_lshrrev_b32 v8, 2, v0\nv_lshlrev_b32 v8, 8, v8\nv_and_b32 v9, 3, v0\nv_lshl_add_u32 v8, v9, 4, v8")
    A(f"s_mul_i32 s{S_POLL}, s{S_NB}, {GRPS}\ns_lshr_b32 s56, s{S_W}, 1\ns_lshl_b32 s56, s56, 7\ns_add_u32 s{S_POLL}, s{S_POLL}, s56")
    A(f"s_add_u32 s{S_POLL}, s{S_POLL}, s59\ns_add_u32 s{S_POLL}, s{S_POLL}, {UF:#x}")
    upoll = f"buffer_load_dwordx2 v[10:11], v8, s[{SWS}:{SWS+3}], s{S_POLL} offen sc1"
    zsplit = OPT.get("zsplit", 96)
    for i in range(256):
        if i == zsplit:
            A(upoll)
        A(f"v_accvgpr_write_b32 a{i}, 0")
    A(f"s_add_u32 s57, s57, {DF:#x}")
    st.mark(A, "zero")
    A("s_waitcnt vmcnt(1)\ns_barrier")
    st.mark(A, "b5")
    A(f"s_cmp_lg_u32 s{S_W}, 0\ns_cbranch_scc1 Lnodf")
    A(f"buffer_store_dwordx2 {v(VT,2)}, v{V63}, s[{SWS}:{SWS+3}], s57 offen sc1\ns_mov_b32 s58, {SPIN_MAX}\ns_waitcnt vmcnt(1)\ns_branch Lu_chk")
    A("Lnodf:")
    ucheck = f"v_cmp_ne_u32 vcc, s{S_TAG}, v10\nv_cmp_ne_u32 s[56:57], s{S_TAG}, v11\ns_nop 1\ns_or_b64 s[56:57], s[56:57], vcc"
    spin(A, "Lu", upoll, ucheck, True)
    st.mark(A, "uok")
    A(f"s_mul_i32 s{S_U0}, s{S_NB}, 786432\ns_mul_i32 s56, s{S_W}, 12288\ns_add_u32 s{S_U0}, s{S_U0}, s56")
    A(f"s_lshl_b32 s56, s{S_IT}, 23\ns_add_u32 s{S_U0}, s{S_U0}, s56")
    A(f"s_add_u32 s{S_U0}, s{S_U0}, {U1:#x}\ns_add_u32 s{S_U1}, s{S_U0}, 4096\ns_add_u32 s{S_U2}, s{S_U0}, 8192")
    Q = Seq()
    for k, j in ((0, 0), (0, 1), (0, 2), (1, 0)):
        for nu in range(4):
            u_load(Q, k, j, nu)
    A(Seq.text(Q.take()))
    A(f"s_lshl_b32 s{S_DMA}, s{S_W}, 16\ns_lshl_b32 s56, s{S_RB}, 12\ns_add_u32 s{S_DMA}, s{S_DMA}, s56")
    A(f"v_lshrrev_b32 v8, 3, v0\nv_min_u32 v8, 2, v8\nv_add_u32 v8, s{S_RB}, v8\nv_add_u32 v8, -1, v8\nv_med3_i32 v8, v8, 0, 15")
    A(f"v_and_b32 v9, 1, v0\nv_lshl_add_u32 v8, v8, 1, v9\nv_lshlrev_b32 v8, 7, v8")
    A(f"v_bfe_u32 v9, v0, 1, 2\nv_mul_u32_u24 v9, {GRPS}, v9\nv_add_u32 v{VPOLL}, v8, v9")
    A(f"s_mul_i32 s{S_POLL}, s{S_B}, {4*GRPS}\ns_add_u32 s{S_POLL}, s{S_POLL}, s59\ns_add_u32 s{S_POLL}, s{S_POLL}, {DF:#x}")
    A(f"s_cmp_lg_u32 s{S_IT}, 0\ns_cbranch_scc1 Lnojob1")
    A(f"s_mov_b32 s{S_RET}, 1\ns_mov_b32 s56, {U2:#x}\ns_mov_b32 s57, 0\ns_branch Ljob")
    A("Lnojob1:")
    A(f"s_cmp_lg_u32 s{S_W}, 0\ns_cbranch_scc1 Ld_ok")
    A(f"s_sleep {OPT['delayd']}\n{POLL4}")
    A("Lret1:")
    st.mark(A, "job1")
    A(f"s_cmp_lg_u32 s{S_W}, 0\ns_cbranch_scc1 Ld_ok")
    spin(A, "Ld", POLL4, f"v_cmp_ne_u32 vcc, s{S_TAG}, v{PLD}\nv_cmp_ne_u32 s[56:57], s{S_TAG}, v{PLD+1}\ns_nop 1\ns_or_b64 s[56:57], s[56:57], vcc", True)
    A("s_barrier")
    st.mark(A, "b6")

    def dma_all(k, z=lambda: None):
        for p in range(6):
            if p in (0, 4):
                dma_m0(Q, k, p >> 2); Q.raw("s_nop 0")
            dma(Q, k, p); z()
    dma_all(0)
    dma_all(1)
    Q.raw(f"s_xor_b32 s{S_M0}, s{S_M0}, 0x10000")
    dma_all(2)
    for nu in range(4):
        u_load(Q, 1, 1, nu)
    Q.wait(vm=[("raw", 0)])
    Q.raw("s_barrier")
    for par in range(2):
        for tb in range(4):
            raw_read(Q, 0, par, tb, 0); raw_read(Q, 0, par, tb, 1)
    for par in range(2):
        for tb in range(4):
            Q.wait(lg=[("rd", 0, par, tb)])
            for d in range(4):
                h_op(Q, 0, par, tb, d)
    Q.wait(vm=[("raw", 1)])
    A(Seq.text(Q.take()))
    A(f"s_mov_b32 s{S_CNT}, 7\ns_cmp_lg_u32 s{S_IT}, 0\ns_cbranch_scc1 Lnost")
    job_stores(A)
    A("s_branch Lgo\nLnost:")
    A(f"s_cmp_lg_u32 s2, 2\ns_cbranch_scc1 Lgo\ns_cmp_lg_u32 s{S_W}, 0\ns_cbranch_scc1 Lgo")
    A(f"buffer_store_dword v{VT}, v{V63}, s[{SWS}:{SWS+3}], 0 offen offset:{GEN} sc1")
    A("Lgo:")
    st.mark(A, "loop")
    bodies = []
    for n in range(7):
        gen.step(Q, 2*n)
        gen.step(Q, 2*n + 1, {63: [lambda: Q.raw(f"s_sub_u32 s{S_CNT}, s{S_CNT}, 1\ns_cmp_lg_u32 s{S_CNT}, 0\ns_cbranch_scc1 Lloop")]})
        bodies.append(Q.take())
    A(".p2align 6\nLloop:")
    A(Seq.text(merge(bodies)))
    R = lambda t: [lambda: Q.raw(t)]
    gen.step(Q, 14, {9: R(f"v_and_b32 v238, 127, v237\nv_lshlrev_b32 v239, 1, v238\nv_lshlrev_b32 v238, 5, v238"),
                     11: R(f"v_and_b32 v{VPOLL}, 15, v0\nv_lshl_add_u32 v{VPOLL}, v{VPOLL}, 8, v239"),
                     17: R(f"s_mul_i32 s56, s{S_NB}, {GRPS}\ns_lshl_b32 s57, s{S_IT}, 16\ns_add_u32 s56, s56, s57"),
                     19: R(f"s_lshl_b32 s57, s{S_B}, 3\ns_add_u32 s57, s57, s{S_NB}"),
                     22: R(f"s_lshl_b32 s57, s57, 12\ns_add_u32 s57, s57, {EMBP:#x}"),
                     26: R(f"s_add_u32 s56, s56, {UF:#x}")})
    gen.step(Q, 15, {g: R(f"@{g}") for g in range(31, 64)})
    out = Q.take()
    cut = out.index("@31")
    A(Seq.text(out[:cut]))
    sc_ld = [f"buffer_load_dword v{SCR+h}, v238, s[{SWS}:{SWS+3}], s56 offen offset:{8 + 256*h} sc1" for h in range(2)]
    em_ld = [f"buffer_load_dwordx4 {v(EMR+4*h,4)}, v{VPOLL}, s[{SWS}:{SWS+3}], s57 offen offset:{16*h} sc1" for h in range(2)]
    free = [33, 34, 35, 38, 39, 42, 43, 46, 49, 50, 51, 52, 53, 54, 55, 56, 57, 58]
    A(f"s_cmp_lg_u32 s{S_IT}, 0\ns_cbranch_scc1 Ltail1")
    for it, ld in enumerate((sc_ld + em_ld, x_loads() + sc_ld)):
        m = dict(zip(free, ld))
        A(Seq.text([m.get(int(x[1:]), "") if isinstance(x, str) and x.startswith("@") else x for x in out[cut:]]))
        if it == 0:
            A("s_branch Lepi\nLtail1:")
    A("Lepi:")
    st.mark(A, "end")
    RB_, ZB = [8, 40], [72, 88]
    XB = [8, 20, 72, 84]
    order = [(nul, q) for nul in range(2) for q in range(4)]

    def rd(n):
        nul, q = order[n]
        for i in range(3):
            A(f"ds_read_b128 {v(XB[n & 3] + 4*i, 4)}, v{VR[i]} offset:{(nul*4 + q)*1024}")
    n = 0
    pend = []
    for phi in (2, 1, 3, 0):
        sg, nup = phi >> 1, phi & 1
        for nul in range(2):
            nu = 2*nup + nul
            Rr = RB_[n & 1]
            Z = (lambda q, zb=ZB[n & 1]: zb + 4*q) if phi else (lambda q, nul=nul: H + q*8 + nul*4)
            n += 1
            m = lambda j, be, r=0: Rr + j*8 + be*4 + r
            cnt = 0
            for j in range(4):
                for be in range(2):
                    for r in range(4):
                        A(f"v_accvgpr_read_b32 v{m(j,be,r)}, a{j*64 + nu*16 + (2*sg + be)*4 + r}")
                        cnt += 1
                        while pend and cnt >= OPT["wpos"][4 - len(pend)]:
                            A(pend.pop(0))
            if n > 2 and phi:
                A("s_waitcnt lgkmcnt(4)")
            for r in (0, 2):
                A(f"v_pk_add_f32 {v(Z(0)+r,2)}, {v(m(1,0,r),2)}, {v(m(2,0,r),2)} {NEG1}")
                A(f"v_pk_add_f32 {v(Z(1)+r,2)}, {v(m(1,0,r),2)}, {v(m(2,0,r),2)}")
                A(f"v_pk_add_f32 {v(Z(2)+r,2)}, {v(m(1,1,r),2)}, {v(m(2,1,r),2)} {NEG1}")
                A(f"v_pk_add_f32 {v(Z(3)+r,2)}, {v(m(1,1,r),2)}, {v(m(2,1,r),2)}")
            for r in (0, 2):
                A(f"v_pk_add_f32 {v(Z(0)+r,2)}, {v(Z(0)+r,2)}, {v(m(3,0,r),2)} {NEG1}")
                A(f"v_pk_add_f32 {v(Z(1)+r,2)}, {v(Z(1)+r,2)}, {v(m(0,0,r),2)} {NEG1}")
                A(f"v_pk_add_f32 {v(Z(2)+r,2)}, {v(Z(2)+r,2)}, {v(m(3,1,r),2)} {NEG1}")
                A(f"v_pk_add_f32 {v(Z(3)+r,2)}, {v(Z(3)+r,2)}, {v(m(0,1,r),2)} {NEG1}")
            for r in (0, 2):
                A(f"v_pk_add_f32 {v(Z(1)+r,2)}, {v(Z(1)+r,2)}, {v(m(0,1,r),2)}")
                A(f"v_pk_add_f32 {v(Z(2)+r,2)}, {v(Z(2)+r,2)}, {v(m(3,0,r),2)}")
            for r in range(4):
                A(f"v_add_f32_dpp v{Z(0)+r}, v{m(3,1,r)}, v{Z(0)+r} row_shr:1 row_mask:0xf bank_mask:0xf bound_ctrl:1")
            for r in range(4):
                A(f"v_add_f32_dpp v{Z(3)+r}, v{m(0,0,r)}, v{Z(3)+r} row_shl:1 row_mask:0xf bank_mask:0xf bound_ctrl:1")
            if phi:
                pend = [f"ds_write_b128 v{VW[phi]}, {v(Z(q),4)} offset:{(nul*4 + q)*1024}" for q in (1, 2, 0, 3)]
            elif nul == 0:
                A("s_waitcnt lgkmcnt(0)\ns_barrier")
                for i in range(4):
                    rd(i)
    LO, HI = "op_sel_hi:[1,0,1]", "op_sel:[0,1,0] op_sel_hi:[1,1,1]"
    ag, bb = f"s[{S_AG}:{S_AG+1}]", f"s[{S_BB}:{S_BB+1}]"
    for n in range(8):
        A(f"s_waitcnt lgkmcnt({3*min(3, 7-n)})")
        nul, q = order[n]
        x = XB[n & 3]
        ha, hb = H + q*8 + nul*4, H + 32 + q*8 + nul*4
        for r in (0, 2):
            A(f"v_pk_fma_f32 {v(hb+r,2)}, {v(x+4+r,2)}, {ag}, {v(x+8+r,2)} {HI}")
        for r in (0, 2):
            A(f"v_pk_fma_f32 {v(x+4+r,2)}, {v(x+4+r,2)}, {ag}, {v(x+r,2)} {LO}")
        for r in (0, 2):
            A(f"v_pk_fma_f32 {v(hb+r,2)}, {v(x+r,2)}, {bb}, {v(hb+r,2)} {LO}")
        for r in (0, 2):
            A(f"v_pk_fma_f32 {v(hb+r,2)}, {v(ha+r,2)}, {bb}, {v(hb+r,2)} {HI}")
        for r in (0, 2):
            A(f"v_pk_add_f32 {v(ha+r,2)}, {v(ha+r,2)}, {v(x+4+r,2)}")
        if n + 4 < 8:
            rd(n + 4)
    st.mark(A, "hh")
    A("s_waitcnt vmcnt(0)")
    A(f"v_pk_mul_f32 {v(SCR,2)}, {v(SCR,2)}, s[{S_ASC}:{S_INV}] op_sel:[0,1] op_sel_hi:[1,1]")
    A(f"s_cmp_lg_u32 s{S_IT}, 0\ns_cbranch_scc1 Lfinal")
    for sh in (8, 4, 2, 1):
        for k in range(8):
            A(f"v_add_f32_dpp v{EMR+k}, v{EMR+k}, v{EMR+k} row_ror:{sh} row_mask:0xf bank_mask:0xf")
    for p in range(8):
        for k in range(0, 8, 2):
            x = H + p*8 + k
            A(f"v_pk_fma_f32 {v(x,2)}, {v(x,2)}, {v(SCR,2)}, {v(EMR+k,2)} {LO if k < 4 else HI}")
    st.flush(A, 0, 7)
    st.mark(A, "start")
    A(f"s_mov_b32 s{S_IT}, 1\ns_mov_b64 s[8:9], s[16:17]\ns_mov_b64 s[10:11], s[18:19]")
    A(f"s_add_u32 s{S_RA}, s{S_RA}, {D2-D1:#x}\ns_add_u32 s{S_RB2}, s{S_RB2}, {D2-D1:#x}")
    A(f"s_add_u32 s{SD}, s{SD}, {D2-D1:#x}\ns_addc_u32 s{SD+1}, s{SD+1}, 0")
    A("s_branch Lstats")
    A("Lfinal:")
    srd(A, SO, 22, 0x800000)
    XF, OUT = 8, 168
    for k in range(0, 8, 2):
        for rho in range(2):
            for kk in (k, k+1):
                r = XR + (rho*8 + kk)*2
                unpack_bf16(A, r, XF + (rho*4 + 0)*8 + kk, XF + (rho*4 + 1)*8 + kk)
                unpack_bf16(A, r+1, XF + (rho*4 + 2)*8 + kk, XF + (rho*4 + 3)*8 + kk)
        for p in range(8):
            x = H + p*8 + k
            A(f"v_pk_fma_f32 {v(x,2)}, {v(x,2)}, {v(SCR,2)}, {v(XF + p*8 + k,2)} {LO if k < 4 else HI}")
        for kk in (k, k+1):
            for rho in range(2):
                o = OUT + (rho*8 + kk)*2
                h = H + rho*32 + kk
                A(f"v_cvt_pk_bf16_f32 v{o}, v{h}, v{h+8}")
                A(f"v_cvt_pk_bf16_f32 v{o+1}, v{h+16}, v{h+24}")
                A(f"buffer_store_dwordx2 {v(o,2)}, v{VX+rho}, s[{SO}:{SO+3}], s{S_XO} offen {OPT['sto']}")
            A(f"s_add_u32 s{S_XO}, s{S_XO}, 8192")
    if stamps:
        A("s_waitcnt vmcnt(0)")
        A("s_memrealtime s[20:21]\ns_memtime s[22:23]\ns_waitcnt lgkmcnt(0)")
        st.flush(A, 1, 7)
        A("s_mov_b32 s72, s20\ns_mov_b32 s74, s22")
        st.flush(A, 2, 1)
    A("Lexit:\ns_endpgm")
    job(A)
    descriptor(A, NAME, 512, 256)
    return A


HEAD = """; ADM ResBlock: GN+SiLU -> conv3x3 -> +emb -> GN+SiLU -> conv3x3 -> +x   (B=2, C=512, 64x64, bf16 in/out)
%s
.amdgcn_target "amdgcn-amd-amdhsa--gfx950"
"""

if __name__ == "__main__":
    for a in sys.argv[2:]:
        if "=" in a:
            k, val = a.split("=")
            OPT[k] = int(val) if val.lstrip("-").isdigit() else (eval(val) if val.startswith("(") else val.replace("+", " "))
    stamps = "stamps" in sys.argv[2:]
    launch = "; @launch " + (f"kernel={NAME} " if "list" in sys.argv[2:] else "") + "grid=(256,1,1) block=(256,1,1) lds=152064"
    text = HEAD % launch + kernel(stamps).text()
    open(sys.argv[1], "w").write(align_pass(text) if OPT["align"] else text)
```

```python
import sys
sys.path.insert(0, "tools")
import gen
from gen import (Asm, v, acc, NEG1, srd, wave_reduce, header, descriptor, gn_coeffs, silu8, unpack_bf16, trim,
                 align_pass, OPT, OOB, NLOG2E, SPIN_MAX, TAGSTEP, S_MASK, WS_BYTES, WROW, STAMP,
                 SLOT, VDMA, VDMA2, VTOP, VBOT, VU, VA, VB, VA1, VB1, WLDS, XLDS, C, PP, TMP, UU,
                 SWS, SD, SX, SO, S_W, S_DMA, S_M0, S_U0, S_U1, S_U2, S_SGN, S_CNT, S_GRP, S_IDX, S_B, S_NB, S_RB,
                 u_load, dma_m0, dma, raw_read, h_op, D1, D2, U1, U2, SC1, SC2)

NAME = "standalone__adm_resblock__diffusion_kernel"
GEN, EMBP = 0x0, 0x10000
STAT, UF, DF = 0x40000, 0x60000, 0x80000
GRPS = 4352
OPT.update(ldu="sc1", ldd="sc1", trimU=3, trimD=3, delay=0, delayd=6, slp=3)

S_IT, S_TAG, S_ASC, S_INV, S_WS, S_E2, S_RA, S_RB2, S_J0, S_J1, S_OQ = 60, 61, 62, 63, 64, 65, 66, 67, 68, 69, 71
S_RET, S_POLL, S_SLOT, S_XO = 24, 25, 12, 13
S_AG, S_BB = 6, 14
VW, VR = (None, 240, 241, 242), (243, 244, 245)
VD, VX, V63, VXL, VPOLL, VT = 246, 247, 249, 250, 251, 252
H, XR, SCR, EMR, GR, BR, PLD, VS = 104, 200, 232, 200, 224, 228, 232, 236
LANE63 = "s_mov_b32 exec_lo, 0\ns_mov_b32 exec_hi, 0x80000000"


class Seq(gen.Seq):
    def wait(self, vm=(), lg=()):
        a = [n for n in (self._n(self.vm, t) for t in vm) if n is not None]
        b = [n for n in (self._n(self.lg, t) for t in lg) if n is not None]
        self.out.append(("wait", a[-1] if a else None, b[-1] if b else None))

    @staticmethod
    def text(out):
        L = []
        for x in out:
            if isinstance(x, tuple):
                p = ([f"vmcnt({x[1]})"] if x[1] is not None else []) + ([f"lgkmcnt({x[2]})"] if x[2] is not None else [])
                assert (x[1] or 0) < 64 and (x[2] or 0) < 16
                if p:
                    L.append("s_waitcnt " + " ".join(p))
            else:
                L.append(x)
        return "\n".join(L)

    def take(self):
        o, self.out = self.out, []
        return o


def merge(bodies):
    res = []
    for items in zip(*bodies):
        if isinstance(items[0], tuple):
            f = lambda i: min([x[i] for x in items if x[i] is not None], default=None)
            res.append(("wait", f(1), f(2)))
            assert res[-1] == bodies[3][len(res) - 1], (res[-1], items)
        else:
            assert all(x == items[0] for x in items), items
            res.append(items[0])
    return res


class Stamps:
    def __init__(self, on):
        self.on = on

    def mark(self, A, name, wait=True):
        sel = OPT.get("marks", "start,pub,tot,silu,loop,end,hh").split(",")
        if self.on and name in sel:
            i = sel.index(name)
            A(f"s_memrealtime s[{72+4*i}:{73+4*i}]\ns_memtime s[{74+4*i}:{75+4*i}]")
            if wait:
                A("s_waitcnt lgkmcnt(0)")

    def flush(self, A, kid, n):
        if self.on:
            A(f"s_lshl_b32 s100, s2, 2\ns_add_u32 s100, s100, s{S_W}\ns_lshl_b32 s100, s100, 6")
            A(f"s_add_u32 s100, s100, {STAMP + kid*0x20000:#x}")
            for i in range(n):
                A(f"v_mov_b32 v{VT}, s{72+4*i}\nv_mov_b32 v{VT+1}, s{74+4*i}")
                A(f"buffer_store_dwordx2 {v(VT,2)}, v{V63}, s[{SWS}:{SWS+3}], s100 offen offset:{8*i}")
                A("s_nop 1")


def w_loads(A, base):
    A(f"s_lshl_b32 s56, s{S_OQ}, 2\ns_add_u32 s56, s56, s{S_W}\ns_mul_i32 s56, s56, 9216")
    A(f"s_mul_i32 s57, s{S_W}, {WROW}")
    for k in range(9):
        if k in (0, 4, 8):
            A(f"s_add_u32 m0, s57, {base + 1024*k}")
            A("s_add_u32 s56, s56, 4096" if k else "s_nop 0")
        A(f"buffer_load_dwordx4 v{VDMA}, s[{SO}:{SO+3}], s56 offen offset:{1024*(k & 3)} lds")


def spin(A, L, load, check, first_in_flight=False):
    A(f"s_mov_b32 s58, {SPIN_MAX}")
    if first_in_flight:
        A(f"s_branch {L}_wait")
    A(f"{L}_poll:\n{load}\n{L}_wait:\ns_waitcnt vmcnt(0)\n{L}_chk:")
    A(check)
    A(f"s_cbranch_scc0 {L}_ok")
    A(f"s_sleep {OPT['slp']}\ns_sub_u32 s58, s58, 1\ns_cmp_lg_u32 s58, 0\ns_cbranch_scc1 {L}_poll")
    A(f"{L}_ok:")


POLL4 = f"buffer_load_dwordx4 {v(PLD,4)}, v{VPOLL}, s[{SWS}:{SWS+3}], s{S_POLL} offen sc1"


def job(A):
    G, M, RW, OUTP = 8, 80, 184, 200
    T = M + 12

    def greg(e):
        return G + (e % 9)*8 + e//9
    A("Ljob:")
    A(f"v_and_b32 v{M}, 3, v0\nv_lshrrev_b32 v{M+1}, 2, v0")
    A(f"v_mul_u32_u24 v{M}, {WROW}, v{M}\nv_mul_u32_u24 v{M+1}, 144, v{M+1}")
    A(f"s_mul_i32 s58, s{S_W}, 2304\ns_add_u32 s58, s58, s57\nv_add3_u32 v{M+1}, v{M}, v{M+1}, s58")
    for k in range(9):
        A(f"ds_read_b128 {v(RW+4*k,4)}, v{M+1} offset:{16*k}")
    A(f"v_mov_b32 v{M}, 0")
    for k in range(9):
        if k in (0, 1, 3, 6):
            A(f"s_waitcnt lgkmcnt({(8, 6, 0, 3, 0, 0, 0)[k]})")
        for d in range(4):
            e = 8*k + 2*d
            unpack_bf16(A, RW + 4*k + d, greg(e), greg(e+1))
        for d in range(4):
            e = 8*k + 2*d
            A(f"v_max3_f32 v{M}, |v{greg(e)}|, |v{greg(e+1)}|, v{M}")
    wave_reduce(A, [M], "v_max_f32")
    A(f"s_lshl_b32 s58, s{S_W}, 2\nv_add_u32 v{M+1}, s58, v{VXL}")
    A(LANE63)
    A(f"ds_write_b32 v{M+1}, v{M} offset:128")
    A("s_mov_b64 exec, -1")
    A(f"s_mul_i32 s58, s{S_GRP}, 786432\ns_add_u32 s56, s56, s58")
    A(f"s_bfe_u32 s58, s{S_RB}, 0x10003\ns_lshl_b32 s58, s58, 11\ns_add_u32 s56, s56, s58")
    A(f"s_and_b32 s58, s{S_RB}, 1\ns_lshl_b32 s58, s58, 10\ns_add_u32 s56, s56, s58")
    A(f"s_bfe_u32 s58, s{S_RB}, 0x20001\ns_lshl_b32 s58, s58, 8\ns_add_u32 s56, s56, s58")
    A(f"s_mul_i32 s58, s{S_W}, {4*49152}\ns_add_u32 s56, s56, s58\ns_xor_b32 s58, s56, 2048")
    A(f"s_bitcmp1_b32 s{S_IDX}, 0\ns_cselect_b32 s{S_J0}, s58, s56\ns_cselect_b32 s{S_J1}, s56, s58")
    A(f"s_cselect_b32 s58, {3*12288}, 0\ns_cselect_b32 s59, 12288, 0")
    A(f"s_add_u32 s{S_J0}, s{S_J0}, s58\ns_add_u32 s{S_J1}, s{S_J1}, s59\ns_add_u32 s{S_J1}, s{S_J1}, 12288")
    A("s_waitcnt lgkmcnt(0)\ns_barrier")
    A(f"ds_read_b128 {v(M+4,4)}, v{VXL} offset:128")
    A(f"v_lshrrev_b32 v{VS}, 4, v0\nv_mul_u32_u24 v{VS}, 49152, v{VS}\nv_and_b32 v{M+3}, 15, v0\nv_lshl_add_u32 v{VS}, v{M+3}, 4, v{VS}")
    A(f"s_bitcmp1_b32 s{S_IDX}, 0\ns_cselect_b32 s58, 0, 1.0\ns_cselect_b32 s59, 1.0, 0\ns_cselect_b32 s56, -0.5, 0.5")
    A("s_waitcnt lgkmcnt(0)")
    A(f"v_max3_f32 v{M+4}, v{M+4}, v{M+5}, v{M+6}\nv_max_f32 v{M+4}, v{M+4}, v{M+7}")
    A(f"v_frexp_exp_i32_f32 v{M+4}, v{M+4}\nv_min_i32 v{M+4}, 60, v{M+4}\nv_max_i32 v{M+4}, 0xffffffc4, v{M+4}")
    A(f"v_add_u32 v{M}, 119, v{M+4}\nv_lshlrev_b32 v{M}, 23, v{M}")
    K0, K1, K2, K3 = M + 4, M + 6, M + 8, M + 10
    A(f"v_sub_u32 v{T}, 135, v{M+4}\nv_lshlrev_b32 v{T}, 23, v{T}\nv_readfirstlane_b32 s{S_WS}, v{M}")
    A(f"v_mul_f32 v{K0}, s58, v{T}\nv_mul_f32 v{K0+1}, s59, v{T}\nv_mul_f32 v{K1}, 0.5, v{T}\nv_mul_f32 v{K1+1}, s56, v{T}")
    A(f"v_pk_mul_f32 {v(K2,2)}, {v(K0,2)}, 0.5 op_sel_hi:[1,0]\nv_pk_mul_f32 {v(K3,2)}, {v(K1,2)}, 0.5 op_sel_hi:[1,0]")
    LO2, HI2 = "op_sel_hi:[1,0]", "op_sel:[0,1] op_sel_hi:[1,1]"
    LO3, HI3 = "op_sel_hi:[1,0,1]", "op_sel:[0,1,0] op_sel_hi:[1,1,1]"
    for col in range(3):
        ka, kb = (K2, K3) if col == 1 else (K0, K1)
        regs = [(G + col*8 + cp, G + (3+col)*8 + cp, G + (6+col)*8 + cp, T + cp) for cp in range(0, 8, 2)]
        for g0, g1, g2, t in regs:
            A(f"v_pk_add_f32 {v(t,2)}, {v(g0,2)}, {v(g2,2)}")
            A(f"v_pk_mul_f32 {v(g0,2)}, {v(g0,2)}, {v(ka,2)} {LO2}")
            A(f"v_pk_mul_f32 {v(g1,2)}, {v(g1,2)}, {v(kb,2)} {HI2}")
        for g0, g1, g2, t in regs:
            A(f"v_pk_fma_f32 {v(g0,2)}, {v(g2,2)}, {v(ka,2)}, {v(g0,2)} {HI3}")
            A(f"v_pk_fma_f32 {v(g1,2)}, {v(t,2)}, {v(kb,2)}, {v(g1,2)} {LO3}")
        if col == OPT.get("hook", 1):
            A(f"s_cmp_lg_u32 s{S_W}, 0\ns_cbranch_scc1 Ljob_mid\n{POLL4}\nLjob_mid:")
    N3 = "neg_lo:[0,0,1] neg_hi:[0,0,1]"
    for i, r in enumerate((G, G + 24)):
        for cp in range(0, 8, 2):
            A(f"v_pk_add_f32 {v(T+cp,2)}, {v(r+cp,2)}, {v(r+16+cp,2)}")
        for cp in range(0, 8, 2):
            A(f"v_pk_fma_f32 {v(r+cp,2)}, {v(T+cp,2)}, 0.5, {v(r+8+cp,2)} {LO3}")
            A(f"v_pk_fma_f32 {v(r+8+cp,2)}, {v(T+cp,2)}, 0.5, {v(r+8+cp,2)} {LO3} {N3}")
        for j, src in enumerate((r+16, r, r+8)):
            o = OUTP + (i*3 + j)*4
            for d in range(4):
                A(f"v_cvt_pk_f16_f32 v{o+d}, v{src+2*d}, v{src+2*d+1}")
            if i or j:
                trim(A, o, 4, OPT["trimU"])
    A(f"s_cmp_eq_u32 s{S_RET}, 0\ns_cbranch_scc1 Lret0\ns_branch Lret1")


def job_stores(A):
    for i in range(2):
        for j in range(3):
            A(f"buffer_store_dwordx4 {v(200 + (i*3 + j)*4, 4)}, v{VS}, s[{SWS}:{SWS+3}], s{S_J0+i} offen sc1")
            if j < 2:
                A(f"s_add_u32 s{S_J0+i}, s{S_J0+i}, 4096")


def x_loads():
    ld = []
    for k in range(8):
        for rho in range(2):
            t = f"buffer_load_dwordx2 {v(XR + (rho*8 + k)*2, 2)}, v{VX+rho}, s[{SX}:{SX+3}], s59 offen"
            if rho == 1 and k < 7:
                t += "\ns_add_u32 s59, s59, 8192"
            ld.append(t)
    ld[0] = f"s_mov_b32 s59, s{S_XO}\n" + ld[0]
    return ld


def kernel(stamps):
    A = Asm()
    st = Stamps(stamps)
    header(A, NAME)
    st.mark(A, "start", False)
    A("s_cmp_ge_u32 s2, 256\ns_cbranch_scc1 Lexit")
    A("s_load_dwordx16 s[4:19], s[0:1], 0")
    A("s_load_dwordx8 s[20:27], s[0:1], 64")
    A("v_lshrrev_b32 v8, 6, v0\nv_and_b32 v0, 63, v0")
    A(f"v_readfirstlane_b32 s{S_W}, v8")
    A(f"s_and_b32 s{S_GRP}, s2, 7\ns_lshr_b32 s{S_IDX}, s2, 3\ns_lshr_b32 s{S_B}, s{S_GRP}, 2")
    A(f"s_and_b32 s{S_NB}, s{S_GRP}, 3\ns_lshl_b32 s{S_NB}, s{S_NB}, 1\ns_and_b32 s56, s{S_IDX}, 1\ns_add_u32 s{S_NB}, s{S_NB}, s56")
    A(f"s_lshr_b32 s{S_RB}, s{S_IDX}, 1\ns_lshl_b32 s{S_OQ}, s{S_GRP}, 4\ns_add_u32 s{S_OQ}, s{S_OQ}, s{S_RB}")

    def touch():
        A(f"s_lshl_b32 s56, s{S_IDX}, 2\ns_add_u32 s56, s56, s{S_W}\nv_and_b32 v8, 1, v0\nv_lshl_add_u32 v8, v8, 7, s56")
        gen.code_touch(A, "Lpf", "Lcode_end", 8, 238, "Lpc", 56)
        A("global_load_dword v8, v[238:239], off\nLpf:")
    if OPT["pf"] == 1:
        touch()
    A("v_and_b32 v9, 15, v0\nv_lshrrev_b32 v10, 4, v0")
    A(f"v_lshlrev_b32 v{VDMA}, 4, v0")
    A(f"s_and_b32 s44, s{S_W}, 1\ns_lshl_b32 s56, s{S_NB}, 1\ns_add_u32 s44, s44, s56")
    A(f"s_lshr_b32 s45, s{S_W}, 1\ns_lshl_b32 s56, s{S_RB}, 1\ns_add_u32 s45, s45, s56")
    A(f"s_lshl_b32 s46, s{S_B}, 22\ns_lshl_b32 s56, s44, 18\ns_add_u32 s46, s46, s56")
    A(f"s_lshl_b32 s47, s45, 8\ns_add_u32 s47, s47, s46")
    A(f"v_lshlrev_b32 v11, 16, v10\nv_lshl_add_u32 v{VD}, v9, 4, v11\nv_lshl_add_u32 v11, v9, 3, v11")
    A(f"s_cmp_eq_u32 s{S_W}, 3\ns_cselect_b32 s56, 128, 0\nv_add_u32 v{VX}, s56, v11\nv_xor_b32 v{VX+1}, 128, v{VX}")
    A(f"s_mov_b32 s{S_MASK}, 0xffff0000")
    A("s_waitcnt lgkmcnt(0)")
    srd(A, SX, 4, 0x800000)
    srd(A, SO, 12, 512*9216)
    A(f"s_load_dword s{S_TAG}, s[26:27], {GEN}")
    A(f"s_cmp_lt_u32 s{S_W}, 2\ns_cbranch_scc1 Lside0\ns_cmp_eq_u32 s{S_W}, 3\ns_cbranch_scc1 Lside3")
    for i, p in enumerate((8, 10, 16, 18)):
        A(f"global_load_dwordx4 {v(16+4*i,4)}, v{VDMA}, s[{p}:{p+1}]")
    A("s_branch Lside0\nLside3:")
    A(f"v_lshrrev_b32 v12, 3, v0\ns_mul_i32 s56, s{S_RB}, 24\nv_add_u32 v12, s56, v12")
    A(f"s_and_b32 s56, s{S_IDX}, 1\ns_mul_i32 s56, s56, 768\nv_lshl_add_u32 v13, v12, 1, s56")
    for i in range(3):
        A(f"global_load_ushort v{16+i}, v13, s[6:7] offset:{16*i}")
    A(f"v_and_b32 v13, 7, v0\nv_lshlrev_b32 v13, 4, v13\nv_lshl_add_u32 v13, v12, 10, v13\ns_lshl_b32 s56, s{S_GRP}, 7\nv_add_u32 v13, s56, v13")
    for i in range(3):
        A(f"global_load_dwordx4 {v(20+4*i,4)}, v13, s[14:15]")
        if i < 2:
            A("v_add_u32 v13, 8192, v13")
    A("Lside0:")
    A(f"s_mov_b32 s{S_XO}, s47")
    for t in x_loads():
        A(t)
    npf = int(OPT["pf"] == 2)
    if npf:
        touch()
    srd(A, SWS, 26, WS_BYTES)
    A(f"s_lshl_b32 s56, s{S_B}, 22\ns_add_u32 s56, s56, {D1 - 1024:#x}")
    A(f"s_add_u32 s{SD}, s26, s56\ns_addc_u32 s{SD+1}, s27, 0\ns_mov_b32 s{SD+2}, {0x400000 + 1024:#x}\ns_mov_b32 s{SD+3}, 0x20000")
    A(f"s_lshl_b32 s56, s45, 11\ns_add_u32 s{S_RA}, s46, s56\ns_add_u32 s{S_RA}, s{S_RA}, {D1:#x}")
    A(f"s_cmp_eq_u32 s{S_W}, 3\ns_cselect_b32 s56, 1024, 0\ns_add_u32 s{S_RA}, s{S_RA}, s56\ns_xor_b32 s{S_RB2}, s{S_RA}, 1024")
    A(f"s_mul_i32 s{S_SLOT}, s{S_GRP}, {GRPS}\ns_lshl_b32 s56, s{S_IDX}, 7\ns_add_u32 s{S_SLOT}, s{S_SLOT}, s56")
    A(f"s_lshl_b32 s56, s44, 6\nv_lshlrev_b32 v237, 4, v10\nv_add_u32 v237, s56, v237")
    A(f"v_add_u32 v{VDMA2}, 4096, v{VDMA}")
    A(f"s_cmp_eq_u32 s{S_RB}, 0\ns_cselect_b32 s56, {OOB:#x}, 0\nv_add_u32 v{VTOP}, s56, v{VDMA}")
    A(f"s_cmp_eq_u32 s{S_RB}, 15\ns_cselect_b32 s56, {OOB:#x}, 0\nv_add_u32 v{VBOT}, s56, v{VDMA2}")
    A(f"v_lshrrev_b32 v11, 2, v9\nv_lshlrev_b32 v11, 8, v11\nv_lshl_add_u32 v11, v10, 6, v11")
    A(f"v_and_b32 v14, 3, v9\nv_lshl_add_u32 v{VU}, v14, 4, v11")
    A(f"s_lshl_b32 s57, s{S_W}, 10\ns_lshr_b32 s56, s{S_W}, 1\ns_sub_u32 s58, 2, s56\ns_lshl_b32 s58, s58, 10\ns_lshl_b32 s56, s56, 11")
    A(f"v_mul_u32_u24 v11, 6144, v10\nv_lshl_add_u32 v11, v9, 4, v11")
    A(f"v_add_u32 v14, s56, v11\ns_xor_b32 s56, s56, 2048\nv_add_u32 v11, s56, v11")
    A(f"v_add_u32 v{VA}, s57, v14\nv_add_u32 v{VB}, s58, v14\nv_add_u32 v{VA1}, s57, v11\nv_add_u32 v{VB1}, s58, v11")
    A(f"s_mov_b32 s56, 0xbc00bc00\ns_cmp_eq_u32 s{S_W}, 1\ns_cselect_b32 s{S_SGN}, 0x3c003c00, s56")
    A(f"s_mul_i32 s{S_M0}, s{S_W}, 6144")
    for phi in (1, 2, 3):
        A(f"s_xor_b32 s56, s{S_W}, {phi}\ns_mul_i32 s56, s56, 3\ns_add_u32 s56, s56, {phi-1}\ns_lshl_b32 s56, s56, 13\nv_add_u32 v{VW[phi]}, s56, v{VDMA}")
    A(f"s_lshl_b32 s57, s{S_W}, 2\ns_mul_i32 s58, s{S_W}, 3")
    for r, tab in zip(VR, (0x1100, 0x0221, 0x2012)):
        A(f"s_lshr_b32 s56, {tab:#x}, s57\ns_and_b32 s56, s56, 15\ns_add_u32 s56, s56, s58\ns_lshl_b32 s56, s56, 13\nv_add_u32 v{r}, s56, v{VDMA}")
    A(f"s_cmp_eq_u32 s{S_W}, 3\ns_cselect_b32 s{S_AG}, -1.0, 1.0\ns_cmp_ge_u32 s{S_W}, 2\ns_cselect_b32 s{S_AG+1}, 1.0, -1.0")
    A(f"s_xor_b32 s{S_BB+1}, s{S_AG+1}, 0x80000000\ns_add_u32 s56, s{S_W}, 1\ns_bitcmp1_b32 s56, 1")
    A(f"s_cselect_b32 s{S_BB}, 0, 1.0\ns_cselect_b32 s{S_BB+1}, s{S_BB+1}, 0")
    A(f"v_cmp_eq_u32 vcc, 63, v0\nv_mov_b32 v11, {OOB:#x}\nv_mov_b32 v{VXL}, {XLDS}\nv_cndmask_b32 v{V63}, v11, 0, vcc")
    A(f"s_mov_b32 s{S_IT}, 0\ns_waitcnt lgkmcnt(0)\ns_add_u32 s{S_TAG}, s{S_TAG}, {TAGSTEP:#x}")
    if OPT.get("wwait") is not None:
        A(f"s_waitcnt vmcnt({OPT['wwait']})")
    w_loads(A, WLDS)
    A(f"s_mov_b32 s{SO}, s20\ns_mov_b32 s{SO+1}, s21")
    A(f"s_cmp_lt_u32 s{S_W}, 2\ns_cbranch_scc1 Lside1\ns_waitcnt vmcnt({25 + npf})\ns_cmp_eq_u32 s{S_W}, 3\ns_cbranch_scc1 Lside4")
    A("v_mov_b32 v12, 0\nv_mov_b32 v13, 0")
    for d in range(16):
        unpack_bf16(A, 16 + d, 14, 15)
        A(f"v_max3_f32 v{12 + d//8}, |v14|, |v15|, v{12 + d//8}")
    A("s_nop 0")
    wave_reduce(A, [12, 13], "v_max_f32")
    for r in (12, 13):
        A(f"v_frexp_exp_i32_f32 v{r}, v{r}\nv_min_i32 v{r}, 60, v{r}\nv_max_i32 v{r}, 0xffffffc4, v{r}")
    A(LANE63)
    A(f"ds_write_b64 v{VXL}, v[12:13] offset:72\ns_mov_b64 exec, -1\ns_branch Lside1")
    A("Lside4:")
    for i in range(3):
        A(f"v_lshlrev_b32 v{16+i}, 16, v{16+i}")
    for op in (f"v_mul_f32 v{{t}}, {NLOG2E:#x}, v{{x}}", "v_exp_f32 v{t}, v{t}", "v_add_f32 v{t}, 1.0, v{t}",
               "v_rcp_f32 v{t}, v{t}", "v_mul_f32 v{x}, v{x}, v{t}"):
        for i in range(3):
            A(op.format(t=32+i, x=16+i))
    for i in range(3):
        for d in range(4):
            unpack_bf16(A, 20 + 4*i + d, 44 + 2*d, 45 + 2*d)
        for k in range(8):
            A(f"v_mul_f32 v{36+k}, v{44+k}, v{16+i}" if i == 0 else f"v_fmac_f32 v{36+k}, v{44+k}, v{16+i}")
    for k in range(8):
        A(f"v_add_f32_dpp v{36+k}, v{36+k}, v{36+k} row_ror:8 row_mask:0xf bank_mask:0xf")
    A("s_nop 1")
    for k in (0, 1, 4, 5):
        A(f"v_permlane16_swap_b32 v{36+k}, v{38+k}")
    for k in (0, 1, 4, 5):
        A(f"v_add_f32 v{36+k}, v{36+k}, v{38+k}")
    A("s_nop 1")
    for k in (0, 1):
        A(f"v_permlane32_swap_b32 v{36+k}, v{40+k}")
    for k in (0, 1):
        A(f"v_add_f32 v{36+k}, v{36+k}, v{40+k}")
    A("v_and_b32 v12, 7, v0\nv_lshlrev_b32 v12, 5, v12\nv_lshl_add_u32 v12, v10, 3, v12")
    A(f"s_and_b32 s56, s{S_IDX}, 1\ns_lshl_b32 s56, s56, 7\ns_add_u32 s56, s56, s{S_OQ}\ns_lshl_b32 s56, s56, 8\ns_add_u32 s56, s56, {EMBP:#x}")
    A(f"s_waitcnt vmcnt({9 + npf})\nbuffer_store_dwordx2 v[36:37], v12, s[{SWS}:{SWS+3}], s56 offen sc1\ns_branch Lside2")
    A(f"Lside1:\ns_waitcnt vmcnt({9 + npf})\nLside2:")
    st.mark(A, "xin")
    for k in range(8):
        for rho in range(2):
            r = XR + (rho*8 + k)*2
            unpack_bf16(A, r, H + (rho*4 + 0)*8 + k, H + (rho*4 + 1)*8 + k)
            unpack_bf16(A, r+1, H + (rho*4 + 2)*8 + k, H + (rho*4 + 3)*8 + k)

    A("Lstats:")
    P = 72
    for p in range(8):
        for k in range(0, 8, 2):
            x = H + p*8 + k
            a = P + (k & 2)
            if p == 0 and k < 4:
                A(f"v_pk_add_f32 {v(a,2)}, {v(x,2)}, {v(x+4,2)}")
                A(f"v_pk_mul_f32 {v(a+4,2)}, {v(x,2)}, {v(x,2)}")
                continue
            if p:
                A(f"v_pk_add_f32 {v(a,2)}, {v(a,2)}, {v(x,2)}")
            A(f"v_pk_fma_f32 {v(a+4,2)}, {v(x,2)}, {v(x,2)}, {v(a+4,2)}")
    A(f"v_pk_add_f32 {v(P,2)}, {v(P,2)}, {v(P+2,2)}")
    A(f"v_pk_add_f32 {v(P+4,2)}, {v(P+4,2)}, {v(P+6,2)}")
    A(f"v_add_f32 v{P}, v{P}, v{P+1}\nv_add_f32 v{P+1}, v{P+4}, v{P+5}")
    wave_reduce(A, [P, P+1])
    A(f"s_lshl_b32 s56, s{S_W}, 3\nv_add_u32 v{P+2}, s56, v{VXL}")
    A(LANE63)
    A(f"ds_write_b64 v{P+2}, {v(P,2)}")
    A("s_mov_b64 exec, -1")
    A(f"s_lshl_b32 s59, s{S_IT}, 16\ns_add_u32 s56, s59, s{S_SLOT}\ns_add_u32 s56, s56, {STAT:#x}")
    A("s_waitcnt lgkmcnt(0)\ns_barrier")
    A(f"s_cmp_lg_u32 s{S_W}, 0\ns_cbranch_scc1 Lnopub")
    A(f"ds_read_b128 {v(P,4)}, v{VXL}\nds_read_b128 {v(P+4,4)}, v{VXL} offset:16")
    A(f"v_mov_b32 v101, s{S_TAG}\nv_mov_b32 v103, s{S_TAG}\ns_waitcnt lgkmcnt(0)")
    A(f"v_pk_add_f32 {v(P,2)}, {v(P,2)}, {v(P+2,2)}\nv_pk_add_f32 {v(P+4,2)}, {v(P+4,2)}, {v(P+6,2)}")
    A(f"v_add_f32 v100, v{P}, v{P+4}\nv_add_f32 v102, v{P+1}, v{P+5}")
    A(f"buffer_store_dwordx4 v[100:103], v{V63}, s[{SWS}:{SWS+3}], s56 offen sc1")
    A("Lnopub:")
    st.mark(A, "pub")
    A(f"global_load_dwordx4 {v(GR,4)}, v237, s[8:9]\nglobal_load_dwordx4 {v(BR,4)}, v237, s[10:11]")
    A(f"s_mul_i32 s{S_POLL}, s{S_GRP}, {GRPS}\ns_add_u32 s{S_POLL}, s{S_POLL}, s59\ns_add_u32 s{S_POLL}, s{S_POLL}, {STAT:#x}")
    A(f"v_cmp_gt_u32 vcc, 32, v0\nv_mov_b32 v{P}, {OOB:#x}\nv_lshlrev_b32 v{VPOLL}, 7, v0\nv_cndmask_b32 v{VPOLL}, v{P}, v{VPOLL}, vcc")
    A(f"s_cmp_lg_u32 s{S_IT}, 0\ns_cbranch_scc1 Lnojob0")
    A(f"s_bitcmp1_b32 0x9, s{S_W}\ns_cbranch_scc1 Lw3\ns_waitcnt vmcnt(2)\nLw3:\ns_waitcnt vmcnt(3)\ns_barrier")
    st.mark(A, "win")
    w_loads(A, 0)
    A(f"s_mov_b32 s{S_RET}, 0\ns_mov_b32 s56, {U1:#x}\ns_mov_b32 s57, {WLDS}\ns_branch Ljob")
    A("Lret0:")
    job_stores(A)
    st.mark(A, "job0")
    A(f"s_cmp_lg_u32 s{S_W}, 0\ns_cbranch_scc1 Ljoin0")
    A(f"s_mov_b32 s58, {SPIN_MAX}\ns_waitcnt vmcnt(6)\ns_branch Ls_chk")
    A("Ljoin0:\ns_waitcnt vmcnt(15)\ns_branch Ljoin")
    A("Lnojob0:")
    A(f"s_waitcnt vmcnt(0)\ns_cmp_lg_u32 s{S_W}, 0\ns_cbranch_scc1 Ljoin")
    if OPT["delay"]:
        A(f"s_sleep {OPT['delay']}")
    spin(A, "Ls", POLL4, f"v_cmp_ne_u32 vcc, s{S_TAG}, v{PLD+1}\nv_cmp_ne_u32 s[56:57], s{S_TAG}, v{PLD+3}\ns_nop 1\ns_or_b32 s56, s56, vcc_lo")
    A(f"v_mov_b32 v{PLD+1}, v{PLD+2}\ns_nop 0")
    wave_reduce(A, [PLD, PLD+1])
    A(LANE63)
    A(f"ds_write_b64 v{VXL}, {v(PLD,2)} offset:64")
    A("s_mov_b64 exec, -1\ns_waitcnt lgkmcnt(0)")
    A("Ljoin:")
    GA, GB, A1, B1, A2, B2, TT, OUT = 8, 16, 24, 32, 40, 48, 56, 72
    for d in range(4):
        unpack_bf16(A, GR + d, GA + 2*d, GA + 2*d + 1)
        unpack_bf16(A, BR + d, GB + 2*d, GB + 2*d + 1)
    A("s_barrier")
    st.mark(A, "b4")
    A(f"ds_read_b128 {v(PLD,4)}, v{VXL} offset:64")
    A(f"s_cmp_lg_u32 s{S_IT}, 0\ns_cselect_b64 vcc, -1, 0\ns_waitcnt lgkmcnt(0)")
    A(f"v_cndmask_b32 v{PLD+3}, v{PLD+2}, v{PLD+3}, vcc\ns_nop 0")
    st.mark(A, "tot")
    A(f"v_readfirstlane_b32 s56, v{PLD+3}\ns_nop 1")
    A(f"s_sub_u32 s{S_ASC}, 130, s56\ns_lshl_b32 s{S_ASC}, s{S_ASC}, 23")
    A(f"s_add_u32 s{S_INV}, s56, 124\ns_lshl_b32 s{S_INV}, s{S_INV}, 23")
    gn_coeffs(A, PLD, PLD+1, GA, GB, A1, B1, A2, B2, f"s{S_ASC}", TT)
    A(f"v_mov_b32 v{VT}, s{S_TAG}\nv_mov_b32 v{VT+1}, s{S_TAG}")
    A(f"s_lshl_b32 s59, s{S_IT}, 16\ns_add_u32 s57, s59, s{S_SLOT}\ns_lshl_b32 s56, s{S_W}, 4\ns_add_u32 s56, s56, s57\ns_add_u32 s56, s56, {UF:#x}")
    A(f"v_mov_b32 v{PLD}, s{S_TAG}\nv_mov_b32 v{PLD+1}, s{S_TAG}\nv_mov_b32 v{PLD+2}, s{S_WS}")
    ufp = OPT.get("ufp", 4)
    for p in range(8):
        o = OUT + 4*p
        silu8(A, H + p*8, A1, B1, A2, B2, TT + 8*(p & 1), o)
        A(f"buffer_store_dwordx4 {v(o,4)}, v{VD}, s[{SWS}:{SWS+3}], s{S_RA + (p >> 2)} offen offset:{256*(p & 3)} sc1")
        if p == ufp:
            A(f"s_waitcnt vmcnt({ufp + 1})")
            A(f"buffer_store_dwordx4 {v(PLD,4)}, v{V63}, s[{SWS}:{SWS+3}], s56 offen sc1")
    st.mark(A, "silu")
    A(f"v_lshrrev_b32 v8, 2, v0\nv_lshlrev_b32 v8, 8, v8\nv_and_b32 v9, 3, v0\nv_lshl_add_u32 v8, v9, 4, v8")
    A(f"s_mul_i32 s{S_POLL}, s{S_NB}, {GRPS}\ns_lshr_b32 s56, s{S_W}, 1\ns_lshl_b32 s56, s56, 7\ns_add_u32 s{S_POLL}, s{S_POLL}, s56")
    A(f"s_add_u32 s{S_POLL}, s{S_POLL}, s59\ns_add_u32 s{S_POLL}, s{S_POLL}, {UF:#x}")
    upoll = f"buffer_load_dwordx2 v[10:11], v8, s[{SWS}:{SWS+3}], s{S_POLL} offen sc1"
    zsplit = OPT.get("zsplit", 96)
    for i in range(256):
        if i == zsplit:
            A(upoll)
        A(f"v_accvgpr_write_b32 a{i}, 0")
    A(f"s_add_u32 s57, s57, {DF:#x}")
    st.mark(A, "zero")
    A("s_waitcnt vmcnt(1)\ns_barrier")
    st.mark(A, "b5")
    A(f"s_cmp_lg_u32 s{S_W}, 0\ns_cbranch_scc1 Lnodf")
    A(f"buffer_store_dwordx2 {v(VT,2)}, v{V63}, s[{SWS}:{SWS+3}], s57 offen sc1\ns_mov_b32 s58, {SPIN_MAX}\ns_waitcnt vmcnt(1)\ns_branch Lu_chk")
    A("Lnodf:")
    ucheck = f"v_cmp_ne_u32 vcc, s{S_TAG}, v10\nv_cmp_ne_u32 s[56:57], s{S_TAG}, v11\ns_nop 1\ns_or_b64 s[56:57], s[56:57], vcc"
    spin(A, "Lu", upoll, ucheck, True)
    st.mark(A, "uok")
    A(f"s_mul_i32 s{S_U0}, s{S_NB}, 786432\ns_mul_i32 s56, s{S_W}, 12288\ns_add_u32 s{S_U0}, s{S_U0}, s56")
    A(f"s_lshl_b32 s56, s{S_IT}, 23\ns_add_u32 s{S_U0}, s{S_U0}, s56")
    A(f"s_add_u32 s{S_U0}, s{S_U0}, {U1:#x}\ns_add_u32 s{S_U1}, s{S_U0}, 4096\ns_add_u32 s{S_U2}, s{S_U0}, 8192")
    Q = Seq()
    for k, j in ((0, 0), (0, 1), (0, 2), (1, 0)):
        for nu in range(4):
            u_load(Q, k, j, nu)
    A(Seq.text(Q.take()))
    A(f"s_lshl_b32 s{S_DMA}, s{S_W}, 16\ns_lshl_b32 s56, s{S_RB}, 12\ns_add_u32 s{S_DMA}, s{S_DMA}, s56")
    A(f"v_lshrrev_b32 v8, 3, v0\nv_min_u32 v8, 2, v8\nv_add_u32 v8, s{S_RB}, v8\nv_add_u32 v8, -1, v8\nv_med3_i32 v8, v8, 0, 15")
    A(f"v_and_b32 v9, 1, v0\nv_lshl_add_u32 v8, v8, 1, v9\nv_lshlrev_b32 v8, 7, v8")
    A(f"v_bfe_u32 v9, v0, 1, 2\nv_mul_u32_u24 v9, {GRPS}, v9\nv_add_u32 v{VPOLL}, v8, v9")
    A(f"s_mul_i32 s{S_POLL}, s{S_B}, {4*GRPS}\ns_add_u32 s{S_POLL}, s{S_POLL}, s59\ns_add_u32 s{S_POLL}, s{S_POLL}, {DF:#x}")
    A(f"s_cmp_lg_u32 s{S_IT}, 0\ns_cbranch_scc1 Lnojob1")
    A(f"s_mov_b32 s{S_RET}, 1\ns_mov_b32 s56, {U2:#x}\ns_mov_b32 s57, 0\ns_branch Ljob")
    A("Lnojob1:")
    A(f"s_cmp_lg_u32 s{S_W}, 0\ns_cbranch_scc1 Ld_ok")
    A(f"s_sleep {OPT['delayd']}\n{POLL4}")
    A("Lret1:")
    st.mark(A, "job1")
    A(f"s_cmp_lg_u32 s{S_W}, 0\ns_cbranch_scc1 Ld_ok")
    spin(A, "Ld", POLL4, f"v_cmp_ne_u32 vcc, s{S_TAG}, v{PLD}\nv_cmp_ne_u32 s[56:57], s{S_TAG}, v{PLD+1}\ns_nop 1\ns_or_b64 s[56:57], s[56:57], vcc", True)
    A("s_barrier")
    st.mark(A, "b6")

    def dma_all(k, z=lambda: None):
        for p in range(6):
            if p in (0, 4):
                dma_m0(Q, k, p >> 2); Q.raw("s_nop 0")
            dma(Q, k, p); z()
    dma_all(0)
    dma_all(1)
    Q.raw(f"s_xor_b32 s{S_M0}, s{S_M0}, 0x10000")
    dma_all(2)
    for nu in range(4):
        u_load(Q, 1, 1, nu)
    Q.wait(vm=[("raw", 0)])
    Q.raw("s_barrier")
    for par in range(2):
        for tb in range(4):
            raw_read(Q, 0, par, tb, 0); raw_read(Q, 0, par, tb, 1)
    for par in range(2):
        for tb in range(4):
            Q.wait(lg=[("rd", 0, par, tb)])
            for d in range(4):
                h_op(Q, 0, par, tb, d)
    Q.wait(vm=[("raw", 1)])
    A(Seq.text(Q.take()))
    A(f"s_mov_b32 s{S_CNT}, 7\ns_cmp_lg_u32 s{S_IT}, 0\ns_cbranch_scc1 Lnost")
    job_stores(A)
    A("s_branch Lgo\nLnost:")
    A(f"s_cmp_lg_u32 s2, 2\ns_cbranch_scc1 Lgo\ns_cmp_lg_u32 s{S_W}, 0\ns_cbranch_scc1 Lgo")
    A(f"buffer_store_dword v{VT}, v{V63}, s[{SWS}:{SWS+3}], 0 offen offset:{GEN} sc1")
    A("Lgo:")
    st.mark(A, "loop")
    bodies = []
    for n in range(7):
        gen.step(Q, 2*n)
        gen.step(Q, 2*n + 1, {63: [lambda: Q.raw(f"s_sub_u32 s{S_CNT}, s{S_CNT}, 1\ns_cmp_lg_u32 s{S_CNT}, 0\ns_cbranch_scc1 Lloop")]})
        bodies.append(Q.take())
    A(".p2align 6\nLloop:")
    A(Seq.text(merge(bodies)))
    R = lambda t: [lambda: Q.raw(t)]
    gen.step(Q, 14, {9: R(f"v_and_b32 v238, 127, v237\nv_lshlrev_b32 v239, 1, v238\nv_lshlrev_b32 v238, 5, v238"),
                     11: R(f"v_and_b32 v{VPOLL}, 15, v0\nv_lshl_add_u32 v{VPOLL}, v{VPOLL}, 8, v239"),
                     17: R(f"s_mul_i32 s56, s{S_NB}, {GRPS}\ns_lshl_b32 s57, s{S_IT}, 16\ns_add_u32 s56, s56, s57"),
                     19: R(f"s_lshl_b32 s57, s{S_B}, 3\ns_add_u32 s57, s57, s{S_NB}"),
                     22: R(f"s_lshl_b32 s57, s57, 12\ns_add_u32 s57, s57, {EMBP:#x}"),
                     26: R(f"s_add_u32 s56, s56, {UF:#x}")})
    gen.step(Q, 15, {g: R(f"@{g}") for g in range(31, 64)})
    out = Q.take()
    cut = out.index("@31")
    A(Seq.text(out[:cut]))
    sc_ld = [f"buffer_load_dword v{SCR+h}, v238, s[{SWS}:{SWS+3}], s56 offen offset:{8 + 256*h} sc1" for h in range(2)]
    em_ld = [f"buffer_load_dwordx4 {v(EMR+4*h,4)}, v{VPOLL}, s[{SWS}:{SWS+3}], s57 offen offset:{16*h} sc1" for h in range(2)]
    free = [33, 34, 35, 38, 39, 42, 43, 46, 49, 50, 51, 52, 53, 54, 55, 56, 57, 58]
    A(f"s_cmp_lg_u32 s{S_IT}, 0\ns_cbranch_scc1 Ltail1")
    for it, ld in enumerate((sc_ld + em_ld, x_loads() + sc_ld)):
        m = dict(zip(free, ld))
        A(Seq.text([m.get(int(x[1:]), "") if isinstance(x, str) and x.startswith("@") else x for x in out[cut:]]))
        if it == 0:
            A("s_branch Lepi\nLtail1:")
    A("Lepi:")
    st.mark(A, "end")
    RB_, ZB = [8, 40], [72, 88]
    XB = [8, 20, 72, 84]
    order = [(nul, q) for nul in range(2) for q in range(4)]

    def rd(n):
        nul, q = order[n]
        for i in range(3):
            A(f"ds_read_b128 {v(XB[n & 3] + 4*i, 4)}, v{VR[i]} offset:{(nul*4 + q)*1024}")
    n = 0
    pend = []
    for phi in (2, 1, 3, 0):
        sg, nup = phi >> 1, phi & 1
        for nul in range(2):
            nu = 2*nup + nul
            Rr = RB_[n & 1]
            Z = (lambda q, zb=ZB[n & 1]: zb + 4*q) if phi else (lambda q, nul=nul: H + q*8 + nul*4)
            n += 1
            m = lambda j, be, r=0: Rr + j*8 + be*4 + r
            cnt = 0
            for j in range(4):
                for be in range(2):
                    for r in range(4):
                        A(f"v_accvgpr_read_b32 v{m(j,be,r)}, a{j*64 + nu*16 + (2*sg + be)*4 + r}")
                        cnt += 1
                        while pend and cnt >= OPT["wpos"][4 - len(pend)]:
                            A(pend.pop(0))
            if n > 2 and phi:
                A("s_waitcnt lgkmcnt(4)")
            for r in (0, 2):
                A(f"v_pk_add_f32 {v(Z(0)+r,2)}, {v(m(1,0,r),2)}, {v(m(2,0,r),2)} {NEG1}")
                A(f"v_pk_add_f32 {v(Z(1)+r,2)}, {v(m(1,0,r),2)}, {v(m(2,0,r),2)}")
                A(f"v_pk_add_f32 {v(Z(2)+r,2)}, {v(m(1,1,r),2)}, {v(m(2,1,r),2)} {NEG1}")
                A(f"v_pk_add_f32 {v(Z(3)+r,2)}, {v(m(1,1,r),2)}, {v(m(2,1,r),2)}")
            for r in (0, 2):
                A(f"v_pk_add_f32 {v(Z(0)+r,2)}, {v(Z(0)+r,2)}, {v(m(3,0,r),2)} {NEG1}")
                A(f"v_pk_add_f32 {v(Z(1)+r,2)}, {v(Z(1)+r,2)}, {v(m(0,0,r),2)} {NEG1}")
                A(f"v_pk_add_f32 {v(Z(2)+r,2)}, {v(Z(2)+r,2)}, {v(m(3,1,r),2)} {NEG1}")
                A(f"v_pk_add_f32 {v(Z(3)+r,2)}, {v(Z(3)+r,2)}, {v(m(0,1,r),2)} {NEG1}")
            for r in (0, 2):
                A(f"v_pk_add_f32 {v(Z(1)+r,2)}, {v(Z(1)+r,2)}, {v(m(0,1,r),2)}")
                A(f"v_pk_add_f32 {v(Z(2)+r,2)}, {v(Z(2)+r,2)}, {v(m(3,0,r),2)}")
            for r in range(4):
                A(f"v_add_f32_dpp v{Z(0)+r}, v{m(3,1,r)}, v{Z(0)+r} row_shr:1 row_mask:0xf bank_mask:0xf bound_ctrl:1")
            for r in range(4):
                A(f"v_add_f32_dpp v{Z(3)+r}, v{m(0,0,r)}, v{Z(3)+r} row_shl:1 row_mask:0xf bank_mask:0xf bound_ctrl:1")
            if phi:
                pend = [f"ds_write_b128 v{VW[phi]}, {v(Z(q),4)} offset:{(nul*4 + q)*1024}" for q in (1, 2, 0, 3)]
            elif nul == 0:
                A("s_waitcnt lgkmcnt(0)\ns_barrier")
                for i in range(4):
                    rd(i)
    LO, HI = "op_sel_hi:[1,0,1]", "op_sel:[0,1,0] op_sel_hi:[1,1,1]"
    ag, bb = f"s[{S_AG}:{S_AG+1}]", f"s[{S_BB}:{S_BB+1}]"
    for n in range(8):
        A(f"s_waitcnt lgkmcnt({3*min(3, 7-n)})")
        nul, q = order[n]
        x = XB[n & 3]
        ha, hb = H + q*8 + nul*4, H + 32 + q*8 + nul*4
        for r in (0, 2):
            A(f"v_pk_fma_f32 {v(hb+r,2)}, {v(x+4+r,2)}, {ag}, {v(x+8+r,2)} {HI}")
        for r in (0, 2):
            A(f"v_pk_fma_f32 {v(x+4+r,2)}, {v(x+4+r,2)}, {ag}, {v(x+r,2)} {LO}")
        for r in (0, 2):
            A(f"v_pk_fma_f32 {v(hb+r,2)}, {v(x+r,2)}, {bb}, {v(hb+r,2)} {LO}")
        for r in (0, 2):
            A(f"v_pk_fma_f32 {v(hb+r,2)}, {v(ha+r,2)}, {bb}, {v(hb+r,2)} {HI}")
        for r in (0, 2):
            A(f"v_pk_add_f32 {v(ha+r,2)}, {v(ha+r,2)}, {v(x+4+r,2)}")
        if n + 4 < 8:
            rd(n + 4)
    st.mark(A, "hh")
    A("s_waitcnt vmcnt(0)")
    A(f"v_pk_mul_f32 {v(SCR,2)}, {v(SCR,2)}, s[{S_ASC}:{S_INV}] op_sel:[0,1] op_sel_hi:[1,1]")
    A(f"s_cmp_lg_u32 s{S_IT}, 0\ns_cbranch_scc1 Lfinal")
    for sh in (8, 4, 2, 1):
        for k in range(8):
            A(f"v_add_f32_dpp v{EMR+k}, v{EMR+k}, v{EMR+k} row_ror:{sh} row_mask:0xf bank_mask:0xf")
    for p in range(8):
        for k in range(0, 8, 2):
            x = H + p*8 + k
            A(f"v_pk_fma_f32 {v(x,2)}, {v(x,2)}, {v(SCR,2)}, {v(EMR+k,2)} {LO if k < 4 else HI}")
    st.flush(A, 0, 7)
    st.mark(A, "start")
    A(f"s_mov_b32 s{S_IT}, 1\ns_mov_b64 s[8:9], s[16:17]\ns_mov_b64 s[10:11], s[18:19]")
    A(f"s_add_u32 s{S_RA}, s{S_RA}, {D2-D1:#x}\ns_add_u32 s{S_RB2}, s{S_RB2}, {D2-D1:#x}")
    A(f"s_add_u32 s{SD}, s{SD}, {D2-D1:#x}\ns_addc_u32 s{SD+1}, s{SD+1}, 0")
    A("s_branch Lstats")
    A("Lfinal:")
    srd(A, SO, 22, 0x800000)
    XF, OUT = 8, 168
    for k in range(0, 8, 2):
        for rho in range(2):
            for kk in (k, k+1):
                r = XR + (rho*8 + kk)*2
                unpack_bf16(A, r, XF + (rho*4 + 0)*8 + kk, XF + (rho*4 + 1)*8 + kk)
                unpack_bf16(A, r+1, XF + (rho*4 + 2)*8 + kk, XF + (rho*4 + 3)*8 + kk)
        for p in range(8):
            x = H + p*8 + k
            A(f"v_pk_fma_f32 {v(x,2)}, {v(x,2)}, {v(SCR,2)}, {v(XF + p*8 + k,2)} {LO if k < 4 else HI}")
        for kk in (k, k+1):
            for rho in range(2):
                o = OUT + (rho*8 + kk)*2
                h = H + rho*32 + kk
                A(f"v_cvt_pk_bf16_f32 v{o}, v{h}, v{h+8}")
                A(f"v_cvt_pk_bf16_f32 v{o+1}, v{h+16}, v{h+24}")
                A(f"buffer_store_dwordx2 {v(o,2)}, v{VX+rho}, s[{SO}:{SO+3}], s{S_XO} offen {OPT['sto']}")
            A(f"s_add_u32 s{S_XO}, s{S_XO}, 8192")
    if stamps:
        A("s_waitcnt vmcnt(0)")
        A("s_memrealtime s[20:21]\ns_memtime s[22:23]\ns_waitcnt lgkmcnt(0)")
        st.flush(A, 1, 7)
        A("s_mov_b32 s72, s20\ns_mov_b32 s74, s22")
        st.flush(A, 2, 1)
    A("Lexit:\ns_endpgm")
    job(A)
    A("Lcode_end:")
    descriptor(A, NAME, 512, 256)
    return A


HEAD = """; ADM ResBlock: GN+SiLU -> conv3x3 -> +emb -> GN+SiLU -> conv3x3 -> +x   (B=2, C=512, 64x64, bf16 in/out)
%s
.amdgcn_target "amdgcn-amd-amdhsa--gfx950"
"""

if __name__ == "__main__":
    for a in sys.argv[2:]:
        if "=" in a:
            k, val = a.split("=")
            OPT[k] = int(val) if val.lstrip("-").isdigit() else (eval(val) if val.startswith("(") else val.replace("+", " "))
    stamps = "stamps" in sys.argv[2:]
    launch = "; @launch " + (f"kernel={NAME} " if "list" in sys.argv[2:] else "") + "grid=(256,1,1) block=(256,1,1) lds=152064"
    text = HEAD % launch + kernel(stamps).text()
    open(sys.argv[1], "w").write(align_pass(text) if OPT["align"] else text)
```

```python
import sys
sys.path.insert(0, "tools")
import gen
from gen import (Asm, v, acc, NEG1, srd, wave_reduce, header, descriptor, gn_coeffs, silu8, unpack_bf16, trim,
                 align_pass, OPT, OOB, NLOG2E, SPIN_MAX, TAGSTEP, S_MASK, WS_BYTES, WROW, STAMP,
                 SLOT, VDMA, VDMA2, VTOP, VBOT, VU, VA, VB, VA1, VB1, WLDS, XLDS, C, PP, TMP, UU,
                 SWS, SD, SX, SO, S_W, S_DMA, S_M0, S_U0, S_U1, S_U2, S_SGN, S_CNT, S_GRP, S_IDX, S_B, S_NB, S_RB,
                 u_load, dma_m0, dma, raw_read, h_op, D1, D2, U1, U2, SC1, SC2)

NAME = "standalone__adm_resblock__diffusion_kernel"
GEN, EMBP = 0x0, 0x10000
STAT, UF, DF = 0x40000, 0x60000, 0x80000
GRPS = 4352
D1, D2 = 0x0e00000, 0x1700000
OPT.update(ldu="sc1", ldd="sc1", trimU=3, trimD=3, pf=1, delay=0, delayd=6, slp=3)

S_IT, S_TAG, S_ASC, S_INV, S_WS, S_E2, S_RA, S_RB2, S_J0, S_J1, S_OQ = 60, 61, 62, 63, 64, 65, 66, 67, 68, 69, 71
S_RET, S_POLL, S_SLOT, S_XO = 24, 25, 12, 13
S_AG, S_BB = 6, 14
VW, VR = (None, 240, 241, 242), (243, 244, 245)
VD, VX, V63, VXL, VPOLL, VT = 246, 247, 249, 250, 251, 252
H, XR, SCR, EMR, GR, BR, PLD, VS, VJ = 104, 200, 232, 200, 224, 228, 232, 236, 238

LANE63 = "s_mov_b32 exec_lo, 0\ns_mov_b32 exec_hi, 0x80000000"


class Seq(gen.Seq):
    def wait(self, vm=(), lg=()):
        a = [n for n in (self._n(self.vm, t) for t in vm) if n is not None]
        b = [n for n in (self._n(self.lg, t) for t in lg) if n is not None]
        self.out.append(("wait", a[-1] if a else None, b[-1] if b else None))

    @staticmethod
    def text(out):
        L = []
        for x in out:
            if isinstance(x, tuple):
                p = ([f"vmcnt({x[1]})"] if x[1] is not None else []) + ([f"lgkmcnt({x[2]})"] if x[2] is not None else [])
                assert (x[1] or 0) < 64 and (x[2] or 0) < 16
                if p:
                    L.append("s_waitcnt " + " ".join(p))
            else:
                L.append(x)
        return "\n".join(L)

    def take(self):
        o, self.out = self.out, []
        return o


def merge(bodies):
    res = []
    for items in zip(*bodies):
        if isinstance(items[0], tuple):
            f = lambda i: min([x[i] for x in items if x[i] is not None], default=None)
            res.append(("wait", f(1), f(2)))
            assert res[-1] == bodies[3][len(res) - 1], (res[-1], items)
        else:
            assert all(x == items[0] for x in items), items
            res.append(items[0])
    return res


class Stamps:
    def __init__(self, on):
        self.on = on

    def mark(self, A, name, wait=True):
        sel = OPT.get("marks", "start,pub,tot,silu,loop,end,hh").split(",")
        if self.on and name in sel:
            i = sel.index(name)
            A(f"s_memrealtime s[{72+4*i}:{73+4*i}]\ns_memtime s[{74+4*i}:{75+4*i}]")
            if wait:
                A("s_waitcnt lgkmcnt(0)")

    def flush(self, A, kid, n):
        if self.on:
            A(f"s_lshl_b32 s100, s2, 2\ns_add_u32 s100, s100, s{S_W}\ns_lshl_b32 s100, s100, 6")
            A(f"s_add_u32 s100, s100, {STAMP + kid*0x20000:#x}")
            for i in range(n):
                A(f"v_mov_b32 v{VT}, s{72+4*i}\nv_mov_b32 v{VT+1}, s{74+4*i}")
                A(f"buffer_store_dwordx2 {v(VT,2)}, v{V63}, s[{SWS}:{SWS+3}], s100 offen offset:{8*i}")
                A("s_nop 1")


def weave(A, main, side, first=0, last=None):
    last = len(main) if last is None else last
    pos = {}
    for i, t in enumerate(side):
        pos.setdefault(first + (i*(last - first))//len(side), []).append(t)
    for i, m in enumerate(main):
        for t in pos.get(i, []):
            A(t)
        A(m)


def w_loads(base, so, sm):
    ld = []
    for k in range(9):
        t = ""
        if k == 0:
            t = (f"s_mul_i32 s{sm}, s{S_W}, {WROW}\ns_add_u32 m0, s{sm}, {base}\n"
                 f"s_lshl_b32 s{so}, s{S_OQ}, 2\ns_add_u32 s{so}, s{so}, s{S_W}\ns_mul_i32 s{so}, s{so}, 9216\n")
        elif k in (4, 8):
            t = f"s_add_u32 m0, s{sm}, {base + 1024*k}\ns_add_u32 s{so}, s{so}, 4096\n"
        ld.append(t + f"buffer_load_dwordx4 v{VDMA}, s[{SO}:{SO+3}], s{so} offen offset:{1024*(k & 3)} lds")
    return ld


def spin(A, L, load, check, first_in_flight=False):
    if first_in_flight is not None:
        A(f"s_mov_b32 s58, {SPIN_MAX}")
    if first_in_flight:
        A(f"s_branch {L}_wait")
    A(f"{L}_poll:\n{load}\n{L}_wait:\ns_waitcnt vmcnt(0)\n{L}_chk:")
    A(check)
    A(f"s_cbranch_scc0 {L}_ok")
    A(f"s_sleep {OPT['slp']}\ns_sub_u32 s58, s58, 1\ns_cmp_lg_u32 s58, 0\ns_cbranch_scc1 {L}_poll")
    A(f"{L}_ok:")


POLL4 = f"buffer_load_dwordx4 {v(PLD,4)}, v{VPOLL}, s[{SWS}:{SWS+3}], s{S_POLL} offen sc1"


JG, JM, JRW, JOUT = 8, 80, 184, 200
LO2, HI2 = "op_sel_hi:[1,0]", "op_sel:[0,1] op_sel_hi:[1,1]"
LO3, HI3 = "op_sel_hi:[1,0,1]", "op_sel:[0,1,0] op_sel_hi:[1,1,1]"


def job_a(A, lds, side=()):
    G, M, RW = JG, JM, JRW

    def greg(e):
        return G + (e % 9)*8 + e//9
    for k in range(9):
        A(f"ds_read_b128 {v(RW+4*k,4)}, v{VJ} offset:{lds + 16*k}")
    B = Asm()
    for k in range(9):
        if k in (0, 1, 3, 6):
            B(f"s_waitcnt lgkmcnt({(8, 6, 0, 3, 0, 0, 0)[k]})")
        for d in range(4):
            e = 8*k + 2*d
            unpack_bf16(B, RW + 4*k + d, greg(e), greg(e+1))
        for d in range(4):
            e = 8*k + 2*d
            B(f"v_max3_f32 v{M}, |v{greg(e)}|, |v{greg(e+1)}|, {'0' if e == 0 else f'v{M}'}")
    if side:
        weave(A, B.L, side)
    else:
        A("\n".join(B.L))
    wave_reduce(A, [M], "v_max_f32")
    A(f"s_lshl_b32 s58, s{S_W}, 2\nv_add_u32 v{M+1}, s58, v{VXL}")
    A(LANE63)
    A(f"ds_write_b32 v{M+1}, v{M} offset:128")
    A("s_mov_b64 exec, -1")


def job_b(A, side=(), hook=None, stores=None):
    G, M, OUTP = JG, JM, JOUT
    T = M + 12
    A(f"ds_read_b128 {v(M+4,4)}, v{VXL} offset:128")
    A(f"s_bitcmp1_b32 s{S_IDX}, 0\ns_cselect_b32 s58, 0, 1.0\ns_cselect_b32 s59, 1.0, 0\ns_cselect_b32 s56, -0.5, 0.5")
    side = list(side)
    if side:
        A(side.pop(0))
    A("s_waitcnt lgkmcnt(0)")
    B = Asm()
    B(f"v_max3_f32 v{M+4}, v{M+4}, v{M+5}, v{M+6}\nv_max_f32 v{M+4}, v{M+4}, v{M+7}")
    B(f"v_frexp_exp_i32_f32 v{M+4}, v{M+4}\nv_min_i32 v{M+4}, 60, v{M+4}\nv_max_i32 v{M+4}, 0xffffffc4, v{M+4}")
    B(f"v_add_u32 v{M}, 119, v{M+4}\nv_lshlrev_b32 v{M}, 23, v{M}")
    K0, K1, K2, K3 = M + 4, M + 6, M + 8, M + 10
    B(f"v_sub_u32 v{T}, 135, v{M+4}\nv_lshlrev_b32 v{T}, 23, v{T}\nv_readfirstlane_b32 s{S_WS}, v{M}")
    B(f"v_mul_f32 v{K0}, s58, v{T}\nv_mul_f32 v{K0+1}, s59, v{T}\nv_mul_f32 v{K1}, 0.5, v{T}\nv_mul_f32 v{K1+1}, s56, v{T}")
    B(f"v_pk_mul_f32 {v(K2,2)}, {v(K0,2)}, 0.5 op_sel_hi:[1,0]\nv_pk_mul_f32 {v(K3,2)}, {v(K1,2)}, 0.5 op_sel_hi:[1,0]")
    for col in range(3):
        ka, kb = (K2, K3) if col == 1 else (K0, K1)
        regs = [(G + col*8 + cp, G + (3+col)*8 + cp, G + (6+col)*8 + cp, T + cp) for cp in range(0, 8, 2)]
        for g0, g1, g2, t in regs:
            B(f"v_pk_add_f32 {v(t,2)}, {v(g0,2)}, {v(g2,2)}")
            B(f"v_pk_mul_f32 {v(g0,2)}, {v(g0,2)}, {v(ka,2)} {LO2}")
            B(f"v_pk_mul_f32 {v(g1,2)}, {v(g1,2)}, {v(kb,2)} {HI2}")
        for g0, g1, g2, t in regs:
            B(f"v_pk_fma_f32 {v(g0,2)}, {v(g2,2)}, {v(ka,2)}, {v(g0,2)} {HI3}")
            B(f"v_pk_fma_f32 {v(g1,2)}, {v(t,2)}, {v(kb,2)}, {v(g1,2)} {LO3}")
        if hook and col == hook[0]:
            B.L.append(hook[1])
    N3 = "neg_lo:[0,0,1] neg_hi:[0,0,1]"
    for i, r in enumerate((G, G + 24)):
        for cp in range(0, 8, 2):
            B(f"v_pk_add_f32 {v(T+cp,2)}, {v(r+cp,2)}, {v(r+16+cp,2)}")
        for cp in range(0, 8, 2):
            B(f"v_pk_fma_f32 {v(r+cp,2)}, {v(T+cp,2)}, 0.5, {v(r+8+cp,2)} {LO3}")
            B(f"v_pk_fma_f32 {v(r+8+cp,2)}, {v(T+cp,2)}, 0.5, {v(r+8+cp,2)} {LO3} {N3}")
        for j, src in enumerate((r+16, r, r+8)):
            o = OUTP + (i*3 + j)*4
            for d in range(4):
                B(f"v_cvt_pk_f16_f32 v{o+d}, v{src+2*d}, v{src+2*d+1}")
            if i or j:
                trim(B, o, 4, OPT["trimU"])
            if stores:
                B.L.append(stores[i*3 + j])
    if side:
        weave(A, B.L, side, 6)
    else:
        A("\n".join(B.L))


def job_stores():
    st = []
    for i in range(2):
        for j in range(3):
            st.append(f"buffer_store_dwordx4 {v(JOUT + (i*3 + j)*4, 4)}, v{VS}, s[{SWS}:{SWS+3}], s{S_J0+i} offen sc1\n"
                      f"s_add_u32 s{S_J0+i}, s{S_J0+i}, {4096 if j < 2 else U2 - U1 - 8192}")
    return st


def silu(A, x, A1, B1, kk, t, out):
    for k in range(0, 8, 2):
        A(f"v_pk_fma_f32 {v(x+k,2)}, {v(x+k,2)}, {v(A1+k,2)}, {v(B1+k,2)}")
    for k in range(8):
        A(f"v_exp_f32 v{t+k}, v{x+k}")
    for k in range(0, 8, 2):
        A(f"v_pk_fma_f32 {v(t+k,2)}, {v(t+k,2)}, {v(kk,2)}, {v(kk,2)}")
    for k in range(8):
        A(f"v_rcp_f32 v{t+k}, v{t+k}")
    for k in range(0, 8, 2):
        A(f"v_pk_mul_f32 {v(x+k,2)}, {v(x+k,2)}, {v(t+k,2)}")
    for k in range(0, 8, 2):
        A(f"v_cvt_pk_f16_f32 v{out+k//2}, v{x+k}, v{x+k+1}")
    trim(A, out, 4, OPT["trimD"])


def x_loads():
    ld = []
    for k in range(8):
        for rho in range(2):
            t = f"buffer_load_dwordx2 {v(XR + (rho*8 + k)*2, 2)}, v{VX+rho}, s[{SX}:{SX+3}], s59 offen"
            if rho == 1 and k < 7:
                t += f"\ns_add_u32 s59, s59, {32768 if OPT.get('xperm') else 8192}"
            ld.append(t)
    ld[0] = f"s_mov_b32 s59, s{S_XO}\n" + ld[0]
    return ld


def kernel(stamps):
    A = Asm()
    st = Stamps(stamps)
    header(A, NAME)
    st.mark(A, "start", False)
    A("s_cmp_ge_u32 s2, 256\ns_cbranch_scc1 Lexit")
    A("s_load_dwordx16 s[4:19], s[0:1], 0")
    A("s_load_dwordx8 s[20:27], s[0:1], 64")
    A("v_lshrrev_b32 v8, 6, v0\nv_and_b32 v0, 63, v0")
    A(f"v_readfirstlane_b32 s{S_W}, v8")
    A(f"s_and_b32 s{S_GRP}, s2, 7\ns_lshr_b32 s{S_IDX}, s2, 3\ns_lshr_b32 s{S_B}, s{S_GRP}, 2")
    A(f"s_and_b32 s{S_NB}, s{S_GRP}, 3\ns_lshl_b32 s{S_NB}, s{S_NB}, 1\ns_and_b32 s56, s{S_IDX}, 1\ns_add_u32 s{S_NB}, s{S_NB}, s56")
    A(f"s_lshr_b32 s{S_RB}, s{S_IDX}, 1\ns_lshl_b32 s{S_OQ}, s{S_GRP}, 4\ns_add_u32 s{S_OQ}, s{S_OQ}, s{S_RB}")

    def touch():
        A(f"s_lshl_b32 s56, s{S_IDX}, 2\ns_add_u32 s56, s56, s{S_W}\nv_and_b32 v8, 1, v0\nv_lshl_add_u32 v8, v8, 7, s56")
        gen.code_touch(A, "Lpf", "Lcode_end", 8, 72, "Lpc", 56)
        A("global_load_dword v8, v[72:73], off\nLpf:")
    if OPT["pf"] == 1:
        touch()
    A("v_and_b32 v9, 15, v0\nv_lshrrev_b32 v10, 4, v0")
    A(f"v_lshlrev_b32 v{VDMA}, 4, v0")
    A(f"s_and_b32 s44, s{S_W}, 1\ns_lshl_b32 s56, s{S_NB}, 1\ns_add_u32 s44, s44, s56")
    A(f"s_lshr_b32 s45, s{S_W}, 1\ns_lshl_b32 s56, s{S_RB}, 1\ns_add_u32 s45, s45, s56")
    A(f"s_lshl_b32 s46, s{S_B}, 22\ns_lshl_b32 s56, s44, 18\ns_add_u32 s46, s46, s56")
    A(f"s_lshl_b32 s47, s45, 8\ns_add_u32 s47, s47, s46")
    OS = 65536 + OPT.get("pad", 0)
    gen.DSTEP = 4*OS
    A(f"v_lshlrev_b32 v11, {13 if OPT.get('xperm') else 16}, v10\nv_lshl_add_u32 v11, v9, 3, v11")
    A(f"s_cmp_eq_u32 s{S_W}, 3\ns_cselect_b32 s56, 128, 0\nv_add_u32 v{VX}, s56, v11\nv_xor_b32 v{VX+1}, 128, v{VX}")
    A(f"s_mov_b32 s{S_MASK}, 0xffff0000")
    A("s_waitcnt lgkmcnt(0)")
    srd(A, SX, 4, 0x800000)
    srd(A, SO, 12, 512*9216)
    A(f"s_load_dword s{S_TAG}, s[26:27], {GEN}")
    A(f"s_cmp_lt_u32 s{S_W}, 2\ns_cbranch_scc1 Lside0\ns_cmp_eq_u32 s{S_W}, 3\ns_cbranch_scc1 Lside3")
    for i, p in enumerate((8, 10, 16, 18)):
        A(f"global_load_dwordx4 {v(16+4*i,4)}, v{VDMA}, s[{p}:{p+1}]")
    A("s_branch Lside0\nLside3:")
    A(f"v_lshrrev_b32 v12, 3, v0\ns_mul_i32 s56, s{S_RB}, 24\nv_add_u32 v12, s56, v12")
    A(f"s_and_b32 s56, s{S_IDX}, 1\ns_mul_i32 s56, s56, 768\nv_lshl_add_u32 v13, v12, 1, s56")
    for i in range(3):
        A(f"global_load_ushort v{16+i}, v13, s[6:7] offset:{16*i}")
    A(f"v_and_b32 v13, 7, v0\nv_lshlrev_b32 v13, 4, v13\nv_lshl_add_u32 v13, v12, 10, v13\ns_lshl_b32 s56, s{S_GRP}, 7\nv_add_u32 v13, s56, v13")
    for i in range(3):
        A(f"global_load_dwordx4 {v(20+4*i,4)}, v13, s[14:15]")
        if i < 2:
            A("v_add_u32 v13, 8192, v13")
    A("Lside0:")
    A(f"s_mov_b32 s{S_XO}, s47")
    for t in x_loads():
        A(t)
    npf = int(OPT["pf"] == 2)
    if npf:
        touch()
    srd(A, SWS, 26, WS_BYTES)
    if OPT["tlb"]:
        npf += 1
        A(f"s_cmp_eq_u32 s{S_W}, 1\ns_cselect_b32 s{SD}, s22, s26\ns_cselect_b32 s{SD+1}, s23, s27\ns_mov_b32 s56, 0x3000000\ns_cselect_b32 s{SD+2}, 0x800000, s56")
        A(f"s_cmp_eq_u32 s{S_W}, 2\ns_cselect_b32 s{SD}, s20, s{SD}\ns_cselect_b32 s{SD+1}, s21, s{SD+1}\ns_cselect_b32 s{SD+2}, {512*9216}, s{SD+2}")
        A(f"s_cmp_eq_u32 s{S_W}, 3\ns_cselect_b32 s{SD+2}, 0, s{SD+2}\ns_mov_b32 s{SD+3}, 0x20000")
        A(f"v_lshlrev_b32 v11, {OPT['tlb']}, v0")
        A(f"buffer_load_dword v8, v11, s[{SD}:{SD+3}], 0 offen offset:2048 sc1")
    A(f"v_mul_u32_u24 v{VD}, {OS}, v10\nv_lshl_add_u32 v{VD}, v9, 4, v{VD}")
    A(f"s_mul_i32 s46, s{S_B}, {64*OS}\ns_add_u32 s56, s46, {D1 - 1024:#x}\ns_mul_i32 s57, s44, {4*OS}\ns_add_u32 s46, s46, s57")
    A(f"s_add_u32 s{SD}, s26, s56\ns_addc_u32 s{SD+1}, s27, 0\ns_mov_b32 s{SD+2}, {64*OS + 1024:#x}\ns_mov_b32 s{SD+3}, 0x20000")
    A(f"s_lshl_b32 s56, s45, 11\ns_add_u32 s{S_RA}, s46, s56\ns_add_u32 s{S_RA}, s{S_RA}, {D1:#x}")
    A(f"s_cmp_eq_u32 s{S_W}, 3\ns_cselect_b32 s56, 1024, 0\ns_cselect_b32 s57, 0, 1024\ns_add_u32 s{S_RB2}, s{S_RA}, s57\ns_add_u32 s{S_RA}, s{S_RA}, s56")
    A(f"s_mul_i32 s{S_SLOT}, s{S_GRP}, {GRPS}\ns_lshl_b32 s56, s{S_IDX}, 7\ns_add_u32 s{S_SLOT}, s{S_SLOT}, s56")
    if OPT.get("ft", 1):
        npf += 1
        A(f"v_min_u32 v11, 5, v0\nv_lshlrev_b32 v11, 16, v11\ns_cmp_eq_u32 s{S_W}, 1\ns_cselect_b32 s56, 0, {OOB:#x}")
        A(f"s_add_u32 s56, s56, s{S_SLOT}\ns_add_u32 s56, s56, {STAT:#x}")
        A(f"buffer_load_dword v8, v11, s[{SWS}:{SWS+3}], s56 offen sc1")
    A(f"s_lshl_b32 s56, s44, 6\nv_lshlrev_b32 v237, 4, v10\nv_add_u32 v237, s56, v237")
    A(f"v_add_u32 v{VDMA2}, 4096, v{VDMA}")
    A(f"s_cmp_eq_u32 s{S_RB}, 0\ns_cselect_b32 s56, {OOB:#x}, 0\nv_add_u32 v{VTOP}, s56, v{VDMA}")
    A(f"s_cmp_eq_u32 s{S_RB}, 15\ns_cselect_b32 s56, {OOB:#x}, 0\nv_add_u32 v{VBOT}, s56, v{VDMA2}")
    A(f"v_lshrrev_b32 v11, 2, v9\nv_lshlrev_b32 v11, 8, v11\nv_lshl_add_u32 v11, v10, 6, v11")
    A(f"v_and_b32 v14, 3, v9\nv_lshl_add_u32 v{VU}, v14, 4, v11")
    A(f"s_lshl_b32 s57, s{S_W}, 10\ns_lshr_b32 s56, s{S_W}, 1\ns_sub_u32 s58, 2, s56\ns_lshl_b32 s58, s58, 10\ns_lshl_b32 s56, s56, 11")
    A(f"v_mul_u32_u24 v11, 6144, v10\nv_lshl_add_u32 v11, v9, 4, v11")
    A(f"v_add_u32 v14, s56, v11\ns_xor_b32 s56, s56, 2048\nv_add_u32 v11, s56, v11")
    A(f"v_add_u32 v{VA}, s57, v14\nv_add_u32 v{VB}, s58, v14\nv_add_u32 v{VA1}, s57, v11\nv_add_u32 v{VB1}, s58, v11")
    A(f"s_mov_b32 s56, 0xbc00bc00\ns_cmp_eq_u32 s{S_W}, 1\ns_cselect_b32 s{S_SGN}, 0x3c003c00, s56")
    A(f"s_mul_i32 s{S_M0}, s{S_W}, 6144")
    for phi in (1, 2, 3):
        A(f"s_xor_b32 s56, s{S_W}, {phi}\ns_mul_i32 s56, s56, 3\ns_add_u32 s56, s56, {phi-1}\ns_lshl_b32 s56, s56, 13\nv_add_u32 v{VW[phi]}, s56, v{VDMA}")
    A(f"s_lshl_b32 s57, s{S_W}, 2\ns_mul_i32 s58, s{S_W}, 3")
    for r, tab in zip(VR, (0x1100, 0x0221, 0x2012)):
        A(f"s_lshr_b32 s56, {tab:#x}, s57\ns_and_b32 s56, s56, 15\ns_add_u32 s56, s56, s58\ns_lshl_b32 s56, s56, 13\nv_add_u32 v{r}, s56, v{VDMA}")
    A(f"s_cmp_eq_u32 s{S_W}, 3\ns_cselect_b32 s{S_AG}, -1.0, 1.0\ns_cmp_ge_u32 s{S_W}, 2\ns_cselect_b32 s{S_AG+1}, 1.0, -1.0")
    A(f"s_xor_b32 s{S_BB+1}, s{S_AG+1}, 0x80000000\ns_add_u32 s56, s{S_W}, 1\ns_bitcmp1_b32 s56, 1")
    A(f"s_cselect_b32 s{S_BB}, 0, 1.0\ns_cselect_b32 s{S_BB+1}, s{S_BB+1}, 0")
    A(f"v_cmp_eq_u32 vcc, 63, v0\nv_mov_b32 v11, {OOB:#x}\nv_mov_b32 v{VXL}, {XLDS}\nv_cndmask_b32 v{V63}, v11, 0, vcc")
    A(f"s_mov_b32 s{S_IT}, 0\ns_waitcnt lgkmcnt(0)\ns_add_u32 s{S_TAG}, s{S_TAG}, {TAGSTEP:#x}")
    A("v_and_b32 v35, 7, v0\nv_lshlrev_b32 v35, 5, v35\nv_lshl_add_u32 v35, v10, 3, v35")
    A(f"s_and_b32 s56, s{S_IDX}, 1\ns_lshl_b32 s56, s56, 7\ns_add_u32 s56, s56, s{S_OQ}\ns_lshl_b32 s56, s56, 8\ns_add_u32 s{S_E2}, s56, {EMBP:#x}")
    A(f"v_and_b32 v11, 3, v0\nv_lshrrev_b32 v14, 2, v0\nv_mul_u32_u24 v11, {WROW}, v11\nv_mul_u32_u24 v14, 144, v14")
    A(f"s_mul_i32 s58, s{S_W}, 2304\ns_add_u32 s58, s58, {WLDS}\nv_add3_u32 v{VJ}, v11, v14, s58")
    A(f"v_mul_u32_u24 v{VS}, 49152, v10\nv_lshl_add_u32 v{VS}, v9, 4, v{VS}")
    A(f"s_mul_i32 s56, s{S_GRP}, 786432\ns_add_u32 s56, s56, {U1:#x}")
    A(f"s_bfe_u32 s58, s{S_RB}, 0x10003\ns_lshl_b32 s58, s58, 11\ns_add_u32 s56, s56, s58")
    A(f"s_and_b32 s58, s{S_RB}, 1\ns_lshl_b32 s58, s58, 10\ns_add_u32 s56, s56, s58")
    A(f"s_bfe_u32 s58, s{S_RB}, 0x20001\ns_lshl_b32 s58, s58, 8\ns_add_u32 s56, s56, s58")
    A(f"s_mul_i32 s58, s{S_W}, {4*49152}\ns_add_u32 s56, s56, s58\ns_xor_b32 s58, s56, 2048")
    A(f"s_bitcmp1_b32 s{S_IDX}, 0\ns_cselect_b32 s{S_J0}, s58, s56\ns_cselect_b32 s{S_J1}, s56, s58")
    A(f"s_cselect_b32 s58, {3*12288}, 0\ns_cselect_b32 s59, 12288, 0")
    A(f"s_add_u32 s{S_J0}, s{S_J0}, s58\ns_add_u32 s{S_J1}, s{S_J1}, s59\ns_add_u32 s{S_J1}, s{S_J1}, 12288")
    wk = OPT.get("wk", -1)
    nextw = f"s_mov_b32 s{SO}, s20\ns_mov_b32 s{SO+1}, s21"
    if wk < 0:
        A("\n".join(w_loads(WLDS, 56, 57)) + "\n" + nextw)
    A(f"s_cmp_lt_u32 s{S_W}, 2\ns_cbranch_scc1 Lside1\ns_waitcnt vmcnt({16 + 9*(wk < 0) + npf})\ns_cmp_eq_u32 s{S_W}, 3\ns_cbranch_scc1 Lside4")
    A("v_mov_b32 v12, 0\nv_mov_b32 v13, 0")
    for d in range(16):
        unpack_bf16(A, 16 + d, 14, 15)
        A(f"v_max3_f32 v{12 + d//8}, |v14|, |v15|, v{12 + d//8}")
    A("s_nop 0")
    wave_reduce(A, [12, 13], "v_max_f32")
    for r in (12, 13):
        A(f"v_frexp_exp_i32_f32 v{r}, v{r}\nv_min_i32 v{r}, 60, v{r}\nv_max_i32 v{r}, 0xffffffc4, v{r}")
    A(LANE63)
    A(f"ds_write_b64 v{VXL}, v[12:13] offset:72\ns_mov_b64 exec, -1\ns_branch Lside1")
    A("Lside4:")
    for i in range(3):
        A(f"v_lshlrev_b32 v{16+i}, 16, v{16+i}")
    for op in (f"v_mul_f32 v{{t}}, {NLOG2E:#x}, v{{x}}", "v_exp_f32 v{t}, v{t}", "v_add_f32 v{t}, 1.0, v{t}",
               "v_rcp_f32 v{t}, v{t}", "v_mul_f32 v{x}, v{x}, v{t}"):
        for i in range(3):
            A(op.format(t=32+i, x=16+i))
    for i in range(3):
        for d in range(4):
            unpack_bf16(A, 20 + 4*i + d, 44 + 2*d, 45 + 2*d)
        for k in range(8):
            A(f"v_mul_f32 v{36+k}, v{44+k}, v{16+i}" if i == 0 else f"v_fmac_f32 v{36+k}, v{44+k}, v{16+i}")
    for k in range(8):
        A(f"v_add_f32_dpp v{36+k}, v{36+k}, v{36+k} row_ror:8 row_mask:0xf bank_mask:0xf")
    A("s_nop 1")
    for k in (0, 1, 4, 5):
        A(f"v_permlane16_swap_b32 v{36+k}, v{38+k}")
    for k in (0, 1, 4, 5):
        A(f"v_add_f32 v{36+k}, v{36+k}, v{38+k}")
    A("s_nop 1")
    for k in (0, 1):
        A(f"v_permlane32_swap_b32 v{36+k}, v{40+k}")
    for k in (0, 1):
        A(f"v_add_f32 v{36+k}, v{36+k}, v{40+k}")
    A("Lside1:")
    P = 72

    def sums(A, x, a, first):
        if first:
            A(f"v_pk_mul_f32 {v(a+4,2)}, {v(x,2)}, {v(x,2)}\nv_pk_mul_f32 {v(a,2)}, {v(x,2)}, 1.0 op_sel_hi:[1,0]")
        else:
            A(f"v_pk_add_f32 {v(a,2)}, {v(a,2)}, {v(x,2)}\nv_pk_fma_f32 {v(a+4,2)}, {v(x,2)}, {v(x,2)}, {v(a+4,2)}")
    for k in range(0, 8, 2):
        A(f"s_waitcnt vmcnt({12 + 9*(wk < k) + npf - 2*k})")
        if k == 6:
            st.mark(A, "xin")
        B = Asm()
        for kk in (k, k+1):
            for rho in range(2):
                r = XR + (rho*8 + kk)*2
                unpack_bf16(B, r, H + (rho*4 + 0)*8 + kk, H + (rho*4 + 1)*8 + kk)
                unpack_bf16(B, r+1, H + (rho*4 + 2)*8 + kk, H + (rho*4 + 3)*8 + kk)
        for p in range(8):
            sums(B, H + p*8 + k, P + 2*(p & 1), k == 0 and p < 2)
        if k == wk:
            weave(A, B.L, w_loads(WLDS, 56, 57))
            A(nextw)
        else:
            A("\n".join(B.L))
    A(f"s_cmp_lg_u32 s{S_W}, 3\ns_cbranch_scc1 Lstats")
    A(f"buffer_store_dwordx2 v[36:37], v35, s[{SWS}:{SWS+3}], s{S_E2} offen sc1")

    A("Lstats:")
    A(f"v_pk_add_f32 {v(P,2)}, {v(P,2)}, {v(P+2,2)}")
    A(f"v_pk_add_f32 {v(P+4,2)}, {v(P+4,2)}, {v(P+6,2)}")
    A(f"v_add_f32 v{P}, v{P}, v{P+1}\nv_add_f32 v{P+1}, v{P+4}, v{P+5}")
    wave_reduce(A, [P, P+1])
    A(f"s_lshl_b32 s56, s{S_W}, 3\nv_add_u32 v{P+2}, s56, v{VXL}")
    A(LANE63)
    A(f"ds_write_b64 v{P+2}, {v(P,2)}")
    A("s_mov_b64 exec, -1")
    A(f"s_lshl_b32 s59, s{S_IT}, 16\ns_add_u32 s56, s59, s{S_SLOT}\ns_add_u32 s56, s56, {STAT:#x}")
    A(f"s_cmp_eq_u32 s{S_IT}, 0\ns_cbranch_scc1 Lb1\ns_waitcnt vmcnt(0)\nLb1:")
    A("s_waitcnt lgkmcnt(0)\ns_barrier")
    A(f"s_cmp_lg_u32 s{S_W}, 0\ns_cbranch_scc1 Lnopub")
    A(f"ds_read_b128 {v(P,4)}, v{VXL}\nds_read_b128 {v(P+4,4)}, v{VXL} offset:16")
    A(f"v_mov_b32 v101, s{S_TAG}\nv_mov_b32 v103, s{S_TAG}\ns_waitcnt lgkmcnt(0)")
    A(f"v_pk_add_f32 {v(P,2)}, {v(P,2)}, {v(P+2,2)}\nv_pk_add_f32 {v(P+4,2)}, {v(P+4,2)}, {v(P+6,2)}")
    A(f"v_add_f32 v100, v{P}, v{P+4}\nv_add_f32 v102, v{P+1}, v{P+5}")
    A(f"buffer_store_dwordx4 v[100:103], v{V63}, s[{SWS}:{SWS+3}], s56 offen sc1")
    A("Lnopub:")
    st.mark(A, "pub")
    A(f"s_mul_i32 s{S_POLL}, s{S_GRP}, {GRPS}\ns_add_u32 s{S_POLL}, s{S_POLL}, s59\ns_add_u32 s{S_POLL}, s{S_POLL}, {STAT:#x}")
    A(f"v_cmp_gt_u32 vcc, 32, v0\nv_mov_b32 v{P}, {OOB:#x}\nv_lshlrev_b32 v{VPOLL}, 7, v0\nv_cndmask_b32 v{VPOLL}, v{P}, v{VPOLL}, vcc")
    A(f"s_cmp_lg_u32 s{S_IT}, 0\ns_cbranch_scc1 Ljob")
    A(f"global_load_dwordx4 {v(GR,4)}, v237, s[8:9]\nglobal_load_dwordx4 {v(BR,4)}, v237, s[10:11]")
    A(f"s_bitcmp1_b32 0x9, s{S_W}\ns_cbranch_scc1 Lw3\ns_waitcnt vmcnt(2)\nLw3:\ns_waitcnt vmcnt(3)\ns_barrier")
    A("Ljob:")
    st.mark(A, "win")
    job_a(A, 0)
    A("s_waitcnt lgkmcnt(0)\ns_barrier")
    job_b(A, hook=(OPT.get("hook", 2), f"s_cmp_lg_u32 s{S_W}, 0\ns_cbranch_scc1 Ljob_mid\n{POLL4}\nLjob_mid:"))
    st.mark(A, "job0")
    A(f"s_cmp_lg_u32 s{S_W}, 0\ns_cbranch_scc1 Ljoin")
    spin(A, "Ls", POLL4, f"v_cmp_ne_u32 vcc, s{S_TAG}, v{PLD+1}\nv_cmp_ne_u32 s[56:57], s{S_TAG}, v{PLD+3}\ns_nop 1\ns_or_b32 s56, s56, vcc_lo", True)
    wave_reduce(A, [PLD, PLD+2])
    A(f"v_mul_f32 v{PLD}, 0xb6000000, v{PLD}\nv_mul_f32 v{PLD+2}, 0x36000000, v{PLD+2}")
    A(f"v_fma_f32 v{PLD+2}, -v{PLD}, v{PLD}, v{PLD+2}\nv_max_f32 v{PLD+2}, 0, v{PLD+2}")
    A(f"v_add_f32 v{PLD+2}, 0x3727c5ac, v{PLD+2}\nv_rsq_f32 v{PLD+1}, v{PLD+2}")
    A(LANE63)
    A(f"ds_write_b64 v{VXL}, {v(PLD,2)} offset:64")
    A("s_mov_b64 exec, -1")
    A("Ljoin:")
    A1, B1, KK, TT, OUT = 8, 16, 24, 32, 72
    A(f"ds_read_b64 {v(KK,2)}, v{VXL} offset:72\ns_waitcnt vmcnt(0)")
    B = Asm()
    for d in range(4):
        unpack_bf16(B, GR + d, A1 + 2*d, A1 + 2*d + 1)
        unpack_bf16(B, BR + d, B1 + 2*d, B1 + 2*d + 1)
    weave(A, B.L, job_stores())
    A(f"s_cmp_lg_u32 s{S_IT}, 0\ns_cselect_b64 vcc, -1, 0\ns_waitcnt lgkmcnt(0)\ns_barrier")
    st.mark(A, "b4")
    A(f"ds_read_b64 {v(PLD,2)}, v{VXL} offset:64")
    A(f"v_cndmask_b32 v{KK}, v{KK}, v{KK+1}, vcc\ns_mov_b32 s56, {NLOG2E:#x}")
    A(f"v_add_u32 v{KK}, 124, v{KK}\nv_lshlrev_b32 v{KK}, 23, v{KK}")
    for k in range(0, 16, 2):
        A(f"v_pk_mul_f32 {v(A1+k,2)}, {v(A1+k,2)}, s[56:57] {LO2}")
    A(f"v_readfirstlane_b32 s{S_INV}, v{KK}\nv_mul_f32 v{KK+1}, s56, v{KK}\nv_mul_f32 v{KK}, s56, v{KK}")
    A("s_waitcnt lgkmcnt(0)")
    st.mark(A, "tot")
    for k in range(0, 8, 2):
        A(f"v_pk_mul_f32 {v(A1+k,2)}, {v(A1+k,2)}, {v(PLD,2)} {HI2}")
    for k in range(0, 8, 2):
        A(f"v_pk_fma_f32 {v(B1+k,2)}, {v(A1+k,2)}, {v(PLD,2)}, {v(B1+k,2)} {LO3}")
    A(f"v_mov_b32 v{VT}, s{S_TAG}\nv_mov_b32 v{VT+1}, s{S_TAG}")
    A(f"s_lshl_b32 s59, s{S_IT}, 16\ns_add_u32 s57, s59, s{S_SLOT}\ns_lshl_b32 s56, s{S_W}, 4\ns_add_u32 s56, s56, s57\ns_add_u32 s{S_E2}, s56, {UF:#x}")
    uflag = (f"v_mov_b32 v{BR}, s{S_TAG}\nv_mov_b32 v{BR+1}, s{S_TAG}\nv_mov_b32 v{BR+2}, s{S_WS}\ns_waitcnt vmcnt(%d)\n"
             f"buffer_store_dwordx4 {v(BR,4)}, v{V63}, s[{SWS}:{SWS+3}], s{S_E2} offen sc1")
    ufp = OPT.get("ufp", 4)
    for p in range(8):
        o = OUT + 4*p
        silu(A, H + p*8, A1, B1, KK, TT + 8*(p & 1), o)
        A(f"buffer_store_dwordx4 {v(o,4)}, v{VD}, s[{SWS}:{SWS+3}], s{S_RA + (p >> 2)} offen offset:{256*(p & 3)} sc1")
        if p == ufp:
            A(uflag % (ufp + 1))
    st.mark(A, "silu")
    VUP, S_UP = 239, S_RET
    A(f"v_lshrrev_b32 v8, 2, v0\nv_lshlrev_b32 v8, 8, v8\nv_and_b32 v9, 3, v0\nv_lshl_add_u32 v{VUP}, v9, 4, v8")
    A(f"s_mul_i32 s{S_UP}, s{S_NB}, {GRPS}\ns_lshr_b32 s56, s{S_W}, 1\ns_lshl_b32 s56, s56, 7\ns_add_u32 s{S_UP}, s{S_UP}, s56")
    A(f"s_add_u32 s{S_UP}, s{S_UP}, s59\ns_add_u32 s{S_UP}, s{S_UP}, {UF:#x}")
    A(f"s_add_u32 s57, s57, {DF:#x}")
    A(f"s_mul_i32 s{S_U0}, s{S_NB}, 786432\ns_mul_i32 s56, s{S_W}, 12288\ns_add_u32 s{S_U0}, s{S_U0}, s56")
    A(f"s_lshl_b32 s56, s{S_IT}, 23\ns_add_u32 s{S_U0}, s{S_U0}, s56")
    A(f"s_add_u32 s{S_U0}, s{S_U0}, {U1:#x}\ns_add_u32 s{S_U1}, s{S_U0}, 4096\ns_add_u32 s{S_U2}, s{S_U0}, 8192")
    A(f"s_mul_i32 s{S_DMA}, s{S_W}, {OS}\ns_lshl_b32 s56, s{S_RB}, 12\ns_add_u32 s{S_DMA}, s{S_DMA}, s56")
    A(f"v_lshrrev_b32 v8, 3, v0\nv_min_u32 v8, 2, v8\nv_add_u32 v8, s{S_RB}, v8\nv_add_u32 v8, -1, v8\nv_med3_i32 v8, v8, 0, 15")
    A(f"v_and_b32 v9, 1, v0\nv_lshl_add_u32 v8, v8, 1, v9\nv_lshlrev_b32 v8, 7, v8")
    A(f"v_bfe_u32 v9, v0, 1, 2\nv_mul_u32_u24 v9, {GRPS}, v9\nv_add_u32 v{VPOLL}, v8, v9")
    A(f"s_mul_i32 s{S_POLL}, s{S_B}, {4*GRPS}\ns_add_u32 s{S_POLL}, s{S_POLL}, s59\ns_add_u32 s{S_POLL}, s{S_POLL}, {DF:#x}")
    upoll = f"buffer_load_dwordx2 {v(GR,2)}, v{VUP}, s[{SWS}:{SWS+3}], s{S_UP} offen sc1"
    ucheck = f"v_cmp_ne_u32 vcc, s{S_TAG}, v{GR}\nv_cmp_ne_u32 s[56:57], s{S_TAG}, v{GR+1}\ns_nop 1\ns_or_b64 s[56:57], s[56:57], vcc"
    dflag = f"buffer_store_dwordx2 {v(VT,2)}, v{V63}, s[{SWS}:{SWS+3}], s57 offen sc1"
    zero = [f"v_accvgpr_write_b32 a{i}, 0" for i in range(256)]
    nz1 = OPT.get("nz1", 160)
    Q0, Q1 = Seq(), Seq()

    def ulist(Q, kj):
        L = []
        for k, j in kj:
            for nu in range(4):
                u_load(Q, k, j, nu)
                L.append(Seq.text(Q.take()))
        return L

    def dma_list(Q, k):
        L = []
        for p in range(6):
            if p in (0, 4):
                dma_m0(Q, k, p >> 2); Q.raw("s_nop 0")
            dma(Q, k, p)
            L.append(Seq.text(Q.take()))
        return L
    Q = Q1
    A(upoll)
    nz0 = OPT.get("nz0", 64)
    A("\n".join(zero[:nz0]))
    A("s_waitcnt vmcnt(1)\ns_barrier")
    st.mark(A, "b5")
    A(f"s_cmp_lg_u32 s{S_W}, 0\ns_cbranch_scc1 Lnodf")
    A(f"{dflag}\ns_mov_b32 s58, {SPIN_MAX}\ns_waitcnt vmcnt(1)\ns_branch Lu_chk")
    A("Lnodf:")
    spin(A, "Lu", upoll, ucheck, True)
    st.mark(A, "uok")
    ul = ulist(Q, ((0, 0), (0, 1), (0, 2), (1, 0)))
    npre = OPT.get("npre", 10)
    ul[npre] = f"s_cmp_lg_u32 s{S_W}, 0\ns_cbranch_scc1 Lnp\n{POLL4}\nLnp:\n" + ul[npre]
    weave(A, zero[nz0:], ul)
    st.mark(A, "job1")
    A(f"s_cmp_lg_u32 s{S_W}, 0\ns_cbranch_scc1 Ld_ok")
    A(f"s_mov_b32 s58, {SPIN_MAX}\ns_waitcnt vmcnt({16 - npre})\ns_branch Ld_chk")
    spin(A, "Ld", POLL4, f"v_cmp_ne_u32 vcc, s{S_TAG}, v{PLD}\nv_cmp_ne_u32 s[56:57], s{S_TAG}, v{PLD+1}\ns_nop 1\ns_or_b64 s[56:57], s[56:57], vcc", None)
    A("s_barrier")
    st.mark(A, "b6")
    A("\n".join(dma_list(Q, 0) + dma_list(Q, 1)))
    A(f"s_xor_b32 s{S_M0}, s{S_M0}, 0x10000\ns_mov_b32 s{S_CNT}, 7")
    d2 = dma_list(Q, 2)
    nd2 = OPT.get("nd2", 4)
    A("\n".join(d2[:nd2]))
    A(f"s_waitcnt vmcnt({6 + nd2})\ns_barrier")
    st.mark(A, "b7")
    for par in range(2):
        for tb in range(4):
            raw_read(Q, 0, par, tb, 0); raw_read(Q, 0, par, tb, 1)
    for par in range(2):
        for tb in range(4):
            Q.wait(lg=[("rd", 0, par, tb)])
            for d in range(4):
                h_op(Q, 0, par, tb, d)
    main = Seq.text(Q.take()).split("\n")
    weave(A, main, d2[nd2:] + ulist(Q, ((1, 1),)), 12)
    Q.wait(vm=[("raw", 1)])
    A(Seq.text(Q.take()))
    A(f"s_cmp_eq_u32 s{S_IT}, 0\ns_cbranch_scc1 Lgo")
    A(f"s_cmp_lg_u32 s2, 2\ns_cbranch_scc1 Lgo\ns_cmp_lg_u32 s{S_W}, 0\ns_cbranch_scc1 Lgo")
    A(f"buffer_store_dword v{VT}, v{V63}, s[{SWS}:{SWS+3}], 0 offen offset:{GEN} sc1")
    A("Lgo:")
    st.mark(A, "loop")
    bodies = []
    for Q in (Q1,):
        for n in range(7):
            gen.step(Q, 2*n)
            gen.step(Q, 2*n + 1, {63: [lambda: Q.raw(f"s_sub_u32 s{S_CNT}, s{S_CNT}, 1\ns_cmp_lg_u32 s{S_CNT}, 0\ns_cbranch_scc1 Lloop")]})
            bodies.append(Q.take())
    A(".p2align 6\nLloop:")
    A(Seq.text(merge(bodies)))
    R = lambda t: [lambda: Q.raw(t)]
    gen.step(Q, 14, {9: R(f"v_and_b32 v{VT}, 127, v237\nv_lshlrev_b32 v239, 1, v{VT}\nv_lshlrev_b32 v{VT}, 5, v{VT}"),
                     11: R(f"v_and_b32 v{VPOLL}, 15, v0\nv_lshl_add_u32 v{VPOLL}, v{VPOLL}, 8, v239"),
                     17: R(f"s_mul_i32 s56, s{S_NB}, {GRPS}\ns_lshl_b32 s57, s{S_IT}, 16\ns_add_u32 s56, s56, s57"),
                     19: R(f"s_lshl_b32 s57, s{S_B}, 3\ns_add_u32 s57, s57, s{S_NB}"),
                     22: R(f"s_lshl_b32 s57, s57, 12\ns_add_u32 s57, s57, {EMBP:#x}"),
                     26: R(f"s_add_u32 s56, s56, {UF:#x}")})
    gen.step(Q, 15, {g: R(f"@{g}") for g in range(31, 64)})
    out = Q.take()
    cut = out.index("@31")
    A(Seq.text(out[:cut]))
    sc_ld = [f"buffer_load_dword v{SCR+h}, v{VT}, s[{SWS}:{SWS+3}], s56 offen offset:{8 + 256*h} sc1" for h in range(2)]
    em_ld = [f"buffer_load_dwordx4 {v(EMR+4*h,4)}, v{VPOLL}, s[{SWS}:{SWS+3}], s57 offen offset:{16*h} sc1" for h in range(2)]
    gb_ld = [f"global_load_dwordx4 {v(GR,4)}, v237, s[16:17]", f"global_load_dwordx4 {v(BR,4)}, v237, s[18:19]"]
    free = [33, 34, 35, 38, 39, 42, 43, 46, 49, 50, 51, 52, 53, 54, 55, 56, 57, 58]
    A(f"s_cmp_lg_u32 s{S_IT}, 0\ns_cbranch_scc1 Ltail1")
    for it, ld in enumerate((sc_ld + em_ld + gb_ld + w_loads(WLDS, 58, 59), x_loads() + sc_ld)):
        m = dict(zip(free, ld))
        A(Seq.text([m.get(int(x[1:]), "") if isinstance(x, str) and x.startswith("@") else x for x in out[cut:]]))
        if it == 0:
            A("s_branch Lepi\nLtail1:")
    A("Lepi:")
    st.mark(A, "end")
    RB_, ZB = [8, 40], [72, 88]
    XB = [8, 20, 72, 84]
    order = [(nul, q) for nul in range(2) for q in range(4)]

    def rd(n):
        nul, q = order[n]
        for i in range(3):
            A(f"ds_read_b128 {v(XB[n & 3] + 4*i, 4)}, v{VR[i]} offset:{(nul*4 + q)*1024}")
    n = 0
    pend = []
    for phi in (2, 1, 3, 0):
        sg, nup = phi >> 1, phi & 1
        for nul in range(2):
            nu = 2*nup + nul
            Rr = RB_[n & 1]
            Z = (lambda q, zb=ZB[n & 1]: zb + 4*q) if phi else (lambda q, nul=nul: H + q*8 + nul*4)
            n += 1
            m = lambda j, be, r=0: Rr + j*8 + be*4 + r
            cnt = 0
            for j in range(4):
                for be in range(2):
                    for r in range(4):
                        A(f"v_accvgpr_read_b32 v{m(j,be,r)}, a{j*64 + nu*16 + (2*sg + be)*4 + r}")
                        cnt += 1
                        while pend and cnt >= OPT["wpos"][4 - len(pend)]:
                            A(pend.pop(0))
            if n > 2 and phi:
                A("s_waitcnt lgkmcnt(4)")
            for r in (0, 2):
                A(f"v_pk_add_f32 {v(Z(0)+r,2)}, {v(m(1,0,r),2)}, {v(m(2,0,r),2)} {NEG1}")
                A(f"v_pk_add_f32 {v(Z(1)+r,2)}, {v(m(1,0,r),2)}, {v(m(2,0,r),2)}")
                A(f"v_pk_add_f32 {v(Z(2)+r,2)}, {v(m(1,1,r),2)}, {v(m(2,1,r),2)} {NEG1}")
                A(f"v_pk_add_f32 {v(Z(3)+r,2)}, {v(m(1,1,r),2)}, {v(m(2,1,r),2)}")
            for r in (0, 2):
                A(f"v_pk_add_f32 {v(Z(0)+r,2)}, {v(Z(0)+r,2)}, {v(m(3,0,r),2)} {NEG1}")
                A(f"v_pk_add_f32 {v(Z(1)+r,2)}, {v(Z(1)+r,2)}, {v(m(0,0,r),2)} {NEG1}")
                A(f"v_pk_add_f32 {v(Z(2)+r,2)}, {v(Z(2)+r,2)}, {v(m(3,1,r),2)} {NEG1}")
                A(f"v_pk_add_f32 {v(Z(3)+r,2)}, {v(Z(3)+r,2)}, {v(m(0,1,r),2)} {NEG1}")
            for r in (0, 2):
                A(f"v_pk_add_f32 {v(Z(1)+r,2)}, {v(Z(1)+r,2)}, {v(m(0,1,r),2)}")
                A(f"v_pk_add_f32 {v(Z(2)+r,2)}, {v(Z(2)+r,2)}, {v(m(3,0,r),2)}")
            for r in range(4):
                A(f"v_add_f32_dpp v{Z(0)+r}, v{m(3,1,r)}, v{Z(0)+r} row_shr:1 row_mask:0xf bank_mask:0xf bound_ctrl:1")
            for r in range(4):
                A(f"v_add_f32_dpp v{Z(3)+r}, v{m(0,0,r)}, v{Z(3)+r} row_shl:1 row_mask:0xf bank_mask:0xf bound_ctrl:1")
            if phi:
                pend = [f"ds_write_b128 v{VW[phi]}, {v(Z(q),4)} offset:{(nul*4 + q)*1024}" for q in (1, 2, 0, 3)]
            elif nul == 0:
                A("s_waitcnt lgkmcnt(0)\ns_barrier")
                for i in range(4):
                    rd(i)
    LO, HI = "op_sel_hi:[1,0,1]", "op_sel:[0,1,0] op_sel_hi:[1,1,1]"
    ag, bb = f"s[{S_AG}:{S_AG+1}]", f"s[{S_BB}:{S_BB+1}]"
    for n in range(8):
        A(f"s_waitcnt lgkmcnt({3*min(3, 7-n)})")
        nul, q = order[n]
        x = XB[n & 3]
        ha, hb = H + q*8 + nul*4, H + 32 + q*8 + nul*4
        for r in (0, 2):
            A(f"v_pk_fma_f32 {v(hb+r,2)}, {v(x+4+r,2)}, {ag}, {v(x+8+r,2)} {HI}")
        for r in (0, 2):
            A(f"v_pk_fma_f32 {v(x+4+r,2)}, {v(x+4+r,2)}, {ag}, {v(x+r,2)} {LO}")
        for r in (0, 2):
            A(f"v_pk_fma_f32 {v(hb+r,2)}, {v(x+r,2)}, {bb}, {v(hb+r,2)} {LO}")
        for r in (0, 2):
            A(f"v_pk_fma_f32 {v(hb+r,2)}, {v(ha+r,2)}, {bb}, {v(hb+r,2)} {HI}")
        for r in (0, 2):
            A(f"v_pk_add_f32 {v(ha+r,2)}, {v(ha+r,2)}, {v(x+4+r,2)}")
        if n + 4 < 8:
            rd(n + 4)
    st.mark(A, "hh")
    unscale = f"v_pk_mul_f32 {v(SCR,2)}, {v(SCR,2)}, s[{S_ASC}:{S_INV}] op_sel:[0,1] op_sel_hi:[1,1]"
    A(f"s_cmp_lg_u32 s{S_IT}, 0\ns_cbranch_scc1 Lfinal")
    A("s_waitcnt vmcnt(11)\n" + unscale)
    for sh in (8, 4, 2, 1):
        for k in range(8):
            A(f"v_add_f32_dpp v{EMR+k}, v{EMR+k}, v{EMR+k} row_ror:{sh} row_mask:0xf bank_mask:0xf")
    for p in range(8):
        for k in range(0, 8, 2):
            x = H + p*8 + k
            A(f"v_pk_fma_f32 {v(x,2)}, {v(x,2)}, {v(SCR,2)}, {v(EMR+k,2)} {LO if k < 4 else HI}")
        for k in range(0, 8, 2):
            sums(A, H + p*8 + k, P + (k & 2), p == 0 and k < 4)
    st.flush(A, 0, 7)
    st.mark(A, "start")
    A(f"s_mov_b32 s{S_IT}, 1")
    A(f"s_add_u32 s{S_RA}, s{S_RA}, {D2-D1:#x}\ns_add_u32 s{S_RB2}, s{S_RB2}, {D2-D1:#x}")
    A(f"s_add_u32 s{SD}, s{SD}, {D2-D1:#x}\ns_addc_u32 s{SD+1}, s{SD+1}, 0")
    A("s_branch Lstats")
    A("Lfinal:")
    srd(A, SO, 22, 0x800000)
    A("s_waitcnt vmcnt(0)\n" + unscale)
    XF, OUT = 8, 168
    for k in range(0, 8, 2):
        for rho in range(2):
            for kk in (k, k+1):
                r = XR + (rho*8 + kk)*2
                unpack_bf16(A, r, XF + (rho*4 + 0)*8 + kk, XF + (rho*4 + 1)*8 + kk)
                unpack_bf16(A, r+1, XF + (rho*4 + 2)*8 + kk, XF + (rho*4 + 3)*8 + kk)
        for p in range(8):
            x = H + p*8 + k
            A(f"v_pk_fma_f32 {v(x,2)}, {v(x,2)}, {v(SCR,2)}, {v(XF + p*8 + k,2)} {LO if k < 4 else HI}")
        for kk in (k, k+1):
            for rho in range(2):
                o = OUT + (rho*8 + kk)*2
                h = H + rho*32 + kk
                A(f"v_cvt_pk_bf16_f32 v{o}, v{h}, v{h+8}")
                A(f"v_cvt_pk_bf16_f32 v{o+1}, v{h+16}, v{h+24}")
                A(f"buffer_store_dwordx2 {v(o,2)}, v{VX+rho}, s[{SO}:{SO+3}], s{S_XO} offen {OPT['sto']}")
            A(f"s_add_u32 s{S_XO}, s{S_XO}, {32768 if OPT.get('xperm') else 8192}")
    if stamps:
        A("s_waitcnt vmcnt(0)")
        A("s_memrealtime s[20:21]\ns_memtime s[22:23]\ns_waitcnt lgkmcnt(0)")
        st.flush(A, 1, 7)
        A("s_mov_b32 s72, s20\ns_mov_b32 s74, s22")
        st.flush(A, 2, 1)
    A("Lexit:\ns_endpgm")
    A("Lcode_end:")
    descriptor(A, NAME, 512, 256)
    return A


HEAD = """; ADM ResBlock: GN+SiLU -> conv3x3 -> +emb -> GN+SiLU -> conv3x3 -> +x   (B=2, C=512, 64x64, bf16 in/out)
%s
.amdgcn_target "amdgcn-amd-amdhsa--gfx950"
"""

if __name__ == "__main__":
    for a in sys.argv[2:]:
        if "=" in a:
            k, val = a.split("=")
            OPT[k] = int(val) if val.lstrip("-").isdigit() else (eval(val) if val.startswith("(") else val.replace("+", " "))
    stamps = "stamps" in sys.argv[2:]
    launch = "; @launch " + (f"kernel={NAME} " if "list" in sys.argv[2:] else "") + "grid=(256,1,1) block=(256,1,1) lds=152064"
    text = HEAD % launch + kernel(stamps).text()
    open(sys.argv[1], "w").write(align_pass(text) if OPT["align"] else text)
```

```python
import sys
sys.path.insert(0, "tools")
import gen
from gen import (Asm, v, acc, NEG1, srd, wave_reduce, header, descriptor, gn_coeffs, silu8, unpack_bf16, trim,
                 align_pass, OPT, OOB, NLOG2E, SPIN_MAX, TAGSTEP, S_MASK, WS_BYTES, WROW, STAMP,
                 SLOT, VDMA, VDMA2, VTOP, VBOT, VU, VA, VB, VA1, VB1, WLDS, XLDS, C, PP, TMP, UU,
                 SWS, SD, SX, SO, S_W, S_DMA, S_M0, S_U0, S_U1, S_U2, S_SGN, S_CNT, S_GRP, S_IDX, S_B, S_NB, S_RB,
                 u_load, dma_m0, dma, raw_read, h_op, D1, D2, U1, U2, SC1, SC2)

NAME = "standalone__adm_resblock__diffusion_kernel"
GEN, EMBP = 0x0, 0x10000
STAT, UF, DF = 0x40000, 0x60000, 0x80000
GRPS = 4352
D1, D2 = 0x0e00000, 0x1700000
OPT.update(jst=1, wpos=(2, 8, 14, 20), ldu="sc1", ldd="sc1", trimU=3, trimD=3, pf=1, delay=0, delayd=6, slp=3)

S_IT, S_TAG, S_ASC, S_INV, S_WS, S_E2, S_RA, S_RB2, S_J0, S_J1, S_OQ = 60, 61, 62, 63, 64, 65, 66, 67, 68, 69, 71
S_RET, S_POLL, S_SLOT, S_XO = 24, 25, 12, 13
S_AG, S_BB = 6, 14
VW, VR = (None, 240, 241, 242), (243, 244, 245)
VD, VX, V63, VXL, VPOLL, VT = 246, 247, 249, 250, 251, 252
H, XR, SCR, EMR, GR, BR, PLD, VS, VJ = 104, 200, 232, 200, 224, 228, 232, 236, 238

LANE63 = "s_mov_b32 exec_lo, 0\ns_mov_b32 exec_hi, 0x80000000"


class Seq(gen.Seq):
    def wait(self, vm=(), lg=()):
        a = [n for n in (self._n(self.vm, t) for t in vm) if n is not None]
        b = [n for n in (self._n(self.lg, t) for t in lg) if n is not None]
        self.out.append(("wait", a[-1] if a else None, b[-1] if b else None))

    @staticmethod
    def text(out):
        L = []
        for x in out:
            if isinstance(x, tuple):
                p = ([f"vmcnt({x[1]})"] if x[1] is not None else []) + ([f"lgkmcnt({x[2]})"] if x[2] is not None else [])
                assert (x[1] or 0) < 64 and (x[2] or 0) < 16
                if p:
                    L.append("s_waitcnt " + " ".join(p))
            else:
                L.append(x)
        return "\n".join(L)

    def take(self):
        o, self.out = self.out, []
        return o


def merge(bodies):
    res = []
    for items in zip(*bodies):
        if isinstance(items[0], tuple):
            f = lambda i: min([x[i] for x in items if x[i] is not None], default=None)
            res.append(("wait", f(1), f(2)))
            assert res[-1] == bodies[3][len(res) - 1], (res[-1], items)
        else:
            assert all(x == items[0] for x in items), items
            res.append(items[0])
    return res


class Stamps:
    def __init__(self, on):
        self.on = on

    def mark(self, A, name, wait=True):
        sel = OPT.get("marks", "start,pub,tot,silu,loop,end,hh").split(",")
        if self.on and name in sel:
            i = sel.index(name)
            A(f"s_memrealtime s[{72+4*i}:{73+4*i}]\ns_memtime s[{74+4*i}:{75+4*i}]")
            if wait:
                A("s_waitcnt lgkmcnt(0)")

    def flush(self, A, kid, n):
        if self.on:
            A(f"s_lshl_b32 s100, s2, 2\ns_add_u32 s100, s100, s{S_W}\ns_lshl_b32 s100, s100, 6")
            A(f"s_add_u32 s100, s100, {STAMP + kid*0x20000:#x}")
            for i in range(n):
                A(f"v_mov_b32 v{VT}, s{72+4*i}\nv_mov_b32 v{VT+1}, s{74+4*i}")
                A(f"buffer_store_dwordx2 {v(VT,2)}, v{V63}, s[{SWS}:{SWS+3}], s100 offen offset:{8*i}")
                A("s_nop 1")


def weave(A, main, side, first=0, last=None):
    last = len(main) if last is None else last
    pos = {}
    for i, t in enumerate(side):
        pos.setdefault(first + (i*(last - first))//len(side), []).append(t)
    for i, m in enumerate(main):
        for t in pos.get(i, []):
            A(t)
        A(m)


def w_loads(base, so, sm):
    ld = []
    for k in range(9):
        t = ""
        if k == 0:
            t = (f"s_mul_i32 s{sm}, s{S_W}, {WROW}\ns_add_u32 m0, s{sm}, {base}\n"
                 f"s_lshl_b32 s{so}, s{S_OQ}, 2\ns_add_u32 s{so}, s{so}, s{S_W}\ns_mul_i32 s{so}, s{so}, 9216\n")
        elif k in (4, 8):
            t = f"s_add_u32 m0, s{sm}, {base + 1024*k}\ns_add_u32 s{so}, s{so}, 4096\n"
        ld.append(t + f"buffer_load_dwordx4 v{VDMA}, s[{SO}:{SO+3}], s{so} offen offset:{1024*(k & 3)} lds")
    return ld


def spin(A, L, load, check, first_in_flight=False):
    if first_in_flight is not None:
        A(f"s_mov_b32 s58, {SPIN_MAX}")
    if first_in_flight:
        A(f"s_branch {L}_wait")
    A(f"{L}_poll:\n{load}\n{L}_wait:\ns_waitcnt vmcnt(0)\n{L}_chk:")
    A(check)
    A(f"s_cbranch_scc0 {L}_ok")
    A(f"s_sleep {OPT['slp']}\ns_sub_u32 s58, s58, 1\ns_cmp_lg_u32 s58, 0\ns_cbranch_scc1 {L}_poll")
    A(f"{L}_ok:")


POLL4 = f"buffer_load_dwordx4 {v(PLD,4)}, v{VPOLL}, s[{SWS}:{SWS+3}], s{S_POLL} offen sc1"


JG, JM, JRW, JOUT = 8, 80, 184, 200
LO2, HI2 = "op_sel_hi:[1,0]", "op_sel:[0,1] op_sel_hi:[1,1]"
LO3, HI3 = "op_sel_hi:[1,0,1]", "op_sel:[0,1,0] op_sel_hi:[1,1,1]"


def job_a(A, lds, side=()):
    G, M, RW = JG, JM, JRW

    def greg(e):
        return G + (e % 9)*8 + e//9
    for k in range(9):
        A(f"ds_read_b128 {v(RW+4*k,4)}, v{VJ} offset:{lds + 16*k}")
    B = Asm()
    for k in range(9):
        if k in (0, 1, 3, 6):
            B(f"s_waitcnt lgkmcnt({(8, 6, 0, 3, 0, 0, 0)[k]})")
        for d in range(4):
            e = 8*k + 2*d
            unpack_bf16(B, RW + 4*k + d, greg(e), greg(e+1))
        for d in range(4):
            e = 8*k + 2*d
            B(f"v_max3_f32 v{M}, |v{greg(e)}|, |v{greg(e+1)}|, {'0' if e == 0 else f'v{M}'}")
    if side:
        weave(A, B.L, side)
    else:
        A("\n".join(B.L))
    wave_reduce(A, [M], "v_max_f32")
    A(f"s_lshl_b32 s58, s{S_W}, 2\nv_add_u32 v{M+1}, s58, v{VXL}")
    A(LANE63)
    A(f"ds_write_b32 v{M+1}, v{M} offset:128")
    A("s_mov_b64 exec, -1")


def job_b(A, side=(), hook=None, stores=None):
    G, M, OUTP = JG, JM, JOUT
    T = M + 12
    A(f"ds_read_b128 {v(M+4,4)}, v{VXL} offset:128")
    A(f"s_bitcmp1_b32 s{S_IDX}, 0\ns_cselect_b32 s58, 0, 1.0\ns_cselect_b32 s59, 1.0, 0\ns_cselect_b32 s56, -0.5, 0.5")
    side = list(side)
    if side:
        A(side.pop(0))
    A("s_waitcnt lgkmcnt(0)")
    B = Asm()
    B(f"v_max3_f32 v{M+4}, v{M+4}, v{M+5}, v{M+6}\nv_max_f32 v{M+4}, v{M+4}, v{M+7}")
    B(f"v_frexp_exp_i32_f32 v{M+4}, v{M+4}\nv_min_i32 v{M+4}, 60, v{M+4}\nv_max_i32 v{M+4}, 0xffffffc4, v{M+4}")
    B(f"v_add_u32 v{M}, 119, v{M+4}\nv_lshlrev_b32 v{M}, 23, v{M}")
    K0, K1, K2, K3 = M + 4, M + 6, M + 8, M + 10
    B(f"v_sub_u32 v{T}, 135, v{M+4}\nv_lshlrev_b32 v{T}, 23, v{T}\nv_readfirstlane_b32 s{S_WS}, v{M}")
    B(f"v_mul_f32 v{K0}, s58, v{T}\nv_mul_f32 v{K0+1}, s59, v{T}\nv_mul_f32 v{K1}, 0.5, v{T}\nv_mul_f32 v{K1+1}, s56, v{T}")
    B(f"v_pk_mul_f32 {v(K2,2)}, {v(K0,2)}, 0.5 op_sel_hi:[1,0]\nv_pk_mul_f32 {v(K3,2)}, {v(K1,2)}, 0.5 op_sel_hi:[1,0]")
    for col in range(3):
        ka, kb = (K2, K3) if col == 1 else (K0, K1)
        regs = [(G + col*8 + cp, G + (3+col)*8 + cp, G + (6+col)*8 + cp, T + cp) for cp in range(0, 8, 2)]
        for g0, g1, g2, t in regs:
            B(f"v_pk_add_f32 {v(t,2)}, {v(g0,2)}, {v(g2,2)}")
            B(f"v_pk_mul_f32 {v(g0,2)}, {v(g0,2)}, {v(ka,2)} {LO2}")
            B(f"v_pk_mul_f32 {v(g1,2)}, {v(g1,2)}, {v(kb,2)} {HI2}")
        for g0, g1, g2, t in regs:
            B(f"v_pk_fma_f32 {v(g0,2)}, {v(g2,2)}, {v(ka,2)}, {v(g0,2)} {HI3}")
            B(f"v_pk_fma_f32 {v(g1,2)}, {v(t,2)}, {v(kb,2)}, {v(g1,2)} {LO3}")
        if hook and col == hook[0]:
            B.L.append(hook[1])
    N3 = "neg_lo:[0,0,1] neg_hi:[0,0,1]"
    for i, r in enumerate((G, G + 24)):
        for cp in range(0, 8, 2):
            B(f"v_pk_add_f32 {v(T+cp,2)}, {v(r+cp,2)}, {v(r+16+cp,2)}")
        for cp in range(0, 8, 2):
            B(f"v_pk_fma_f32 {v(r+cp,2)}, {v(T+cp,2)}, 0.5, {v(r+8+cp,2)} {LO3}")
            B(f"v_pk_fma_f32 {v(r+8+cp,2)}, {v(T+cp,2)}, 0.5, {v(r+8+cp,2)} {LO3} {N3}")
        for j, src in enumerate((r+16, r, r+8)):
            o = OUTP + (i*3 + j)*4
            for d in range(4):
                B(f"v_cvt_pk_f16_f32 v{o+d}, v{src+2*d}, v{src+2*d+1}")
            if i or j:
                trim(B, o, 4, OPT["trimU"])
            if stores:
                B.L.append(stores[i*3 + j])
    if side:
        weave(A, B.L, side, 6)
    else:
        A("\n".join(B.L))


def job_stores():
    st = []
    for i in range(2):
        for j in range(3):
            st.append(f"buffer_store_dwordx4 {v(JOUT + (i*3 + j)*4, 4)}, v{VS}, s[{SWS}:{SWS+3}], s{S_J0+i} offen sc1\n"
                      f"s_add_u32 s{S_J0+i}, s{S_J0+i}, {4096 if j < 2 else U2 - U1 - 8192}")
    return st


def silu(A, x, A1, B1, kk, t, out):
    for k in range(0, 8, 2):
        A(f"v_pk_fma_f32 {v(x+k,2)}, {v(x+k,2)}, {v(A1+k,2)}, {v(B1+k,2)}")
    for k in range(8):
        A(f"v_exp_f32 v{t+k}, v{x+k}")
    for k in range(0, 8, 2):
        A(f"v_pk_fma_f32 {v(t+k,2)}, {v(t+k,2)}, {v(kk,2)}, {v(kk,2)}")
    for k in range(8):
        A(f"v_rcp_f32 v{t+k}, v{t+k}")
    for k in range(0, 8, 2):
        A(f"v_pk_mul_f32 {v(x+k,2)}, {v(x+k,2)}, {v(t+k,2)}")
    for k in range(0, 8, 2):
        A(f"v_cvt_pk_f16_f32 v{out+k//2}, v{x+k}, v{x+k+1}")
    trim(A, out, 4, OPT["trimD"])


def x_loads():
    ld = []
    for k in range(8):
        for rho in range(2):
            t = f"buffer_load_dwordx2 {v(XR + (rho*8 + k)*2, 2)}, v{VX+rho}, s[{SX}:{SX+3}], s59 offen"
            if rho == 1 and k < 7:
                t += f"\ns_add_u32 s59, s59, {32768 if OPT.get('xperm') else 8192}"
            ld.append(t)
    ld[0] = f"s_mov_b32 s59, s{S_XO}\n" + ld[0]
    return ld


def kernel(stamps):
    A = Asm()
    st = Stamps(stamps)
    header(A, NAME)
    st.mark(A, "start", False)
    A("s_cmp_ge_u32 s2, 256\ns_cbranch_scc1 Lexit")
    A("s_load_dwordx16 s[4:19], s[0:1], 0")
    A("s_load_dwordx8 s[20:27], s[0:1], 64")
    A("v_lshrrev_b32 v8, 6, v0\nv_and_b32 v0, 63, v0")
    A(f"v_readfirstlane_b32 s{S_W}, v8")
    A(f"s_and_b32 s{S_GRP}, s2, 7\ns_lshr_b32 s{S_IDX}, s2, 3\ns_lshr_b32 s{S_B}, s{S_GRP}, 2")
    A(f"s_and_b32 s{S_NB}, s{S_GRP}, 3\ns_lshl_b32 s{S_NB}, s{S_NB}, 1\ns_and_b32 s56, s{S_IDX}, 1\ns_add_u32 s{S_NB}, s{S_NB}, s56")
    A(f"s_lshr_b32 s{S_RB}, s{S_IDX}, 1\ns_lshl_b32 s{S_OQ}, s{S_GRP}, 4\ns_add_u32 s{S_OQ}, s{S_OQ}, s{S_RB}")

    def touch():
        A(f"s_lshl_b32 s56, s{S_IDX}, 2\ns_add_u32 s56, s56, s{S_W}\nv_and_b32 v8, 1, v0\nv_lshl_add_u32 v8, v8, 7, s56")
        gen.code_touch(A, "Lpf", "Lcode_end", 8, 72, "Lpc", 56)
        A("global_load_dword v8, v[72:73], off\nLpf:")
    if OPT["pf"] == 1:
        touch()
    A("v_and_b32 v9, 15, v0\nv_lshrrev_b32 v10, 4, v0")
    A(f"v_lshlrev_b32 v{VDMA}, 4, v0")
    A(f"s_and_b32 s44, s{S_W}, 1\ns_lshl_b32 s56, s{S_NB}, 1\ns_add_u32 s44, s44, s56")
    A(f"s_lshr_b32 s45, s{S_W}, 1\ns_lshl_b32 s56, s{S_RB}, 1\ns_add_u32 s45, s45, s56")
    A(f"s_lshl_b32 s46, s{S_B}, 22\ns_lshl_b32 s56, s44, 18\ns_add_u32 s46, s46, s56")
    A(f"s_lshl_b32 s47, s45, 8\ns_add_u32 s47, s47, s46")
    OS = 65536 + OPT.get("pad", 0)
    gen.DSTEP = 4*OS
    A(f"v_lshlrev_b32 v11, {13 if OPT.get('xperm') else 16}, v10\nv_lshl_add_u32 v11, v9, 3, v11")
    A(f"s_cmp_eq_u32 s{S_W}, 3\ns_cselect_b32 s56, 128, 0\nv_add_u32 v{VX}, s56, v11\nv_xor_b32 v{VX+1}, 128, v{VX}")
    A(f"s_mov_b32 s{S_MASK}, 0xffff0000")
    A("s_waitcnt lgkmcnt(0)")
    srd(A, SX, 4, 0x800000)
    srd(A, SO, 12, 512*9216)
    A(f"s_load_dword s{S_TAG}, s[26:27], {GEN}")
    A(f"s_cmp_lt_u32 s{S_W}, 2\ns_cbranch_scc1 Lside0\ns_cmp_eq_u32 s{S_W}, 3\ns_cbranch_scc1 Lside3")
    for i, p in enumerate((8, 10, 16, 18)):
        A(f"global_load_dwordx4 {v(16+4*i,4)}, v{VDMA}, s[{p}:{p+1}]")
    A("s_branch Lside0\nLside3:")
    A(f"v_lshrrev_b32 v12, 3, v0\ns_mul_i32 s56, s{S_RB}, 24\nv_add_u32 v12, s56, v12")
    A(f"s_and_b32 s56, s{S_IDX}, 1\ns_mul_i32 s56, s56, 768\nv_lshl_add_u32 v13, v12, 1, s56")
    for i in range(3):
        A(f"global_load_ushort v{16+i}, v13, s[6:7] offset:{16*i}")
    A(f"v_and_b32 v13, 7, v0\nv_lshlrev_b32 v13, 4, v13\nv_lshl_add_u32 v13, v12, 10, v13\ns_lshl_b32 s56, s{S_GRP}, 7\nv_add_u32 v13, s56, v13")
    for i in range(3):
        A(f"global_load_dwordx4 {v(20+4*i,4)}, v13, s[14:15]")
        if i < 2:
            A("v_add_u32 v13, 8192, v13")
    A("Lside0:")
    A(f"s_mov_b32 s{S_XO}, s47")
    for t in x_loads():
        A(t)
    npf = int(OPT["pf"] == 2)
    if npf:
        touch()
    srd(A, SWS, 26, WS_BYTES)
    if OPT["tlb"]:
        npf += 1
        A(f"s_cmp_eq_u32 s{S_W}, 1\ns_cselect_b32 s{SD}, s22, s26\ns_cselect_b32 s{SD+1}, s23, s27\ns_mov_b32 s56, 0x3000000\ns_cselect_b32 s{SD+2}, 0x800000, s56")
        A(f"s_cmp_eq_u32 s{S_W}, 2\ns_cselect_b32 s{SD}, s20, s{SD}\ns_cselect_b32 s{SD+1}, s21, s{SD+1}\ns_cselect_b32 s{SD+2}, {512*9216}, s{SD+2}")
        A(f"s_cmp_eq_u32 s{S_W}, 3\ns_cselect_b32 s{SD+2}, 0, s{SD+2}\ns_mov_b32 s{SD+3}, 0x20000")
        A(f"v_lshlrev_b32 v11, {OPT['tlb']}, v0")
        A(f"buffer_load_dword v8, v11, s[{SD}:{SD+3}], 0 offen offset:2048 sc1")
    A(f"v_mul_u32_u24 v{VD}, {OS}, v10\nv_lshl_add_u32 v{VD}, v9, 4, v{VD}")
    A(f"s_mul_i32 s46, s{S_B}, {64*OS}\ns_add_u32 s56, s46, {D1 - 1024:#x}\ns_mul_i32 s57, s44, {4*OS}\ns_add_u32 s46, s46, s57")
    A(f"s_add_u32 s{SD}, s26, s56\ns_addc_u32 s{SD+1}, s27, 0\ns_mov_b32 s{SD+2}, {64*OS + 1024:#x}\ns_mov_b32 s{SD+3}, 0x20000")
    A(f"s_lshl_b32 s56, s45, 11\ns_add_u32 s{S_RA}, s46, s56\ns_add_u32 s{S_RA}, s{S_RA}, {D1:#x}")
    A(f"s_cmp_eq_u32 s{S_W}, 3\ns_cselect_b32 s56, 1024, 0\ns_cselect_b32 s57, 0, 1024\ns_add_u32 s{S_RB2}, s{S_RA}, s57\ns_add_u32 s{S_RA}, s{S_RA}, s56")
    A(f"s_mul_i32 s{S_SLOT}, s{S_GRP}, {GRPS}\ns_lshl_b32 s56, s{S_IDX}, 7\ns_add_u32 s{S_SLOT}, s{S_SLOT}, s56")
    if OPT.get("ft", 1):
        npf += 1
        A(f"v_min_u32 v11, 5, v0\nv_lshlrev_b32 v11, 16, v11\ns_cmp_eq_u32 s{S_W}, 1\ns_cselect_b32 s56, 0, {OOB:#x}")
        A(f"s_add_u32 s56, s56, s{S_SLOT}\ns_add_u32 s56, s56, {STAT:#x}")
        A(f"buffer_load_dword v8, v11, s[{SWS}:{SWS+3}], s56 offen sc1")
    A(f"s_lshl_b32 s56, s44, 6\nv_lshlrev_b32 v237, 4, v10\nv_add_u32 v237, s56, v237")
    A(f"v_add_u32 v{VDMA2}, 4096, v{VDMA}")
    A(f"s_cmp_eq_u32 s{S_RB}, 0\ns_cselect_b32 s56, {OOB:#x}, 0\nv_add_u32 v{VTOP}, s56, v{VDMA}")
    A(f"s_cmp_eq_u32 s{S_RB}, 15\ns_cselect_b32 s56, {OOB:#x}, 0\nv_add_u32 v{VBOT}, s56, v{VDMA2}")
    A(f"v_lshrrev_b32 v11, 2, v9\nv_lshlrev_b32 v11, 8, v11\nv_lshl_add_u32 v11, v10, 6, v11")
    A(f"v_and_b32 v14, 3, v9\nv_lshl_add_u32 v{VU}, v14, 4, v11")
    A(f"s_lshl_b32 s57, s{S_W}, 10\ns_lshr_b32 s56, s{S_W}, 1\ns_sub_u32 s58, 2, s56\ns_lshl_b32 s58, s58, 10\ns_lshl_b32 s56, s56, 11")
    A(f"v_mul_u32_u24 v11, 6144, v10\nv_lshl_add_u32 v11, v9, 4, v11")
    A(f"v_add_u32 v14, s56, v11\ns_xor_b32 s56, s56, 2048\nv_add_u32 v11, s56, v11")
    A(f"v_add_u32 v{VA}, s57, v14\nv_add_u32 v{VB}, s58, v14\nv_add_u32 v{VA1}, s57, v11\nv_add_u32 v{VB1}, s58, v11")
    A(f"s_mov_b32 s56, 0xbc00bc00\ns_cmp_eq_u32 s{S_W}, 1\ns_cselect_b32 s{S_SGN}, 0x3c003c00, s56")
    A(f"s_mul_i32 s{S_M0}, s{S_W}, 6144")
    for phi in (1, 2, 3):
        A(f"s_xor_b32 s56, s{S_W}, {phi}\ns_mul_i32 s56, s56, 3\ns_add_u32 s56, s56, {phi-1}\ns_lshl_b32 s56, s56, 13\nv_add_u32 v{VW[phi]}, s56, v{VDMA}")
    A(f"s_lshl_b32 s57, s{S_W}, 2\ns_mul_i32 s58, s{S_W}, 3")
    for r, tab in zip(VR, (0x1100, 0x0221, 0x2012)):
        A(f"s_lshr_b32 s56, {tab:#x}, s57\ns_and_b32 s56, s56, 15\ns_add_u32 s56, s56, s58\ns_lshl_b32 s56, s56, 13\nv_add_u32 v{r}, s56, v{VDMA}")
    A(f"s_cmp_eq_u32 s{S_W}, 3\ns_cselect_b32 s{S_AG}, -1.0, 1.0\ns_cmp_ge_u32 s{S_W}, 2\ns_cselect_b32 s{S_AG+1}, 1.0, -1.0")
    A(f"s_xor_b32 s{S_BB+1}, s{S_AG+1}, 0x80000000\ns_add_u32 s56, s{S_W}, 1\ns_bitcmp1_b32 s56, 1")
    A(f"s_cselect_b32 s{S_BB}, 0, 1.0\ns_cselect_b32 s{S_BB+1}, s{S_BB+1}, 0")
    A(f"v_cmp_eq_u32 vcc, 63, v0\nv_mov_b32 v11, {OOB:#x}\nv_mov_b32 v{VXL}, {XLDS}\nv_cndmask_b32 v{V63}, v11, 0, vcc")
    A(f"s_mov_b32 s{S_IT}, 0\ns_waitcnt lgkmcnt(0)\ns_add_u32 s{S_TAG}, s{S_TAG}, {TAGSTEP:#x}")
    A("v_and_b32 v35, 7, v0\nv_lshlrev_b32 v35, 5, v35\nv_lshl_add_u32 v35, v10, 3, v35")
    A(f"s_and_b32 s56, s{S_IDX}, 1\ns_lshl_b32 s56, s56, 7\ns_add_u32 s56, s56, s{S_OQ}\ns_lshl_b32 s56, s56, 8\ns_add_u32 s{S_E2}, s56, {EMBP:#x}")
    A(f"v_and_b32 v11, 3, v0\nv_lshrrev_b32 v14, 2, v0\nv_mul_u32_u24 v11, {WROW}, v11\nv_mul_u32_u24 v14, 144, v14")
    A(f"s_mul_i32 s58, s{S_W}, 2304\ns_add_u32 s58, s58, {WLDS}\nv_add3_u32 v{VJ}, v11, v14, s58")
    A(f"v_mul_u32_u24 v{VS}, 49152, v10\nv_lshl_add_u32 v{VS}, v9, 4, v{VS}")
    A(f"s_mul_i32 s56, s{S_GRP}, 786432\ns_add_u32 s56, s56, {U1:#x}")
    A(f"s_bfe_u32 s58, s{S_RB}, 0x10003\ns_lshl_b32 s58, s58, 11\ns_add_u32 s56, s56, s58")
    A(f"s_and_b32 s58, s{S_RB}, 1\ns_lshl_b32 s58, s58, 10\ns_add_u32 s56, s56, s58")
    A(f"s_bfe_u32 s58, s{S_RB}, 0x20001\ns_lshl_b32 s58, s58, 8\ns_add_u32 s56, s56, s58")
    A(f"s_mul_i32 s58, s{S_W}, {4*49152}\ns_add_u32 s56, s56, s58\ns_xor_b32 s58, s56, 2048")
    A(f"s_bitcmp1_b32 s{S_IDX}, 0\ns_cselect_b32 s{S_J0}, s58, s56\ns_cselect_b32 s{S_J1}, s56, s58")
    A(f"s_cselect_b32 s58, {3*12288}, 0\ns_cselect_b32 s59, 12288, 0")
    A(f"s_add_u32 s{S_J0}, s{S_J0}, s58\ns_add_u32 s{S_J1}, s{S_J1}, s59\ns_add_u32 s{S_J1}, s{S_J1}, 12288")
    wk = OPT.get("wk", -1)
    nextw = f"s_mov_b32 s{SO}, s20\ns_mov_b32 s{SO+1}, s21"
    if wk < 0:
        A("\n".join(w_loads(WLDS, 56, 57)) + "\n" + nextw)
    A(f"s_cmp_lt_u32 s{S_W}, 2\ns_cbranch_scc1 Lside1\ns_waitcnt vmcnt({16 + 9*(wk < 0) + npf})\ns_cmp_eq_u32 s{S_W}, 3\ns_cbranch_scc1 Lside4")
    A("v_mov_b32 v12, 0\nv_mov_b32 v13, 0")
    for d in range(16):
        unpack_bf16(A, 16 + d, 14, 15)
        A(f"v_max3_f32 v{12 + d//8}, |v14|, |v15|, v{12 + d//8}")
    A("s_nop 0")
    wave_reduce(A, [12, 13], "v_max_f32")
    for r in (12, 13):
        A(f"v_frexp_exp_i32_f32 v{r}, v{r}\nv_min_i32 v{r}, 60, v{r}\nv_max_i32 v{r}, 0xffffffc4, v{r}")
    A(LANE63)
    A(f"ds_write_b64 v{VXL}, v[12:13] offset:72\ns_mov_b64 exec, -1\ns_branch Lside1")
    A("Lside4:")
    for i in range(3):
        A(f"v_lshlrev_b32 v{16+i}, 16, v{16+i}")
    for op in (f"v_mul_f32 v{{t}}, {NLOG2E:#x}, v{{x}}", "v_exp_f32 v{t}, v{t}", "v_add_f32 v{t}, 1.0, v{t}",
               "v_rcp_f32 v{t}, v{t}", "v_mul_f32 v{x}, v{x}, v{t}"):
        for i in range(3):
            A(op.format(t=32+i, x=16+i))
    for i in range(3):
        for d in range(4):
            unpack_bf16(A, 20 + 4*i + d, 44 + 2*d, 45 + 2*d)
        for k in range(8):
            A(f"v_mul_f32 v{36+k}, v{44+k}, v{16+i}" if i == 0 else f"v_fmac_f32 v{36+k}, v{44+k}, v{16+i}")
    for k in range(8):
        A(f"v_add_f32_dpp v{36+k}, v{36+k}, v{36+k} row_ror:8 row_mask:0xf bank_mask:0xf")
    A("s_nop 1")
    for k in (0, 1, 4, 5):
        A(f"v_permlane16_swap_b32 v{36+k}, v{38+k}")
    for k in (0, 1, 4, 5):
        A(f"v_add_f32 v{36+k}, v{36+k}, v{38+k}")
    A("s_nop 1")
    for k in (0, 1):
        A(f"v_permlane32_swap_b32 v{36+k}, v{40+k}")
    for k in (0, 1):
        A(f"v_add_f32 v{36+k}, v{36+k}, v{40+k}")
    A("Lside1:")
    P = 176

    def sums(A, x, a, first):
        if first:
            A(f"v_pk_mul_f32 {v(a+4,2)}, {v(x,2)}, {v(x,2)}\nv_pk_mul_f32 {v(a,2)}, {v(x,2)}, 1.0 op_sel_hi:[1,0]")
        else:
            A(f"v_pk_add_f32 {v(a,2)}, {v(a,2)}, {v(x,2)}\nv_pk_fma_f32 {v(a+4,2)}, {v(x,2)}, {v(x,2)}, {v(a+4,2)}")
    for k in range(0, 8, 2):
        A(f"s_waitcnt vmcnt({12 + 9*(wk < k) + npf - 2*k})")
        if k == 6:
            st.mark(A, "xin")
        B = Asm()
        for kk in (k, k+1):
            for rho in range(2):
                r = XR + (rho*8 + kk)*2
                unpack_bf16(B, r, H + (rho*4 + 0)*8 + kk, H + (rho*4 + 1)*8 + kk)
                unpack_bf16(B, r+1, H + (rho*4 + 2)*8 + kk, H + (rho*4 + 3)*8 + kk)
        for p in range(8):
            sums(B, H + p*8 + k, P + 2*(p & 1), k == 0 and p < 2)
        if k == wk:
            weave(A, B.L, w_loads(WLDS, 56, 57))
            A(nextw)
        else:
            A("\n".join(B.L))
    A(f"s_cmp_lg_u32 s{S_W}, 3\ns_cbranch_scc1 Lstats")
    A(f"buffer_store_dwordx2 v[36:37], v35, s[{SWS}:{SWS+3}], s{S_E2} offen sc1")

    A("Lstats:")
    A(f"v_pk_add_f32 {v(P,2)}, {v(P,2)}, {v(P+2,2)}")
    A(f"v_pk_add_f32 {v(P+4,2)}, {v(P+4,2)}, {v(P+6,2)}")
    A(f"v_add_f32 v{P}, v{P}, v{P+1}\nv_add_f32 v{P+1}, v{P+4}, v{P+5}")
    wave_reduce(A, [P, P+1])
    A(f"s_lshl_b32 s56, s{S_W}, 3\nv_add_u32 v{P+2}, s56, v{VXL}")
    A(LANE63)
    A(f"ds_write_b64 v{P+2}, {v(P,2)}")
    A("s_mov_b64 exec, -1")
    A(f"s_lshl_b32 s59, s{S_IT}, 16\ns_add_u32 s56, s59, s{S_SLOT}\ns_add_u32 s56, s56, {STAT:#x}")
    A(f"s_cmp_eq_u32 s{S_IT}, 0\ns_cbranch_scc1 Lb1\ns_waitcnt vmcnt(0)\nLb1:")
    A("s_waitcnt lgkmcnt(0)\ns_barrier")
    A(f"s_cmp_lg_u32 s{S_W}, 0\ns_cbranch_scc1 Lnopub")
    A(f"ds_read_b128 {v(P,4)}, v{VXL}\nds_read_b128 {v(P+4,4)}, v{VXL} offset:16")
    A(f"v_mov_b32 v101, s{S_TAG}\nv_mov_b32 v103, s{S_TAG}\ns_waitcnt lgkmcnt(0)")
    A(f"v_pk_add_f32 {v(P,2)}, {v(P,2)}, {v(P+2,2)}\nv_pk_add_f32 {v(P+4,2)}, {v(P+4,2)}, {v(P+6,2)}")
    A(f"v_add_f32 v100, v{P}, v{P+4}\nv_add_f32 v102, v{P+1}, v{P+5}")
    A(f"buffer_store_dwordx4 v[100:103], v{V63}, s[{SWS}:{SWS+3}], s56 offen sc1")
    A("Lnopub:")
    st.mark(A, "pub")
    A(f"s_mul_i32 s{S_POLL}, s{S_GRP}, {GRPS}\ns_add_u32 s{S_POLL}, s{S_POLL}, s59\ns_add_u32 s{S_POLL}, s{S_POLL}, {STAT:#x}")
    A(f"v_cmp_gt_u32 vcc, 32, v0\nv_mov_b32 v{P}, {OOB:#x}\nv_lshlrev_b32 v{VPOLL}, 7, v0\nv_cndmask_b32 v{VPOLL}, v{P}, v{VPOLL}, vcc")
    A(f"s_cmp_lg_u32 s{S_IT}, 0\ns_cbranch_scc1 Ljob")
    A(f"global_load_dwordx4 {v(GR,4)}, v237, s[8:9]\nglobal_load_dwordx4 {v(BR,4)}, v237, s[10:11]")
    A(f"s_bitcmp1_b32 0x9, s{S_W}\ns_cbranch_scc1 Lw3\ns_waitcnt vmcnt(2)\nLw3:\ns_waitcnt vmcnt(3)\ns_barrier")
    A("Ljob:")
    st.mark(A, "win")
    job_a(A, 0)
    A("s_waitcnt lgkmcnt(0)\ns_barrier")
    job_b(A, hook=(OPT.get("hook", 2), f"s_cmp_lg_u32 s{S_W}, 0\ns_cbranch_scc1 Ljob_mid\n{POLL4}\nLjob_mid:"),
          stores=job_stores() if OPT.get("jst") else None)
    st.mark(A, "job0")
    A(f"s_cmp_lg_u32 s{S_W}, 0\ns_cbranch_scc1 Ljoin")
    if OPT.get("jst"):
        A(f"s_mov_b32 s58, {SPIN_MAX}\ns_waitcnt vmcnt(6)\ns_branch Ls_chk")
    spin(A, "Ls", POLL4, f"v_cmp_ne_u32 vcc, s{S_TAG}, v{PLD+1}\nv_cmp_ne_u32 s[56:57], s{S_TAG}, v{PLD+3}\ns_nop 1\ns_or_b32 s56, s56, vcc_lo", None if OPT.get("jst") else True)
    wave_reduce(A, [PLD, PLD+2])
    A(f"v_mul_f32 v{PLD}, 0xb6000000, v{PLD}\nv_mul_f32 v{PLD+2}, 0x36000000, v{PLD+2}")
    A(f"v_fma_f32 v{PLD+2}, -v{PLD}, v{PLD}, v{PLD+2}\nv_max_f32 v{PLD+2}, 0, v{PLD+2}")
    A(f"v_add_f32 v{PLD+2}, 0x3727c5ac, v{PLD+2}\nv_rsq_f32 v{PLD+1}, v{PLD+2}")
    A(LANE63)
    A(f"ds_write_b64 v{VXL}, {v(PLD,2)} offset:64")
    A("s_mov_b64 exec, -1")
    A("Ljoin:")
    A1, B1, KK, TT, OUT = 8, 16, 24, 32, 72
    A(f"ds_read_b64 {v(KK,2)}, v{VXL} offset:72\ns_waitcnt vmcnt({6 if OPT.get('jst') else 0})")
    B = Asm()
    for d in range(4):
        unpack_bf16(B, GR + d, A1 + 2*d, A1 + 2*d + 1)
        unpack_bf16(B, BR + d, B1 + 2*d, B1 + 2*d + 1)
    weave(A, B.L, [""] if OPT.get("jst") else job_stores())
    A(f"s_cmp_lg_u32 s{S_IT}, 0\ns_cselect_b64 vcc, -1, 0\ns_waitcnt lgkmcnt(0)\ns_barrier")
    st.mark(A, "b4")
    A(f"ds_read_b64 {v(PLD,2)}, v{VXL} offset:64")
    A(f"v_cndmask_b32 v{KK}, v{KK}, v{KK+1}, vcc\ns_mov_b32 s56, {NLOG2E:#x}")
    A(f"v_add_u32 v{KK}, 124, v{KK}\nv_lshlrev_b32 v{KK}, 23, v{KK}")
    for k in range(0, 16, 2):
        A(f"v_pk_mul_f32 {v(A1+k,2)}, {v(A1+k,2)}, s[56:57] {LO2}")
    A(f"v_readfirstlane_b32 s{S_INV}, v{KK}\nv_mul_f32 v{KK+1}, s56, v{KK}\nv_mul_f32 v{KK}, s56, v{KK}")
    A("s_waitcnt lgkmcnt(0)")
    st.mark(A, "tot")
    for k in range(0, 8, 2):
        A(f"v_pk_mul_f32 {v(A1+k,2)}, {v(A1+k,2)}, {v(PLD,2)} {HI2}")
    for k in range(0, 8, 2):
        A(f"v_pk_fma_f32 {v(B1+k,2)}, {v(A1+k,2)}, {v(PLD,2)}, {v(B1+k,2)} {LO3}")
    A(f"v_mov_b32 v{VT}, s{S_TAG}\nv_mov_b32 v{VT+1}, s{S_TAG}")
    A(f"s_lshl_b32 s59, s{S_IT}, 16\ns_add_u32 s57, s59, s{S_SLOT}\ns_lshl_b32 s56, s{S_W}, 4\ns_add_u32 s56, s56, s57\ns_add_u32 s{S_E2}, s56, {UF:#x}")
    uflag = (f"v_mov_b32 v{BR}, s{S_TAG}\nv_mov_b32 v{BR+1}, s{S_TAG}\nv_mov_b32 v{BR+2}, s{S_WS}\ns_waitcnt vmcnt(%d)\n"
             f"buffer_store_dwordx4 {v(BR,4)}, v{V63}, s[{SWS}:{SWS+3}], s{S_E2} offen sc1")
    ufp = OPT.get("ufp", 4)
    for p in range(8):
        o = OUT + 4*p
        silu(A, H + p*8, A1, B1, KK, TT + 8*(p & 1), o)
        A(f"buffer_store_dwordx4 {v(o,4)}, v{VD}, s[{SWS}:{SWS+3}], s{S_RA + (p >> 2)} offen offset:{256*(p & 3)} sc1")
        if p == ufp:
            A(uflag % (ufp + 1))
    st.mark(A, "silu")
    VUP, S_UP = 239, S_RET
    A(f"v_lshrrev_b32 v8, 2, v0\nv_lshlrev_b32 v8, 8, v8\nv_and_b32 v9, 3, v0\nv_lshl_add_u32 v{VUP}, v9, 4, v8")
    A(f"s_mul_i32 s{S_UP}, s{S_NB}, {GRPS}\ns_lshr_b32 s56, s{S_W}, 1\ns_lshl_b32 s56, s56, 7\ns_add_u32 s{S_UP}, s{S_UP}, s56")
    A(f"s_add_u32 s{S_UP}, s{S_UP}, s59\ns_add_u32 s{S_UP}, s{S_UP}, {UF:#x}")
    A(f"s_add_u32 s57, s57, {DF:#x}")
    A(f"s_mul_i32 s{S_U0}, s{S_NB}, 786432\ns_mul_i32 s56, s{S_W}, 12288\ns_add_u32 s{S_U0}, s{S_U0}, s56")
    A(f"s_lshl_b32 s56, s{S_IT}, 23\ns_add_u32 s{S_U0}, s{S_U0}, s56")
    A(f"s_add_u32 s{S_U0}, s{S_U0}, {U1:#x}\ns_add_u32 s{S_U1}, s{S_U0}, 4096\ns_add_u32 s{S_U2}, s{S_U0}, 8192")
    A(f"s_mul_i32 s{S_DMA}, s{S_W}, {OS}\ns_lshl_b32 s56, s{S_RB}, 12\ns_add_u32 s{S_DMA}, s{S_DMA}, s56")
    A(f"v_lshrrev_b32 v8, 3, v0\nv_min_u32 v8, 2, v8\nv_add_u32 v8, s{S_RB}, v8\nv_add_u32 v8, -1, v8\nv_med3_i32 v8, v8, 0, 15")
    A(f"v_and_b32 v9, 1, v0\nv_lshl_add_u32 v8, v8, 1, v9\nv_lshlrev_b32 v8, 7, v8")
    A(f"v_bfe_u32 v9, v0, 1, 2\nv_mul_u32_u24 v9, {GRPS}, v9\nv_add_u32 v{VPOLL}, v8, v9")
    A(f"s_mul_i32 s{S_POLL}, s{S_B}, {4*GRPS}\ns_add_u32 s{S_POLL}, s{S_POLL}, s59\ns_add_u32 s{S_POLL}, s{S_POLL}, {DF:#x}")
    upoll = f"buffer_load_dwordx2 {v(GR,2)}, v{VUP}, s[{SWS}:{SWS+3}], s{S_UP} offen sc1"
    ucheck = f"v_cmp_ne_u32 vcc, s{S_TAG}, v{GR}\nv_cmp_ne_u32 s[56:57], s{S_TAG}, v{GR+1}\ns_nop 1\ns_or_b64 s[56:57], s[56:57], vcc"
    dflag = f"buffer_store_dwordx2 {v(VT,2)}, v{V63}, s[{SWS}:{SWS+3}], s57 offen sc1"
    zero = [f"v_accvgpr_write_b32 a{i}, 0" for i in range(256)]
    nz1 = OPT.get("nz1", 160)
    Q0, Q1 = Seq(), Seq()

    def ulist(Q, kj):
        L = []
        for k, j in kj:
            for nu in range(4):
                u_load(Q, k, j, nu)
                L.append(Seq.text(Q.take()))
        return L

    def dma_list(Q, k):
        L = []
        for p in range(6):
            if p in (0, 4):
                dma_m0(Q, k, p >> 2); Q.raw("s_nop 0")
            dma(Q, k, p)
            L.append(Seq.text(Q.take()))
        return L
    Q = Q1
    weave(A, zero, [upoll], OPT.get("nz0", 128))
    A("s_waitcnt vmcnt(1)\ns_barrier")
    st.mark(A, "b5")
    A(f"s_cmp_lg_u32 s{S_W}, 0\ns_cbranch_scc1 Lnodf")
    A(f"{dflag}\ns_mov_b32 s58, {SPIN_MAX}\ns_waitcnt vmcnt(1)\ns_branch Lu_chk")
    A("Lnodf:")
    spin(A, "Lu", upoll, ucheck, True)
    st.mark(A, "uok")
    A(f"s_cmp_lg_u32 s{S_W}, 0\ns_cbranch_scc1 Lnp")
    A("s_waitcnt vmcnt(0)" if OPT["delayd"] < 0 else f"s_sleep {OPT['delayd']}")
    A(f"{POLL4}\nLnp:")
    A("\n".join(ulist(Q, ((0, 0), (0, 1), (0, 2), (1, 0)))))
    st.mark(A, "job1")
    A(f"s_cmp_lg_u32 s{S_W}, 0\ns_cbranch_scc1 Ld_ok")
    A(f"s_mov_b32 s58, {SPIN_MAX}\ns_waitcnt vmcnt(16)\ns_branch Ld_chk")
    spin(A, "Ld", POLL4, f"v_cmp_ne_u32 vcc, s{S_TAG}, v{PLD}\nv_cmp_ne_u32 s[56:57], s{S_TAG}, v{PLD+1}\ns_nop 1\ns_or_b64 s[56:57], s[56:57], vcc", None)
    A("s_barrier")
    st.mark(A, "b6")
    A("\n".join(dma_list(Q, 0) + dma_list(Q, 1)))
    A(f"s_xor_b32 s{S_M0}, s{S_M0}, 0x10000\ns_mov_b32 s{S_CNT}, 7")
    d2 = dma_list(Q, 2)
    nd2 = OPT.get("nd2", 4)
    A("\n".join(d2[:nd2]))
    A(f"s_waitcnt vmcnt({6 + nd2})\ns_barrier")
    st.mark(A, "b7")
    for par in range(2):
        for tb in range(4):
            raw_read(Q, 0, par, tb, 0); raw_read(Q, 0, par, tb, 1)
    for par in range(2):
        for tb in range(4):
            Q.wait(lg=[("rd", 0, par, tb)])
            for d in range(4):
                h_op(Q, 0, par, tb, d)
    main = Seq.text(Q.take()).split("\n")
    weave(A, main, d2[nd2:] + ulist(Q, ((1, 1),)), 12)
    Q.wait(vm=[("raw", 1)])
    A(Seq.text(Q.take()))
    A(f"s_cmp_eq_u32 s{S_IT}, 0\ns_cbranch_scc1 Lgo")
    A(f"s_cmp_lg_u32 s2, 2\ns_cbranch_scc1 Lgo\ns_cmp_lg_u32 s{S_W}, 0\ns_cbranch_scc1 Lgo")
    A(f"buffer_store_dword v{VT}, v{V63}, s[{SWS}:{SWS+3}], 0 offen offset:{GEN} sc1")
    A("Lgo:")
    st.mark(A, "loop")
    bodies = []
    for Q in (Q1,):
        for n in range(7):
            gen.step(Q, 2*n)
            gen.step(Q, 2*n + 1, {63: [lambda: Q.raw(f"s_sub_u32 s{S_CNT}, s{S_CNT}, 1\ns_cmp_lg_u32 s{S_CNT}, 0\ns_cbranch_scc1 Lloop")]})
            bodies.append(Q.take())
    A(".p2align 6\nLloop:")
    A(Seq.text(merge(bodies)))
    R = lambda t: [lambda: Q.raw(t)]
    M = lambda t: [lambda: Q.vmem(t, "ep")]
    sc_ld = [f"buffer_load_dword v{SCR+h}, v{VT}, s[{SWS}:{SWS+3}], s56 offen offset:{8 + 256*h} sc1" for h in range(2)]
    em_ld = [f"buffer_load_dwordx4 {v(EMR+4*h,4)}, v{VPOLL}, s[{SWS}:{SWS+3}], s57 offen offset:{16*h} sc1" for h in range(2)]
    gb_ld = [f"global_load_dwordx4 {v(GR,4)}, v237, s[16:17]", f"global_load_dwordx4 {v(BR,4)}, v237, s[18:19]"]
    ex = {9: R(f"v_and_b32 v{VT}, 127, v237\nv_lshlrev_b32 v239, 1, v{VT}\nv_lshlrev_b32 v{VT}, 5, v{VT}"),
          11: R(f"v_and_b32 v{VPOLL}, 15, v0\nv_lshl_add_u32 v{VPOLL}, v{VPOLL}, 8, v239"),
          17: R(f"s_mul_i32 s56, s{S_NB}, {GRPS}\ns_lshl_b32 s57, s{S_IT}, 16\ns_add_u32 s56, s56, s57"),
          19: R(f"s_lshl_b32 s57, s{S_B}, 3\ns_add_u32 s57, s57, s{S_NB}"),
          22: R(f"s_lshl_b32 s57, s57, 12\ns_add_u32 s57, s57, {EMBP:#x}"),
          26: R(f"s_add_u32 s56, s56, {UF:#x}")}
    ex.update({g: M(t) for g, t in zip((33, 35, 38, 42), sc_ld + em_ld)})
    wl = w_loads(WLDS, 58, 59)
    ex.update({g: M(t) for g, t in zip((49, 51, 53, 55), wl)})
    gen.step(Q, 14, ex)
    ex = {g: M(t) for g, t in zip((1, 3, 5, 7, 9), wl[4:])}
    ex.update({g: R(f"@{g}") for g in range(31, 64)})
    gen.step(Q, 15, ex)
    out = Q.take()
    cut = out.index("@31")
    A(Seq.text(out[:cut]))
    unscale = f"v_pk_mul_f32 {v(SCR,2)}, {v(SCR,2)}, s[{S_ASC}:{S_INV}] op_sel:[0,1] op_sel_hi:[1,1]"
    red = [f"v_add_f32_dpp v{EMR+k}, v{EMR+k}, v{EMR+k} row_ror:{sh} row_mask:0xf bank_mask:0xf" for sh in (8, 4, 2, 1) for k in range(8)]
    free = [33, 34, 35, 38, 39, 42, 43, 46, 49, 50, 51, 52, 53, 54, 55, 56, 57, 58, 59, 60, 61, 62]
    touch2 = []
    if OPT.get("pf2", 1):
        B = Asm()
        B(f"s_lshl_b32 s56, s{S_W}, 4\nv_and_b32 v8, 15, v0\nv_add_u32 v8, s56, v8")
        gen.code_touch(B, "Lepi", "Lcode_end", 8, 10, "Lpc2", 56)
        touch2 = ["\n".join(B.L), "global_load_dword v234, v[10:11], off"]
    ld0 = ["s_waitcnt vmcnt(9)\n" + unscale] + touch2 + gb_ld + ["\n".join(red[2*i:2*i+2]) for i in range(16)]
    ld1 = x_loads()
    ld1[0] = "s_waitcnt vmcnt(9)\n" + unscale + "\n" + ld1[0]
    ld1.append(f"s_mov_b32 s{SO}, s22\ns_mov_b32 s{SO+1}, s23\ns_mov_b32 s{SO+2}, 0x800000")
    A(f"s_cmp_lg_u32 s{S_IT}, 0\ns_cbranch_scc1 Ltail1")
    for it, ld in enumerate((ld0, ld1)):
        assert len(ld) <= len(free)
        m = dict(zip(free, ld))
        A(Seq.text([m.get(int(x[1:]), "") if isinstance(x, str) and x.startswith("@") else x for x in out[cut:]]))
        if it == 0:
            A("s_branch Lepi\nLtail1:")
    A("Lepi:")
    st.mark(A, "end")
    RB_, ZB = [8, 40], [72, 88]
    XB = [8, 20, 72, 84]
    LO, HI = LO3, HI3
    ag, bb = f"s[{S_AG}:{S_AG+1}]", f"s[{S_BB}:{S_BB+1}]"
    XF, OUT = 40, 168
    for nul in range(2):
        stream, ready = [], []
        for n, phi in enumerate((2, 1, 3, 0)):
            sg, nup = phi >> 1, phi & 1
            nu = 2*nup + nul
            Rr = RB_[n & 1]
            Z = (lambda q, zb=ZB[n & 1]: zb + 4*q) if phi else (lambda q: H + q*8 + nul*4)
            m = lambda j, be, r=0: Rr + j*8 + be*4 + r
            E = stream.append

            def rdacc(*jb):
                for j, be in jb:
                    for r in range(4):
                        E(f"v_accvgpr_read_b32 v{m(j,be,r)}, a{j*64 + nu*16 + (2*sg + be)*4 + r}")

            def pk(q, x, y, neg, first=False):
                for r in (0, 2):
                    E(f"v_pk_add_f32 {v(Z(q)+r,2)}, {v((x if first else Z(q))+r,2)}, {v(y+r,2)} {NEG1 if neg else ''}")

            def done(q):
                if phi:
                    ready.append((len(stream), f"ds_write_b128 v{VW[phi]}, {v(Z(q),4)} offset:{(nul*4 + q)*1024}"))
            rdacc((0, 0), (0, 1), (1, 0), (2, 0))
            if n == 2:
                E("@war")
            pk(1, m(1,0), m(2,0), 0, True); pk(0, m(1,0), m(2,0), 1, True)
            pk(1, None, m(0,0), 1); pk(1, None, m(0,1), 0); done(1)
            rdacc((3, 1), (3, 0))
            for r in range(4):
                E(f"v_add_f32_dpp v{Z(0)+r}, v{m(3,1,r)}, v{Z(0)+r} row_shr:1 row_mask:0xf bank_mask:0xf bound_ctrl:1")
            pk(0, None, m(3,0), 1)
            done(0)
            rdacc((1, 1), (2, 1))
            pk(2, m(1,1), m(2,1), 1, True); pk(3, m(1,1), m(2,1), 0, True)
            pk(2, None, m(3,1), 1); pk(2, None, m(3,0), 0); done(2)
            for r in range(4):
                E(f"v_add_f32_dpp v{Z(3)+r}, v{m(0,0,r)}, v{Z(3)+r} row_shl:1 row_mask:0xf bank_mask:0xf bound_ctrl:1")
            pk(3, None, m(0,1), 1)
            done(3)
        where, last = {}, -99
        for pos, t in ready:
            last = max(pos, last + OPT.get("wgap", 15))
            where[last] = t
        bpos = last + OPT.get("bgap", 14)
        nw = 0
        rds = [f"ds_read_b128 {v(XB[q] + 4*k, 4)}, v{VR[k]} offset:{(nul*4 + q)*1024}" for q in range(4) for k in range(3)]
        for i, t in enumerate(stream):
            if i in where:
                A(where[i]); nw += 1
            if i == bpos:
                A("s_waitcnt lgkmcnt(0)\ns_barrier")
            if i >= bpos and (i - bpos) % OPT.get("rgap", 2) == 0 and rds:
                A(rds.pop(0))
            A(f"s_waitcnt lgkmcnt({nw - 4})" if t == "@war" else t)
        assert nw == 12 and 181 <= bpos and not rds
        for q in range(4):
            if q in (0, 2):
                A(f"s_waitcnt lgkmcnt({6 - 3*q})")
            x = XB[q]
            ha, hb = H + q*8 + nul*4, H + 32 + q*8 + nul*4
            for r in (0, 2):
                A(f"v_pk_fma_f32 {v(hb+r,2)}, {v(x+4+r,2)}, {ag}, {v(x+8+r,2)} {HI}")
            for r in (0, 2):
                A(f"v_pk_fma_f32 {v(x+4+r,2)}, {v(x+4+r,2)}, {ag}, {v(x+r,2)} {LO}")
            for r in (0, 2):
                A(f"v_pk_fma_f32 {v(hb+r,2)}, {v(x+r,2)}, {bb}, {v(hb+r,2)} {LO}")
            for r in (0, 2):
                A(f"v_pk_fma_f32 {v(hb+r,2)}, {v(ha+r,2)}, {bb}, {v(hb+r,2)} {HI}")
            for r in (0, 2):
                A(f"v_pk_add_f32 {v(ha+r,2)}, {v(ha+r,2)}, {v(x+4+r,2)}")
        if nul:
            st.mark(A, "hh")
        sel = HI if nul else LO
        A(f"s_cmp_lg_u32 s{S_IT}, 0\ns_cbranch_scc1 Lfinal{nul}")
        for p0 in range(0, 8, 2):
            xs = [(H + p*8 + k, k) for p in (p0, p0 + 1) for k in (4*nul, 4*nul + 2)]
            for x, k in xs:
                A(f"v_pk_fma_f32 {v(x,2)}, {v(x,2)}, {v(SCR,2)}, {v(EMR+k,2)} {sel}")
            for i, (x, k) in enumerate(xs):
                sums(A, x, P + (k & 2), nul == 0 and p0 == 0 and i < 2)
        if nul == 0:
            A("s_branch Lhalf")
        else:
            st.flush(A, 0, 7)
            st.mark(A, "start")
            A(f"s_mov_b32 s{S_IT}, 1\ns_mov_b32 s{SO+2}, 0")
            A(f"s_add_u32 s{S_RA}, s{S_RA}, {D2-D1:#x}\ns_add_u32 s{S_RB2}, s{S_RB2}, {D2-D1:#x}")
            A(f"s_add_u32 s{SD}, s{SD}, {D2-D1:#x}\ns_addc_u32 s{SD+1}, s{SD+1}, 0")
            A("s_branch Lstats")
        A(f"Lfinal{nul}:")
        A("s_waitcnt vmcnt(8)")
        for k in (4*nul, 4*nul + 2):
            xf = lambda p, kk: XF + p*4 + (kk & 3)
            for rho in range(2):
                for kk in (k, k+1):
                    r = XR + (rho*8 + kk)*2
                    unpack_bf16(A, r, xf(rho*4, kk), xf(rho*4 + 1, kk))
                    unpack_bf16(A, r+1, xf(rho*4 + 2, kk), xf(rho*4 + 3, kk))
            for p in range(8):
                x = H + p*8 + k
                A(f"v_pk_fma_f32 {v(x,2)}, {v(x,2)}, {v(SCR,2)}, {v(xf(p, k),2)} {sel}")
            for kk in (k, k+1):
                for rho in range(2):
                    o = OUT + (rho*8 + kk)*2
                    h = H + rho*32 + kk
                    A(f"v_cvt_pk_bf16_f32 v{o}, v{h}, v{h+8}")
                    A(f"v_cvt_pk_bf16_f32 v{o+1}, v{h+16}, v{h+24}")
                    A(f"buffer_store_dwordx2 {v(o,2)}, v{VX+rho}, s[{SO}:{SO+3}], s{S_XO} offen {OPT['sto']}")
                A(f"s_add_u32 s{S_XO}, s{S_XO}, 8192")
        if nul == 0:
            A("Lhalf:")
    if stamps:
        A("s_waitcnt vmcnt(0)")
        A("s_memrealtime s[20:21]\ns_memtime s[22:23]\ns_waitcnt lgkmcnt(0)")
        st.flush(A, 1, 7)
        A("s_mov_b32 s72, s20\ns_mov_b32 s74, s22")
        st.flush(A, 2, 1)
    A("Lexit:\ns_endpgm")
    A("Lcode_end:")
    descriptor(A, NAME, 512, 256)
    return A


HEAD = """; ADM ResBlock: GN+SiLU -> conv3x3 -> +emb -> GN+SiLU -> conv3x3 -> +x   (B=2, C=512, 64x64, bf16 in/out)
%s
.amdgcn_target "amdgcn-amd-amdhsa--gfx950"
"""

if __name__ == "__main__":
    for a in sys.argv[2:]:
        if "=" in a:
            k, val = a.split("=")
            OPT[k] = int(val) if val.lstrip("-").isdigit() else (eval(val) if val.startswith("(") else val.replace("+", " "))
    stamps = "stamps" in sys.argv[2:]
    launch = "; @launch " + (f"kernel={NAME} " if "list" in sys.argv[2:] else "") + "grid=(256,1,1) block=(256,1,1) lds=152064"
    text = HEAD % launch + kernel(stamps).text()
    open(sys.argv[1], "w").write(align_pass(text) if OPT["align"] else text)
```

```python
import sys

SC1, SC2, EMB = 0x1000, 0x2000, 0x3000
ASC = 0x4000
STAT1, STAT2 = 0x300000, 0x200000
STAMP = 0x4000000
D1, D2 = 0x1000000, 0x1800000
U1, U2 = 0x2000000, 0x2800000
WS_BYTES = 0x10000000
OOB = 0x40000000
LOG2E = 0x3fb8aa3b
NLOG2E = 0xbfb8aa3b
SPIN_MAX = 400000
TAGSTEP = 0x9e3779b9
S_MASK = 70
OPT = dict(st="sc1", sto="sc1", hmode="wg", gs=128, grps=4352, poller="one", delay=10, slp=4, hsc="sc1",
           w_in_k1=1, own=1, wfirst=0, ldx="", delay1=0, wdelay=0, pf=0, tlb=0, trimU=0, trimD=0, ldu="", ldd="", morder=0, align=1, wpos=(2, 10, 18, 26))


class Asm:
    def __init__(self):
        self.L = []

    def __call__(self, s):
        for line in s.split("\n"):
            line = line.strip()
            if line:
                self.L.append(line if line.endswith(":") or line.startswith(".") or line.startswith(";") else "    " + line)

    def text(self):
        return "\n".join(self.L) + "\n"


def v(a, n=1):
    return f"v{a}" if n == 1 else f"v[{a}:{a+n-1}]"


def acc(a, n=1):
    return f"a{a}" if n == 1 else f"a[{a}:{a+n-1}]"


def s(a, n=1):
    return f"s{a}" if n == 1 else f"s[{a}:{a+n-1}]"


NEG1 = "neg_lo:[0,1] neg_hi:[0,1]"


def srd(A, d, lo, size):
    A(f"s_mov_b32 s{d}, s{lo}\ns_mov_b32 s{d+1}, s{lo+1}\ns_mov_b32 s{d+2}, {size:#x}\ns_mov_b32 s{d+3}, 0x20000")


def wave_reduce(A, regs, op="v_add_f32"):
    steps = ["row_shr:1", "row_shr:2", "row_shr:4", "row_shr:8"]
    pad = max(0, 3 - len(regs))
    for st in steps:
        if pad:
            A(f"s_nop {pad-1}")
        for r in regs:
            A(f"{op}_dpp v{r}, v{r}, v{r} {st} row_mask:0xf bank_mask:0xf bound_ctrl:1")
    for st, m in (("row_bcast:15", "0xa"), ("row_bcast:31", "0xc")):
        if pad:
            A(f"s_nop {pad-1}")
        for r in regs:
            A(f"{op}_dpp v{r}, v{r}, v{r} {st} row_mask:{m} bank_mask:0xf")


def code_touch(A, start, end, line, va, tag, sp):
    A(f"s_getpc_b64 s[{sp}:{sp+1}]\n{tag}:")
    A(f"s_add_u32 s{sp}, s{sp}, {start}-{tag}\ns_addc_u32 s{sp+1}, s{sp+1}, {'-1' if start.endswith('+0') else '0'}")
    A(f"v_lshlrev_b32 v{va}, 7, v{line}\nv_min_u32 v{va}, {end}-{start}-4, v{va}")
    A(f"v_mov_b32 v{va+1}, s{sp+1}\nv_add_co_u32 v{va}, vcc, s{sp}, v{va}\ns_nop 1\nv_addc_co_u32 v{va+1}, vcc, 0, v{va+1}, vcc")


def header(A, name):
    A(f".text\n.globl {name}\n.p2align 8\n.type {name},@function\n{name}:")


def descriptor(A, name, nvgpr, accoff):
    A(f""".section .rodata,"a"
.p2align 6
.amdhsa_kernel {name}
.amdhsa_next_free_vgpr {nvgpr}
.amdhsa_next_free_sgpr 102
.amdhsa_accum_offset {accoff}
.amdhsa_group_segment_fixed_size 0
.amdhsa_kernarg_size 96
.amdhsa_user_sgpr_count 2
.amdhsa_user_sgpr_kernarg_segment_ptr 1
.amdhsa_system_sgpr_workgroup_id_x 1
.amdhsa_float_denorm_mode_32 3
.end_amdhsa_kernel""")


class Stamps:
    def __init__(self, on, kid):
        self.on, self.kid, self.n = on, kid, 0

    def mark(self, A):
        if not self.on:
            return
        assert self.n < 7
        A(f"s_memrealtime s[{72+4*self.n}:{73+4*self.n}]\ns_memtime s[{74+4*self.n}:{75+4*self.n}]")
        self.n += 1

    def mark_wait(self, A):
        if not self.on:
            return
        self.mark(A)
        A("s_waitcnt lgkmcnt(0)")

    def flush(self, A, sws, swave, vt):
        if not self.on:
            return
        A("s_waitcnt lgkmcnt(0)")
        A(f"s_lshl_b32 s100, s2, 2\ns_add_u32 s100, s100, s{swave}\ns_lshl_b32 s100, s100, 6")
        A(f"s_add_u32 s100, s100, {STAMP + self.kid*0x20000:#x}")
        A(f"v_mov_b32 v{vt+2}, 0")
        for i in range(self.n):
            A(f"v_mov_b32 v{vt}, s{72+4*i}\nv_mov_b32 v{vt+1}, s{74+4*i}")
            A(f"buffer_store_dwordx2 v[{vt}:{vt+1}], v{vt+2}, s[{sws}:{sws+3}], s100 offen offset:{8*i}")
            A("s_nop 1")


def gn_coeffs(A, vS1, vS2, vG, vB, vA1, vB1, vA2, vB2, asc, t):
    A(f"v_mul_f32 v{t}, 0x36000000, v{vS1}")
    A(f"v_mul_f32 v{t+1}, 0x36000000, v{vS2}")
    A(f"v_fma_f32 v{t+1}, -v{t}, v{t}, v{t+1}")
    A(f"v_max_f32 v{t+1}, 0, v{t+1}")
    A(f"v_add_f32 v{t+1}, 0x3727c5ac, v{t+1}")
    A(f"v_rsq_f32 v{t+1}, v{t+1}")
    A("s_nop 0")
    for k in range(8):
        A(f"v_mul_f32 v{vG+k}, v{vG+k}, v{t+1}")
    for k in range(8):
        A(f"v_fma_f32 v{vB+k}, -v{t}, v{vG+k}, v{vB+k}")
    for k in range(8):
        A(f"v_mul_f32 v{vA1+k}, {NLOG2E:#x}, v{vG+k}")
        A(f"v_mul_f32 v{vB1+k}, {NLOG2E:#x}, v{vB+k}")
        A(f"v_mul_f32 v{vA2+k}, {asc}, v{vG+k}")
        A(f"v_mul_f32 v{vB2+k}, {asc}, v{vB+k}")


def silu8(A, x, vA1, vB1, vA2, vB2, t, out):
    for k in range(0, 8, 2):
        A(f"v_pk_fma_f32 {v(t+k,2)}, {v(x+k,2)}, {v(vA1+k,2)}, {v(vB1+k,2)}")
    for k in range(8):
        A(f"v_exp_f32 v{t+k}, v{t+k}")
    for k in range(0, 8, 2):
        A(f"v_pk_fma_f32 {v(x+k,2)}, {v(x+k,2)}, {v(vA2+k,2)}, {v(vB2+k,2)}")
    for k in range(0, 8, 2):
        A(f"v_pk_add_f32 {v(t+k,2)}, {v(t+k,2)}, 1.0 op_sel_hi:[1,0]")
    for k in range(8):
        A(f"v_rcp_f32 v{t+k}, v{t+k}")
    for k in range(0, 8, 2):
        A(f"v_pk_mul_f32 {v(x+k,2)}, {v(x+k,2)}, {v(t+k,2)}")
    for k in range(0, 8, 2):
        A(f"v_cvt_pk_f16_f32 v{out+k//2}, v{x+k}, v{x+k+1}")
    trim(A, out, 4, OPT["trimD"])


def trim(A, r, n, bits):
    if bits:
        h, m = 1 << (bits - 1), 0xffff & ~((1 << bits) - 1)
        for d in range(n):
            A(f"v_add_u32 v{r+d}, {h*0x10001:#x}, v{r+d}")
        for d in range(n):
            A(f"v_and_b32 v{r+d}, {m*0x10001:#x}, v{r+d}")


def unpack_bf16(A, src, lo, hi):
    A(f"v_lshlrev_b32 v{lo}, 16, v{src}")
    A(f"v_and_b32 v{hi}, s{S_MASK}, v{src}")


def act_exp(A, raw, t, out, s_m60):
    A(f"v_mov_b32 v{t}, 0")
    for d in range(8):
        unpack_bf16(A, raw + d, t+1, t+2)
        A(f"v_max3_f32 v{t}, |v{t+1}|, |v{t+2}|, v{t}")
    wave_reduce(A, [t], "v_max_f32")
    A(f"v_frexp_exp_i32_f32 v{t}, v{t}\ns_nop 0\nv_readlane_b32 s{out}, v{t}, 63\ns_nop 1")
    A(f"s_max_i32 s{out}, s{out}, {s_m60}\ns_min_i32 s{out}, s{out}, 60")


WROW = 9280


def wjob_loads(v16, wave, oq, so, srd_w, lds):
    pre = (f"s_lshl_b32 s{so}, s{oq}, 2\ns_add_u32 s{so}, s{so}, s{wave}\ns_mul_i32 s{so}, s{so}, 9216\n"
           f"s_mul_i32 s{so+1}, s{wave}, {WROW}\ns_add_u32 s{so+1}, s{so+1}, {lds}")
    ld = []
    for k in range(9):
        t = ""
        if k in (4, 8):
            t += f"s_add_u32 s{so+1}, s{so+1}, 4096\n"
        if k in (0, 4, 8):
            t += f"s_mov_b32 m0, s{so+1}\n"
            t += f"s_add_u32 s{so}, s{so}, 4096\n" if k else "s_nop 0\n"
        ld.append(t + f"buffer_load_dwordx4 v{v16}, s[{srd_w}:{srd_w+3}], s{so} offen offset:{1024*(k & 3)} {OPT['ldx']} lds")
    return pre, ld


def wjob(A, lane, wave, oq, sws, ubase, scbase, G, AX, RW, K, wlds, lds, sc0, mid=None):
    M, T = K, K + 12

    def greg(e):
        return G + (e % 9)*8 + e//9
    A(f"v_and_b32 v{M}, 3, v{lane}\nv_lshrrev_b32 v{M+1}, 2, v{lane}")
    A(f"v_mul_u32_u24 v{M}, {WROW}, v{M}\nv_mul_u32_u24 v{M+1}, 144, v{M+1}")
    A(f"s_mul_i32 s{sc0}, s{wave}, 2304\ns_add_u32 s{sc0}, s{sc0}, {wlds}\nv_add3_u32 v{M+1}, v{M}, v{M+1}, s{sc0}")
    for k in range(9):
        A(f"ds_read_b128 {v(RW+4*k,4)}, v{M+1} offset:{16*k}")
    A(f"v_mov_b32 v{M}, 0")
    for k in range(9):
        if k in (0, 1, 3, 6):
            A(f"s_waitcnt lgkmcnt({(8, 6, 0, 3, 0, 0, 0)[k]})")
        for d in range(4):
            e = 8*k + 2*d
            unpack_bf16(A, RW + 4*k + d, greg(e), greg(e+1))
        for d in range(4):
            e = 8*k + 2*d
            A(f"v_max3_f32 v{M}, |v{greg(e)}|, |v{greg(e+1)}|, v{M}")
    wave_reduce(A, [M], "v_max_f32")
    A(f"s_lshl_b32 s{sc0}, s{wave}, 2\ns_add_u32 s{sc0}, s{sc0}, {lds:#x}\nv_mov_b32 v{M+1}, s{sc0}")
    A("s_mov_b32 exec_lo, 0\ns_mov_b32 exec_hi, 0x80000000")
    A(f"ds_write_b32 v{M+1}, v{M}")
    A(f"s_mov_b64 exec, -1\nv_mov_b32 v{M+1}, {lds:#x}")
    a, b = sc0, sc0 + 1
    A(f"s_lshr_b32 s{a}, s{oq}, 4\ns_mul_i32 s{a}, s{a}, 786432")
    A(f"s_bfe_u32 s{b}, s{oq}, 0x10003\ns_lshl_b32 s{b}, s{b}, 11\ns_add_u32 s{a}, s{a}, s{b}")
    A(f"s_and_b32 s{b}, s{oq}, 1\ns_lshl_b32 s{b}, s{b}, 10\ns_add_u32 s{a}, s{a}, s{b}")
    A(f"s_bfe_u32 s{b}, s{oq}, 0x20001\ns_lshl_b32 s{b}, s{b}, 8\ns_add_u32 s{a}, s{a}, s{b}")
    A(f"s_mul_i32 s{b}, s{wave}, {4*49152}\ns_add_u32 s{a}, s{a}, s{b}\ns_add_u32 s{a}, s{a}, {ubase}")
    A(f"s_lshl_b32 s{b}, s{oq}, 4\ns_add_u32 s{b}, s{b}, {scbase}")
    A("s_waitcnt lgkmcnt(0)\ns_barrier")
    A(f"ds_read_b128 {v(M+4,4)}, v{M+1}")
    VS = M + 2
    A(f"v_lshrrev_b32 v{VS}, 4, v{lane}\nv_mul_u32_u24 v{VS}, 49152, v{VS}\nv_and_b32 v{M+3}, 15, v{lane}\nv_lshl_add_u32 v{VS}, v{M+3}, 4, v{VS}")
    A(f"v_lshlrev_b32 v{M+3}, 2, v{lane}\nv_cmp_gt_u32 vcc, 4, v{lane}\nv_mov_b32 v{M+1}, {OOB:#x}\nv_mov_b32 v{M}, 60")
    A(f"v_cndmask_b32 v{M+3}, v{M+1}, v{M+3}, vcc")
    A("s_waitcnt lgkmcnt(0)")
    A(f"v_max3_f32 v{M+4}, v{M+4}, v{M+5}, v{M+6}\nv_max_f32 v{M+4}, v{M+4}, v{M+7}")
    A(f"v_frexp_exp_i32_f32 v{M+4}, v{M+4}\nv_min_i32 v{M+4}, v{M+4}, v{M}\nv_max_i32 v{M+4}, 0xffffffc4, v{M+4}")
    A(f"v_add_u32 v{M}, 119, v{M+4}\nv_lshlrev_b32 v{M}, 23, v{M}")
    A(f"buffer_store_dword v{M}, v{M+3}, s[{sws}:{sws+3}], s{b} offen {OPT['st']}")
    S, S2, S4, HF = M + 4, M + 6, M + 8, M + 10
    A(f"v_sub_u32 v{S}, 135, v{S}\nv_lshlrev_b32 v{S}, 23, v{S}\nv_mov_b32 v{S+1}, v{S}")
    A(f"v_mul_f32 v{S2}, 0.5, v{S}\nv_mul_f32 v{S2+1}, 0.5, v{S}\nv_mul_f32 v{S4}, 0.5, v{S2}\nv_mul_f32 v{S4+1}, 0.5, v{S2}")
    A(f"v_mov_b32 v{HF}, 0.5\nv_mov_b32 v{HF+1}, 0.5")
    N3 = "neg_lo:[0,0,1] neg_hi:[0,0,1]"
    for col in range(3):
        sc, sch = (S2, S4) if col == 1 else (S, S2)
        for cp in range(0, 8, 2):
            g0, g1, g2 = G + col*8 + cp, G + (3+col)*8 + cp, G + (6+col)*8 + cp
            A(f"v_pk_mul_f32 {v(g0,2)}, {v(g0,2)}, {v(sc,2)}")
            A(f"v_pk_mul_f32 {v(g2,2)}, {v(g2,2)}, {v(sc,2)}")
            A(f"v_pk_mul_f32 {v(g1,2)}, {v(g1,2)}, {v(sch,2)}")
            A(f"v_pk_add_f32 {v(T+cp,2)}, {v(g0,2)}, {v(g2,2)}")
        for cp in range(0, 8, 2):
            g1, a2 = G + (3+col)*8 + cp, AX + col*8 + cp
            A(f"v_pk_fma_f32 {v(a2,2)}, {v(T+cp,2)}, {v(HF,2)}, {v(g1,2)} {N3}")
            A(f"v_pk_fma_f32 {v(g1,2)}, {v(T+cp,2)}, {v(HF,2)}, {v(g1,2)}")
    if mid:
        mid()
    rowb = [G, G + 24, AX, G + 48]
    for i in range(4):
        r = rowb[i]
        for cp in range(0, 8, 2):
            A(f"v_pk_add_f32 {v(T+cp,2)}, {v(r+cp,2)}, {v(r+16+cp,2)}")
        for cp in range(0, 8, 2):
            A(f"v_pk_fma_f32 {v(r+cp,2)}, {v(T+cp,2)}, {v(HF,2)}, {v(r+8+cp,2)}")
            A(f"v_pk_fma_f32 {v(r+8+cp,2)}, {v(T+cp,2)}, {v(HF,2)}, {v(r+8+cp,2)} {N3}")
        for j, src in enumerate((r+16, r, r+8)):
            o = RW + (i*3 + j)*4
            for d in range(4):
                A(f"v_cvt_pk_f16_f32 v{o+d}, v{src+2*d}, v{src+2*d+1}")
            trim(A, o, 4, OPT["trimU"])
            A(f"buffer_store_dwordx4 {v(o,4)}, v{VS}, s[{sws}:{sws+3}], s{a} offen {OPT['st']}")
            A(f"s_add_u32 s{a}, s{a}, 4096")
        if OPT["own"] and i < 3:
            A(f"s_xor_b32 s{a}, s{a}, 2048")


def gen_prep(A, stamps):
    name = "adm_prep_kernel"
    NW = 128*OPT["w_in_k1"]
    st = Stamps(stamps, 0)
    header(A, name)
    st.mark(A)
    A(f"s_cmp_ge_u32 s2, {264 + NW}\ns_cbranch_scc1 Lp_exit")
    A("s_load_dwordx16 s[4:19], s[0:1], 0")
    A("s_load_dwordx8 s[20:27], s[0:1], 64")
    if OPT["wfirst"]:
        A(f"s_add_u32 s44, s2, 256\ns_sub_u32 s2, s2, {NW + 8}\ns_cselect_b32 s2, s44, s2")
    A("v_lshrrev_b32 v1, 6, v0\nv_and_b32 v2, 63, v0")
    A("v_readfirstlane_b32 s3, v1")
    A(f"s_mov_b32 s{S_MASK}, 0xffff0000")
    SWS, SX, SW = 28, 32, 36
    A("s_cmp_ge_u32 s2, 256\ns_cbranch_scc1 Lp_notx")
    A("s_and_b32 s45, s2, 7\ns_lshr_b32 s46, s2, 3")
    A("s_lshl_b32 s47, s45, 4\ns_lshr_b32 s48, s46, 1\ns_add_u32 s47, s47, s48")
    A("s_and_b32 s48, s46, 1\ns_lshl_b32 s48, s48, 2\ns_add_u32 s48, s48, s3")
    A("s_lshl_b32 s49, s47, 16\ns_lshl_b32 s50, s48, 10\ns_add_u32 s49, s49, s50")
    A("s_and_b32 s50, s47, 63\ns_lshl_b32 s50, s50, 4")
    A(f"s_mul_i32 s62, s45, {OPT['grps']}\ns_add_u32 s62, s62, {STAT1:#x}")
    A(f"s_add_u32 s63, s62, {32*128}")
    XF, RX, GBR, P = 8, 72, 104, 112
    npf = int(OPT["pf"] > 0) + 3*int(OPT["tlb"] > 0)
    A("v_lshlrev_b32 v3, 3, v2\nv_lshlrev_b32 v4, 4, v2")
    A("s_waitcnt lgkmcnt(0)")
    srd(A, SX, 4, 0x800000)
    for k in range(8):
        for it in range(2):
            r = RX + (it*8 + k)*2
            A(f"buffer_load_dwordx2 {v(r,2)}, v3, s[{SX}:{SX+3}], s49 offen offset:{512*it} {OPT['ldx']}")
        if k < 7:
            A("s_add_u32 s49, s49, 8192")
    A(f"global_load_dwordx4 {v(GBR,4)}, v4, s[8:9]\nglobal_load_dwordx4 {v(GBR+4,4)}, v4, s[10:11]")
    if OPT["pf"]:
        A("s_lshl_b32 s64, s46, 2\ns_add_u32 s64, s64, s3\nv_and_b32 v146, 3, v2\nv_lshl_add_u32 v146, v146, 7, s64")
        code_touch(A, "Lp_pf", "Lcode_end", 146, 144, "Lp_pc", 64)
        A("global_load_dword v0, v[144:145], off\nLp_pf:")
    A("s_load_dwordx4 s[52:55], s[8:9], s50\ns_load_dwordx4 s[56:59], s[10:11], s50")
    A("s_load_dword s61, s[26:27], s63")
    srd(A, SWS, 26, WS_BYTES)
    if OPT["tlb"]:
        sh = OPT["tlb"]
        srd(A, 36, 22, 0x800000)
        srd(A, 40, 20, 512*9216)
        A(f"s_lshl_b32 s64, s46, 2\ns_add_u32 s64, s64, s3\ns_and_b32 s64, s64, {(1 << (21 - sh)) - 1}\ns_lshl_b32 s64, s64, {sh}")
        A(f"v_lshlrev_b32 v5, 21, v2\nv_min_u32 v6, 23, v2\nv_lshlrev_b32 v6, 21, v6")
        A(f"buffer_load_dword v0, v6, s[{SWS}:{SWS+3}], s64 offen")
        A("buffer_load_dword v0, v5, s[36:39], s64 offen\nbuffer_load_dword v0, v5, s[40:43], s64 offen")
    for i in range(8):
        A(f"v_mov_b32 v{P+i}, 0")
    A(f"s_lshl_b32 s64, s3, 3\nv_mov_b32 v5, s64\nv_mov_b32 v6, 0")
    A(f"v_cmp_eq_u32 vcc, 63, v2\nv_mov_b32 v7, {OOB:#x}\nv_lshlrev_b32 v3, 7, v2")
    A("v_cndmask_b32 v4, v7, 0, vcc")
    A("v_cmp_gt_u32 vcc, 32, v2\ns_lshl_b32 s64, s46, 7\ns_add_u32 s64, s64, s62")
    A("v_cndmask_b32 v3, v7, v3, vcc")
    for k in range(0, 8, 2):
        A(f"s_waitcnt vmcnt({14 + npf - 2*k})")
        for kk in (k, k+1):
            for it in range(2):
                r = RX + (it*8 + kk)*2
                unpack_bf16(A, r, XF + (it*4 + 0)*8 + kk, XF + (it*4 + 1)*8 + kk)
                unpack_bf16(A, r+1, XF + (it*4 + 2)*8 + kk, XF + (it*4 + 3)*8 + kk)
        for p in range(8):
            x = XF + p*8 + k
            a = P + 2*(p & 1)
            A(f"v_pk_add_f32 {v(a,2)}, {v(a,2)}, {v(x,2)}")
            A(f"v_pk_fma_f32 {v(a+4,2)}, {v(x,2)}, {v(x,2)}, {v(a+4,2)}")
    A(f"v_pk_add_f32 {v(P,2)}, {v(P,2)}, {v(P+2,2)}")
    A(f"v_pk_add_f32 {v(P+4,2)}, {v(P+4,2)}, {v(P+6,2)}")
    A(f"v_add_f32 v{P}, v{P}, v{P+1}\nv_add_f32 v{P+1}, v{P+4}, v{P+5}")
    wave_reduce(A, [P, P+1])
    A("s_mov_b32 exec_lo, 0\ns_mov_b32 exec_hi, 0x80000000")
    A(f"ds_write_b64 v5, {v(P,2)}")
    A("s_mov_b64 exec, -1\ns_waitcnt lgkmcnt(0)\ns_barrier")
    A(f"s_add_u32 s61, s61, {TAGSTEP:#x}")
    A("s_cmp_lg_u32 s3, 0\ns_cbranch_scc1 Lp_nopub")
    A(f"ds_read_b128 {v(P,4)}, v6\nds_read_b128 {v(P+4,4)}, v6 offset:16\ns_waitcnt lgkmcnt(0)")
    A(f"v_pk_add_f32 {v(P,2)}, {v(P,2)}, {v(P+2,2)}\nv_pk_add_f32 {v(P+4,2)}, {v(P+4,2)}, {v(P+6,2)}")
    A(f"v_add_f32 v{P}, v{P}, v{P+4}\nv_add_f32 v{P+2}, v{P+1}, v{P+5}\nv_mov_b32 v{P+1}, s61\nv_mov_b32 v{P+3}, s61")
    A(f"buffer_store_dwordx4 {v(P,4)}, v4, s[{SWS}:{SWS+3}], s64 offen sc1")
    A("Lp_nopub:")
    st.mark(A)
    GA, GB, A1, B1, A2, B2, TT, OUT = 72, 80, 88, 96, 120, 128, 136, 152
    A("s_waitcnt vmcnt(1)") if False else None
    A(f"s_cmp_eq_u32 s3, 0\ns_cbranch_scc1 Lp_w1\ns_waitcnt vmcnt({npf})\nLp_w1:\ns_waitcnt vmcnt({1 + npf})")
    act_exp(A, GBR, TT, 65, "0xffffffc4")
    A("s_sub_u32 s65, 130, s65\ns_lshl_b32 s65, s65, 23")
    for d in range(4):
        A(f"v_mov_b32 v{TT}, s{52+d}\nv_mov_b32 v{TT+1}, s{56+d}")
        unpack_bf16(A, TT, GA + 2*d, GA + 2*d + 1)
        unpack_bf16(A, TT+1, GB + 2*d, GB + 2*d + 1)
    A(f"s_lshl_b32 s66, s47, 16\ns_lshl_b32 s67, s48, 13\ns_add_u32 s66, s66, s67\ns_add_u32 s66, s66, {D1:#x}")
    A("v_lshrrev_b32 v1, 4, v2\nv_lshlrev_b32 v1, 10, v1\nv_and_b32 v5, 15, v2\nv_lshl_add_u32 v1, v5, 4, v1")
    A("s_cmp_lg_u32 s3, 0\ns_cbranch_scc1 Lp_join")
    A(f"s_mov_b32 s67, {SPIN_MAX}")
    if OPT["delay1"]:
        A(f"s_sleep {OPT['delay1']}")
    A("Lp_poll:")
    A(f"buffer_load_dwordx4 {v(P+4,4)}, v3, s[{SWS}:{SWS+3}], s62 offen sc1")
    A(f"s_waitcnt vmcnt(0)\nv_cmp_ne_u32 vcc, s61, v{P+5}\nv_cmp_ne_u32 s[68:69], s61, v{P+7}\ns_nop 1")
    A("s_or_b32 s68, s68, vcc_lo\ns_cbranch_scc0 Lp_ready")
    A(f"s_sleep {OPT['slp']}\ns_sub_u32 s67, s67, 1\ns_cmp_lg_u32 s67, 0\ns_cbranch_scc1 Lp_poll")
    A("Lp_ready:")
    A(f"v_mov_b32 v{P+5}, v{P+6}\ns_nop 0")
    wave_reduce(A, [P+4, P+5])
    A("s_mov_b32 exec_lo, 0\ns_mov_b32 exec_hi, 0x80000000")
    A(f"ds_write_b64 v6, {v(P+4,2)} offset:64")
    A("s_mov_b64 exec, -1")
    A("s_cmp_lg_u32 s46, 0\ns_cbranch_scc1 Lp_nogen")
    A(f"buffer_store_dword v{P+1}, v4, s[{SWS}:{SWS+3}], s63 offen sc1")
    A("Lp_nogen:\ns_waitcnt lgkmcnt(0)")
    A("Lp_join:\ns_barrier")
    A(f"ds_read_b64 {v(P+4,2)}, v6 offset:64\ns_waitcnt lgkmcnt(0)")
    st.mark(A)
    gn_coeffs(A, P+4, P+5, GA, GB, A1, B1, A2, B2, "s65", TT)
    for it in range(2):
        for q in range(4):
            p = it*4 + q
            o = OUT + 4*(p & 3)
            silu8(A, XF + p*8, A1, B1, A2, B2, TT + 8*(p & 1), o)
            A(f"buffer_store_dwordx4 {v(o,4)}, v1, s[{SWS}:{SWS+3}], s66 offen offset:{256*q} {OPT['st']}")
        if it == 0:
            A("s_add_u32 s66, s66, 4096")
    st.mark(A)
    if stamps:
        A("s_waitcnt vmcnt(0)")
        st.mark(A)
    st.flush(A, SWS, 3, 8)
    A("Lp_exit:\ns_endpgm")

    A("Lp_notx:")
    A(f"s_cmp_ge_u32 s2, {256 + NW}\ns_cbranch_scc1 Lp_emb")
    st.n = 1
    A("s_sub_u32 s51, s2, 256\ns_lshr_b32 s44, s51, 7\ns_and_b32 s51, s51, 127")
    pre, lds_ = wjob_loads(3, 3, 51, 60, SW, 64)
    A(pre)
    A("v_lshlrev_b32 v3, 4, v2")
    A(f"s_lshl_b32 s45, s44, 23\ns_add_u32 s45, s45, {U1:#x}\ns_lshl_b32 s46, s44, 12\ns_add_u32 s46, s46, {SC1:#x}")
    A("s_waitcnt lgkmcnt(0)")
    A("s_cmp_eq_u32 s44, 0\ns_cselect_b32 s36, s12, s20\ns_cselect_b32 s37, s13, s21")
    A(f"s_mov_b32 s38, {512*9216:#x}\ns_mov_b32 s39, 0x20000")
    if OPT["wdelay"]:
        A(f"s_sleep {OPT['wdelay']}")
    for t in lds_:
        A(t)
    srd(A, SWS, 26, WS_BYTES)
    A("s_waitcnt vmcnt(0)\ns_barrier")
    st.mark_wait(A)
    wjob(A, 2, 3, 51, SWS, "s45", "s46", 4, 76, 100, 148, 64, 0, 62, mid=lambda: st.mark(A))
    st.mark(A)
    if stamps:
        A("s_waitcnt vmcnt(0)")
        st.mark(A)
    st.flush(A, SWS, 3, 8)
    A("s_endpgm")

    A("Lp_emb:")
    A(f"s_sub_u32 s44, s2, {256 + NW}")
    A("s_waitcnt lgkmcnt(0)")
    srd(A, SWS, 26, WS_BYTES)
    srd(A, 32, 14, 384*1024)
    srd(A, 36, 6, 1536)
    A("v_and_b32 v3, 7, v0\nv_lshrrev_b32 v4, 3, v0")
    A("v_lshlrev_b32 v5, 10, v4\nv_lshl_add_u32 v5, v3, 4, v5")
    A("v_lshlrev_b32 v6, 1, v4\nv_lshlrev_b32 v7, 4, v2")
    A("s_lshl_b32 s45, s44, 7")
    WE, TE, AC = 8, 56, 80
    for b in range(2):
        for it in range(12):
            A(f"buffer_load_ushort v{TE + b*12 + it}, v6, s[36:39], 0 offen offset:{b*768 + it*64}")
    for it in range(12):
        A(f"buffer_load_dwordx4 {v(WE+4*it,4)}, v5, s[32:35], s45 offen")
        A("s_add_u32 s45, s45, 32768")
    for i, p in enumerate((8, 10, 16, 18)):
        A(f"global_load_dwordx4 {v(128+4*i,4)}, v7, s[{p}:{p+1}]")
    A("v_mov_b32 v100, -1\nv_mov_b32 v101, -1")
    A("s_cmp_lg_u32 s3, 0\ns_cbranch_scc1 Lp_noreset")
    A(f"v_and_b32 v7, 31, v2\nv_mul_u32_u24 v7, {OPT['gs']}, v7\ns_mul_i32 s46, s44, {OPT['grps']}\ns_add_u32 s46, s46, {STAT2:#x}")
    A(f"buffer_store_dwordx2 v[100:101], v7, s[{SWS}:{SWS+3}], s46 offen")
    A("Lp_noreset:")
    for i in range(16):
        A(f"v_mov_b32 v{AC+i}, 0")
    A("s_waitcnt vmcnt(0)")
    for i in range(24):
        A(f"v_lshlrev_b32 v{TE+i}, 16, v{TE+i}")
    for i in range(24):
        A(f"v_mul_f32 v{104+i}, {NLOG2E:#x}, v{TE+i}")
    for i in range(24):
        A(f"v_exp_f32 v{104+i}, v{104+i}")
    for i in range(24):
        A(f"v_add_f32 v{104+i}, 1.0, v{104+i}")
    for i in range(24):
        A(f"v_rcp_f32 v{104+i}, v{104+i}")
    for i in range(24):
        A(f"v_mul_f32 v{TE+i}, v{TE+i}, v{104+i}")
    for it in range(12):
        for d in range(4):
            unpack_bf16(A, WE + 4*it + d, 104 + 2*d, 105 + 2*d)
        for b in range(2):
            for k in range(8):
                A(f"v_fmac_f32 v{AC + b*8 + k}, v{104+k}, v{TE + b*12 + it}")
    A("v_lshlrev_b32 v5, 9, v4\nv_lshl_add_u32 v5, v3, 5, v5")
    for b in range(2):
        for h in range(2):
            A(f"ds_write_b128 v5, {v(AC + b*8 + 4*h, 4)} offset:{b*256 + h*16}")
    A("s_waitcnt lgkmcnt(0)\ns_barrier")
    A("s_cmp_ge_u32 s3, 2\ns_cbranch_scc1 Lp_scales")
    A("v_lshlrev_b32 v5, 2, v0")
    for half in range(4):
        for e in range(8):
            A(f"ds_read_b32 v{8 + half*8 + e}, v5 offset:{(half*8 + e)*512}")
        A("s_waitcnt lgkmcnt(0)")
    n = 32
    while n > 1:
        n //= 2
        for e in range(n):
            A(f"v_add_f32 v{8+e}, v{8+e}, v{8+n+e}")
    A(f"s_lshl_b32 s45, s3, 11\ns_lshl_b32 s46, s44, 8\ns_add_u32 s45, s45, s46\ns_add_u32 s45, s45, {EMB:#x}")
    A("v_lshlrev_b32 v5, 2, v2")
    A(f"buffer_store_dword v8, v5, s[{SWS}:{SWS+3}], s45 offen")
    A("s_endpgm")
    A("Lp_scales:")
    A("s_cmp_lg_u32 s3, 2\ns_cbranch_scc1 Lp_exit2\ns_cmp_lg_u32 s44, 0\ns_cbranch_scc1 Lp_exit2")
    act_exp(A, 128, 8, 45, "0xffffffc4")
    act_exp(A, 136, 8, 46, "0xffffffc4")
    A("s_add_u32 s45, s45, 124\ns_lshl_b32 s45, s45, 23")
    A("s_sub_u32 s47, 130, s46\ns_lshl_b32 s47, s47, 23")
    A("s_add_u32 s46, s46, 124\ns_lshl_b32 s46, s46, 23")
    A(f"v_mov_b32 v8, s45\nv_mov_b32 v9, s47\nv_mov_b32 v10, s46\nv_mov_b32 v11, 0\ns_mov_b32 s45, {ASC:#x}")
    A(f"buffer_store_dwordx4 v[8:11], off, s[{SWS}:{SWS+3}], s45")
    A("Lp_exit2:\ns_endpgm")
    descriptor(A, name, 168, 168)


SLOT = 24576
DSTEP = 0x40000
VDMA, VDMA2, VTOP, VBOT, VU, VA, VB, VA1, VB1 = 1, 2, 3, 4, 5, 6, 7, 254, 255
WLDS, XLDS = 114688, 151808
C = [[8, 24], [40, 56]]
PP, TMP = 72, 88
UU = [[104, 120, 136], [152, 168, 184]]
EP = 200
SWS, SD, SX, SO = 28, 32, 36, 40
S_W, S_DMA, S_M0, S_U0, S_U1, S_U2, S_SGN, S_CNT = 3, 44, 45, 46, 47, 48, 49, 50
S_GRP, S_IDX, S_B, S_NB, S_RB = 51, 52, 53, 54, 55


class Seq:
    def __init__(self):
        self.out, self.vm, self.lg = [], [], []

    def raw(self, t):
        self.out.append(t)

    def vmem(self, t, tag):
        self.out.append(t); self.vm.append(tag)

    def lds(self, t, tag):
        self.out.append(t); self.lg.append(tag)

    def _n(self, lst, tag):
        idx = [i for i, x in enumerate(lst) if x == tag]
        if not idx:
            return None
        n = len(lst) - 1 - idx[-1]
        del lst[:idx[-1] + 1]
        return n

    def wait(self, vm=(), lg=()):
        parts = []
        ns = [self._n(self.vm, t) for t in vm]
        ns = [n for n in ns if n is not None]
        if ns:
            assert ns[-1] < 64
            parts.append(f"vmcnt({ns[-1]})")
        ns = [self._n(self.lg, t) for t in lg]
        ns = [n for n in ns if n is not None]
        if ns:
            assert ns[-1] < 16
            parts.append(f"lgkmcnt({ns[-1]})")
        if parts:
            self.out.append("s_waitcnt " + " ".join(parts))


def u_load(Q, k, j, nu):
    sreg = (S_U0, S_U1, S_U2)[j]
    r = UU[k & 1][j] + 4*nu
    Q.vmem(f"buffer_load_dwordx4 {v(r,4)}, v{VU}, s[{SWS}:{SWS+3}], s{sreg} offen offset:{1024*nu} {OPT['ldu']}", ("u", k, j))
    if nu == 3:
        Q.raw(f"s_add_u32 s{sreg}, s{sreg}, 49152")


def dma_m0(Q, k, hi):
    Q.raw(f"s_add_u32 m0, s{S_M0}, {(k & 1)*SLOT + 4096*hi}")


def dma(Q, k, p):
    vo = (VTOP, VDMA, VDMA, VDMA, VDMA2, VBOT)[p]
    Q.vmem(f"buffer_load_dwordx4 v{vo}, s[{SD}:{SD+3}], s{S_DMA} offen offset:{1024*(p & 3)} {OPT['ldd']} lds", ("raw", k))
    if p == 5:
        Q.raw(f"s_add_u32 s{S_DMA}, s{S_DMA}, {DSTEP:#x}")


def raw_read(Q, k, par, tb, which):
    off = (k & 1)*SLOT + (2*(tb & 1) + par)*256
    if "b" in OPT.get("abl", "") and k > 0 and tb == 1 and which == 1:
        return
    r = (C[k & 1][par] if which == 0 else (TMP, PP)[par]) + 4*tb
    Q.lds(f"ds_read_b128 {v(r,4)}, v{((VA, VB), (VA1, VB1))[tb >> 1][which]} offset:{off}", ("rd", k, par, tb))


def h_op(Q, k, par, tb, d):
    c = C[k & 1][par] + 4*tb + d
    t = (TMP, PP)[par] + 4*tb + d
    if "a" in OPT.get("abl", ""):
        Q.raw(f"v_pk_add_f16 v{c}, v{c}, v{t} {NEG1}")
    else:
        Q.raw(f"v_pk_fma_f16 v{c}, v{t}, s{S_SGN}, v{c}")


def step(Q, k, extra=None):
    cs = k & 1
    c0, c1 = C[cs]
    u0, u1, u2 = UU[cs]
    ld_u2 = k + 1 <= 15
    ld_u = k + 2 <= 15
    ld_d = k + 3 <= 16
    rd = k + 1 <= 15
    G = [[] for _ in range(64)]
    at = lambda g, f: G[g].append(f)

    def vops(lst, gaps):
        it = iter(lst)
        for g, n in gaps:
            for _ in range(n):
                at(g, next(it))
        assert next(it, None) is None

    R = lambda t: (lambda: Q.raw(t))
    if rd:
        for tb in range(4):
            at(2*tb, lambda tb=tb: raw_read(Q, k+1, 0, tb, 0))
            at(2*tb, lambda tb=tb: raw_read(Q, k+1, 0, tb, 1))
    if ld_u2:
        for nu in range(4):
            at(2*nu + 1, lambda nu=nu: u_load(Q, k+1, 2, nu))
    pops = [R(f"v_pk_add_f16 v{PP+i}, v{c0+i}, v{c1+i}") for i in range(16)]
    vops(pops, [(8, 2), (10, 3), (12, 3), (13, 3), (14, 3), (15, 2)])
    if ld_d:
        at(8, lambda: dma_m0(Q, k+3, 0))
        at(9, lambda: dma(Q, k+3, 0))
        at(11, lambda: dma(Q, k+3, 1))
        at(17, lambda: dma(Q, k+3, 2))
        at(19, lambda: dma(Q, k+3, 3))
        at(21, lambda: dma_m0(Q, k+3, 1))
        at(22, lambda: dma(Q, k+3, 4))
        at(26, lambda: dma(Q, k+3, 5))
        if cs == 0:
            at(27, R(f"s_xor_b32 s{S_M0}, s{S_M0}, 0x10000"))
    at(15, lambda: Q.wait(vm=[("u", k, 1)]))
    mops = [R(f"v_pk_add_f16 v{c0+i}, v{c0+i}, v{c1+i} {NEG1}") for i in range(16)]
    vops(mops, [(16, 3), (18, 3), (21, 1), (23, 3), (25, 1), (27, 2), (29, 1), (30, 2)])
    tops = [R(f"v_pk_add_f16 v{u1+i}, v{u1+i}, v{u0+i} {NEG1}") for i in range(16)]
    vops(tops, [(20, 3), (21, 1), (24, 3), (25, 1), (28, 3), (29, 1), (31, 2), (32, 2)])
    at(31, lambda: Q.wait(vm=[("u", k, 2)]))
    if rd:
        for g, tb, w in ((32, 0, 0), (34, 0, 1), (34, 1, 0), (34, 1, 1), (37, 2, 0), (37, 2, 1), (39, 3, 0), (39, 3, 1)):
            if g == 32:
                at(g, lambda: Q.wait(lg=[("rd", k+1, 0, 3)]))
            at(g, lambda tb=tb, w=w: raw_read(Q, k+1, 1, tb, w))
        if cs == 0:
            at(39, R(f"v_xor_b32 v{VA}, 0x10000, v{VA}"))
            at(41, R(f"v_xor_b32 v{VB}, 0x10000, v{VB}"))
            at(63, R(f"v_xor_b32 v{VA1}, 0x10000, v{VA1}"))
            at(63, R(f"v_xor_b32 v{VB1}, 0x10000, v{VB1}"))
    if ld_u:
        for nu, g in enumerate((33, 35, 38, 42)):
            at(g, lambda nu=nu: u_load(Q, k+2, 0, nu))
    wops = [R(f"v_pk_add_f16 v{u2+i}, v{u1+i}, v{u2+i}") for i in range(16)]
    vops(wops, [(36, 3), (37, 1), (40, 3), (41, 1), (44, 3), (45, 1), (47, 2), (48, 2)])
    if rd:
        h0 = [(lambda i=i: h_op(Q, k+1, 0, i >> 2, i & 3)) for i in range(16)]
        vops(h0, [(41, 1), (43, 3), (45, 2), (46, 3), (47, 1), (48, 1), (50, 3), (52, 2)])
        at(54, lambda: Q.wait(lg=[("rd", k+1, 1, 3)]))
        h1 = [(lambda i=i: h_op(Q, k+1, 1, i >> 2, i & 3)) for i in range(16)]
        vops(h1, [(54, 2), (56, 2), (57, 2), (58, 2), (59, 2), (60, 2), (61, 2), (62, 2)])
    if ld_u:
        for nu, g in enumerate((49, 51, 53, 55)):
            at(g, lambda nu=nu: u_load(Q, k+2, 1, nu))
    if extra:
        for g, fs in extra.items():
            G[g] += fs
    Q.wait(vm=[("raw", k+1), ("u", k, 0)])
    Q.raw("s_nop 0" if "c" in OPT.get("abl", "") else "s_barrier")
    for g in range(64):
        j, nu, tb = g >> 4, (g >> 2) & 3, g & 3
        if nu & 1 and OPT["morder"] == 0:
            tb = 3 - tb
        a = (u0, u1, u2, u2)[j] + 4*nu
        b = (c0, PP, c0, c1)[j] + 4*tb
        d = j*64 + nu*16 + tb*4
        Q.raw(f"v_mfma_f32_16x16x32_f16 {acc(d,4)}, {v(a,4)}, {v(b,4)}, {acc(d,4)}")
        for f in G[g]:
            f()


def gen_conv(A, conv, stamps):
    name = f"adm_conv{conv}_kernel"
    L = f"Lc{conv}"
    st = Stamps(stamps, conv)
    DIN, UOFF, SC = (D1, U1, SC1) if conv == 1 else (D2, U2, SC2)
    w2job = conv == 1 and OPT["w_in_k1"] == 1
    header(A, name)
    st.mark(A)
    A(f"s_cmp_ge_u32 s2, 256\ns_cbranch_scc1 {L}_exit")
    A("s_load_dwordx2 s[26:27], s[0:1], 88")
    if conv == 1:
        A("s_load_dwordx4 s[16:19], s[0:1], 48\ns_load_dwordx2 s[20:21], s[0:1], 64")
    else:
        A("s_load_dwordx2 s[4:5], s[0:1], 0\ns_load_dwordx2 s[22:23], s[0:1], 72")
    if OPT["pf"]:
        code_touch(A, f"{L}_pf", f"{L}_exit", 0, 244, f"{L}_pc", 56)
        A(f"global_load_dword v246, v[244:245], off\n{L}_pf:")
    A("v_lshrrev_b32 v8, 6, v0\nv_and_b32 v0, 63, v0")
    A(f"v_readfirstlane_b32 s{S_W}, v8")
    A(f"s_mov_b32 s{S_MASK}, 0xffff0000")
    A(f"s_and_b32 s{S_GRP}, s2, 7\ns_lshr_b32 s{S_IDX}, s2, 3\ns_lshr_b32 s{S_B}, s{S_GRP}, 2")
    A(f"s_and_b32 s{S_NB}, s{S_GRP}, 3\ns_lshl_b32 s{S_NB}, s{S_NB}, 1\ns_and_b32 s56, s{S_IDX}, 1\ns_add_u32 s{S_NB}, s{S_NB}, s56")
    A(f"s_lshr_b32 s{S_RB}, s{S_IDX}, 1")
    A("v_and_b32 v9, 15, v0\nv_lshrrev_b32 v10, 4, v0")
    A(f"v_lshlrev_b32 v{VDMA}, 4, v0\nv_add_u32 v{VDMA2}, 4096, v{VDMA}")
    A(f"s_cmp_eq_u32 s{S_RB}, 0\ns_cselect_b32 s56, {OOB:#x}, 0\nv_add_u32 v{VTOP}, s56, v{VDMA}")
    A(f"s_cmp_eq_u32 s{S_RB}, 15\ns_cselect_b32 s56, {OOB:#x}, 0\nv_add_u32 v{VBOT}, s56, v{VDMA2}")
    A(f"v_lshrrev_b32 v11, 2, v9\nv_lshlrev_b32 v11, 8, v11\nv_lshl_add_u32 v11, v10, 6, v11")
    A(f"v_and_b32 v12, 3, v9\nv_lshl_add_u32 v{VU}, v12, 4, v11")
    A(f"s_lshl_b32 s{S_DMA}, s{S_W}, 16\ns_lshl_b32 s56, s{S_RB}, 12\ns_add_u32 s{S_DMA}, s{S_DMA}, s56")
    A(f"s_mul_i32 s{S_M0}, s{S_W}, 6144")
    A(f"s_mul_i32 s{S_U0}, s{S_NB}, 786432\ns_mul_i32 s56, s{S_W}, 12288\ns_add_u32 s{S_U0}, s{S_U0}, s56")
    A(f"s_add_u32 s{S_U0}, s{S_U0}, {UOFF:#x}\ns_add_u32 s{S_U1}, s{S_U0}, 4096\ns_add_u32 s{S_U2}, s{S_U0}, 8192")
    A(f"s_lshl_b32 s56, s{S_B}, 22\ns_add_u32 s56, s56, {DIN - 1024:#x}")
    for i in range(64):
        A(f"v_accvgpr_write_b32 a{i}, 0")
    A("s_waitcnt lgkmcnt(0)")
    srd(A, SWS, 26, WS_BYTES)
    A(f"s_add_u32 s{SD}, s26, s56\ns_addc_u32 s{SD+1}, s27, 0\ns_mov_b32 s{SD+2}, {0x400000 + 1024:#x}\ns_mov_b32 s{SD+3}, 0x20000")

    Q = Seq()

    zi = iter(range(64, 256))

    def zero(n):
        for _ in range(n):
            i = next(zi, None)
            if i is not None:
                Q.raw(f"v_accvgpr_write_b32 a{i}, 0")

    def dma_all(k, z):
        for p in range(6):
            if p in (0, 4):
                dma_m0(Q, k, p >> 2); Q.raw("s_nop 0")
            dma(Q, k, p); z()
    dma_all(0, lambda: None)
    Q.raw(f"s_lshl_b32 s57, s{S_W}, 10\ns_lshr_b32 s56, s{S_W}, 1\ns_sub_u32 s58, 2, s56\ns_lshl_b32 s58, s58, 10\ns_lshl_b32 s56, s56, 11")
    Q.raw(f"v_mul_u32_u24 v11, 6144, v10\nv_lshl_add_u32 v11, v9, 4, v11")
    Q.raw(f"v_add_u32 v12, s56, v11\ns_xor_b32 s56, s56, 2048\nv_add_u32 v11, s56, v11")
    Q.raw(f"v_add_u32 v{VA}, s57, v12\nv_add_u32 v{VB}, s58, v12\nv_add_u32 v{VA1}, s57, v11\nv_add_u32 v{VB1}, s58, v11")
    Q.raw(f"s_mov_b32 s56, 0xbc00bc00\ns_cmp_eq_u32 s{S_W}, 1\ns_cselect_b32 s{S_SGN}, 0x3c003c00, s56")
    Q.raw(f"s_and_b32 s60, s{S_W}, 1\ns_lshr_b32 s61, s{S_W}, 1")
    Q.raw(f"s_lshl_b32 s62, s{S_NB}, 1\ns_add_u32 s62, s62, s60")
    Q.raw(f"s_lshl_b32 s63, s{S_RB}, 1\ns_add_u32 s63, s63, s61")
    Q.raw(f"v_lshlrev_b32 v248, 5, v10")
    Q.raw(f"s_lshl_b32 s64, s62, 7\ns_add_u32 s64, s64, {SC:#x}")
    if conv == 1:
        Q.raw(f"s_lshl_b32 s65, s62, 7\ns_lshl_b32 s56, s{S_B}, 11\ns_add_u32 s65, s65, s56\ns_add_u32 s65, s65, {EMB:#x}")
        Q.raw("s_lshl_b32 s56, s62, 6\nv_lshlrev_b32 v249, 4, v10\nv_add_u32 v249, s56, v249")
        Q.raw("v_lshlrev_b32 v250, 16, v10\nv_lshl_add_u32 v250, v9, 4, v250")
        Q.raw(f"s_lshl_b32 s66, s{S_B}, 22\ns_lshl_b32 s56, s62, 18\ns_add_u32 s66, s66, s56")
        Q.raw(f"s_lshl_b32 s56, s63, 11\ns_add_u32 s66, s66, s56\ns_add_u32 s66, s66, {D2:#x}")
        Q.raw(f"s_cmp_eq_u32 s{S_W}, 3\ns_cselect_b32 s56, 1024, 0\ns_add_u32 s66, s66, s56\ns_xor_b32 s67, s66, 1024")
        if w2job:
            srdq = Asm(); srd(srdq, SX, 20, 512*9216)
            Q.raw("\n".join(srdq.L))
            Q.raw(f"s_lshl_b32 s71, s{S_GRP}, 4\ns_add_u32 s71, s71, s{S_RB}")
            pre, wld = wjob_loads(VDMA, S_W, 71, 68, SX, WLDS)
            Q.raw(pre)
            Q.raw(f"s_bitcmp1_b32 s{S_IDX}, 0\ns_cselect_b32 s68, s68, {OOB:#x}")
    else:
        srdq = Asm(); srd(srdq, SX, 4, 0x800000); srd(srdq, SO, 22, 0x800000)
        Q.raw("\n".join(srdq.L))
        Q.raw("v_lshlrev_b32 v250, 16, v10\nv_lshl_add_u32 v250, v9, 3, v250")
        Q.raw(f"s_lshl_b32 s66, s{S_B}, 22\ns_lshl_b32 s56, s62, 18\ns_add_u32 s66, s66, s56")
        Q.raw(f"s_lshl_b32 s56, s63, 8\ns_add_u32 s66, s66, s56")
        Q.raw(f"s_cmp_eq_u32 s{S_W}, 3\ns_cselect_b32 s56, 128, 0\nv_add_u32 v250, s56, v250\nv_xor_b32 v251, 128, v250\ns_mov_b32 s67, s66")
    dma_all(1, lambda: zero(11))
    for j in range(3):
        for nu in range(4):
            u_load(Q, 0, j, nu); zero(11)
    zero(256)
    Q.raw(f"s_xor_b32 s{S_M0}, s{S_M0}, 0x10000")
    Q.wait(vm=[("raw", 0)])
    Q.raw("s_barrier")
    todo = [(lambda par=par, tb=tb: (raw_read(Q, 0, par, tb, 0), raw_read(Q, 0, par, tb, 1))) for par in range(2) for tb in range(4)]
    todo[0](); todo[1]()
    ti = iter(todo[2:])
    dma_all(2, lambda: next(ti)())
    for j in range(2):
        for nu in range(4):
            u_load(Q, 1, j, nu)
            Q.wait(lg=[("rd", 0, j, nu)])
            for d in range(4):
                h_op(Q, 0, j, nu, d)
    Q.raw(f"s_mov_b32 s{S_CNT}, 7")
    A("\n".join(Q.out)); Q.out = []
    st.mark_wait(A)
    body = None
    for n in range(7):
        step(Q, 2*n)
        step(Q, 2*n + 1, {63: [lambda: Q.raw(f"s_sub_u32 s{S_CNT}, s{S_CNT}, 1\ns_cmp_lg_u32 s{S_CNT}, 0\ns_cbranch_scc1 {L}_loop")]})
        if body is None:
            body = Q.out
        assert Q.out == body, [(a, b) for a, b in zip(Q.out, body) if a != b]
        Q.out = []
    A(f".p2align 6\n{L}_loop:")
    A("\n".join(body))
    if conv == 2:
        st.mark_wait(A)
    SCR, EMR, GR, BR, XR = 200, 208, 216, 220, 208
    ld = ["global_load_dword v246, v[244:245], off"] if OPT["pf"] > 1 else []
    for h in range(2):
        ld.append(f"buffer_load_dwordx4 {v(SCR+4*h,4)}, v248, s[{SWS}:{SWS+3}], s64 offen offset:{16*h}")
    if conv == 1:
        for h in range(2):
            ld.append(f"buffer_load_dwordx4 {v(EMR+4*h,4)}, v248, s[{SWS}:{SWS+3}], s65 offen offset:{16*h}")
        ld.append(f"global_load_dwordx4 {v(GR,4)}, v249, s[16:17]")
        ld.append(f"global_load_dwordx4 {v(BR,4)}, v249, s[18:19]")
        ld.append(f"s_mov_b32 s56, {ASC:#x}\nbuffer_load_dwordx2 v[224:225], off, s[{SWS}:{SWS+3}], s56")
    else:
        ld.append(f"s_mov_b32 s56, {ASC+8:#x}\nbuffer_load_dwordx2 v[240:241], off, s[{SWS}:{SWS+3}], s56")
        for kch in range(8):
            for rho in range(2):
                t = f"buffer_load_dwordx2 {v(XR + (rho*8 + kch)*2, 2)}, v{250+rho}, s[{SX}:{SX+3}], s67 offen"
                if rho == 1:
                    t += "\ns_add_u32 s67, s67, 8192"
                ld.append(t)
    gaps14 = [9, 11, 17, 19, 22, 26, 33, 35, 38, 42, 49, 51, 53, 55]
    gaps15 = [1, 3, 5, 7, 9, 11]
    if OPT.get("noep"):
        ld = ld[:OPT["noep"]]
    nep = len(ld)
    if w2job:
        ld += wld
    assert len(ld) <= len(gaps14) + len(gaps15)
    ex14 = {g: [lambda t=t: Q.vmem(t, "ep")] for g, t in zip(gaps14, ld)}
    ex15 = {g: [lambda t=t: Q.vmem(t, "ep")] for g, t in zip(gaps15, ld[len(gaps14):])}
    step(Q, 14, ex14)
    step(Q, 15, ex15)
    A("\n".join(Q.out)); Q.out = []
    st.mark(A)

    VW, VR = (None, 2, 3, 4), (5, 6, 7)
    for phi in (1, 2, 3):
        A(f"s_xor_b32 s56, s{S_W}, {phi}\ns_mul_i32 s56, s56, 3\ns_add_u32 s56, s56, {phi-1}\ns_lshl_b32 s56, s56, 13\nv_add_u32 v{VW[phi]}, s56, v{VDMA}")
    A(f"s_lshl_b32 s57, s{S_W}, 2\ns_mul_i32 s58, s{S_W}, 3")
    for r, tab in zip(VR, (0x1100, 0x0221, 0x2012)):
        A(f"s_lshr_b32 s56, {tab:#x}, s57\ns_and_b32 s56, s56, 15\ns_add_u32 s56, s56, s58\ns_lshl_b32 s56, s56, 13\nv_add_u32 v{r}, s56, v{VDMA}")
    A(f"s_cmp_eq_u32 s{S_W}, 3\ns_cselect_b32 s44, -1.0, 1.0\ns_cmp_ge_u32 s{S_W}, 2\ns_cselect_b32 s45, 1.0, -1.0")
    A(f"s_xor_b32 s47, s45, 0x80000000\ns_add_u32 s56, s{S_W}, 1\ns_bitcmp1_b32 s56, 1\ns_cselect_b32 s46, 0, 1.0\ns_cselect_b32 s47, s47, 0")
    H = 104
    RB, ZB = [8, 40], [72, 88]
    XB = [8, 20, 72, 84]
    order = [(nul, q) for nul in range(2) for q in range(4)]

    def rd(n):
        nul, q = order[n]
        for i in range(3):
            A(f"ds_read_b128 {v(XB[n & 3] + 4*i, 4)}, v{VR[i]} offset:{(nul*4 + q)*1024}")
    n = 0
    pend = []
    for phi in (1, 2, 3, 0):
        sg, nup = phi >> 1, phi & 1
        for nul in range(2):
            nu = 2*nup + nul
            R = RB[n & 1]
            Z = (lambda q, zb=ZB[n & 1]: zb + 4*q) if phi else (lambda q, nul=nul: H + q*8 + nul*4)
            n += 1
            m = lambda j, be, r=0: R + j*8 + be*4 + r
            cnt = 0
            for j in range(4):
                for be in range(2):
                    for r in range(4):
                        A(f"v_accvgpr_read_b32 v{m(j,be,r)}, a{j*64 + nu*16 + (2*sg + be)*4 + r}")
                        cnt += 1
                        if cnt in OPT["wpos"] and pend:
                            A(pend.pop(0))
            if n > 2 and phi:
                A("s_waitcnt lgkmcnt(4)")
            for r in (0, 2):
                A(f"v_pk_add_f32 {v(Z(0)+r,2)}, {v(m(1,0,r),2)}, {v(m(2,0,r),2)} {NEG1}")
                A(f"v_pk_add_f32 {v(Z(1)+r,2)}, {v(m(1,0,r),2)}, {v(m(2,0,r),2)}")
                A(f"v_pk_add_f32 {v(Z(2)+r,2)}, {v(m(1,1,r),2)}, {v(m(2,1,r),2)} {NEG1}")
                A(f"v_pk_add_f32 {v(Z(3)+r,2)}, {v(m(1,1,r),2)}, {v(m(2,1,r),2)}")
            for r in (0, 2):
                A(f"v_pk_add_f32 {v(Z(0)+r,2)}, {v(Z(0)+r,2)}, {v(m(3,0,r),2)} {NEG1}")
                A(f"v_pk_add_f32 {v(Z(1)+r,2)}, {v(Z(1)+r,2)}, {v(m(0,0,r),2)} {NEG1}")
                A(f"v_pk_add_f32 {v(Z(2)+r,2)}, {v(Z(2)+r,2)}, {v(m(3,1,r),2)} {NEG1}")
                A(f"v_pk_add_f32 {v(Z(3)+r,2)}, {v(Z(3)+r,2)}, {v(m(0,1,r),2)} {NEG1}")
            for r in (0, 2):
                A(f"v_pk_add_f32 {v(Z(1)+r,2)}, {v(Z(1)+r,2)}, {v(m(0,1,r),2)}")
                A(f"v_pk_add_f32 {v(Z(2)+r,2)}, {v(Z(2)+r,2)}, {v(m(3,0,r),2)}")
            for r in range(4):
                A(f"v_add_f32_dpp v{Z(0)+r}, v{m(3,1,r)}, v{Z(0)+r} row_shr:1 row_mask:0xf bank_mask:0xf bound_ctrl:1")
            for r in range(4):
                A(f"v_add_f32_dpp v{Z(3)+r}, v{m(0,0,r)}, v{Z(3)+r} row_shl:1 row_mask:0xf bank_mask:0xf bound_ctrl:1")
            if phi:
                pend = [f"ds_write_b128 v{VW[phi]}, {v(Z(q),4)} offset:{(nul*4 + q)*1024}" for q in (1, 2, 0, 3)]
            elif nul == 0:
                A("s_waitcnt lgkmcnt(0)\ns_barrier")
                for i in range(4):
                    rd(i)
    st.mark(A)
    if stamps:
        A("s_waitcnt lgkmcnt(0)")
    LO, HI = "op_sel_hi:[1,0,1]", "op_sel:[0,1,0] op_sel_hi:[1,1,1]"
    for n in range(8):
        A(f"s_waitcnt lgkmcnt({3*min(3, 7-n)})")
        nul, q = order[n]
        x = XB[n & 3]
        ha, hb = H + q*8 + nul*4, H + 32 + q*8 + nul*4
        for r in (0, 2):
            A(f"v_pk_fma_f32 {v(hb+r,2)}, {v(x+4+r,2)}, s[44:45], {v(x+8+r,2)} {HI}")
        for r in (0, 2):
            A(f"v_pk_fma_f32 {v(x+4+r,2)}, {v(x+4+r,2)}, s[44:45], {v(x+r,2)} {LO}")
        for r in (0, 2):
            A(f"v_pk_fma_f32 {v(hb+r,2)}, {v(x+r,2)}, s[46:47], {v(hb+r,2)} {LO}")
        for r in (0, 2):
            A(f"v_pk_fma_f32 {v(hb+r,2)}, {v(ha+r,2)}, s[46:47], {v(hb+r,2)} {HI}")
        for r in (0, 2):
            A(f"v_pk_add_f32 {v(ha+r,2)}, {v(ha+r,2)}, {v(x+4+r,2)}")
        if n + 4 < 8:
            rd(n + 4)
    A(f"s_waitcnt vmcnt({len(ld) - nep})")
    for k in range(0, 8, 2):
        A(f"v_pk_mul_f32 {v(SCR+k,2)}, {v(SCR+k,2)}, {v(224 if conv == 1 else 240, 2)} op_sel_hi:[1,0]")
    if conv == 1:
        P = 72
        for i in range(8):
            A(f"v_mov_b32 v{P+i}, 0")
        for p in range(8):
            for k in range(0, 8, 2):
                x = H + p*8 + k
                A(f"v_pk_fma_f32 {v(x,2)}, {v(x,2)}, {v(SCR+k,2)}, {v(EMR+k,2)}")
            for k in range(0, 8, 2):
                x = H + p*8 + k
                a = P + (k & 2)
                A(f"v_pk_add_f32 {v(a,2)}, {v(a,2)}, {v(x,2)}")
                A(f"v_pk_fma_f32 {v(a+4,2)}, {v(x,2)}, {v(x,2)}, {v(a+4,2)}")
        A(f"v_pk_add_f32 {v(P,2)}, {v(P,2)}, {v(P+2,2)}")
        A(f"v_pk_add_f32 {v(P+4,2)}, {v(P+4,2)}, {v(P+6,2)}")
        A(f"v_add_f32 v{P}, v{P}, v{P+1}\nv_add_f32 v{P+1}, v{P+4}, v{P+5}")
        wave_reduce(A, [P, P+1])
        gs, hsc = OPT["gs"], OPT["hsc"]
        PL = 246
        A(f"s_lshl_b32 s56, s{S_W}, 3\ns_add_u32 s56, s56, {XLDS}\nv_mov_b32 v89, s56")
        A("s_mov_b32 exec_lo, 0\ns_mov_b32 exec_hi, 0x80000000")
        A(f"ds_write_b64 v89, {v(P,2)}")
        A(f"s_mov_b64 exec, -1\nv_mov_b32 v249, {XLDS}")
        A(f"v_cmp_eq_u32 vcc, 63, v0\nv_mov_b32 v89, {OOB:#x}\nv_mul_u32_u24 v248, {gs}, v0")
        A(f"v_cndmask_b32 v88, v89, 0, vcc\nv_cmp_gt_u32 vcc, 32, v0")
        A(f"s_mul_i32 s57, s{S_GRP}, {OPT['grps']}\ns_add_u32 s57, s57, {STAT2:#x}")
        A(f"v_cndmask_b32 v248, v89, v248, vcc")
        A("s_waitcnt vmcnt(0) lgkmcnt(0)\ns_barrier")
        A(f"s_cmp_lg_u32 s{S_W}, 0\ns_cbranch_scc1 {L}_nopub")
        A(f"ds_read_b128 {v(P,4)}, v249\nds_read_b128 {v(P+4,4)}, v249 offset:16")
        A(f"s_mul_i32 s56, s{S_IDX}, {gs}\ns_add_u32 s56, s56, s57")
        A("s_waitcnt lgkmcnt(0)")
        A(f"v_pk_add_f32 {v(P,2)}, {v(P,2)}, {v(P+2,2)}\nv_pk_add_f32 {v(P+4,2)}, {v(P+4,2)}, {v(P+6,2)}")
        A(f"v_pk_add_f32 {v(252,2)}, {v(P,2)}, {v(P+4,2)}")
        A(f"v_and_b32 v253, 0x7fffffff, v253")
        A(f"buffer_store_dwordx2 v[252:253], v88, s[{SWS}:{SWS+3}], s56 offen {hsc}")
        A(f"{L}_nopub:")
        st.mark_wait(A)
        poll = f"buffer_load_dwordx2 {v(PL,2)}, v248, s[{SWS}:{SWS+3}], s57 offen {hsc}"
        A(f"s_mov_b32 s58, {SPIN_MAX}")
        if w2job:
            A(f"s_bitcmp1_b32 s{S_IDX}, 0\ns_cbranch_scc0 {L}_nojob")
            wjob(A, 0, S_W, 71, SWS, f"{U2:#x}", f"{SC2:#x}", 8, 80, 168, 226, WLDS, XLDS + 128, 68,
                 mid=lambda: A(f"s_cmp_lg_u32 s{S_W}, 0\ns_cbranch_scc1 {L}_mid\n{poll}\n{L}_mid:"))
            A(f"s_cmp_lg_u32 s{S_W}, 0\ns_cbranch_scc1 {L}_join")
            A(f"s_waitcnt vmcnt(12)\ns_branch {L}_check")
            A(f"{L}_nojob:")
        A(f"s_cmp_lg_u32 s{S_W}, 0\ns_cbranch_scc1 {L}_join")
        A(f"s_sleep {OPT['delay']}")
        A(f"{L}_poll:")
        A(poll)
        A(f"s_waitcnt vmcnt(0)\n{L}_check:\nv_cmp_gt_i32 vcc, 0, v{PL+1}")
        A(f"s_nop 1\ns_cmp_eq_u64 vcc, 0\ns_cbranch_scc1 {L}_ready")
        A(f"s_sleep {OPT['slp']}\ns_sub_u32 s58, s58, 1\ns_cmp_lg_u32 s58, 0\ns_cbranch_scc1 {L}_poll")
        A(f"{L}_ready:")
        wave_reduce(A, [PL, PL+1])
        A("s_mov_b32 exec_lo, 0\ns_mov_b32 exec_hi, 0x80000000")
        A(f"ds_write_b64 v249, {v(PL,2)} offset:64")
        A("s_mov_b64 exec, -1\ns_waitcnt lgkmcnt(0)")
        A(f"{L}_join:")
        GA, GB, A1, B1, A2, B2, TT, OUT = 8, 16, 24, 32, 40, 48, 56, 72
        P = PL
        A("s_barrier")
        A(f"ds_read_b64 {v(P,2)}, v249 offset:64")
        for d in range(4):
            unpack_bf16(A, GR + d, GA + 2*d, GA + 2*d + 1)
            unpack_bf16(A, BR + d, GB + 2*d, GB + 2*d + 1)
        A("s_waitcnt lgkmcnt(0)")
        st.mark(A)
        gn_coeffs(A, P, P+1, GA, GB, A1, B1, A2, B2, "v225", TT)
        for p in range(8):
            o = OUT + 4*p
            silu8(A, H + p*8, A1, B1, A2, B2, TT + 8*(p & 1), o)
            A(f"buffer_store_dwordx4 {v(o,4)}, v250, s[{SWS}:{SWS+3}], s{66 + (p >> 2)} offen offset:{256*(p & 3)} {OPT['st']}")
    else:
        XF, OUT = 8, 168
        for k in range(0, 8, 2):
            for rho in range(2):
                for kk in (k, k+1):
                    r = XR + (rho*8 + kk)*2
                    unpack_bf16(A, r, XF + (rho*4 + 0)*8 + kk, XF + (rho*4 + 1)*8 + kk)
                    unpack_bf16(A, r+1, XF + (rho*4 + 2)*8 + kk, XF + (rho*4 + 3)*8 + kk)
            for p in range(8):
                x = H + p*8 + k
                A(f"v_pk_fma_f32 {v(x,2)}, {v(x,2)}, {v(SCR+k,2)}, {v(XF + p*8 + k,2)}")
            for kk in (k, k+1):
                for rho in range(2):
                    o = OUT + (rho*8 + kk)*2
                    h = H + rho*32 + kk
                    A(f"v_cvt_pk_bf16_f32 v{o}, v{h}, v{h+8}")
                    A(f"v_cvt_pk_bf16_f32 v{o+1}, v{h+16}, v{h+24}")
                    A(f"buffer_store_dwordx2 {v(o,2)}, v{250+rho}, s[{SO}:{SO+3}], s66 offen {OPT['sto']}")
                A("s_add_u32 s66, s66, 8192")
    if stamps:
        A("s_waitcnt vmcnt(0)")
        st.mark(A)
    st.flush(A, SWS, S_W, 8)
    A(f"{L}_exit:\ns_endpgm")
    if conv == 2:
        A("Lcode_end:")
    descriptor(A, name, 512, 256)


HEAD = """; ADM ResBlock: GN+SiLU -> conv3x3 -> +emb -> GN+SiLU -> conv3x3 -> +x   (B=2, C=512, 64x64, bf16 in/out)
; @launch kernel=adm_prep_kernel grid=(%d,1,1) block=(256,1,1) lds=37376
; @launch kernel=adm_conv1_kernel grid=(256,1,1) block=(256,1,1) lds=152064
; @launch kernel=adm_conv2_kernel grid=(256,1,1) block=(256,1,1) lds=152064
.amdgcn_target "amdgcn-amd-amdhsa--gfx950"
"""


def align_pass(text):
    import subprocess, re
    r = subprocess.run(["llvm-mc", "-triple", "amdgcn-amd-amdhsa", "-mcpu=gfx950", "-show-encoding"],
                       input=text, capture_output=True, text=True)
    assert r.returncode == 0, r.stderr
    sizes = [m.count(",") + 1 for m in re.findall(r"encoding: \[([^\]]*)\]", r.stdout)]
    lines = text.split("\n")
    idx = [i for i, l in enumerate(lines) if l.startswith("    ")]
    assert len(idx) == len(sizes), (len(idx), len(sizes))
    size = dict(zip(idx, sizes))
    out, off, run = [], 0, []
    for i, l in enumerate(lines):
        if l.startswith(".p2align"):
            off, run = 0, []
        if i not in size:
            out.append(l); continue
        if size[i] == 4:
            run.append(len(out)); out.append(l); off ^= 4
            continue
        if off:
            for p in reversed(run):
                op = out[p].split()[0]
                if op.startswith("v_") and not op.startswith(("v_readfirstlane", "v_nop", "v_fmac", "v_cmp")):
                    out[p] = out[p].replace(op, op + "_e64", 1); off = 0
                    break
            else:
                n, j = 0, i
                while j < len(lines) and size.get(j, 8) == 8 and not lines[j].startswith(".section"):
                    n += j in size; j += 1
                if run and n >= OPT.get("padrun", 6):
                    out.append("    s_nop 0"); off = 0
        run = []
        out.append(l)
    return "\n".join(out)


def generate(stamps=False):
    A = Asm()
    gen_prep(A, stamps)
    gen_conv(A, 1, stamps)
    gen_conv(A, 2, stamps)
    text = HEAD % (264 + 128*OPT["w_in_k1"]) + A.text()
    return align_pass(text) if OPT["align"] else text


if __name__ == "__main__":
    out = sys.argv[1]
    for a in sys.argv[2:]:
        if "=" in a:
            k, val = a.split("=")
            OPT[k] = int(val) if val.lstrip("-").isdigit() else val.replace("+", " ")
    if OPT.get("base"):
        for nm in ("D1", "D2", "U1", "U2"):
            globals()[nm] += OPT["base"] << 20
    open(out, "w").write(generate(stamps="stamps" in sys.argv[2:]))
```

```python
import sys
sys.path.insert(0, "tools")
import gen
from gen import (Asm, v, acc, NEG1, srd, wave_reduce, header, descriptor, gn_coeffs, silu8, unpack_bf16, trim,
                 align_pass, OPT, OOB, NLOG2E, SPIN_MAX, TAGSTEP, S_MASK, WS_BYTES, WROW, STAMP,
                 SLOT, VDMA, VDMA2, VTOP, VBOT, VU, VA, VB, VA1, VB1, WLDS, XLDS, C, PP, TMP, UU,
                 SWS, SD, SX, SO, S_W, S_DMA, S_M0, S_U0, S_U1, S_U2, S_SGN, S_CNT, S_GRP, S_IDX, S_B, S_NB, S_RB,
                 u_load, dma_m0, dma, raw_read, h_op, D1, D2, U1, U2, SC1, SC2)

NAME = "standalone__adm_resblock__diffusion_kernel"
GEN, EMBP = 0x0, 0x10000
STAT, UF, DF = 0x40000, 0x60000, 0x80000
GRPS = 4352
D1, D2 = 0x0e00000, 0x1700000
OPT.update(ldx="nt", ldw="nt", jst=1, wpos=(2, 8, 14, 20), ldu="sc1", ldd="sc1", trimU=3, trimD=3, pf=1, delay=0, delayd=6, slp=3)

S_IT, S_TAG, S_ASC, S_INV, S_WS, S_E2, S_RA, S_RB2, S_J0, S_J1, S_OQ = 60, 61, 62, 63, 64, 65, 66, 67, 68, 69, 71
S_RET, S_POLL, S_SLOT, S_XO = 24, 25, 12, 13
S_AG, S_BB = 6, 14
VW, VR = (None, 240, 241, 242), (243, 244, 245)
VD, VX, V63, VXL, VPOLL, VT = 246, 247, 249, 250, 251, 252
H, XR, SCR, EMR, GR, BR, PLD, VS, VJ = 136, 200, 232, 104, 124, 128, 232, 236, 238

LANE63 = "s_mov_b32 exec_lo, 0\ns_mov_b32 exec_hi, 0x80000000"


class Seq(gen.Seq):
    def wait(self, vm=(), lg=()):
        a = [n for n in (self._n(self.vm, t) for t in vm) if n is not None]
        b = [n for n in (self._n(self.lg, t) for t in lg) if n is not None]
        self.out.append(("wait", a[-1] if a else None, b[-1] if b else None))

    @staticmethod
    def text(out):
        L = []
        for x in out:
            if isinstance(x, tuple):
                p = ([f"vmcnt({x[1]})"] if x[1] is not None else []) + ([f"lgkmcnt({x[2]})"] if x[2] is not None else [])
                assert (x[1] or 0) < 64 and (x[2] or 0) < 16
                if p:
                    L.append("s_waitcnt " + " ".join(p))
            else:
                L.append(x)
        return "\n".join(L)

    def take(self):
        o, self.out = self.out, []
        return o


def merge(bodies):
    res = []
    for items in zip(*bodies):
        if isinstance(items[0], tuple):
            f = lambda i: min([x[i] for x in items if x[i] is not None], default=None)
            res.append(("wait", f(1), f(2)))
            assert res[-1] == bodies[3][len(res) - 1], (res[-1], items)
        else:
            assert all(x == items[0] for x in items), items
            res.append(items[0])
    return res


class Stamps:
    def __init__(self, on):
        self.on = on

    def mark(self, A, name, wait=True):
        sel = OPT.get("marks", "start,pub,tot,silu,loop,end,hh").split(",")
        if self.on and name in sel:
            i = sel.index(name)
            A(f"s_memrealtime s[{72+4*i}:{73+4*i}]\ns_memtime s[{74+4*i}:{75+4*i}]")
            if wait:
                A("s_waitcnt lgkmcnt(0)")

    def flush(self, A, kid, n):
        if self.on:
            A(f"s_lshl_b32 s100, s2, 2\ns_add_u32 s100, s100, s{S_W}\ns_lshl_b32 s100, s100, 6")
            A(f"s_add_u32 s100, s100, {STAMP + kid*0x20000:#x}")
            for i in range(n):
                A(f"v_mov_b32 v{VT}, s{72+4*i}\nv_mov_b32 v{VT+1}, s{74+4*i}")
                A(f"buffer_store_dwordx2 {v(VT,2)}, v{V63}, s[{SWS}:{SWS+3}], s100 offen offset:{8*i}")
                A("s_nop 1")


def weave(A, main, side, first=0, last=None):
    last = len(main) if last is None else last
    pos = {}
    for i, t in enumerate(side):
        pos.setdefault(first + (i*(last - first))//len(side), []).append(t)
    for i, m in enumerate(main):
        for t in pos.get(i, []):
            A(t)
        A(m)


def w_loads(base, so, sm):
    ld = []
    for k in range(9):
        t = ""
        if k == 0:
            t = (f"s_mul_i32 s{sm}, s{S_W}, {WROW}\ns_add_u32 m0, s{sm}, {base}\n"
                 f"s_lshl_b32 s{so}, s{S_OQ}, 2\ns_add_u32 s{so}, s{so}, s{S_W}\ns_mul_i32 s{so}, s{so}, 9216\n")
        elif k in (4, 8):
            t = f"s_add_u32 m0, s{sm}, {base + 1024*k}\ns_add_u32 s{so}, s{so}, 4096\n"
        ld.append(t + f"buffer_load_dwordx4 v{VDMA}, s[{SO}:{SO+3}], s{so} offen offset:{1024*(k & 3)} {OPT.get('ldw', '')} lds")
    return ld


def spin(A, L, load, check, first_in_flight=False):
    if first_in_flight is not None:
        A(f"s_mov_b32 s58, {SPIN_MAX}")
    if first_in_flight:
        A(f"s_branch {L}_wait")
    A(f"{L}_poll:\n{load}\n{L}_wait:\ns_waitcnt vmcnt(0)\n{L}_chk:")
    A(check)
    A(f"s_cbranch_scc0 {L}_ok")
    A(f"s_sleep {OPT['slp']}\ns_sub_u32 s58, s58, 1\ns_cmp_lg_u32 s58, 0\ns_cbranch_scc1 {L}_poll")
    A(f"{L}_ok:")


POLL4 = f"buffer_load_dwordx4 {v(PLD,4)}, v{VPOLL}, s[{SWS}:{SWS+3}], s{S_POLL} offen sc1"


JG, JM, JRW, JOUT = 8, 80, 80, 56
LO2, HI2 = "op_sel_hi:[1,0]", "op_sel:[0,1] op_sel_hi:[1,1]"
LO3, HI3 = "op_sel_hi:[1,0,1]", "op_sel:[0,1,0] op_sel_hi:[1,1,1]"


def job_a(A, lds, side=()):
    G, M, RW = JG, 116, JRW

    def greg(e):
        return G + (e % 9)*8 + e//9
    for k in range(9):
        A(f"ds_read_b128 {v(RW+4*k,4)}, v{VJ} offset:{lds + 16*k}")
    B = Asm()
    for k in range(9):
        if k in (0, 1, 3, 6):
            B(f"s_waitcnt lgkmcnt({(8, 6, 0, 3, 0, 0, 0)[k]})")
        for d in range(4):
            e = 8*k + 2*d
            unpack_bf16(B, RW + 4*k + d, greg(e), greg(e+1))
        for d in range(4):
            e = 8*k + 2*d
            B(f"v_max3_f32 v{M}, |v{greg(e)}|, |v{greg(e+1)}|, {'0' if e == 0 else f'v{M}'}")
    if side:
        weave(A, B.L, side)
    else:
        A("\n".join(B.L))
    wave_reduce(A, [M], "v_max_f32")
    A(f"s_lshl_b32 s58, s{S_W}, 2\nv_add_u32 v{M+1}, s58, v{VXL}")
    A(LANE63)
    A(f"ds_write_b32 v{M+1}, v{M} offset:128")
    A("s_mov_b64 exec, -1")


def job_b(A, side=(), hook=None, stores=None):
    G, M, OUTP = JG, JM, JOUT
    T = M + 12
    A(f"ds_read_b128 {v(M+4,4)}, v{VXL} offset:128")
    A(f"s_bitcmp1_b32 s{S_IDX}, 0\ns_cselect_b32 s58, 0, 1.0\ns_cselect_b32 s59, 1.0, 0\ns_cselect_b32 s56, -0.5, 0.5")
    side = list(side)
    if side:
        A(side.pop(0))
    A("s_waitcnt lgkmcnt(0)")
    B = Asm()
    B(f"v_max3_f32 v{M+4}, v{M+4}, v{M+5}, v{M+6}\nv_max_f32 v{M+4}, v{M+4}, v{M+7}")
    B(f"v_frexp_exp_i32_f32 v{M+4}, v{M+4}\nv_min_i32 v{M+4}, 60, v{M+4}\nv_max_i32 v{M+4}, 0xffffffc4, v{M+4}")
    B(f"v_add_u32 v{M}, 119, v{M+4}\nv_lshlrev_b32 v{M}, 23, v{M}")
    K0, K1, K2, K3 = M + 4, M + 6, M + 8, M + 10
    B(f"v_sub_u32 v{T}, 135, v{M+4}\nv_lshlrev_b32 v{T}, 23, v{T}\nv_readfirstlane_b32 s{S_WS}, v{M}")
    B(f"v_mul_f32 v{K0}, s58, v{T}\nv_mul_f32 v{K0+1}, s59, v{T}\nv_mul_f32 v{K1}, 0.5, v{T}\nv_mul_f32 v{K1+1}, s56, v{T}")
    B(f"v_pk_mul_f32 {v(K2,2)}, {v(K0,2)}, 0.5 op_sel_hi:[1,0]\nv_pk_mul_f32 {v(K3,2)}, {v(K1,2)}, 0.5 op_sel_hi:[1,0]")
    for col in range(3):
        ka, kb = (K2, K3) if col == 1 else (K0, K1)
        regs = [(G + col*8 + cp, G + (3+col)*8 + cp, G + (6+col)*8 + cp, T + cp) for cp in range(0, 8, 2)]
        for g0, g1, g2, t in regs:
            B(f"v_pk_add_f32 {v(t,2)}, {v(g0,2)}, {v(g2,2)}")
            B(f"v_pk_mul_f32 {v(g0,2)}, {v(g0,2)}, {v(ka,2)} {LO2}")
            B(f"v_pk_mul_f32 {v(g1,2)}, {v(g1,2)}, {v(kb,2)} {HI2}")
        for g0, g1, g2, t in regs:
            B(f"v_pk_fma_f32 {v(g0,2)}, {v(g2,2)}, {v(ka,2)}, {v(g0,2)} {HI3}")
            B(f"v_pk_fma_f32 {v(g1,2)}, {v(t,2)}, {v(kb,2)}, {v(g1,2)} {LO3}")
        if hook and col == hook[0]:
            B.L.append(hook[1])
    N3 = "neg_lo:[0,0,1] neg_hi:[0,0,1]"
    for i, r in enumerate((G, G + 24)):
        for cp in range(0, 8, 2):
            B(f"v_pk_add_f32 {v(T+cp,2)}, {v(r+cp,2)}, {v(r+16+cp,2)}")
        for cp in range(0, 8, 2):
            B(f"v_pk_fma_f32 {v(r+cp,2)}, {v(T+cp,2)}, 0.5, {v(r+8+cp,2)} {LO3}")
            B(f"v_pk_fma_f32 {v(r+8+cp,2)}, {v(T+cp,2)}, 0.5, {v(r+8+cp,2)} {LO3} {N3}")
        for j, src in enumerate((r+16, r, r+8)):
            o = OUTP + (i*3 + j)*4
            for d in range(4):
                B(f"v_cvt_pk_f16_f32 v{o+d}, v{src+2*d}, v{src+2*d+1}")
            if i or j:
                trim(B, o, 4, OPT["trimU"])
            if stores:
                B.L.append(stores[i*3 + j])
    if side:
        weave(A, B.L, side, 6)
    else:
        A("\n".join(B.L))


def job_stores():
    st = []
    for i in range(2):
        for j in range(3):
            st.append(f"buffer_store_dwordx4 {v(JOUT + (i*3 + j)*4, 4)}, v{VS}, s[{SWS}:{SWS+3}], s{S_J0+i} offen sc1\n"
                      f"s_add_u32 s{S_J0+i}, s{S_J0+i}, {4096 if j < 2 else U2 - U1 - 8192}")
    return st


def silu(A, x, A1, B1, kk, t, out):
    for k in range(0, 8, 2):
        A(f"v_pk_fma_f32 {v(x+k,2)}, {v(x+k,2)}, {v(A1+k,2)}, {v(B1+k,2)}")
    for k in range(8):
        A(f"v_exp_f32 v{t+k}, v{x+k}")
    for k in range(0, 8, 2):
        A(f"v_pk_fma_f32 {v(t+k,2)}, {v(t+k,2)}, {v(kk,2)}, {v(kk,2)}")
    for k in range(8):
        A(f"v_rcp_f32 v{t+k}, v{t+k}")
    for k in range(0, 8, 2):
        A(f"v_pk_mul_f32 {v(x+k,2)}, {v(x+k,2)}, {v(t+k,2)}")
    for k in range(0, 8, 2):
        A(f"v_cvt_pk_f16_f32 v{out+k//2}, v{x+k}, v{x+k+1}")
    trim(A, out, 4, OPT["trimD"])


def x_loads():
    ld = []
    for k in range(8):
        for rho in range(2):
            t = f"buffer_load_dwordx2 {v(XR + (rho*8 + k)*2, 2)}, v{VX+rho}, s[{SX}:{SX+3}], s59 offen {OPT['ldx']}"
            if rho == 1 and k < 7:
                t += f"\ns_add_u32 s59, s59, {32768 if OPT.get('xperm') else 8192}"
            ld.append(t)
    ld[0] = f"s_mov_b32 s59, s{S_XO}\n" + ld[0]
    return ld


def kernel(stamps):
    A = Asm()
    st = Stamps(stamps)
    header(A, NAME)
    st.mark(A, "start", False)
    A("s_cmp_ge_u32 s2, 256\ns_cbranch_scc1 Lexit")
    A("s_load_dwordx16 s[4:19], s[0:1], 0")
    A("s_load_dwordx8 s[20:27], s[0:1], 64")
    A("v_lshrrev_b32 v8, 6, v0\nv_and_b32 v0, 63, v0")
    A(f"v_readfirstlane_b32 s{S_W}, v8")
    A(f"s_and_b32 s{S_GRP}, s2, 7\ns_lshr_b32 s{S_IDX}, s2, 3\ns_lshr_b32 s{S_B}, s{S_GRP}, 2")
    A(f"s_and_b32 s{S_NB}, s{S_GRP}, 3\ns_lshl_b32 s{S_NB}, s{S_NB}, 1\ns_and_b32 s56, s{S_IDX}, 1\ns_add_u32 s{S_NB}, s{S_NB}, s56")
    A(f"s_lshr_b32 s{S_RB}, s{S_IDX}, 1\ns_lshl_b32 s{S_OQ}, s{S_GRP}, 4\ns_add_u32 s{S_OQ}, s{S_OQ}, s{S_RB}")

    def touch():
        A(f"s_lshl_b32 s56, s{S_IDX}, 2\ns_add_u32 s56, s56, s{S_W}\nv_and_b32 v8, 1, v0\nv_lshl_add_u32 v8, v8, 7, s56")
        gen.code_touch(A, "Lpf", "Lcode_end", 8, 72, "Lpc", 56)
        A("global_load_dword v253, v[72:73], off\nLpf:")
    if OPT["pf"] == 1:
        touch()
    A("v_and_b32 v9, 15, v0\nv_lshrrev_b32 v10, 4, v0")
    A(f"v_lshlrev_b32 v{VDMA}, 4, v0")
    A(f"s_and_b32 s44, s{S_W}, 1\ns_lshl_b32 s56, s{S_NB}, 1\ns_add_u32 s44, s44, s56")
    A(f"s_lshr_b32 s45, s{S_W}, 1\ns_lshl_b32 s56, s{S_RB}, 1\ns_add_u32 s45, s45, s56")
    A(f"s_lshl_b32 s46, s{S_B}, 22\ns_lshl_b32 s56, s44, 18\ns_add_u32 s46, s46, s56")
    A(f"s_lshl_b32 s47, s45, 8\ns_add_u32 s47, s47, s46")
    OS = 65536 + OPT.get("pad", 0)
    gen.DSTEP = 4*OS
    A(f"v_lshlrev_b32 v11, {13 if OPT.get('xperm') else 16}, v10\nv_lshl_add_u32 v11, v9, 3, v11")
    A(f"s_cmp_eq_u32 s{S_W}, 3\ns_cselect_b32 s56, 128, 0\nv_add_u32 v{VX}, s56, v11\nv_xor_b32 v{VX+1}, 128, v{VX}")
    A(f"s_mov_b32 s{S_MASK}, 0xffff0000")
    A("s_waitcnt lgkmcnt(0)")
    st.mark(A, "karg", False)
    srd(A, SX, 4, 0x800000)
    srd(A, SO, 12, 512*9216)
    A(f"s_load_dword s{S_TAG}, s[26:27], {GEN}")
    A(f"s_cmp_lt_u32 s{S_W}, 2\ns_cbranch_scc1 Lside0\ns_cmp_eq_u32 s{S_W}, 3\ns_cbranch_scc1 Lside3")
    for i, p in enumerate((8, 10, 16, 18)):
        A(f"global_load_dwordx4 {v(16+4*i,4)}, v{VDMA}, s[{p}:{p+1}]")
    A("s_branch Lside0\nLside3:")
    A(f"v_lshrrev_b32 v12, 3, v0\ns_mul_i32 s56, s{S_RB}, 24\nv_add_u32 v12, s56, v12")
    A(f"s_and_b32 s56, s{S_IDX}, 1\ns_mul_i32 s56, s56, 768\nv_lshl_add_u32 v13, v12, 1, s56")
    for i in range(3):
        A(f"global_load_ushort v{16+i}, v13, s[6:7] offset:{16*i}")
    A(f"v_and_b32 v13, 7, v0\nv_lshlrev_b32 v13, 4, v13\nv_lshl_add_u32 v13, v12, 10, v13\ns_lshl_b32 s56, s{S_GRP}, 7\nv_add_u32 v13, s56, v13")
    for i in range(3):
        A(f"global_load_dwordx4 {v(20+4*i,4)}, v13, s[14:15]")
        if i < 2:
            A("v_add_u32 v13, 8192, v13")
    A("Lside0:")
    A(f"s_mov_b32 s{S_XO}, s47")
    for t in x_loads():
        A(t)
    st.mark(A, "xis", False)
    npf = int(OPT["pf"] == 2)
    if npf:
        touch()
    srd(A, SWS, 26, WS_BYTES)
    if OPT["tlb"]:
        npf += 1
        A(f"s_cmp_eq_u32 s{S_W}, 1\ns_cselect_b32 s{SD}, s22, s26\ns_cselect_b32 s{SD+1}, s23, s27\ns_mov_b32 s56, 0x3000000\ns_cselect_b32 s{SD+2}, 0x800000, s56")
        A(f"s_cmp_eq_u32 s{S_W}, 2\ns_cselect_b32 s{SD}, s20, s{SD}\ns_cselect_b32 s{SD+1}, s21, s{SD+1}\ns_cselect_b32 s{SD+2}, {512*9216}, s{SD+2}")
        A(f"s_cmp_eq_u32 s{S_W}, 3\ns_cselect_b32 s{SD+2}, 0, s{SD+2}\ns_mov_b32 s{SD+3}, 0x20000")
        A(f"v_lshlrev_b32 v11, {OPT['tlb']}, v0")
        A(f"buffer_load_dword v8, v11, s[{SD}:{SD+3}], 0 offen offset:2048 sc1")
    A(f"v_mul_u32_u24 v{VD}, {OS}, v10\nv_lshl_add_u32 v{VD}, v9, 4, v{VD}")
    A(f"s_mul_i32 s46, s{S_B}, {64*OS}\ns_add_u32 s56, s46, {D1 - 1024:#x}\ns_mul_i32 s57, s44, {4*OS}\ns_add_u32 s46, s46, s57")
    A(f"s_add_u32 s{SD}, s26, s56\ns_addc_u32 s{SD+1}, s27, 0\ns_mov_b32 s{SD+2}, {64*OS + 1024:#x}\ns_mov_b32 s{SD+3}, 0x20000")
    A(f"s_lshl_b32 s56, s45, 11\ns_add_u32 s{S_RA}, s46, s56\ns_add_u32 s{S_RA}, s{S_RA}, {D1:#x}")
    A(f"s_cmp_eq_u32 s{S_W}, 3\ns_cselect_b32 s56, 1024, 0\ns_cselect_b32 s57, 0, 1024\ns_add_u32 s{S_RB2}, s{S_RA}, s57\ns_add_u32 s{S_RA}, s{S_RA}, s56")
    A(f"s_mul_i32 s{S_SLOT}, s{S_GRP}, {GRPS}\ns_lshl_b32 s56, s{S_IDX}, 7\ns_add_u32 s{S_SLOT}, s{S_SLOT}, s56")
    def ftouch():
        A(f"v_min_u32 v11, 5, v0\nv_lshlrev_b32 v11, 16, v11\ns_cmp_eq_u32 s{S_W}, 1\ns_cselect_b32 s56, 0, {OOB:#x}")
        A(f"s_add_u32 s56, s56, s{S_SLOT}\ns_add_u32 s56, s56, {STAT:#x}")
        A(f"buffer_load_dword v{VT+1}, v11, s[{SWS}:{SWS+3}], s56 offen sc1")
    npf += 1
    if OPT.get("ft", 2) == 1:
        ftouch()
    A(f"s_lshl_b32 s56, s44, 6\nv_lshlrev_b32 v237, 4, v10\nv_add_u32 v237, s56, v237")
    A(f"v_add_u32 v{VDMA2}, 4096, v{VDMA}")
    A(f"s_cmp_eq_u32 s{S_RB}, 0\ns_cselect_b32 s56, {OOB:#x}, 0\nv_add_u32 v{VTOP}, s56, v{VDMA}")
    A(f"s_cmp_eq_u32 s{S_RB}, 15\ns_cselect_b32 s56, {OOB:#x}, 0\nv_add_u32 v{VBOT}, s56, v{VDMA2}")
    A(f"v_lshrrev_b32 v11, 2, v9\nv_lshlrev_b32 v11, 8, v11\nv_lshl_add_u32 v11, v10, 6, v11")
    A(f"v_and_b32 v14, 3, v9\nv_lshl_add_u32 v{VU}, v14, 4, v11")
    A(f"s_lshl_b32 s57, s{S_W}, 10\ns_lshr_b32 s56, s{S_W}, 1\ns_sub_u32 s58, 2, s56\ns_lshl_b32 s58, s58, 10\ns_lshl_b32 s56, s56, 11")
    A(f"v_mul_u32_u24 v11, 6144, v10\nv_lshl_add_u32 v11, v9, 4, v11")
    A(f"v_add_u32 v14, s56, v11\ns_xor_b32 s56, s56, 2048\nv_add_u32 v11, s56, v11")
    A(f"v_add_u32 v{VA}, s57, v14\nv_add_u32 v{VB}, s58, v14\nv_add_u32 v{VA1}, s57, v11\nv_add_u32 v{VB1}, s58, v11")
    A(f"s_mov_b32 s56, 0xbc00bc00\ns_cmp_eq_u32 s{S_W}, 1\ns_cselect_b32 s{S_SGN}, 0x3c003c00, s56")
    A(f"s_mul_i32 s{S_M0}, s{S_W}, 6144")
    for phi in (1, 2, 3):
        A(f"s_xor_b32 s56, s{S_W}, {phi}\ns_mul_i32 s56, s56, 3\ns_add_u32 s56, s56, {phi-1}\ns_lshl_b32 s56, s56, 13\nv_add_u32 v{VW[phi]}, s56, v{VDMA}")
    A(f"s_lshl_b32 s57, s{S_W}, 2\ns_mul_i32 s58, s{S_W}, 3")
    for r, tab in zip(VR, (0x1100, 0x0221, 0x2012)):
        A(f"s_lshr_b32 s56, {tab:#x}, s57\ns_and_b32 s56, s56, 15\ns_add_u32 s56, s56, s58\ns_lshl_b32 s56, s56, 13\nv_add_u32 v{r}, s56, v{VDMA}")
    A(f"s_cmp_eq_u32 s{S_W}, 3\ns_cselect_b32 s{S_AG}, -1.0, 1.0\ns_cmp_ge_u32 s{S_W}, 2\ns_cselect_b32 s{S_AG+1}, 1.0, -1.0")
    A(f"s_xor_b32 s{S_BB+1}, s{S_AG+1}, 0x80000000\ns_add_u32 s56, s{S_W}, 1\ns_bitcmp1_b32 s56, 1")
    A(f"s_cselect_b32 s{S_BB}, 0, 1.0\ns_cselect_b32 s{S_BB+1}, s{S_BB+1}, 0")
    A(f"v_cmp_eq_u32 vcc, 63, v0\nv_mov_b32 v11, {OOB:#x}\nv_mov_b32 v{VXL}, {XLDS}\nv_cndmask_b32 v{V63}, v11, 0, vcc")
    A(f"s_mov_b32 s{S_IT}, 0\ns_waitcnt lgkmcnt(0)\ns_add_u32 s{S_TAG}, s{S_TAG}, {TAGSTEP:#x}")
    A("v_and_b32 v35, 7, v0\nv_lshlrev_b32 v35, 5, v35\nv_lshl_add_u32 v35, v10, 3, v35")
    A(f"s_and_b32 s56, s{S_IDX}, 1\ns_lshl_b32 s56, s56, 7\ns_add_u32 s56, s56, s{S_OQ}\ns_lshl_b32 s56, s56, 8\ns_add_u32 s{S_E2}, s56, {EMBP:#x}")
    A(f"v_and_b32 v11, 3, v0\nv_lshrrev_b32 v14, 2, v0\nv_mul_u32_u24 v11, {WROW}, v11\nv_mul_u32_u24 v14, 144, v14")
    A(f"s_mul_i32 s58, s{S_W}, 2304\ns_add_u32 s58, s58, {WLDS}\nv_add3_u32 v{VJ}, v11, v14, s58")
    A(f"v_mul_u32_u24 v{VS}, 49152, v10\nv_lshl_add_u32 v{VS}, v9, 4, v{VS}")
    A(f"s_mul_i32 s56, s{S_GRP}, 786432\ns_add_u32 s56, s56, {U1:#x}")
    A(f"s_bfe_u32 s58, s{S_RB}, 0x10003\ns_lshl_b32 s58, s58, 11\ns_add_u32 s56, s56, s58")
    A(f"s_and_b32 s58, s{S_RB}, 1\ns_lshl_b32 s58, s58, 10\ns_add_u32 s56, s56, s58")
    A(f"s_bfe_u32 s58, s{S_RB}, 0x20001\ns_lshl_b32 s58, s58, 8\ns_add_u32 s56, s56, s58")
    A(f"s_mul_i32 s58, s{S_W}, {4*49152}\ns_add_u32 s56, s56, s58\ns_xor_b32 s58, s56, 2048")
    A(f"s_bitcmp1_b32 s{S_IDX}, 0\ns_cselect_b32 s{S_J0}, s58, s56\ns_cselect_b32 s{S_J1}, s56, s58")
    A(f"s_cselect_b32 s58, {3*12288}, 0\ns_cselect_b32 s59, 12288, 0")
    A(f"s_add_u32 s{S_J0}, s{S_J0}, s58\ns_add_u32 s{S_J1}, s{S_J1}, s59\ns_add_u32 s{S_J1}, s{S_J1}, 12288")
    wk = OPT.get("wk", 9)
    wsp = OPT.get("wsp", (2, 2, 2, 3, 0))
    nextw = f"s_mov_b32 s{SO}, s20\ns_mov_b32 s{SO+1}, s21"
    if wk < 0:
        A("\n".join(w_loads(WLDS, 56, 57)) + "\n" + nextw)
    st.mark(A, "wis", False)
    nlate = 0
    if OPT["pf"] == 3:
        touch(); nlate += 1; npf += 1
    if OPT.get("ft", 2) == 2 and wk < 0:
        ftouch(); nlate += 1
    if wk == 9:
        npf -= 1
    w1l = w_loads(WLDS, 44, 46)
    A(f"s_cmp_lt_u32 s{S_W}, 2\ns_cbranch_scc1 Lside1\ns_waitcnt vmcnt({16 + 9*(wk < 0) + npf})\ns_cmp_eq_u32 s{S_W}, 3\ns_cbranch_scc1 Lside4")
    A("v_mov_b32 v12, 0\nv_mov_b32 v13, 0")
    for d in range(16):
        unpack_bf16(A, 16 + d, 14, 15)
        A(f"v_max3_f32 v{12 + d//8}, |v14|, |v15|, v{12 + d//8}")
    A("s_nop 0")
    wave_reduce(A, [12, 13], "v_max_f32")
    for r in (12, 13):
        A(f"v_frexp_exp_i32_f32 v{r}, v{r}\nv_min_i32 v{r}, 60, v{r}\nv_max_i32 v{r}, 0xffffffc4, v{r}")
    A(LANE63)
    A(f"ds_write_b64 v{VXL}, v[12:13] offset:72\ns_mov_b64 exec, -1\ns_branch Lside1")
    A("Lside4:")
    for i in range(3):
        A(f"v_lshlrev_b32 v{16+i}, 16, v{16+i}")
    for op in (f"v_mul_f32 v{{t}}, {NLOG2E:#x}, v{{x}}", "v_exp_f32 v{t}, v{t}", "v_add_f32 v{t}, 1.0, v{t}",
               "v_rcp_f32 v{t}, v{t}", "v_mul_f32 v{x}, v{x}, v{t}"):
        for i in range(3):
            A(op.format(t=32+i, x=16+i))
    for i in range(3):
        for d in range(4):
            unpack_bf16(A, 20 + 4*i + d, 44 + 2*d, 45 + 2*d)
        for k in range(8):
            A(f"v_mul_f32 v{36+k}, v{44+k}, v{16+i}" if i == 0 else f"v_fmac_f32 v{36+k}, v{44+k}, v{16+i}")
    for k in range(8):
        A(f"v_add_f32_dpp v{36+k}, v{36+k}, v{36+k} row_ror:8 row_mask:0xf bank_mask:0xf")
    A("s_nop 1")
    for k in (0, 1, 4, 5):
        A(f"v_permlane16_swap_b32 v{36+k}, v{38+k}")
    for k in (0, 1, 4, 5):
        A(f"v_add_f32 v{36+k}, v{36+k}, v{38+k}")
    A("s_nop 1")
    for k in (0, 1):
        A(f"v_permlane32_swap_b32 v{36+k}, v{40+k}")
    for k in (0, 1):
        A(f"v_add_f32 v{36+k}, v{36+k}, v{40+k}")
    A("Lside1:")
    st.mark(A, "side", False)
    P = 116

    def sums(A, x, a, first):
        if first:
            A(f"v_pk_mul_f32 {v(a+4,2)}, {v(x,2)}, {v(x,2)}\nv_pk_mul_f32 {v(a,2)}, {v(x,2)}, 1.0 op_sel_hi:[1,0]")
        else:
            A(f"v_pk_add_f32 {v(a,2)}, {v(a,2)}, {v(x,2)}\nv_pk_fma_f32 {v(a+4,2)}, {v(x,2)}, {v(x,2)}, {v(a+4,2)}")
    for k in range(0, 8, 2):
        A(f"s_waitcnt vmcnt({12 + (sum(wsp[:k//2]) if wk == 9 else 9*(wk < k)) + npf - 2*k})")
        if k == 6:
            st.mark(A, "xin")
        B = Asm()
        for kk in (k, k+1):
            for rho in range(2):
                r = XR + (rho*8 + kk)*2
                unpack_bf16(B, r, H + (rho*4 + 0)*8 + kk, H + (rho*4 + 1)*8 + kk)
                unpack_bf16(B, r+1, H + (rho*4 + 2)*8 + kk, H + (rho*4 + 3)*8 + kk)
        for p in range(8):
            sums(B, H + p*8 + k, P + 2*(p & 1), k == 0 and p < 2)
        if k == wk:
            weave(A, B.L, w_loads(WLDS, 56, 57))
            A(nextw)
        else:
            A("\n".join(B.L))
        if wk == 9:
            A("\n".join(w1l[sum(wsp[:k//2]):sum(wsp[:k//2 + 1])]))

    A("Lstats:")
    A(f"v_pk_add_f32 {v(P,2)}, {v(P,2)}, {v(P+2,2)}")
    A(f"v_pk_add_f32 {v(P+4,2)}, {v(P+4,2)}, {v(P+6,2)}")
    A(f"v_add_f32 v{P}, v{P}, v{P+1}\nv_add_f32 v{P+1}, v{P+4}, v{P+5}")
    wave_reduce(A, [P, P+1])
    A(f"s_lshl_b32 s56, s{S_W}, 3\nv_add_u32 v{P+2}, s56, v{VXL}")
    A(LANE63)
    A(f"ds_write_b64 v{P+2}, {v(P,2)}")
    A("s_mov_b64 exec, -1")
    A(f"s_lshl_b32 s59, s{S_IT}, 16\ns_add_u32 s56, s59, s{S_SLOT}\ns_add_u32 s56, s56, {STAT:#x}")
    A(f"s_cmp_eq_u32 s{S_IT}, 0\ns_cbranch_scc1 Lb1\ns_waitcnt vmcnt(0)\nLb1:")
    A("s_waitcnt lgkmcnt(0)\ns_barrier")
    A(f"s_cmp_lg_u32 s{S_W}, 0\ns_cbranch_scc1 Lnopub")
    A(f"ds_read_b128 {v(P,4)}, v{VXL}\nds_read_b128 {v(P+4,4)}, v{VXL} offset:16")
    A(f"v_mov_b32 v133, s{S_TAG}\nv_mov_b32 v135, s{S_TAG}\ns_waitcnt lgkmcnt(0)")
    A(f"v_pk_add_f32 {v(P,2)}, {v(P,2)}, {v(P+2,2)}\nv_pk_add_f32 {v(P+4,2)}, {v(P+4,2)}, {v(P+6,2)}")
    A(f"v_add_f32 v132, v{P}, v{P+4}\nv_add_f32 v134, v{P+1}, v{P+5}")
    if OPT.get("fl", 1):
        A(f"v_and_b32 v{P}, 0x70, v{VDMA}\nbuffer_store_dwordx4 v[132:135], v{P}, s[{SWS}:{SWS+3}], s56 offen sc1")
    else:
        A(f"buffer_store_dwordx4 v[132:135], v{V63}, s[{SWS}:{SWS+3}], s56 offen sc1")
    A("Lnopub:")
    st.mark(A, "pub")
    A(f"s_mul_i32 s{S_POLL}, s{S_GRP}, {GRPS}\ns_add_u32 s{S_POLL}, s{S_POLL}, s59\ns_add_u32 s{S_POLL}, s{S_POLL}, {STAT:#x}")
    A(f"v_cmp_gt_u32 vcc, 32, v0\nv_mov_b32 v{P}, {OOB:#x}\nv_lshlrev_b32 v{VPOLL}, 7, v0\nv_cndmask_b32 v{VPOLL}, v{P}, v{VPOLL}, vcc")
    A(f"s_cmp_lg_u32 s{S_IT}, 0\ns_cbranch_scc1 Ljob")
    if wk == 9:
        A("\n".join(w1l[sum(wsp[:4]):]) + "\n" + nextw)
        ftouch(); nlate = 1
    A(f"global_load_dwordx4 {v(GR,4)}, v237, s[8:9]\nglobal_load_dwordx4 {v(BR,4)}, v237, s[10:11]")
    A(f"s_cmp_eq_u32 s{S_W}, 3\ns_cselect_b32 s56, s{S_E2}, {OOB:#x}")
    A(f"buffer_store_dwordx2 v[36:37], v35, s[{SWS}:{SWS+3}], s56 offen sc1")
    if wk == 9 and wsp[4]:
        A(f"s_waitcnt vmcnt({3 + nlate})\ns_barrier")
    else:
        A(f"s_cmp_eq_u32 s{S_W}, 0\ns_cbranch_scc1 Lw3\ns_waitcnt vmcnt({3 + nlate})\nLw3:\ns_waitcnt vmcnt({4 + nlate})\ns_barrier")
    A("Ljob:")
    st.mark(A, "win")
    job_a(A, 0)
    A("s_waitcnt lgkmcnt(0)\ns_barrier")
    job_b(A, hook=(OPT.get("hook", 2), f"s_cmp_lg_u32 s{S_W}, 0\ns_cbranch_scc1 Ljob_mid\n{POLL4}\nLjob_mid:"),
          stores=job_stores() if OPT.get("jst") else None)
    st.mark(A, "job0")
    A(f"s_cmp_lg_u32 s{S_W}, 0\ns_cbranch_scc1 Ljoin")
    if OPT.get("jst"):
        A(f"s_mov_b32 s58, {SPIN_MAX}\ns_waitcnt vmcnt(6)\ns_branch Ls_chk")
    spin(A, "Ls", POLL4, f"v_cmp_ne_u32 vcc, s{S_TAG}, v{PLD+1}\nv_cmp_ne_u32 s[56:57], s{S_TAG}, v{PLD+3}\ns_nop 1\ns_or_b32 s56, s56, vcc_lo", None if OPT.get("jst") else True)
    wave_reduce(A, [PLD, PLD+2])
    A(f"v_mul_f32 v{PLD}, 0xb6000000, v{PLD}\nv_mul_f32 v{PLD+2}, 0x36000000, v{PLD+2}")
    A(f"v_fma_f32 v{PLD+2}, -v{PLD}, v{PLD}, v{PLD+2}\nv_max_f32 v{PLD+2}, 0, v{PLD+2}")
    A(f"v_add_f32 v{PLD+2}, 0x3727c5ac, v{PLD+2}\nv_rsq_f32 v{PLD+1}, v{PLD+2}")
    A(LANE63)
    A(f"ds_write_b64 v{VXL}, {v(PLD,2)} offset:64")
    A("s_mov_b64 exec, -1")
    A("Ljoin:")
    A1, B1, KK, TT, OUT = 8, 16, 24, 32, 72
    A(f"ds_read_b64 {v(KK,2)}, v{VXL} offset:72\ns_waitcnt vmcnt({6 if OPT.get('jst') else 0})")
    B = Asm()
    for d in range(4):
        unpack_bf16(B, GR + d, A1 + 2*d, A1 + 2*d + 1)
        unpack_bf16(B, BR + d, B1 + 2*d, B1 + 2*d + 1)
    weave(A, B.L, [""] if OPT.get("jst") else job_stores())
    A(f"s_cmp_lg_u32 s{S_IT}, 0\ns_cselect_b64 vcc, -1, 0\ns_waitcnt lgkmcnt(0)\ns_barrier")
    st.mark(A, "b4")
    A(f"ds_read_b64 {v(PLD,2)}, v{VXL} offset:64")
    A(f"v_cndmask_b32 v{KK}, v{KK}, v{KK+1}, vcc\ns_mov_b32 s56, {NLOG2E:#x}")
    A(f"v_add_u32 v{KK}, 124, v{KK}\nv_lshlrev_b32 v{KK}, 23, v{KK}")
    for k in range(0, 16, 2):
        A(f"v_pk_mul_f32 {v(A1+k,2)}, {v(A1+k,2)}, s[56:57] {LO2}")
    A(f"v_readfirstlane_b32 s{S_INV}, v{KK}\nv_mul_f32 v{KK+1}, s56, v{KK}\nv_mul_f32 v{KK}, s56, v{KK}")
    A("s_waitcnt lgkmcnt(0)")
    st.mark(A, "tot")
    for k in range(0, 8, 2):
        A(f"v_pk_mul_f32 {v(A1+k,2)}, {v(A1+k,2)}, {v(PLD,2)} {HI2}")
    for k in range(0, 8, 2):
        A(f"v_pk_fma_f32 {v(B1+k,2)}, {v(A1+k,2)}, {v(PLD,2)}, {v(B1+k,2)} {LO3}")
    A(f"v_mov_b32 v{VT}, s{S_TAG}\nv_mov_b32 v{VT+1}, s{S_TAG}")
    A(f"s_lshl_b32 s59, s{S_IT}, 16\ns_add_u32 s57, s59, s{S_SLOT}\ns_lshl_b32 s56, s{S_W}, 4\ns_add_u32 s56, s56, s57\ns_add_u32 s{S_E2}, s56, {UF:#x}")
    uflag = (f"v_mov_b32 v{BR}, s{S_TAG}\nv_mov_b32 v{BR+1}, s{S_TAG}\nv_mov_b32 v{BR+2}, s{S_WS}\ns_waitcnt vmcnt(%d)\n"
             f"buffer_store_dwordx4 {v(BR,4)}, v{V63}, s[{SWS}:{SWS+3}], s{S_E2} offen sc1")
    ufp = OPT.get("ufp", 4)
    for p in range(8):
        o = OUT + 4*p
        silu(A, H + p*8, A1, B1, KK, TT + 8*(p & 1), o)
        A(f"buffer_store_dwordx4 {v(o,4)}, v{VD}, s[{SWS}:{SWS+3}], s{S_RA + (p >> 2)} offen offset:{256*(p & 3)} sc1")
        if p == ufp:
            A(uflag % (ufp + 1))
    st.mark(A, "silu")
    VUP, S_UP = 239, S_RET
    A(f"v_lshrrev_b32 v8, 2, v0\nv_lshlrev_b32 v8, 8, v8\nv_and_b32 v9, 3, v0\nv_lshl_add_u32 v{VUP}, v9, 4, v8")
    A(f"s_mul_i32 s{S_UP}, s{S_NB}, {GRPS}\ns_lshr_b32 s56, s{S_W}, 1\ns_lshl_b32 s56, s56, 7\ns_add_u32 s{S_UP}, s{S_UP}, s56")
    A(f"s_add_u32 s{S_UP}, s{S_UP}, s59\ns_add_u32 s{S_UP}, s{S_UP}, {UF:#x}")
    A(f"s_add_u32 s57, s57, {DF:#x}")
    A(f"s_mul_i32 s{S_U0}, s{S_NB}, 786432\ns_mul_i32 s56, s{S_W}, 12288\ns_add_u32 s{S_U0}, s{S_U0}, s56")
    A(f"s_lshl_b32 s56, s{S_IT}, 23\ns_add_u32 s{S_U0}, s{S_U0}, s56")
    A(f"s_add_u32 s{S_U0}, s{S_U0}, {U1:#x}\ns_add_u32 s{S_U1}, s{S_U0}, 4096\ns_add_u32 s{S_U2}, s{S_U0}, 8192")
    A(f"s_mul_i32 s{S_DMA}, s{S_W}, {OS}\ns_lshl_b32 s56, s{S_RB}, 12\ns_add_u32 s{S_DMA}, s{S_DMA}, s56")
    A(f"v_lshrrev_b32 v8, 3, v0\nv_min_u32 v8, 2, v8\nv_add_u32 v8, s{S_RB}, v8\nv_add_u32 v8, -1, v8\nv_med3_i32 v8, v8, 0, 15")
    A(f"v_and_b32 v9, 1, v0\nv_lshl_add_u32 v8, v8, 1, v9\nv_lshlrev_b32 v8, 7, v8")
    A(f"v_bfe_u32 v9, v0, 1, 2\nv_mul_u32_u24 v9, {GRPS}, v9\nv_add_u32 v{VPOLL}, v8, v9")
    A(f"s_mul_i32 s{S_POLL}, s{S_B}, {4*GRPS}\ns_add_u32 s{S_POLL}, s{S_POLL}, s59\ns_add_u32 s{S_POLL}, s{S_POLL}, {DF:#x}")
    upoll = f"buffer_load_dwordx2 {v(GR,2)}, v{VUP}, s[{SWS}:{SWS+3}], s{S_UP} offen sc1"
    ucheck = f"v_cmp_ne_u32 vcc, s{S_TAG}, v{GR}\nv_cmp_ne_u32 s[56:57], s{S_TAG}, v{GR+1}\ns_nop 1\ns_or_b64 s[56:57], s[56:57], vcc"
    dflag = f"buffer_store_dwordx2 {v(VT,2)}, v{V63}, s[{SWS}:{SWS+3}], s57 offen sc1"
    zero = [f"v_accvgpr_write_b32 a{i}, 0" for i in range(256)]
    nz1 = OPT.get("nz1", 160)
    Q0, Q1 = Seq(), Seq()

    def ulist(Q, kj):
        L = []
        for k, j in kj:
            for nu in range(4):
                u_load(Q, k, j, nu)
                L.append(Seq.text(Q.take()))
        return L

    def dma_list(Q, k):
        L = []
        for p in range(6):
            if p in (0, 4):
                dma_m0(Q, k, p >> 2); Q.raw("s_nop 0")
            dma(Q, k, p)
            L.append(Seq.text(Q.take()))
        return L
    Q = Q1
    nz1 = OPT.get("nz1", 128)
    weave(A, zero[:nz1], [upoll], OPT.get("nz0", 100))
    A("s_waitcnt vmcnt(1)\ns_barrier")
    st.mark(A, "b5")
    A(f"s_cmp_lg_u32 s{S_W}, 0\ns_cbranch_scc1 Lnodf")
    A(f"{dflag}\nLnodf:")
    A("\n".join(zero[nz1:]))
    A(f"s_mov_b32 s58, {SPIN_MAX}\ns_waitcnt vmcnt(1)\ns_cmp_eq_u32 s{S_W}, 0\ns_cbranch_scc1 Lu_chk\ns_branch Lu_wait")
    spin(A, "Lu", upoll, ucheck, None)
    st.mark(A, "uok")
    A(f"s_cmp_lg_u32 s{S_W}, 0\ns_cbranch_scc1 Lnp")
    A(f"{POLL4}\nLnp:")
    A("\n".join(ulist(Q, ((0, 0), (0, 1), (0, 2), (1, 0)))))
    st.mark(A, "job1")
    A(f"s_cmp_lg_u32 s{S_W}, 0\ns_cbranch_scc1 Ld_ok")
    A(f"s_mov_b32 s58, {SPIN_MAX}\ns_waitcnt vmcnt(16)\ns_branch Ld_chk")
    spin(A, "Ld", POLL4, f"v_cmp_ne_u32 vcc, s{S_TAG}, v{PLD}\nv_cmp_ne_u32 s[56:57], s{S_TAG}, v{PLD+1}\ns_nop 1\ns_or_b64 s[56:57], s[56:57], vcc", None)
    A("s_barrier")
    st.mark(A, "b6")
    A("\n".join(dma_list(Q, 0) + dma_list(Q, 1)))
    A(f"s_xor_b32 s{S_M0}, s{S_M0}, 0x10000\ns_mov_b32 s{S_CNT}, 7")
    d2 = dma_list(Q, 2)
    nd2 = OPT.get("nd2", 4)
    A("\n".join(d2[:nd2]))
    A(f"s_lshl_b32 s56, s{S_W}, 5\nv_and_b32 v8, 31, v0\nv_add_u32 v8, s56, v8")
    gen.code_touch(A, "Ltail", "Lcode_end", 8, 234, "Lpc2", 56)
    A(f"s_waitcnt vmcnt({6 + nd2})\ns_barrier")
    st.mark(A, "b7")
    for par in range(2):
        for tb in range(4):
            raw_read(Q, 0, par, tb, 0); raw_read(Q, 0, par, tb, 1)
    for par in range(2):
        for tb in range(4):
            Q.wait(lg=[("rd", 0, par, tb)])
            for d in range(4):
                h_op(Q, 0, par, tb, d)
    main = Seq.text(Q.take()).split("\n")
    weave(A, main, d2[nd2:] + ulist(Q, ((1, 1),)), 12)
    Q.wait(vm=[("raw", 1)])
    A(Seq.text(Q.take()))
    A(f"s_cmp_eq_u32 s{S_IT}, 0\ns_cbranch_scc1 Lgo")
    A(f"s_cmp_lg_u32 s2, 2\ns_cbranch_scc1 Lgo\ns_cmp_lg_u32 s{S_W}, 0\ns_cbranch_scc1 Lgo")
    A(f"buffer_store_dword v{VT}, v{V63}, s[{SWS}:{SWS+3}], 0 offen offset:{GEN} sc1")
    A("Lgo:")
    st.mark(A, "loop")
    bodies = []
    for Q in (Q1,):
        for n in range(7):
            gen.step(Q, 2*n)
            gen.step(Q, 2*n + 1, {63: [lambda: Q.raw(f"s_sub_u32 s{S_CNT}, s{S_CNT}, 1\ns_cmp_gt_u32 s{S_CNT}, 1\ns_cbranch_scc1 Lloop")]})
            bodies.append(Q.take())
    A(".p2align 6\nLloop:")
    A(Seq.text(merge(bodies)))
    A(f"s_cmp_eq_u32 s{S_CNT}, 0\ns_cbranch_scc1 Ltail\nglobal_load_dword v{VT+1}, v[234:235], off\ns_branch Lloop\nLtail:")
    st.mark(A, "l14")
    R = lambda t: [lambda: Q.raw(t)]
    M = lambda t: [lambda: Q.vmem(t, "ep")]
    sc_ld = [f"buffer_load_dword v{SCR+h}, v{VT}, s[{SWS}:{SWS+3}], s56 offen offset:{8 + 256*h} sc1" for h in range(2)]
    em_ld = [f"buffer_load_dwordx4 {v(EMR+4*h,4)}, v{VPOLL}, s[{SWS}:{SWS+3}], s57 offen offset:{16*h} sc1" for h in range(2)]
    gb_ld = [f"global_load_dwordx4 {v(GR,4)}, v237, s[16:17]", f"global_load_dwordx4 {v(BR,4)}, v237, s[18:19]"]
    unscale = f"v_pk_mul_f32 {v(SCR,2)}, {v(SCR,2)}, s[{S_ASC}:{S_INV}] op_sel:[0,1] op_sel_hi:[1,1]"
    red = [f"v_add_f32_dpp v{EMR+k}, v{EMR+k}, v{EMR+k} row_ror:{sh} row_mask:0xf bank_mask:0xf" for sh in (8, 4, 2, 1) for k in range(8)]
    wl = w_loads(WLDS, 58, 59)
    ex = {9: R(f"v_and_b32 v{VT}, 127, v237\nv_lshlrev_b32 v239, 1, v{VT}\nv_lshlrev_b32 v{VT}, 5, v{VT}"),
          11: M(wl[0]),
          17: R(f"s_mul_i32 s56, s{S_NB}, {GRPS}\ns_lshl_b32 s57, s{S_IT}, 16\ns_add_u32 s56, s56, s57\ns_add_u32 s56, s56, {UF:#x}"),
          19: R(f"s_lshl_b32 s57, s{S_B}, 3\ns_add_u32 s57, s57, s{S_NB}\ns_lshl_b32 s57, s57, 12\ns_add_u32 s57, s57, {EMBP:#x}"),
          22: R(f"v_and_b32 v{VPOLL}, 15, v0\nv_lshl_add_u32 v{VPOLL}, v{VPOLL}, 8, v239"),
          26: M(wl[1]),
          33: M(em_ld[0]), 35: M(em_ld[1]), 38: M(sc_ld[0]), 42: [lambda: Q.vmem(sc_ld[1], "sc")],
          49: M(wl[2]), 63: M(wl[3])}
    gen.step(Q, 14, ex)
    ex = {2: M(gb_ld[0]), 9: M(wl[4]), 5: M(gb_ld[1]), 22: M(wl[5]),
          33: M(wl[6]), 42: M(wl[7]), 55: M(wl[8]),
          43: [lambda: Q.wait(vm=["sc"]), lambda: Q.raw(unscale)]}
    slots = [46, 49, 50, 51, 52, 53, 54, 56, 57, 58, 59, 60, 61, 62, 63]
    for i, g in enumerate(slots):
        ex[g] = R("\n".join(red[(32*i)//15:(32*(i+1))//15]))
    gen.step(Q, 15, ex)
    A(Seq.text(Q.take()))
    A("Lepi:")
    st.mark(A, "end")
    RB_, ZB = [8, 40], [72, 88]
    XB = [8, 20, 72, 84]
    LO, HI = LO3, HI3
    ag, bb = f"s[{S_AG}:{S_AG+1}]", f"s[{S_BB}:{S_BB+1}]"
    XF, OUT = 40, 104
    for nul in range(2):
        stream, ready = [], []
        for n, phi in enumerate((2, 1, 3, 0)):
            sg, nup = phi >> 1, phi & 1
            nu = 2*nup + nul
            Rr = RB_[n & 1]
            Z = (lambda q, zb=ZB[n & 1]: zb + 4*q) if phi else (lambda q: H + q*8 + nul*4)
            m = lambda j, be, r=0: Rr + j*8 + be*4 + r
            E = stream.append

            def rdacc(*jb):
                for j, be in jb:
                    for r in range(4):
                        E(f"v_accvgpr_read_b32 v{m(j,be,r)}, a{j*64 + nu*16 + (2*sg + be)*4 + r}")

            def pk(q, x, y, neg, first=False):
                for r in (0, 2):
                    E(f"v_pk_add_f32 {v(Z(q)+r,2)}, {v((x if first else Z(q))+r,2)}, {v(y+r,2)} {NEG1 if neg else ''}")

            def done(q):
                if phi:
                    ready.append((len(stream), f"ds_write_b128 v{VW[phi]}, {v(Z(q),4)} offset:{(nul*4 + q)*1024}"))
            rdacc((0, 0), (0, 1), (1, 0), (2, 0))
            if n == 2:
                E("@war")
            pk(1, m(1,0), m(2,0), 0, True); pk(0, m(1,0), m(2,0), 1, True)
            pk(1, None, m(0,0), 1); pk(1, None, m(0,1), 0); done(1)
            rdacc((3, 1), (3, 0))
            for r in range(4):
                E(f"v_add_f32_dpp v{Z(0)+r}, v{m(3,1,r)}, v{Z(0)+r} row_shr:1 row_mask:0xf bank_mask:0xf bound_ctrl:1")
            pk(0, None, m(3,0), 1)
            done(0)
            rdacc((1, 1), (2, 1))
            pk(2, m(1,1), m(2,1), 1, True); pk(3, m(1,1), m(2,1), 0, True)
            pk(2, None, m(3,1), 1); pk(2, None, m(3,0), 0); done(2)
            for r in range(4):
                E(f"v_add_f32_dpp v{Z(3)+r}, v{m(0,0,r)}, v{Z(3)+r} row_shl:1 row_mask:0xf bank_mask:0xf bound_ctrl:1")
            pk(3, None, m(0,1), 1)
            done(3)
        where, last = {}, -99
        for pos, t in ready:
            last = max(pos, last + OPT.get("wgap", 15))
            where[last] = t
        bpos = last + OPT.get("bgap", 14)
        nw = 0
        rds = [f"ds_read_b128 {v(XB[q] + 4*k, 4)}, v{VR[k]} offset:{(nul*4 + q)*1024}" for q in range(4) for k in range(3)]
        for i, t in enumerate(stream):
            if i in where:
                A(where[i]); nw += 1
            if i == bpos:
                A("s_waitcnt lgkmcnt(0)\ns_barrier")
            if i >= bpos and (i - bpos) % OPT.get("rgap", 2) == 0 and rds:
                A(rds.pop(0))
            A(f"s_waitcnt lgkmcnt({nw - 4})" if t == "@war" else t)
        assert nw == 12 and 181 <= bpos and not rds
        for q in range(4):
            if q in (0, 2):
                A(f"s_waitcnt lgkmcnt({6 - 3*q})")
            x = XB[q]
            ha, hb = H + q*8 + nul*4, H + 32 + q*8 + nul*4
            for r in (0, 2):
                A(f"v_pk_fma_f32 {v(hb+r,2)}, {v(x+4+r,2)}, {ag}, {v(x+8+r,2)} {HI}")
            for r in (0, 2):
                A(f"v_pk_fma_f32 {v(x+4+r,2)}, {v(x+4+r,2)}, {ag}, {v(x+r,2)} {LO}")
            for r in (0, 2):
                A(f"v_pk_fma_f32 {v(hb+r,2)}, {v(x+r,2)}, {bb}, {v(hb+r,2)} {LO}")
            for r in (0, 2):
                A(f"v_pk_fma_f32 {v(hb+r,2)}, {v(ha+r,2)}, {bb}, {v(hb+r,2)} {HI}")
            for r in (0, 2):
                A(f"v_pk_add_f32 {v(ha+r,2)}, {v(ha+r,2)}, {v(x+4+r,2)}")
        if nul:
            st.mark(A, "hh")
        sel = HI if nul else LO
        A(f"s_cmp_lg_u32 s{S_IT}, 0\ns_cbranch_scc1 Lfinal{nul}")
        for p0 in range(0, 8, 2):
            xs = [(H + p*8 + k, k) for p in (p0, p0 + 1) for k in (4*nul, 4*nul + 2)]
            for x, k in xs:
                A(f"v_pk_fma_f32 {v(x,2)}, {v(x,2)}, {v(SCR,2)}, {v(EMR+k,2)} {sel}")
            for i, (x, k) in enumerate(xs):
                sums(A, x, P + (k & 2), nul == 0 and p0 == 0 and i < 2)
        if nul == 0:
            A("s_branch Lhalf")
        else:
            st.flush(A, 0, 7)
            st.mark(A, "start")
            A(f"s_mov_b32 s{S_IT}, 1\ns_mov_b32 s{SO+2}, 0")
            A(f"s_add_u32 s{S_RA}, s{S_RA}, {D2-D1:#x}\ns_add_u32 s{S_RB2}, s{S_RB2}, {D2-D1:#x}")
            A(f"s_add_u32 s{SD}, s{SD}, {D2-D1:#x}\ns_addc_u32 s{SD+1}, s{SD+1}, 0")
            A("s_branch Lstats")
        A(f"Lfinal{nul}:")
        if nul == 0:
            A(f"s_mov_b32 s{SO}, s22\ns_mov_b32 s{SO+1}, s23\ns_mov_b32 s{SO+2}, 0x800000\ns_waitcnt vmcnt(0)")
        for k in (4*nul, 4*nul + 2):
            xf = lambda p, kk: XF + p*4 + (kk & 3)
            for rho in range(2):
                for kk in (k, k+1):
                    r = XR + (rho*8 + kk)*2
                    unpack_bf16(A, r, xf(rho*4, kk), xf(rho*4 + 1, kk))
                    unpack_bf16(A, r+1, xf(rho*4 + 2, kk), xf(rho*4 + 3, kk))
            for p in range(8):
                x = H + p*8 + k
                A(f"v_pk_fma_f32 {v(x,2)}, {v(x,2)}, {v(SCR,2)}, {v(xf(p, k),2)} {sel}")
            for kk in (k, k+1):
                for rho in range(2):
                    o = OUT + (rho*8 + kk)*2
                    h = H + rho*32 + kk
                    A(f"v_cvt_pk_bf16_f32 v{o}, v{h}, v{h+8}")
                    A(f"v_cvt_pk_bf16_f32 v{o+1}, v{h+16}, v{h+24}")
                    A(f"buffer_store_dwordx2 {v(o,2)}, v{VX+rho}, s[{SO}:{SO+3}], s{S_XO} offen {OPT['sto']}")
                A(f"s_add_u32 s{S_XO}, s{S_XO}, 8192")
        if nul == 0:
            A("Lhalf:")
    if stamps:
        A("s_waitcnt vmcnt(0)")
        A("s_memrealtime s[20:21]\ns_memtime s[22:23]\ns_waitcnt lgkmcnt(0)")
        st.flush(A, 1, 7)
        A("s_mov_b32 s72, s20\ns_mov_b32 s74, s22")
        st.flush(A, 2, 1)
    A("Lexit:\ns_endpgm")
    A("Lcode_end:")
    descriptor(A, NAME, 512, 256)
    return A


HEAD = """; ADM ResBlock: GN+SiLU -> conv3x3 -> +emb -> GN+SiLU -> conv3x3 -> +x   (B=2, C=512, 64x64, bf16 in/out)
; operands carry run-time power-of-two scales (max|w| per 4 output channels, max|gamma|,|beta|) undone afterwards.
%s
.amdgcn_target "amdgcn-amd-amdhsa--gfx950"
"""

if __name__ == "__main__":
    for a in sys.argv[2:]:
        if "=" in a:
            k, val = a.split("=")
            OPT[k] = int(val) if val.lstrip("-").isdigit() else (eval(val) if val.startswith("(") else val.replace("+", " "))
    stamps = "stamps" in sys.argv[2:]
    launch = "; @launch " + (f"kernel={NAME} " if "list" in sys.argv[2:] else "") + "grid=(256,1,1) block=(256,1,1) lds=152064"
    text = HEAD % launch + kernel(stamps).text()
    open(sys.argv[1], "w").write(align_pass(text) if OPT["align"] else text)
```

```python
import sys
sys.path.insert(0, "tools")
import gen
from gen import (Asm, v, acc, NEG1, srd, wave_reduce, header, descriptor, gn_coeffs, silu8, unpack_bf16, trim,
                 align_pass, OPT, OOB, NLOG2E, SPIN_MAX, TAGSTEP, S_MASK, WS_BYTES, WROW, STAMP,
                 SLOT, VDMA, VDMA2, VTOP, VBOT, VU, VA, VB, VA1, VB1, WLDS, XLDS, C, PP, TMP, UU,
                 SWS, SD, SX, SO, S_W, S_DMA, S_M0, S_U0, S_U1, S_U2, S_SGN, S_CNT, S_GRP, S_IDX, S_B, S_NB, S_RB,
                 u_load, dma_m0, dma, raw_read, h_op, D1, D2, U1, U2, SC1, SC2)

NAME = "standalone__adm_resblock__diffusion_kernel"
GEN, EMBP = 0x0, 0x10000
STAT, UF, DF = 0x40000, 0x60000, 0x80000
GRPS = 4352
D1, D2 = 0x0e00000, 0x1700000
OPT.update(ldx="nt", ldw="nt", jst=1, wpos=(2, 8, 14, 20), ldu="sc1", ldd="sc1", trimU=3, trimD=3, pf=1, delay=0, delayd=6, slp=3)

S_IT, S_TAG, S_ASC, S_INV, S_WS, S_E2, S_RA, S_RB2, S_J0, S_J1, S_OQ = 60, 61, 62, 63, 64, 65, 66, 67, 68, 69, 71
S_RET, S_POLL, S_SLOT, S_XO = 24, 25, 12, 13
S_AG, S_BB = 6, 14
VW, VR = (None, 240, 241, 242), (243, 244, 245)
VD, VX, V63, VXL, VPOLL, VT = 246, 247, 249, 250, 251, 252
H, XR, SCR, EMR, GR, BR, PLD, VS, VJ = 136, 200, 232, 104, 124, 128, 232, 236, 238

LANE63 = "s_mov_b32 exec_lo, 0\ns_mov_b32 exec_hi, 0x80000000"


class Seq(gen.Seq):
    def wait(self, vm=(), lg=()):
        a = [n for n in (self._n(self.vm, t) for t in vm) if n is not None]
        b = [n for n in (self._n(self.lg, t) for t in lg) if n is not None]
        self.out.append(("wait", a[-1] if a else None, b[-1] if b else None))

    @staticmethod
    def text(out):
        L = []
        for x in out:
            if isinstance(x, tuple):
                p = ([f"vmcnt({x[1]})"] if x[1] is not None else []) + ([f"lgkmcnt({x[2]})"] if x[2] is not None else [])
                assert (x[1] or 0) < 64 and (x[2] or 0) < 16
                if p:
                    L.append("s_waitcnt " + " ".join(p))
            else:
                L.append(x)
        return "\n".join(L)

    def take(self):
        o, self.out = self.out, []
        return o


def merge(bodies):
    res = []
    for items in zip(*bodies):
        if isinstance(items[0], tuple):
            f = lambda i: min([x[i] for x in items if x[i] is not None], default=None)
            res.append(("wait", f(1), f(2)))
            assert res[-1] == bodies[3][len(res) - 1], (res[-1], items)
        else:
            assert all(x == items[0] for x in items), items
            res.append(items[0])
    return res


class Stamps:
    def __init__(self, on):
        self.on = on

    def mark(self, A, name, wait=True):
        sel = OPT.get("marks", "start,pub,tot,silu,loop,end,hh").split(",")
        if self.on and name in sel:
            i = sel.index(name)
            A(f"s_memrealtime s[{72+4*i}:{73+4*i}]\ns_memtime s[{74+4*i}:{75+4*i}]")
            if wait:
                A("s_waitcnt lgkmcnt(0)")

    def flush(self, A, kid, n):
        if self.on:
            A(f"s_lshl_b32 s100, s2, 2\ns_add_u32 s100, s100, s{S_W}\ns_lshl_b32 s100, s100, 6")
            A(f"s_add_u32 s100, s100, {STAMP + kid*0x20000:#x}")
            for i in range(n):
                A(f"v_mov_b32 v{VT}, s{72+4*i}\nv_mov_b32 v{VT+1}, s{74+4*i}")
                A(f"buffer_store_dwordx2 {v(VT,2)}, v{V63}, s[{SWS}:{SWS+3}], s100 offen offset:{8*i}")
                A("s_nop 1")


def weave(A, main, side, first=0, last=None):
    last = len(main) if last is None else last
    pos = {}
    for i, t in enumerate(side):
        pos.setdefault(first + (i*(last - first))//len(side), []).append(t)
    for i, m in enumerate(main):
        for t in pos.get(i, []):
            A(t)
        A(m)


def w_loads(base, so, sm):
    ld = []
    for k in range(9):
        t = ""
        if k == 0:
            t = (f"s_mul_i32 s{sm}, s{S_W}, {WROW}\ns_add_u32 m0, s{sm}, {base}\n"
                 f"s_lshl_b32 s{so}, s{S_OQ}, 2\ns_add_u32 s{so}, s{so}, s{S_W}\ns_mul_i32 s{so}, s{so}, 9216\n")
        elif k in (4, 8):
            t = f"s_add_u32 m0, s{sm}, {base + 1024*k}\ns_add_u32 s{so}, s{so}, 4096\n"
        ld.append(t + f"buffer_load_dwordx4 v{VDMA}, s[{SO}:{SO+3}], s{so} offen offset:{1024*(k & 3)} {OPT.get('ldw', '')} lds")
    return ld


def spin(A, L, load, check, first_in_flight=False):
    if first_in_flight is not None:
        A(f"s_mov_b32 s58, {SPIN_MAX}")
    if first_in_flight:
        A(f"s_branch {L}_wait")
    A(f"{L}_poll:\n{load}\n{L}_wait:\ns_waitcnt vmcnt(0)\n{L}_chk:")
    A(check)
    A(f"s_cbranch_scc0 {L}_ok")
    A(f"s_sleep {OPT['slp']}\ns_sub_u32 s58, s58, 1\ns_cmp_lg_u32 s58, 0\ns_cbranch_scc1 {L}_poll")
    A(f"{L}_ok:")


POLL4 = f"buffer_load_dwordx4 {v(PLD,4)}, v{VPOLL}, s[{SWS}:{SWS+3}], s{S_POLL} offen sc1"


JG, JM, JRW, JOUT = 8, 80, 80, 56
LO2, HI2 = "op_sel_hi:[1,0]", "op_sel:[0,1] op_sel_hi:[1,1]"
LO3, HI3 = "op_sel_hi:[1,0,1]", "op_sel:[0,1,0] op_sel_hi:[1,1,1]"


def job_a(A, lds, side=()):
    G, M, RW = JG, 116, JRW

    def greg(e):
        return G + (e % 9)*8 + e//9
    for k in range(9):
        A(f"ds_read_b128 {v(RW+4*k,4)}, v{VJ} offset:{lds + 16*k}")
    B = Asm()
    for k in range(9):
        if k in (0, 1, 3, 6):
            B(f"s_waitcnt lgkmcnt({(8, 6, 0, 3, 0, 0, 0)[k]})")
        for d in range(4):
            e = 8*k + 2*d
            unpack_bf16(B, RW + 4*k + d, greg(e), greg(e+1))
        for d in range(4):
            e = 8*k + 2*d
            B(f"v_max3_f32 v{M}, |v{greg(e)}|, |v{greg(e+1)}|, {'0' if e == 0 else f'v{M}'}")
    if side:
        weave(A, B.L, side)
    else:
        A("\n".join(B.L))
    wave_reduce(A, [M], "v_max_f32")
    A(f"s_lshl_b32 s58, s{S_W}, 2\nv_add_u32 v{M+1}, s58, v{VXL}")
    A(LANE63)
    A(f"ds_write_b32 v{M+1}, v{M} offset:128")
    A("s_mov_b64 exec, -1")


def job_b(A, side=(), hook=None, stores=None):
    G, M, OUTP = JG, JM, JOUT
    T = M + 12
    A(f"ds_read_b128 {v(M+4,4)}, v{VXL} offset:128")
    A(f"s_bitcmp1_b32 s{S_IDX}, 0\ns_cselect_b32 s58, 0, 1.0\ns_cselect_b32 s59, 1.0, 0\ns_cselect_b32 s56, -0.5, 0.5")
    side = list(side)
    if side:
        A(side.pop(0))
    A("s_waitcnt lgkmcnt(0)")
    B = Asm()
    B(f"v_max3_f32 v{M+4}, v{M+4}, v{M+5}, v{M+6}\nv_max_f32 v{M+4}, v{M+4}, v{M+7}")
    B(f"v_frexp_exp_i32_f32 v{M+4}, v{M+4}\nv_min_i32 v{M+4}, 60, v{M+4}\nv_max_i32 v{M+4}, 0xffffffc4, v{M+4}")
    B(f"v_add_u32 v{M}, 119, v{M+4}\nv_lshlrev_b32 v{M}, 23, v{M}")
    K0, K1, K2, K3 = M + 4, M + 6, M + 8, M + 10
    B(f"v_sub_u32 v{T}, 135, v{M+4}\nv_lshlrev_b32 v{T}, 23, v{T}\nv_readfirstlane_b32 s{S_WS}, v{M}")
    B(f"v_mul_f32 v{K0}, s58, v{T}\nv_mul_f32 v{K0+1}, s59, v{T}\nv_mul_f32 v{K1}, 0.5, v{T}\nv_mul_f32 v{K1+1}, s56, v{T}")
    B(f"v_pk_mul_f32 {v(K2,2)}, {v(K0,2)}, 0.5 op_sel_hi:[1,0]\nv_pk_mul_f32 {v(K3,2)}, {v(K1,2)}, 0.5 op_sel_hi:[1,0]")
    for col in range(3):
        ka, kb = (K2, K3) if col == 1 else (K0, K1)
        regs = [(G + col*8 + cp, G + (3+col)*8 + cp, G + (6+col)*8 + cp, T + cp) for cp in range(0, 8, 2)]
        for g0, g1, g2, t in regs:
            B(f"v_pk_add_f32 {v(t,2)}, {v(g0,2)}, {v(g2,2)}")
            B(f"v_pk_mul_f32 {v(g0,2)}, {v(g0,2)}, {v(ka,2)} {LO2}")
            B(f"v_pk_mul_f32 {v(g1,2)}, {v(g1,2)}, {v(kb,2)} {HI2}")
        for g0, g1, g2, t in regs:
            B(f"v_pk_fma_f32 {v(g0,2)}, {v(g2,2)}, {v(ka,2)}, {v(g0,2)} {HI3}")
            B(f"v_pk_fma_f32 {v(g1,2)}, {v(t,2)}, {v(kb,2)}, {v(g1,2)} {LO3}")
        if hook and col == hook[0]:
            B.L.append(hook[1])
    N3 = "neg_lo:[0,0,1] neg_hi:[0,0,1]"
    for i, r in enumerate((G, G + 24)):
        for cp in range(0, 8, 2):
            B(f"v_pk_add_f32 {v(T+cp,2)}, {v(r+cp,2)}, {v(r+16+cp,2)}")
        for cp in range(0, 8, 2):
            B(f"v_pk_fma_f32 {v(r+cp,2)}, {v(T+cp,2)}, 0.5, {v(r+8+cp,2)} {LO3}")
            B(f"v_pk_fma_f32 {v(r+8+cp,2)}, {v(T+cp,2)}, 0.5, {v(r+8+cp,2)} {LO3} {N3}")
        for j, src in enumerate((r+16, r, r+8)):
            o = OUTP + (i*3 + j)*4
            for d in range(4):
                B(f"v_cvt_pk_f16_f32 v{o+d}, v{src+2*d}, v{src+2*d+1}")
            if i or j:
                trim(B, o, 4, OPT["trimU"])
            if stores:
                B.L.append(stores[i*3 + j])
    if side:
        weave(A, B.L, side, 6)
    else:
        A("\n".join(B.L))


def job_stores():
    st = []
    for i in range(2):
        for j in range(3):
            st.append(f"buffer_store_dwordx4 {v(JOUT + (i*3 + j)*4, 4)}, v{VS}, s[{SWS}:{SWS+3}], s{S_J0+i} offen sc1\n"
                      f"s_add_u32 s{S_J0+i}, s{S_J0+i}, {4096 if j < 2 else U2 - U1 - 8192}")
    return st


def silu(A, x, A1, B1, kk, t, out):
    for k in range(0, 8, 2):
        A(f"v_pk_fma_f32 {v(x+k,2)}, {v(x+k,2)}, {v(A1+k,2)}, {v(B1+k,2)}")
    for k in range(8):
        A(f"v_exp_f32 v{t+k}, v{x+k}")
    for k in range(0, 8, 2):
        A(f"v_pk_fma_f32 {v(t+k,2)}, {v(t+k,2)}, {v(kk,2)}, {v(kk,2)}")
    for k in range(8):
        A(f"v_rcp_f32 v{t+k}, v{t+k}")
    for k in range(0, 8, 2):
        A(f"v_pk_mul_f32 {v(x+k,2)}, {v(x+k,2)}, {v(t+k,2)}")
    for k in range(0, 8, 2):
        A(f"v_cvt_pk_f16_f32 v{out+k//2}, v{x+k}, v{x+k+1}")
    trim(A, out, 4, OPT["trimD"])


def x_loads():
    ld = []
    for k in range(8):
        for rho in range(2):
            t = f"buffer_load_dwordx2 {v(XR + (rho*8 + k)*2, 2)}, v{VX+rho}, s[{SX}:{SX+3}], s59 offen {OPT['ldx']}"
            if rho == 1 and k < 7:
                t += f"\ns_add_u32 s59, s59, {32768 if OPT.get('xperm') else 8192}"
            ld.append(t)
    ld[0] = f"s_mov_b32 s59, s{S_XO}\n" + ld[0]
    return ld


def kernel(stamps):
    A = Asm()
    st = Stamps(stamps)
    header(A, NAME)
    st.mark(A, "start", False)
    A("s_cmp_ge_u32 s2, 256\ns_cbranch_scc1 Lexit")
    A("s_load_dwordx16 s[4:19], s[0:1], 0")
    A("s_load_dwordx8 s[20:27], s[0:1], 64")
    A("v_lshrrev_b32 v8, 6, v0\nv_and_b32 v0, 63, v0")
    A(f"v_readfirstlane_b32 s{S_W}, v8")
    A(f"s_and_b32 s{S_GRP}, s2, 7\ns_lshr_b32 s{S_IDX}, s2, 3\ns_lshr_b32 s{S_B}, s{S_GRP}, 2")
    A(f"s_and_b32 s{S_NB}, s{S_GRP}, 3\ns_lshl_b32 s{S_NB}, s{S_NB}, 1\ns_and_b32 s56, s{S_IDX}, 1\ns_add_u32 s{S_NB}, s{S_NB}, s56")
    A(f"s_lshr_b32 s{S_RB}, s{S_IDX}, 1\ns_lshl_b32 s{S_OQ}, s{S_GRP}, 4\ns_add_u32 s{S_OQ}, s{S_OQ}, s{S_RB}")

    def touch():
        A(f"s_lshl_b32 s56, s{S_IDX}, 2\ns_add_u32 s56, s56, s{S_W}\nv_and_b32 v8, 1, v0\nv_lshl_add_u32 v8, v8, 7, s56")
        gen.code_touch(A, "Lpf", "Lcode_end", 8, 72, "Lpc", 56)
        A("global_load_dword v253, v[72:73], off\nLpf:")
    if OPT["pf"] == 1:
        touch()
    A("v_and_b32 v9, 15, v0\nv_lshrrev_b32 v10, 4, v0")
    A(f"v_lshlrev_b32 v{VDMA}, 4, v0")
    A(f"s_and_b32 s44, s{S_W}, 1\ns_lshl_b32 s56, s{S_NB}, 1\ns_add_u32 s44, s44, s56")
    A(f"s_lshr_b32 s45, s{S_W}, 1\ns_lshl_b32 s56, s{S_RB}, 1\ns_add_u32 s45, s45, s56")
    A(f"s_lshl_b32 s46, s{S_B}, 22\ns_lshl_b32 s56, s44, 18\ns_add_u32 s46, s46, s56")
    A(f"s_lshl_b32 s47, s45, 8\ns_add_u32 s47, s47, s46")
    OS = 65536 + OPT.get("pad", 0)
    gen.DSTEP = 4*OS
    A(f"v_lshlrev_b32 v11, {13 if OPT.get('xperm') else 16}, v10\nv_lshl_add_u32 v11, v9, 3, v11")
    A(f"s_cmp_eq_u32 s{S_W}, 3\ns_cselect_b32 s56, 128, 0\nv_add_u32 v{VX}, s56, v11\nv_xor_b32 v{VX+1}, 128, v{VX}")
    A(f"s_mov_b32 s{S_MASK}, 0xffff0000")
    A("s_waitcnt lgkmcnt(0)")
    st.mark(A, "karg", False)
    srd(A, SX, 4, 0x800000)
    srd(A, SO, 12, 512*9216)
    A(f"s_load_dword s{S_TAG}, s[26:27], {GEN}")
    A(f"s_cmp_lt_u32 s{S_W}, 2\ns_cbranch_scc1 Lside0\ns_cmp_eq_u32 s{S_W}, 3\ns_cbranch_scc1 Lside3")
    for i, p in enumerate((8, 10, 16, 18)):
        A(f"global_load_dwordx4 {v(16+4*i,4)}, v{VDMA}, s[{p}:{p+1}]")
    A("s_branch Lside0\nLside3:")
    A(f"v_lshrrev_b32 v12, 3, v0\ns_mul_i32 s56, s{S_RB}, 24\nv_add_u32 v12, s56, v12")
    A(f"s_and_b32 s56, s{S_IDX}, 1\ns_mul_i32 s56, s56, 768\nv_lshl_add_u32 v13, v12, 1, s56")
    for i in range(3):
        A(f"global_load_ushort v{16+i}, v13, s[6:7] offset:{16*i}")
    A(f"v_and_b32 v13, 7, v0\nv_lshlrev_b32 v13, 4, v13\nv_lshl_add_u32 v13, v12, 10, v13\ns_lshl_b32 s56, s{S_GRP}, 7\nv_add_u32 v13, s56, v13")
    for i in range(3):
        A(f"global_load_dwordx4 {v(20+4*i,4)}, v13, s[14:15]")
        if i < 2:
            A("v_add_u32 v13, 8192, v13")
    A("Lside0:")
    A(f"s_mov_b32 s{S_XO}, s47")
    for t in x_loads():
        A(t)
    st.mark(A, "xis", False)
    npf = int(OPT["pf"] == 2)
    if npf:
        touch()
    srd(A, SWS, 26, WS_BYTES)
    A(f"s_mul_i32 s{S_SLOT}, s{S_GRP}, {GRPS}\ns_lshl_b32 s56, s{S_IDX}, 7\ns_add_u32 s{S_SLOT}, s{S_SLOT}, s56")
    def ftouch():
        A(f"v_min_u32 v11, 5, v0\nv_lshlrev_b32 v11, 16, v11\ns_cmp_eq_u32 s{S_W}, 1\ns_cselect_b32 s56, 0, {OOB:#x}")
        A(f"s_add_u32 s56, s56, s{S_SLOT}\ns_add_u32 s56, s56, {STAT:#x}")
        A(f"buffer_load_dword v{VT+1}, v11, s[{SWS}:{SWS+3}], s56 offen sc1")
    npf += 1
    if OPT.get("ft", 3) == 1:
        ftouch()
    if OPT.get("ft", 3) == 3:
        A(f"v_lshrrev_b32 v11, 3, v0\nv_min_u32 v11, 5, v11\nv_lshlrev_b32 v11, 16, v11\nv_and_b32 v14, 0x70, v{VDMA}\nv_add_u32 v11, v11, v14")
        A(f"v_mov_b32 v132, 0\nv_mov_b32 v133, -1\nv_mov_b32 v134, 0\nv_mov_b32 v135, 0")
        A(f"s_cmp_eq_u32 s{S_W}, 0\ns_cselect_b32 s56, 0, {OOB:#x}\ns_add_u32 s56, s56, s{S_SLOT}\ns_add_u32 s56, s56, {STAT:#x}")
        A(f"buffer_store_dwordx4 v[132:135], v11, s[{SWS}:{SWS+3}], s56 offen sc1")
    if OPT["tlb"]:
        npf += 1
        A(f"s_cmp_ge_u32 s{S_IDX}, 24\ns_cselect_b32 s{SD}, s22, s26\ns_cselect_b32 s{SD+1}, s23, s27\ns_mov_b32 s56, 0x3000000\ns_cselect_b32 s{SD+2}, 0x800000, s56\ns_cselect_b32 s57, 24, 0")
        A(f"s_cmp_ge_u32 s{S_IDX}, 29\ns_cselect_b32 s{SD}, s20, s{SD}\ns_cselect_b32 s{SD+1}, s21, s{SD+1}\ns_cselect_b32 s{SD+2}, {512*9216}, s{SD+2}\ns_cselect_b32 s57, 29, s57")
        A(f"s_sub_u32 s57, s{S_IDX}, s57\ns_lshl_b32 s57, s57, 21\ns_sub_u32 s56, s{SD+2}, 4\ns_min_u32 s57, s57, s56")
        A(f"s_cmp_eq_u32 s{S_W}, 1\ns_cselect_b32 s{SD+2}, s{SD+2}, 0\ns_mov_b32 s{SD+3}, 0x20000")
        A(f"buffer_load_dword v253, off, s[{SD}:{SD+3}], s57 sc1")
    A(f"v_mul_u32_u24 v{VD}, {OS}, v10\nv_lshl_add_u32 v{VD}, v9, 4, v{VD}")
    A(f"s_mul_i32 s46, s{S_B}, {64*OS}\ns_add_u32 s56, s46, {D1 - 1024:#x}\ns_mul_i32 s57, s44, {4*OS}\ns_add_u32 s46, s46, s57")
    A(f"s_add_u32 s{SD}, s26, s56\ns_addc_u32 s{SD+1}, s27, 0\ns_mov_b32 s{SD+2}, {64*OS + 1024:#x}\ns_mov_b32 s{SD+3}, 0x20000")
    A(f"s_lshl_b32 s56, s45, 11\ns_add_u32 s{S_RA}, s46, s56\ns_add_u32 s{S_RA}, s{S_RA}, {D1:#x}")
    A(f"s_cmp_eq_u32 s{S_W}, 3\ns_cselect_b32 s56, 1024, 0\ns_cselect_b32 s57, 0, 1024\ns_add_u32 s{S_RB2}, s{S_RA}, s57\ns_add_u32 s{S_RA}, s{S_RA}, s56")
    A(f"s_lshl_b32 s56, s44, 6\nv_lshlrev_b32 v237, 4, v10\nv_add_u32 v237, s56, v237")
    A(f"v_add_u32 v{VDMA2}, 4096, v{VDMA}")
    A(f"s_cmp_eq_u32 s{S_RB}, 0\ns_cselect_b32 s56, {OOB:#x}, 0\nv_add_u32 v{VTOP}, s56, v{VDMA}")
    A(f"s_cmp_eq_u32 s{S_RB}, 15\ns_cselect_b32 s56, {OOB:#x}, 0\nv_add_u32 v{VBOT}, s56, v{VDMA2}")
    A(f"v_lshrrev_b32 v11, 2, v9\nv_lshlrev_b32 v11, 8, v11\nv_lshl_add_u32 v11, v10, 6, v11")
    A(f"v_and_b32 v14, 3, v9\nv_lshl_add_u32 v{VU}, v14, 4, v11")
    A(f"s_lshl_b32 s57, s{S_W}, 10\ns_lshr_b32 s56, s{S_W}, 1\ns_sub_u32 s58, 2, s56\ns_lshl_b32 s58, s58, 10\ns_lshl_b32 s56, s56, 11")
    A(f"v_mul_u32_u24 v11, 6144, v10\nv_lshl_add_u32 v11, v9, 4, v11")
    A(f"v_add_u32 v14, s56, v11\ns_xor_b32 s56, s56, 2048\nv_add_u32 v11, s56, v11")
    A(f"v_add_u32 v{VA}, s57, v14\nv_add_u32 v{VB}, s58, v14\nv_add_u32 v{VA1}, s57, v11\nv_add_u32 v{VB1}, s58, v11")
    A(f"s_mov_b32 s56, 0xbc00bc00\ns_cmp_eq_u32 s{S_W}, 1\ns_cselect_b32 s{S_SGN}, 0x3c003c00, s56")
    A(f"s_mul_i32 s{S_M0}, s{S_W}, 6144")
    for phi in (1, 2, 3):
        A(f"s_xor_b32 s56, s{S_W}, {phi}\ns_mul_i32 s56, s56, 3\ns_add_u32 s56, s56, {phi-1}\ns_lshl_b32 s56, s56, 13\nv_add_u32 v{VW[phi]}, s56, v{VDMA}")
    A(f"s_lshl_b32 s57, s{S_W}, 2\ns_mul_i32 s58, s{S_W}, 3")
    for r, tab in zip(VR, (0x1100, 0x0221, 0x2012)):
        A(f"s_lshr_b32 s56, {tab:#x}, s57\ns_and_b32 s56, s56, 15\ns_add_u32 s56, s56, s58\ns_lshl_b32 s56, s56, 13\nv_add_u32 v{r}, s56, v{VDMA}")
    A(f"s_cmp_eq_u32 s{S_W}, 3\ns_cselect_b32 s{S_AG}, -1.0, 1.0\ns_cmp_ge_u32 s{S_W}, 2\ns_cselect_b32 s{S_AG+1}, 1.0, -1.0")
    A(f"s_xor_b32 s{S_BB+1}, s{S_AG+1}, 0x80000000\ns_add_u32 s56, s{S_W}, 1\ns_bitcmp1_b32 s56, 1")
    A(f"s_cselect_b32 s{S_BB}, 0, 1.0\ns_cselect_b32 s{S_BB+1}, s{S_BB+1}, 0")
    A(f"v_cmp_eq_u32 vcc, 63, v0\nv_mov_b32 v11, {OOB:#x}\nv_mov_b32 v{VXL}, {XLDS}\nv_cndmask_b32 v{V63}, v11, 0, vcc")
    A(f"s_mov_b32 s{S_IT}, 0\ns_waitcnt lgkmcnt(0)\ns_add_u32 s{S_TAG}, s{S_TAG}, {TAGSTEP:#x}")
    A("v_and_b32 v35, 7, v0\nv_lshlrev_b32 v35, 5, v35\nv_lshl_add_u32 v35, v10, 3, v35")
    A(f"s_and_b32 s56, s{S_IDX}, 1\ns_lshl_b32 s56, s56, 7\ns_add_u32 s56, s56, s{S_OQ}\ns_lshl_b32 s56, s56, 8\ns_add_u32 s{S_E2}, s56, {EMBP:#x}")
    A(f"v_and_b32 v11, 3, v0\nv_lshrrev_b32 v14, 2, v0\nv_mul_u32_u24 v11, {WROW}, v11\nv_mul_u32_u24 v14, 144, v14")
    A(f"s_mul_i32 s58, s{S_W}, 2304\ns_add_u32 s58, s58, {WLDS}\nv_add3_u32 v{VJ}, v11, v14, s58")
    A(f"v_mul_u32_u24 v{VS}, 49152, v10\nv_lshl_add_u32 v{VS}, v9, 4, v{VS}")
    A(f"s_mul_i32 s56, s{S_GRP}, 786432\ns_add_u32 s56, s56, {U1:#x}")
    A(f"s_bfe_u32 s58, s{S_RB}, 0x10003\ns_lshl_b32 s58, s58, 11\ns_add_u32 s56, s56, s58")
    A(f"s_and_b32 s58, s{S_RB}, 1\ns_lshl_b32 s58, s58, 10\ns_add_u32 s56, s56, s58")
    A(f"s_bfe_u32 s58, s{S_RB}, 0x20001\ns_lshl_b32 s58, s58, 8\ns_add_u32 s56, s56, s58")
    A(f"s_mul_i32 s58, s{S_W}, {4*49152}\ns_add_u32 s56, s56, s58\ns_xor_b32 s58, s56, 2048")
    A(f"s_bitcmp1_b32 s{S_IDX}, 0\ns_cselect_b32 s{S_J0}, s58, s56\ns_cselect_b32 s{S_J1}, s56, s58")
    A(f"s_cselect_b32 s58, {3*12288}, 0\ns_cselect_b32 s59, 12288, 0")
    A(f"s_add_u32 s{S_J0}, s{S_J0}, s58\ns_add_u32 s{S_J1}, s{S_J1}, s59\ns_add_u32 s{S_J1}, s{S_J1}, 12288")
    wk = OPT.get("wk", 9)
    wsp = OPT.get("wsp", (2, 2, 2, 3, 0))
    nextw = f"s_mov_b32 s{SO}, s20\ns_mov_b32 s{SO+1}, s21"
    if wk < 0:
        A("\n".join(w_loads(WLDS, 56, 57)) + "\n" + nextw)
    st.mark(A, "wis", False)
    nlate = 0
    if OPT["pf"] == 3:
        touch(); nlate += 1; npf += 1
    if OPT.get("ft", 3) == 2 and wk < 0:
        ftouch(); nlate += 1
    if wk == 9 and OPT.get("ft", 3) == 2:
        npf -= 1
    w1l = w_loads(WLDS, 44, 46)
    A(f"s_cmp_lt_u32 s{S_W}, 2\ns_cbranch_scc1 Lside1\ns_waitcnt vmcnt({16 + 9*(wk < 0) + npf})\ns_cmp_eq_u32 s{S_W}, 3\ns_cbranch_scc1 Lside4")
    A("v_mov_b32 v12, 0\nv_mov_b32 v13, 0")
    for d in range(16):
        unpack_bf16(A, 16 + d, 14, 15)
        A(f"v_max3_f32 v{12 + d//8}, |v14|, |v15|, v{12 + d//8}")
    A("s_nop 0")
    wave_reduce(A, [12, 13], "v_max_f32")
    for r in (12, 13):
        A(f"v_frexp_exp_i32_f32 v{r}, v{r}\nv_min_i32 v{r}, 60, v{r}\nv_max_i32 v{r}, 0xffffffc4, v{r}")
    A(LANE63)
    A(f"ds_write_b64 v{VXL}, v[12:13] offset:72\ns_mov_b64 exec, -1\ns_branch Lside1")
    A("Lside4:")
    for i in range(3):
        A(f"v_lshlrev_b32 v{16+i}, 16, v{16+i}")
    for op in (f"v_mul_f32 v{{t}}, {NLOG2E:#x}, v{{x}}", "v_exp_f32 v{t}, v{t}", "v_add_f32 v{t}, 1.0, v{t}",
               "v_rcp_f32 v{t}, v{t}", "v_mul_f32 v{x}, v{x}, v{t}"):
        for i in range(3):
            A(op.format(t=32+i, x=16+i))
    for i in range(3):
        for d in range(4):
            unpack_bf16(A, 20 + 4*i + d, 44 + 2*d, 45 + 2*d)
        for k in range(8):
            A(f"v_mul_f32 v{36+k}, v{44+k}, v{16+i}" if i == 0 else f"v_fmac_f32 v{36+k}, v{44+k}, v{16+i}")
    for k in range(8):
        A(f"v_add_f32_dpp v{36+k}, v{36+k}, v{36+k} row_ror:8 row_mask:0xf bank_mask:0xf")
    A("s_nop 1")
    for k in (0, 1, 4, 5):
        A(f"v_permlane16_swap_b32 v{36+k}, v{38+k}")
    for k in (0, 1, 4, 5):
        A(f"v_add_f32 v{36+k}, v{36+k}, v{38+k}")
    A("s_nop 1")
    for k in (0, 1):
        A(f"v_permlane32_swap_b32 v{36+k}, v{40+k}")
    for k in (0, 1):
        A(f"v_add_f32 v{36+k}, v{36+k}, v{40+k}")
    A("Lside1:")
    st.mark(A, "side", False)
    P = 116

    def sums(A, x, a, first):
        if first:
            A(f"v_pk_mul_f32 {v(a+4,2)}, {v(x,2)}, {v(x,2)}\nv_pk_mul_f32 {v(a,2)}, {v(x,2)}, 1.0 op_sel_hi:[1,0]")
        else:
            A(f"v_pk_add_f32 {v(a,2)}, {v(a,2)}, {v(x,2)}\nv_pk_fma_f32 {v(a+4,2)}, {v(x,2)}, {v(x,2)}, {v(a+4,2)}")
    for k in range(0, 8, 2):
        A(f"s_waitcnt vmcnt({12 + (sum(wsp[:k//2]) if wk == 9 else 9*(wk < k)) + (OPT['tlb'] if k == 6 and OPT.get('ft', 3) == 3 else npf) - 2*k})")
        if k == 6:
            st.mark(A, "xin")
        B = Asm()
        for kk in (k, k+1):
            for rho in range(2):
                r = XR + (rho*8 + kk)*2
                unpack_bf16(B, r, H + (rho*4 + 0)*8 + kk, H + (rho*4 + 1)*8 + kk)
                unpack_bf16(B, r+1, H + (rho*4 + 2)*8 + kk, H + (rho*4 + 3)*8 + kk)
        for p in range(8):
            sums(B, H + p*8 + k, P + 2*(p & 1), k == 0 and p < 2)
        if k == wk:
            weave(A, B.L, w_loads(WLDS, 56, 57))
            A(nextw)
        else:
            A("\n".join(B.L))
        if wk == 9:
            A("\n".join(w1l[sum(wsp[:k//2]):sum(wsp[:k//2 + 1])]))

    A("Lstats:")
    A(f"v_pk_add_f32 {v(P,2)}, {v(P,2)}, {v(P+2,2)}")
    A(f"v_pk_add_f32 {v(P+4,2)}, {v(P+4,2)}, {v(P+6,2)}")
    A(f"v_add_f32 v{P}, v{P}, v{P+1}\nv_add_f32 v{P+1}, v{P+4}, v{P+5}")
    wave_reduce(A, [P, P+1])
    A(f"s_lshl_b32 s56, s{S_W}, 3\nv_add_u32 v{P+2}, s56, v{VXL}")
    A(LANE63)
    A(f"ds_write_b64 v{P+2}, {v(P,2)}")
    A("s_mov_b64 exec, -1")
    A(f"s_lshl_b32 s59, s{S_IT}, 16\ns_add_u32 s56, s59, s{S_SLOT}\ns_add_u32 s56, s56, {STAT:#x}")
    A(f"s_cmp_eq_u32 s{S_IT}, 0\ns_cbranch_scc1 Lb1\ns_waitcnt vmcnt(0)\nLb1:")
    A("s_waitcnt lgkmcnt(0)\ns_barrier")
    A(f"s_cmp_lg_u32 s{S_W}, 0\ns_cbranch_scc1 Lnopub")
    A(f"ds_read_b128 {v(P,4)}, v{VXL}\nds_read_b128 {v(P+4,4)}, v{VXL} offset:16")
    A(f"v_mov_b32 v133, s{S_TAG}\nv_mov_b32 v135, s{S_TAG}\ns_waitcnt lgkmcnt(0)")
    A(f"v_pk_add_f32 {v(P,2)}, {v(P,2)}, {v(P+2,2)}\nv_pk_add_f32 {v(P+4,2)}, {v(P+4,2)}, {v(P+6,2)}")
    A(f"v_add_f32 v132, v{P}, v{P+4}\nv_add_f32 v134, v{P+1}, v{P+5}")
    if OPT.get("fl", 1):
        A(f"v_and_b32 v{P}, 0x70, v{VDMA}\nbuffer_store_dwordx4 v[132:135], v{P}, s[{SWS}:{SWS+3}], s56 offen sc1")
    else:
        A(f"buffer_store_dwordx4 v[132:135], v{V63}, s[{SWS}:{SWS+3}], s56 offen sc1")
    A("Lnopub:")
    st.mark(A, "pub")
    A(f"s_mul_i32 s{S_POLL}, s{S_GRP}, {GRPS}\ns_add_u32 s{S_POLL}, s{S_POLL}, s59\ns_add_u32 s{S_POLL}, s{S_POLL}, {STAT:#x}")
    A(f"v_cmp_gt_u32 vcc, 32, v0\nv_mov_b32 v{P}, {OOB:#x}\nv_lshlrev_b32 v{VPOLL}, 7, v0\nv_cndmask_b32 v{VPOLL}, v{P}, v{VPOLL}, vcc")
    A(f"s_cmp_lg_u32 s{S_IT}, 0\ns_cbranch_scc1 Ljob")
    if wk == 9:
        A("\n".join(w1l[sum(wsp[:4]):]) + "\n" + nextw)
        if OPT.get("ft", 3) == 2:
            ftouch(); nlate = 1
    A(f"global_load_dwordx4 {v(GR,4)}, v237, s[8:9]\nglobal_load_dwordx4 {v(BR,4)}, v237, s[10:11]")
    A(f"s_cmp_eq_u32 s{S_W}, 3\ns_cselect_b32 s56, s{S_E2}, {OOB:#x}")
    A(f"buffer_store_dwordx2 v[36:37], v35, s[{SWS}:{SWS+3}], s56 offen sc1")
    if wk == 9 and wsp[4]:
        A(f"s_waitcnt vmcnt({3 + nlate})\ns_barrier")
    else:
        A(f"s_cmp_eq_u32 s{S_W}, 0\ns_cbranch_scc1 Lw3\ns_waitcnt vmcnt({3 + nlate})\nLw3:\ns_waitcnt vmcnt({4 + nlate})\ns_barrier")
    A("Ljob:")
    st.mark(A, "win")
    job_a(A, 0)
    A("s_waitcnt lgkmcnt(0)\ns_barrier")
    job_b(A, hook=(OPT.get("hook", 2), f"s_cmp_lg_u32 s{S_W}, 0\ns_cbranch_scc1 Ljob_mid\n{POLL4}\nLjob_mid:"),
          stores=job_stores() if OPT.get("jst") else None)
    st.mark(A, "job0")
    A(f"s_cmp_lg_u32 s{S_W}, 0\ns_cbranch_scc1 Ljoin")
    if OPT.get("jst"):
        A(f"s_mov_b32 s58, {SPIN_MAX}\ns_waitcnt vmcnt(6)\ns_branch Ls_chk")
    spin(A, "Ls", POLL4, f"v_cmp_ne_u32 vcc, s{S_TAG}, v{PLD+1}\nv_cmp_ne_u32 s[56:57], s{S_TAG}, v{PLD+3}\ns_nop 1\ns_or_b32 s56, s56, vcc_lo", None if OPT.get("jst") else True)
    wave_reduce(A, [PLD, PLD+2])
    A(f"v_mul_f32 v{PLD}, 0xb6000000, v{PLD}\nv_mul_f32 v{PLD+2}, 0x36000000, v{PLD+2}")
    A(f"v_fma_f32 v{PLD+2}, -v{PLD}, v{PLD}, v{PLD+2}\nv_max_f32 v{PLD+2}, 0, v{PLD+2}")
    A(f"v_add_f32 v{PLD+2}, 0x3727c5ac, v{PLD+2}\nv_rsq_f32 v{PLD+1}, v{PLD+2}")
    A(LANE63)
    A(f"ds_write_b64 v{VXL}, {v(PLD,2)} offset:64")
    A("s_mov_b64 exec, -1")
    A("Ljoin:")
    A1, B1, KK, TT, OUT = 8, 16, 24, 32, 72
    A(f"ds_read_b64 {v(KK,2)}, v{VXL} offset:72\ns_waitcnt vmcnt({6 if OPT.get('jst') else 0})")
    B = Asm()
    for d in range(4):
        unpack_bf16(B, GR + d, A1 + 2*d, A1 + 2*d + 1)
        unpack_bf16(B, BR + d, B1 + 2*d, B1 + 2*d + 1)
    weave(A, B.L, [""] if OPT.get("jst") else job_stores())
    A(f"s_cmp_lg_u32 s{S_IT}, 0\ns_cselect_b64 vcc, -1, 0\ns_waitcnt lgkmcnt(0)\ns_barrier")
    st.mark(A, "b4")
    A(f"ds_read_b64 {v(PLD,2)}, v{VXL} offset:64")
    A(f"v_cndmask_b32 v{KK}, v{KK}, v{KK+1}, vcc\ns_mov_b32 s56, {NLOG2E:#x}")
    A(f"v_add_u32 v{KK}, 124, v{KK}\nv_lshlrev_b32 v{KK}, 23, v{KK}")
    for k in range(0, 16, 2):
        A(f"v_pk_mul_f32 {v(A1+k,2)}, {v(A1+k,2)}, s[56:57] {LO2}")
    A(f"v_readfirstlane_b32 s{S_INV}, v{KK}\nv_mul_f32 v{KK+1}, s56, v{KK}\nv_mul_f32 v{KK}, s56, v{KK}")
    A("s_waitcnt lgkmcnt(0)")
    st.mark(A, "tot")
    for k in range(0, 8, 2):
        A(f"v_pk_mul_f32 {v(A1+k,2)}, {v(A1+k,2)}, {v(PLD,2)} {HI2}")
    for k in range(0, 8, 2):
        A(f"v_pk_fma_f32 {v(B1+k,2)}, {v(A1+k,2)}, {v(PLD,2)}, {v(B1+k,2)} {LO3}")
    A(f"v_mov_b32 v{VT}, s{S_TAG}\nv_mov_b32 v{VT+1}, s{S_TAG}")
    A(f"s_lshl_b32 s59, s{S_IT}, 16\ns_add_u32 s57, s59, s{S_SLOT}\ns_lshl_b32 s56, s{S_W}, 4\ns_add_u32 s56, s56, s57\ns_add_u32 s{S_E2}, s56, {UF:#x}")
    uflag = (f"v_mov_b32 v{BR}, s{S_TAG}\nv_mov_b32 v{BR+1}, s{S_TAG}\nv_mov_b32 v{BR+2}, s{S_WS}\ns_waitcnt vmcnt(%d)\n"
             f"buffer_store_dwordx4 {v(BR,4)}, v{V63}, s[{SWS}:{SWS+3}], s{S_E2} offen sc1")
    ufp = OPT.get("ufp", 4)
    for p in range(8):
        o = OUT + 4*p
        silu(A, H + p*8, A1, B1, KK, TT + 8*(p & 1), o)
        A(f"buffer_store_dwordx4 {v(o,4)}, v{VD}, s[{SWS}:{SWS+3}], s{S_RA + (p >> 2)} offen offset:{256*(p & 3)} sc1")
        if p == ufp:
            A(uflag % (ufp + 1))
    st.mark(A, "silu")
    VUP, S_UP = 239, S_RET
    A(f"v_lshrrev_b32 v8, 2, v0\nv_lshlrev_b32 v8, 8, v8\nv_and_b32 v9, 3, v0\nv_lshl_add_u32 v{VUP}, v9, 4, v8")
    A(f"s_mul_i32 s{S_UP}, s{S_NB}, {GRPS}\ns_lshr_b32 s56, s{S_W}, 1\ns_lshl_b32 s56, s56, 7\ns_add_u32 s{S_UP}, s{S_UP}, s56")
    A(f"s_add_u32 s{S_UP}, s{S_UP}, s59\ns_add_u32 s{S_UP}, s{S_UP}, {UF:#x}")
    A(f"s_add_u32 s57, s57, {DF:#x}")
    A(f"s_mul_i32 s{S_U0}, s{S_NB}, 786432\ns_mul_i32 s56, s{S_W}, 12288\ns_add_u32 s{S_U0}, s{S_U0}, s56")
    A(f"s_lshl_b32 s56, s{S_IT}, 23\ns_add_u32 s{S_U0}, s{S_U0}, s56")
    A(f"s_add_u32 s{S_U0}, s{S_U0}, {U1:#x}\ns_add_u32 s{S_U1}, s{S_U0}, 4096\ns_add_u32 s{S_U2}, s{S_U0}, 8192")
    A(f"s_mul_i32 s{S_DMA}, s{S_W}, {OS}\ns_lshl_b32 s56, s{S_RB}, 12\ns_add_u32 s{S_DMA}, s{S_DMA}, s56")
    A(f"v_lshrrev_b32 v8, 3, v0\nv_min_u32 v8, 2, v8\nv_add_u32 v8, s{S_RB}, v8\nv_add_u32 v8, -1, v8\nv_med3_i32 v8, v8, 0, 15")
    A(f"v_and_b32 v9, 1, v0\nv_lshl_add_u32 v8, v8, 1, v9\nv_lshlrev_b32 v8, 7, v8")
    A(f"v_bfe_u32 v9, v0, 1, 2\nv_mul_u32_u24 v9, {GRPS}, v9\nv_add_u32 v{VPOLL}, v8, v9")
    A(f"s_mul_i32 s{S_POLL}, s{S_B}, {4*GRPS}\ns_add_u32 s{S_POLL}, s{S_POLL}, s59\ns_add_u32 s{S_POLL}, s{S_POLL}, {DF:#x}")
    upoll = f"buffer_load_dwordx2 {v(GR,2)}, v{VUP}, s[{SWS}:{SWS+3}], s{S_UP} offen sc1"
    ucheck = f"v_cmp_ne_u32 vcc, s{S_TAG}, v{GR}\nv_cmp_ne_u32 s[56:57], s{S_TAG}, v{GR+1}\ns_nop 1\ns_or_b64 s[56:57], s[56:57], vcc"
    dflag = f"buffer_store_dwordx2 {v(VT,2)}, v{V63}, s[{SWS}:{SWS+3}], s57 offen sc1"
    zero = [f"v_accvgpr_write_b32 a{i}, 0" for i in range(256)]
    nz1 = OPT.get("nz1", 160)
    Q0, Q1 = Seq(), Seq()

    def ulist(Q, kj):
        L = []
        for k, j in kj:
            for nu in range(4):
                u_load(Q, k, j, nu)
                L.append(Seq.text(Q.take()))
        return L

    def dma_list(Q, k):
        L = []
        for p in range(6):
            if p in (0, 4):
                dma_m0(Q, k, p >> 2); Q.raw("s_nop 0")
            dma(Q, k, p)
            L.append(Seq.text(Q.take()))
        return L
    Q = Q1
    nz1 = OPT.get("nz1", 128)
    weave(A, zero[:nz1], [upoll], OPT.get("nz0", 100))
    A("s_waitcnt vmcnt(1)\ns_barrier")
    st.mark(A, "b5")
    A(f"s_cmp_lg_u32 s{S_W}, 0\ns_cbranch_scc1 Lnodf")
    A(f"{dflag}\nLnodf:")
    A("\n".join(zero[nz1:]))
    A(f"s_mov_b32 s58, {SPIN_MAX}\ns_waitcnt vmcnt(1)\ns_cmp_eq_u32 s{S_W}, 0\ns_cbranch_scc1 Lu_chk\ns_branch Lu_wait")
    spin(A, "Lu", upoll, ucheck, None)
    st.mark(A, "uok")
    A(f"s_cmp_lg_u32 s{S_W}, 0\ns_cbranch_scc1 Lnp")
    A(f"{POLL4}\nLnp:")
    A("\n".join(ulist(Q, ((0, 0), (0, 1), (0, 2), (1, 0)))))
    st.mark(A, "job1")
    A(f"s_cmp_lg_u32 s{S_W}, 0\ns_cbranch_scc1 Ld_ok")
    A(f"s_mov_b32 s58, {SPIN_MAX}\ns_waitcnt vmcnt(16)\ns_branch Ld_chk")
    spin(A, "Ld", POLL4, f"v_cmp_ne_u32 vcc, s{S_TAG}, v{PLD}\nv_cmp_ne_u32 s[56:57], s{S_TAG}, v{PLD+1}\ns_nop 1\ns_or_b64 s[56:57], s[56:57], vcc", None)
    A("s_barrier")
    st.mark(A, "b6")
    A("\n".join(dma_list(Q, 0) + dma_list(Q, 1)))
    A(f"s_xor_b32 s{S_M0}, s{S_M0}, 0x10000\ns_mov_b32 s{S_CNT}, 7")
    d2 = dma_list(Q, 2)
    nd2 = OPT.get("nd2", 4)
    A("\n".join(d2[:nd2]))
    A(f"s_lshl_b32 s56, s{S_W}, 5\nv_and_b32 v8, 31, v0\nv_add_u32 v8, s56, v8")
    gen.code_touch(A, "Ltail", "Lcode_end", 8, 234, "Lpc2", 56)
    A(f"s_waitcnt vmcnt({6 + nd2})\ns_barrier")
    st.mark(A, "b7")
    for par in range(2):
        for tb in range(4):
            raw_read(Q, 0, par, tb, 0); raw_read(Q, 0, par, tb, 1)
    for par in range(2):
        for tb in range(4):
            Q.wait(lg=[("rd", 0, par, tb)])
            for d in range(4):
                h_op(Q, 0, par, tb, d)
    main = Seq.text(Q.take()).split("\n")
    weave(A, main, d2[nd2:] + ulist(Q, ((1, 1),)), 12)
    Q.wait(vm=[("raw", 1)])
    A(Seq.text(Q.take()))
    A(f"s_cmp_eq_u32 s{S_IT}, 0\ns_cbranch_scc1 Lgo")
    A(f"s_cmp_lg_u32 s2, 2\ns_cbranch_scc1 Lgo\ns_cmp_lg_u32 s{S_W}, 0\ns_cbranch_scc1 Lgo")
    A(f"buffer_store_dword v{VT}, v{V63}, s[{SWS}:{SWS+3}], 0 offen offset:{GEN} sc1")
    A("Lgo:")
    st.mark(A, "loop")
    bodies = []
    for Q in (Q1,):
        for n in range(7):
            gen.step(Q, 2*n)
            gen.step(Q, 2*n + 1, {63: [lambda: Q.raw(f"s_sub_u32 s{S_CNT}, s{S_CNT}, 1\ns_cmp_gt_u32 s{S_CNT}, 1\ns_cbranch_scc1 Lloop")]})
            bodies.append(Q.take())
    A(".p2align 6\nLloop:")
    A(Seq.text(merge(bodies)))
    A(f"s_cmp_eq_u32 s{S_CNT}, 0\ns_cbranch_scc1 Ltail\nglobal_load_dword v{VT+1}, v[234:235], off\ns_branch Lloop\nLtail:")
    st.mark(A, "l14")
    R = lambda t: [lambda: Q.raw(t)]
    M = lambda t: [lambda: Q.vmem(t, "ep")]
    sc_ld = [f"buffer_load_dword v{SCR+h}, v{VT}, s[{SWS}:{SWS+3}], s56 offen offset:{8 + 256*h} sc1" for h in range(2)]
    em_ld = [f"buffer_load_dwordx4 {v(EMR+4*h,4)}, v{VPOLL}, s[{SWS}:{SWS+3}], s57 offen offset:{16*h} sc1" for h in range(2)]
    gb_ld = [f"global_load_dwordx4 {v(GR,4)}, v237, s[16:17]", f"global_load_dwordx4 {v(BR,4)}, v237, s[18:19]"]
    unscale = f"v_pk_mul_f32 {v(SCR,2)}, {v(SCR,2)}, s[{S_ASC}:{S_INV}] op_sel:[0,1] op_sel_hi:[1,1]"
    red = [f"v_add_f32_dpp v{EMR+k}, v{EMR+k}, v{EMR+k} row_ror:{sh} row_mask:0xf bank_mask:0xf" for sh in (8, 4, 2, 1) for k in range(8)]
    wl = w_loads(WLDS, 58, 59)
    ex = {9: R(f"v_and_b32 v{VT}, 127, v237\nv_lshlrev_b32 v239, 1, v{VT}\nv_lshlrev_b32 v{VT}, 5, v{VT}"),
          11: M(wl[0]),
          17: R(f"s_mul_i32 s56, s{S_NB}, {GRPS}\ns_lshl_b32 s57, s{S_IT}, 16\ns_add_u32 s56, s56, s57\ns_add_u32 s56, s56, {UF:#x}"),
          19: R(f"s_lshl_b32 s57, s{S_B}, 3\ns_add_u32 s57, s57, s{S_NB}\ns_lshl_b32 s57, s57, 12\ns_add_u32 s57, s57, {EMBP:#x}"),
          22: R(f"v_and_b32 v{VPOLL}, 15, v0\nv_lshl_add_u32 v{VPOLL}, v{VPOLL}, 8, v239"),
          26: M(wl[1]),
          33: M(em_ld[0]), 35: M(em_ld[1]), 38: M(sc_ld[0]), 42: [lambda: Q.vmem(sc_ld[1], "sc")],
          49: M(wl[2]), 63: M(wl[3])}
    gen.step(Q, 14, ex)
    ex = {2: M(gb_ld[0]), 9: M(wl[4]), 5: M(gb_ld[1]), 22: M(wl[5]),
          33: M(wl[6]), 42: M(wl[7]), 55: M(wl[8]),
          43: [lambda: Q.wait(vm=["sc"]), lambda: Q.raw(unscale)]}
    slots = [46, 49, 50, 51, 52, 53, 54, 56, 57, 58, 59, 60, 61, 62, 63]
    for i, g in enumerate(slots):
        ex[g] = R("\n".join(red[(32*i)//15:(32*(i+1))//15]))
    gen.step(Q, 15, ex)
    A(Seq.text(Q.take()))
    A("Lepi:")
    st.mark(A, "end")
    RB_, ZB = [8, 40], [72, 88]
    XB = [8, 20, 72, 84]
    LO, HI = LO3, HI3
    ag, bb = f"s[{S_AG}:{S_AG+1}]", f"s[{S_BB}:{S_BB+1}]"
    XF, OUT = 40, 104
    for nul in range(2):
        stream, ready = [], []
        for n, phi in enumerate((2, 1, 3, 0)):
            sg, nup = phi >> 1, phi & 1
            nu = 2*nup + nul
            Rr = RB_[n & 1]
            Z = (lambda q, zb=ZB[n & 1]: zb + 4*q) if phi else (lambda q: H + q*8 + nul*4)
            m = lambda j, be, r=0: Rr + j*8 + be*4 + r
            E = stream.append

            def rdacc(*jb):
                for j, be in jb:
                    for r in range(4):
                        E(f"v_accvgpr_read_b32 v{m(j,be,r)}, a{j*64 + nu*16 + (2*sg + be)*4 + r}")

            def pk(q, x, y, neg, first=False):
                for r in (0, 2):
                    E(f"v_pk_add_f32 {v(Z(q)+r,2)}, {v((x if first else Z(q))+r,2)}, {v(y+r,2)} {NEG1 if neg else ''}")

            def done(q):
                if phi:
                    ready.append((len(stream), f"ds_write_b128 v{VW[phi]}, {v(Z(q),4)} offset:{(nul*4 + q)*1024}"))
            rdacc((0, 0), (0, 1), (1, 0), (2, 0))
            if n == 2:
                E("@war")
            pk(1, m(1,0), m(2,0), 0, True); pk(0, m(1,0), m(2,0), 1, True)
            pk(1, None, m(0,0), 1); pk(1, None, m(0,1), 0); done(1)
            rdacc((3, 1), (3, 0))
            for r in range(4):
                E(f"v_add_f32_dpp v{Z(0)+r}, v{m(3,1,r)}, v{Z(0)+r} row_shr:1 row_mask:0xf bank_mask:0xf bound_ctrl:1")
            pk(0, None, m(3,0), 1)
            done(0)
            rdacc((1, 1), (2, 1))
            pk(2, m(1,1), m(2,1), 1, True); pk(3, m(1,1), m(2,1), 0, True)
            pk(2, None, m(3,1), 1); pk(2, None, m(3,0), 0); done(2)
            for r in range(4):
                E(f"v_add_f32_dpp v{Z(3)+r}, v{m(0,0,r)}, v{Z(3)+r} row_shl:1 row_mask:0xf bank_mask:0xf bound_ctrl:1")
            pk(3, None, m(0,1), 1)
            done(3)
        where, last = {}, -99
        for pos, t in ready:
            last = max(pos, last + OPT.get("wgap", 15))
            where[last] = t
        bpos = last + OPT.get("bgap", 14)
        nw = 0
        rds = [f"ds_read_b128 {v(XB[q] + 4*k, 4)}, v{VR[k]} offset:{(nul*4 + q)*1024}" for q in range(4) for k in range(3)]
        for i, t in enumerate(stream):
            if i in where:
                A(where[i]); nw += 1
            if i == bpos:
                A("s_waitcnt lgkmcnt(0)\ns_barrier")
            if i >= bpos and (i - bpos) % OPT.get("rgap", 2) == 0 and rds:
                A(rds.pop(0))
            A(f"s_waitcnt lgkmcnt({nw - 4})" if t == "@war" else t)
        assert nw == 12 and 181 <= bpos and not rds
        for q in range(4):
            if q in (0, 2):
                A(f"s_waitcnt lgkmcnt({6 - 3*q})")
            x = XB[q]
            ha, hb = H + q*8 + nul*4, H + 32 + q*8 + nul*4
            for r in (0, 2):
                A(f"v_pk_fma_f32 {v(hb+r,2)}, {v(x+4+r,2)}, {ag}, {v(x+8+r,2)} {HI}")
            for r in (0, 2):
                A(f"v_pk_fma_f32 {v(x+4+r,2)}, {v(x+4+r,2)}, {ag}, {v(x+r,2)} {LO}")
            for r in (0, 2):
                A(f"v_pk_fma_f32 {v(hb+r,2)}, {v(x+r,2)}, {bb}, {v(hb+r,2)} {LO}")
            for r in (0, 2):
                A(f"v_pk_fma_f32 {v(hb+r,2)}, {v(ha+r,2)}, {bb}, {v(hb+r,2)} {HI}")
            for r in (0, 2):
                A(f"v_pk_add_f32 {v(ha+r,2)}, {v(ha+r,2)}, {v(x+4+r,2)}")
        if nul:
            st.mark(A, "hh")
        sel = HI if nul else LO
        A(f"s_cmp_lg_u32 s{S_IT}, 0\ns_cbranch_scc1 Lfinal{nul}")
        for p0 in range(0, 8, 2):
            xs = [(H + p*8 + k, k) for p in (p0, p0 + 1) for k in (4*nul, 4*nul + 2)]
            for x, k in xs:
                A(f"v_pk_fma_f32 {v(x,2)}, {v(x,2)}, {v(SCR,2)}, {v(EMR+k,2)} {sel}")
            for i, (x, k) in enumerate(xs):
                sums(A, x, P + (k & 2), nul == 0 and p0 == 0 and i < 2)
        if nul == 0:
            A("s_branch Lhalf")
        else:
            st.flush(A, 0, 7)
            st.mark(A, "start")
            A(f"s_mov_b32 s{S_IT}, 1\ns_mov_b32 s{SO+2}, 0")
            A(f"s_add_u32 s{S_RA}, s{S_RA}, {D2-D1:#x}\ns_add_u32 s{S_RB2}, s{S_RB2}, {D2-D1:#x}")
            A(f"s_add_u32 s{SD}, s{SD}, {D2-D1:#x}\ns_addc_u32 s{SD+1}, s{SD+1}, 0")
            A("s_branch Lstats")
        A(f"Lfinal{nul}:")
        if nul == 0:
            A(f"s_mov_b32 s{SO}, s22\ns_mov_b32 s{SO+1}, s23\ns_mov_b32 s{SO+2}, 0x800000\ns_waitcnt vmcnt(0)")
        for k in (4*nul, 4*nul + 2):
            xf = lambda p, kk: XF + p*4 + (kk & 3)
            for rho in range(2):
                for kk in (k, k+1):
                    r = XR + (rho*8 + kk)*2
                    unpack_bf16(A, r, xf(rho*4, kk), xf(rho*4 + 1, kk))
                    unpack_bf16(A, r+1, xf(rho*4 + 2, kk), xf(rho*4 + 3, kk))
            for p in range(8):
                x = H + p*8 + k
                A(f"v_pk_fma_f32 {v(x,2)}, {v(x,2)}, {v(SCR,2)}, {v(xf(p, k),2)} {sel}")
            for kk in (k, k+1):
                for rho in range(2):
                    o = OUT + (rho*8 + kk)*2
                    h = H + rho*32 + kk
                    A(f"v_cvt_pk_bf16_f32 v{o}, v{h}, v{h+8}")
                    A(f"v_cvt_pk_bf16_f32 v{o+1}, v{h+16}, v{h+24}")
                    A(f"buffer_store_dwordx2 {v(o,2)}, v{VX+rho}, s[{SO}:{SO+3}], s{S_XO} offen {OPT['sto']}")
                A(f"s_add_u32 s{S_XO}, s{S_XO}, 8192")
        if nul == 0:
            A("Lhalf:")
    if stamps:
        A("s_waitcnt vmcnt(0)")
        A("s_memrealtime s[20:21]\ns_memtime s[22:23]\ns_waitcnt lgkmcnt(0)")
        st.flush(A, 1, 7)
        A("s_mov_b32 s72, s20\ns_mov_b32 s74, s22")
        st.flush(A, 2, 1)
    A("Lexit:\ns_endpgm")
    A("Lcode_end:")
    descriptor(A, NAME, 512, 256)
    return A


HEAD = """; ADM ResBlock: GN+SiLU -> conv3x3 -> +emb -> GN+SiLU -> conv3x3 -> +x   (B=2, C=512, 64x64, bf16 in/out)
; operands carry run-time power-of-two scales (max|w| per 4 output channels, max|gamma|,|beta|) undone afterwards.
%s
.amdgcn_target "amdgcn-amd-amdhsa--gfx950"
"""

if __name__ == "__main__":
    for a in sys.argv[2:]:
        if "=" in a:
            k, val = a.split("=")
            OPT[k] = int(val) if val.lstrip("-").isdigit() else (eval(val) if val.startswith("(") else val.replace("+", " "))
    stamps = "stamps" in sys.argv[2:]
    launch = "; @launch " + (f"kernel={NAME} " if "list" in sys.argv[2:] else "") + "grid=(256,1,1) block=(256,1,1) lds=152064"
    text = HEAD % launch + kernel(stamps).text()
    open(sys.argv[1], "w").write(align_pass(text) if OPT["align"] else text)
```

```python
import sys
sys.path.insert(0, "tools")
import gen
from gen import (Asm, v, acc, NEG1, srd, wave_reduce, header, descriptor, gn_coeffs, silu8, unpack_bf16, trim,
                 align_pass, OPT, OOB, NLOG2E, SPIN_MAX, TAGSTEP, S_MASK, WS_BYTES, WROW, STAMP,
                 SLOT, VDMA, VDMA2, VTOP, VBOT, VU, VA, VB, VA1, VB1, WLDS, XLDS, C, PP, TMP, UU,
                 SWS, SD, SX, SO, S_W, S_DMA, S_M0, S_U0, S_U1, S_U2, S_SGN, S_CNT, S_GRP, S_IDX, S_B, S_NB, S_RB,
                 u_load, dma_m0, dma, raw_read, h_op, D1, D2, U1, U2, SC1, SC2)

NAME = "standalone__adm_resblock__diffusion_kernel"
GEN, EMBP = 0x0, 0x10000
STAT, UF, DF = 0x40000, 0x60000, 0x80000
GRPS = 4352
D1, D2 = 0x0e00000, 0x1700000
OPT.update(ldx="nt", ldw="nt", jst=1, wpos=(2, 8, 14, 20), ldu="sc1", ldd="sc1", trimU=3, trimD=3, pf=1, delay=0, delayd=6, slp=1)

S_IT, S_TAG, S_ASC, S_INV, S_WS, S_E2, S_RA, S_RB2, S_J0, S_J1, S_OQ = 60, 61, 62, 63, 64, 65, 66, 67, 68, 69, 71
S_RET, S_POLL, S_SLOT, S_XO, S_USTEP = 24, 25, 12, 13, 101
S_AG, S_BB = 6, 14
VW, VR = (None, 240, 241, 242), (243, 244, 245)
VD, VX, V63, VXL, VPOLL, VT = 246, 247, 249, 250, 251, 252
H, XR, SCR, EMR, GR, BR, PLD, VS, VJ = 136, 200, 232, 104, 124, 128, 232, 236, 238

LANE63 = "s_mov_b32 exec_lo, 0\ns_mov_b32 exec_hi, 0x80000000"


class Seq(gen.Seq):
    def wait(self, vm=(), lg=()):
        a = [n for n in (self._n(self.vm, t) for t in vm) if n is not None]
        b = [n for n in (self._n(self.lg, t) for t in lg) if n is not None]
        self.out.append(("wait", a[-1] if a else None, b[-1] if b else None))

    @staticmethod
    def text(out):
        L = []
        for x in out:
            if isinstance(x, tuple):
                p = ([f"vmcnt({x[1]})"] if x[1] is not None else []) + ([f"lgkmcnt({x[2]})"] if x[2] is not None else [])
                assert (x[1] or 0) < 64 and (x[2] or 0) < 16
                if p:
                    L.append("s_waitcnt " + " ".join(p))
            else:
                L.append(x)
        return "\n".join(L)

    def take(self):
        o, self.out = self.out, []
        return o


def merge(bodies):
    res = []
    for items in zip(*bodies):
        if isinstance(items[0], tuple):
            f = lambda i: min([x[i] for x in items if x[i] is not None], default=None)
            res.append(("wait", f(1), f(2)))
            if res[-1] != bodies[3][len(res) - 1]:
                print("note: wait tightened", res[-1], items, file=sys.stderr)
        else:
            assert all(x == items[0] for x in items), items
            res.append(items[0])
    return res


class Stamps:
    def __init__(self, on):
        self.on = on

    def mark(self, A, name, wait=True):
        sel = OPT.get("marks", "start,pub,tot,silu,loop,end,hh").split(",")
        if self.on and name in sel:
            i = sel.index(name)
            A(f"s_memrealtime s[{72+4*i}:{73+4*i}]\ns_memtime s[{74+4*i}:{75+4*i}]")
            if wait:
                A("s_waitcnt lgkmcnt(0)")

    def flush(self, A, kid, n):
        if self.on:
            A(f"s_lshl_b32 s100, s2, 2\ns_add_u32 s100, s100, s{S_W}\ns_lshl_b32 s100, s100, 6")
            A(f"s_add_u32 s100, s100, {STAMP + kid*0x20000:#x}")
            for i in range(n):
                A(f"v_mov_b32 v{VT}, s{72+4*i}\nv_mov_b32 v{VT+1}, s{74+4*i}")
                A(f"buffer_store_dwordx2 {v(VT,2)}, v{V63}, s[{SWS}:{SWS+3}], s100 offen offset:{8*i}")
                A("s_nop 1")


def weave(A, main, side, first=0, last=None):
    last = len(main) if last is None else last
    pos = {}
    for i, t in enumerate(side):
        pos.setdefault(first + (i*(last - first))//len(side), []).append(t)
    for i, m in enumerate(main):
        for t in pos.get(i, []):
            A(t)
        A(m)


def w_loads(base, so, sm):
    ld = []
    for k in range(9):
        t = ""
        if k == 0:
            t = (f"s_mul_i32 s{sm}, s{S_W}, {WROW}\ns_add_u32 m0, s{sm}, {base}\n"
                 f"s_lshl_b32 s{so}, s{S_OQ}, 2\ns_add_u32 s{so}, s{so}, s{S_W}\ns_mul_i32 s{so}, s{so}, 9216\n")
        elif k in (4, 8):
            t = f"s_add_u32 m0, s{sm}, {base + 1024*k}\ns_add_u32 s{so}, s{so}, 4096\n"
        ld.append(t + f"buffer_load_dwordx4 v{VDMA}, s[{SO}:{SO+3}], s{so} offen offset:{1024*(k & 3)} {OPT.get('ldw', '')} lds")
    return ld


def spin(A, L, load, check, first_in_flight=False):
    if first_in_flight is not None:
        A(f"s_mov_b32 s58, {SPIN_MAX}")
    if first_in_flight:
        A(f"s_branch {L}_wait")
    A(f"{L}_poll:\n{load}\n{L}_wait:\ns_waitcnt vmcnt(0)\n{L}_chk:")
    A(check)
    A(f"s_cbranch_scc0 {L}_ok")
    A(f"s_sleep {OPT['slp']}\ns_sub_u32 s58, s58, 1\ns_cmp_lg_u32 s58, 0\ns_cbranch_scc1 {L}_poll")
    A(f"{L}_ok:")


POLL4 = f"buffer_load_dwordx4 {v(PLD,4)}, v{VPOLL}, s[{SWS}:{SWS+3}], s{S_POLL} offen sc1"


JG, JM, JRW, JOUT = 8, 80, 80, 56
LO2, HI2 = "op_sel_hi:[1,0]", "op_sel:[0,1] op_sel_hi:[1,1]"
LO3, HI3 = "op_sel_hi:[1,0,1]", "op_sel:[0,1,0] op_sel_hi:[1,1,1]"


def job(A, hook, stores, gate=None):
    G, M, RW, T = JG, 116, JRW, 80

    def greg(e):
        return G + (e % 9)*8 + e//9
    for k in range(9):
        A(f"ds_read_b128 {v(RW+4*k,4)}, v{VJ} offset:{16*k}")
    A(f"s_bitcmp1_b32 s{S_IDX}, 0\ns_cselect_b32 s56, -1.0, 1.0\ns_lshl_b32 s58, s{S_W}, 2\nv_add_u32 v{M+1}, s58, v{VXL}")
    for k in range(9):
        if k in (0, 1, 3, 6):
            A(f"s_waitcnt lgkmcnt({(8, 6, 0, 3, 0, 0, 0)[k]})")
        for d in range(4):
            e = 8*k + 2*d
            unpack_bf16(A, RW + 4*k + d, greg(e), greg(e+1))
        for d in range(4):
            e = 8*k + 2*d
            A(f"v_max3_f32 v{M}, |v{greg(e)}|, |v{greg(e+1)}|, {'0' if e == 0 else f'v{M}'}")
        if gate and k == OPT.get("hk", 3):
            A(hook)
    B = Asm()
    for x in range(0, 24, 2):
        B(f"v_pk_fma_f32 {v(G+24+x,2)}, {v(G+24+x,2)}, s[56:57], {v(G+x,2)} {LO3}")
    for x in range(0, 24, 2):
        B(f"v_pk_add_f32 {v(G+24+x,2)}, {v(G+24+x,2)}, {v(G+48+x,2)}")
    red = [f"v_max_f32_dpp v{M}, v{M}, v{M} row_shr:{n} row_mask:0xf bank_mask:0xf bound_ctrl:1" for n in (1, 2, 4, 8)]
    red += [f"v_max_f32_dpp v{M}, v{M}, v{M} row_bcast:{n} row_mask:{m} bank_mask:0xf" for n, m in ((15, "0xa"), (31, "0xc"))]
    red += [f"{LANE63}\nds_write_b32 v{M+1}, v{M} offset:128\ns_mov_b64 exec, -1"]
    weave(A, B.L, red, 2, 16)

    def wsum(dst, src):
        for cp in range(0, 8, 2):
            A(f"v_pk_add_f32 {v(T+cp,2)}, {v(src+cp,2)}, {v(src+16+cp,2)}")
        for cp in range(0, 8, 2):
            A(f"v_pk_add_f32 {v(dst+cp,2)}, {v(T+cp,2)}, {v(src+8+cp,2)}")
            A(f"v_pk_add_f32 {v(dst+8+cp,2)}, {v(T+cp,2)}, {v(src+8+cp,2)} {NEG1}")
        if dst != src:
            for cp in range(0, 8, 2):
                A(f"v_pk_mul_f32 {v(dst+16+cp,2)}, {v(src+16+cp,2)}, 1.0 {LO2}")
    def sums():
        wsum(G + 24, G + 24)
        A(f"s_bitcmp1_b32 s{S_IDX}, 0\ns_cbranch_scc1 Ljp1")
        wsum(G, G)
        A("s_branch Ljp2\nLjp1:")
        wsum(G, G + 48)
        A("Ljp2:")
    if gate:
        sums()
        gate()
    A("s_waitcnt lgkmcnt(0)\ns_barrier")
    A(f"ds_read_b128 {v(M+4,4)}, v{VXL} offset:128")
    if gate:
        A(f"ds_read_b128 {v(PLD,4)}, v{VXL} offset:64")
    else:
        sums()
        A(hook)
    A("s_waitcnt lgkmcnt(0)")
    K = 88
    A(f"v_max3_f32 v{M+4}, v{M+4}, v{M+5}, v{M+6}\nv_max_f32 v{M+4}, v{M+4}, v{M+7}")
    A(f"v_frexp_exp_i32_f32 v{M+4}, v{M+4}\nv_min_i32 v{M+4}, 60, v{M+4}\nv_max_i32 v{M+4}, 0xffffffc4, v{M+4}")
    A(f"v_add_u32 v{M}, 119, v{M+4}\nv_lshlrev_b32 v{M}, 23, v{M}")
    A(f"v_sub_u32 v{K}, 135, v{M+4}\nv_lshlrev_b32 v{K}, 23, v{K}\nv_readfirstlane_b32 s{S_WS}, v{M}")
    A(f"v_mul_f32 v{K+2}, 0x47000080, v{K}\nv_mul_f32 v{K+3}, 0xc7000000, v{K}")
    A(f"v_pk_mul_f32 {v(K+4,2)}, {v(K+2,2)}, 0.5 {LO2}")
    for i, r in enumerate((G, G + 24)):
        for j, src in enumerate((r+16, r, r+8)):
            o = JOUT + (i*3 + j)*4
            kk = K + 2*(i + (j > 0))
            for cp in range(0, 8, 2):
                A(f"v_pk_mul_f32 {v(T+cp,2)}, {v(src+cp,2)}, {v(kk,2)} {LO2}")
            if i or j:
                for cp in range(0, 8, 2):
                    A(f"v_pk_fma_f32 {v(T+cp,2)}, {v(src+cp,2)}, {v(kk,2)}, {v(T+cp,2)} {HI3}")
            for d in range(4):
                A(f"v_cvt_pk_f16_f32 v{o+d}, v{T+2*d}, v{T+2*d+1}")
            A(stores[i*3 + j])


def job_stores(VS=VS):
    st = []
    for i in range(2):
        for j in range(3):
            st.append(f"buffer_store_dwordx4 {v(JOUT + (i*3 + j)*4, 4)}, v{VS}, s[{SWS}:{SWS+3}], s{S_J0+i} offen sc1\n"
                      f"s_add_u32 s{S_J0+i}, s{S_J0+i}, {4096 if j < 2 else U2 - U1 - 8192}")
    return st


def silu(A, x, A1, B1, kk, t, out):
    for k in range(0, 8, 2):
        A(f"v_pk_fma_f32 {v(x+k,2)}, {v(x+k,2)}, {v(A1+k,2)}, {v(B1+k,2)}")
    for k in range(8):
        A(f"v_exp_f32 v{t+k}, v{x+k}")
    for k in range(0, 8, 2):
        A(f"v_pk_fma_f32 {v(t+k,2)}, {v(t+k,2)}, {v(kk,2)}, {v(kk,2)}")
    for k in range(8):
        A(f"v_rcp_f32 v{t+k}, v{t+k}")
    for k in range(0, 8, 2):
        A(f"v_pk_mul_f32 {v(x+k,2)}, {v(x+k,2)}, {v(t+k,2)}")
    for k in range(0, 8, 2):
        A(f"v_cvt_pk_f16_f32 v{out+k//2}, v{x+k}, v{x+k+1}")
    trim(A, out, 4, OPT["trimD"])


def x_loads():
    ld = []
    for k in range(8):
        for rho in range(2):
            t = f"buffer_load_dwordx2 {v(XR + (rho*8 + k)*2, 2)}, v{VX+rho}, s[{SX}:{SX+3}], s59 offen {OPT['ldx']}"
            if rho == 1 and k < 7:
                t += f"\ns_add_u32 s59, s59, {32768 if OPT.get('xperm') else 8192}"
            ld.append(t)
    ld[0] = f"s_mov_b32 s59, s{S_XO}\n" + ld[0]
    return ld


VG = (1, 4, 8, 11, 15, 18, 22, 25, 29, 32, 36, 39, 43, 46, 50, 53, 57, 60)


def step(Q, k, extra=None, scal=None):
    if OPT.get("sched", 1) == 0:
        return gen.step(Q, k, extra)
    cs = k & 1
    c0, c1 = C[cs]
    u0, u1, u2 = UU[cs]
    ld_u2, ld_u, ld_d, rd = k + 1 <= 15, k + 2 <= 15, k + 3 <= 16, k + 1 <= 15
    G = [[] for _ in range(64)]
    at = lambda g, f: G[g].append(f)
    R = lambda t: (lambda: Q.raw(t))

    def put(lst, gaps):
        it = iter(lst)
        for g, n in gaps:
            for _ in range(n):
                at(g, next(it))
        assert next(it, None) is None

    def uld(kk, j, nu):
        r = UU[kk & 1][j] + 4*nu
        return lambda: Q.vmem(f"buffer_load_dwordx4 {v(r,4)}, v{VU}, s[{SWS}:{SWS+3}], s{S_U0+j} offen offset:{1024*nu} {OPT['ldu']}", ("u", kk, j))

    def dld(kk, p):
        vo = (VTOP, VDMA, VDMA, VDMA, VDMA2, VBOT)[p]
        return lambda: Q.vmem(f"buffer_load_dwordx4 v{vo}, s[{SD}:{SD+3}], s{S_DMA} offen offset:{1024*(p & 3)} {OPT['ldd']} lds", ("raw", kk))
    w4 = OPT.get("w4", 1)
    uinc = lambda j: R(f"s_add_u32 s{S_U0+j}, s{S_U0+j}, " + (f"s{S_USTEP}" if w4 else "49152"))
    rr = lambda par, tb, w: (lambda: raw_read(Q, k+1, par, tb, w))
    if ld_u2:
        put([uld(k+1, 2, nu) for nu in range(4)], [(g, 1) for g in VG[0:4]])
    if ld_d:
        put([dld(k+3, p) for p in range(6)], [(g, 1) for g in VG[4:10]])
        at(12, lambda: dma_m0(Q, k+3, 0))
        at(27, lambda: dma_m0(Q, k+3, 1))
        at(40, R(f"s_add_u32 s{S_DMA}, s{S_DMA}, {gen.DSTEP:#x}"))
        if cs == 0:
            at(41, R(f"s_xor_b32 s{S_M0}, s{S_M0}, 0x10000"))
    if ld_u:
        put([uld(k+2, 0, nu) for nu in range(4)], [(g, 1) for g in VG[10:14]])
        put([uld(k+2, 1, nu) for nu in range(4)], [(g, 1) for g in VG[14:18]])
    at(13, uinc(2))
    at(14, lambda: Q.wait(vm=[("u", k, 1)]))
    at(30, uinc(1))
    at(31, lambda: Q.wait(vm=[("u", k, 2)], lg=[("rd", k+1, 1, 3)]))
    if rd:
        at(51, uinc(0))
        at(52, lambda: Q.wait(lg=[("rd", k+1, 1, 3)]))
        put([rr(0, tb, w) for tb in range(4) for w in range(2)] + [rr(1, tb, 0) for tb in range(4)],
            [(0, 2), (2, 2), (3, 2), (5, 2), (6, 1), (7, 1), (9, 1), (10, 1)])
        put([rr(1, tb, 1) for tb in range(4)], [(33, 1), (34, 1), (35, 1), (37, 1)])
    if scal:
        for g, fs in scal.items():
            G[g] += fs
    put([R(f"v_pk_add_f16 v{PP+i}, v{c0+i}, v{c1+i}") for i in range(16)],
        [(0, 1), (2, 1), (5, 1), (6, 2), (7, 1), (9, 2), (10, 1), (12, 2), (13, 3), (14, 2)] if rd else
        [(g, 2) for g in (0, 3, 6, 7, 10, 12, 13, 14)])
    put([R(f"v_pk_add_f16 v{c0+i}, v{c0+i}, v{c1+i} {NEG1}") for i in range(16)],
        [(16, 3), (17, 3), (19, 1), (21, 2), (23, 1), (26, 2), (27, 1), (30, 3)] if rd else
        [(g, 2) for g in (16, 17, 18, 21, 25, 26, 29, 30)])
    put([R(f"v_pk_add_f16 v{u1+i}, v{u1+i}, v{u0+i} {NEG1}") for i in range(16)],
        [(19, 2), (20, 2), (23, 2), (24, 2), (27, 2), (28, 2), (31, 2), (33, 1), (34, 1)] if rd else
        [(g, 2) for g in (19, 20, 23, 24, 27, 28, 31, 32)])
    put([R(f"v_pk_add_f16 v{u2+i}, v{u1+i}, v{u2+i}") for i in range(16)],
        [(35, 2), (37, 2), (40, 2), (41, 2), (44, 2), (45, 2), (47, 2), (48, 2)])
    if rd:
        put([(lambda i=i: h_op(Q, k+1, 0, i >> 2, i & 3)) for i in range(16)],
            [(33, 1), (34, 1), (38, 3), (42, 3), (44, 1), (45, 1), (47, 1), (49, 3), (51, 2)])
        put([(lambda i=i: h_op(Q, k+1, 1, i >> 2, i & 3)) for i in range(16)],
            [(52, 2), (54, 2), (55, 2), (56, 2), (58, 2), (59, 2), (61, 2), (62, 2)])
        if cs == 0:
            at(21, R(f"v_xor_b32 v{VA}, 0x10000, v{VA}")); at(26, R(f"v_xor_b32 v{VA1}, 0x10000, v{VA1}"))
            at(55, R(f"v_xor_b32 v{VB}, 0x10000, v{VB}")); at(59, R(f"v_xor_b32 v{VB1}, 0x10000, v{VB1}"))
    if extra:
        for g, fs in extra.items():
            G[g] += fs
    Q.wait(vm=[("raw", k+1), ("u", k, 0)])
    Q.raw("s_barrier")
    for g in range(64):
        j, nu, tb = g >> 4, (g >> 2) & 3, g & 3
        if nu & 1:
            tb = 3 - tb
        a = (u0, u1, u2, u2)[j] + 4*nu
        b = (c0, PP, c0, c1)[j] + 4*tb
        d = j*64 + nu*16 + tb*4
        Q.raw(f"v_mfma_f32_16x16x32_f16 {acc(d,4)}, {v(a,4)}, {v(b,4)}, {acc(d,4)}")
        for f in G[g]:
            f()


def kernel(stamps):
    A = Asm()
    st = Stamps(stamps)
    header(A, NAME)
    st.mark(A, "start", False)
    A("s_cmp_ge_u32 s2, 256\ns_cbranch_scc1 Lexit")
    A("s_load_dwordx16 s[4:19], s[0:1], 0")
    A("s_load_dwordx8 s[20:27], s[0:1], 64")
    A("v_lshrrev_b32 v8, 6, v0\nv_and_b32 v0, 63, v0")
    A(f"v_readfirstlane_b32 s{S_W}, v8")
    A(f"s_and_b32 s{S_GRP}, s2, 7\ns_lshr_b32 s{S_IDX}, s2, 3\ns_lshr_b32 s{S_B}, s{S_GRP}, 2")
    A(f"s_and_b32 s{S_NB}, s{S_GRP}, 3\ns_lshl_b32 s{S_NB}, s{S_NB}, 1\ns_and_b32 s56, s{S_IDX}, 1\ns_add_u32 s{S_NB}, s{S_NB}, s56")
    A(f"s_lshr_b32 s{S_RB}, s{S_IDX}, 1\ns_lshl_b32 s{S_OQ}, s{S_GRP}, 4\ns_add_u32 s{S_OQ}, s{S_OQ}, s{S_RB}")

    def touch():
        A(f"s_lshl_b32 s56, s{S_IDX}, 2\ns_add_u32 s56, s56, s{S_W}\nv_and_b32 v8, 1, v0\nv_lshl_add_u32 v8, v8, 7, s56")
        gen.code_touch(A, "Lpf", "Lcode_end", 8, 72, "Lpc", 56)
        A("global_load_dword v253, v[72:73], off\nLpf:")
    if OPT["pf"] == 1:
        touch()
    A("v_and_b32 v9, 15, v0\nv_lshrrev_b32 v10, 4, v0")
    A(f"v_lshlrev_b32 v{VDMA}, 4, v0")
    A(f"s_and_b32 s44, s{S_W}, 1\ns_lshl_b32 s56, s{S_NB}, 1\ns_add_u32 s44, s44, s56")
    A(f"s_lshr_b32 s45, s{S_W}, 1\ns_lshl_b32 s56, s{S_RB}, 1\ns_add_u32 s45, s45, s56")
    A(f"s_lshl_b32 s46, s{S_B}, 22\ns_lshl_b32 s56, s44, 18\ns_add_u32 s46, s46, s56")
    A(f"s_lshl_b32 s47, s45, 8\ns_add_u32 s47, s47, s46")
    OS = 65536 + OPT.get("pad", 0)
    gen.DSTEP = 4*OS
    A(f"v_lshlrev_b32 v11, {13 if OPT.get('xperm') else 16}, v10\nv_lshl_add_u32 v11, v9, 3, v11")
    A(f"s_cmp_eq_u32 s{S_W}, 3\ns_cselect_b32 s56, 128, 0\nv_add_u32 v{VX}, s56, v11\nv_xor_b32 v{VX+1}, 128, v{VX}")
    A(f"s_mov_b32 s{S_MASK}, 0xffff0000")
    A("s_waitcnt lgkmcnt(0)")
    st.mark(A, "karg", False)
    srd(A, SX, 4, 0x800000)
    srd(A, SO, 12, 512*9216)
    A(f"s_load_dword s{S_ASC}, s[26:27], {GEN}")
    A(f"s_cmp_lt_u32 s{S_W}, 2\ns_cbranch_scc1 Lside0\ns_cmp_eq_u32 s{S_W}, 3\ns_cbranch_scc1 Lside3")
    for i, p in enumerate((8, 10, 16, 18)):
        A(f"global_load_dwordx4 {v(16+4*i,4)}, v{VDMA}, s[{p}:{p+1}]")
    A("s_branch Lside0\nLside3:")
    A(f"v_lshrrev_b32 v12, 3, v0\ns_mul_i32 s56, s{S_RB}, 24\nv_add_u32 v12, s56, v12")
    A(f"s_and_b32 s56, s{S_IDX}, 1\ns_mul_i32 s56, s56, 768\nv_lshl_add_u32 v13, v12, 1, s56")
    for i in range(3):
        A(f"global_load_ushort v{16+i}, v13, s[6:7] offset:{16*i}")
    A(f"v_and_b32 v13, 7, v0\nv_lshlrev_b32 v13, 4, v13\nv_lshl_add_u32 v13, v12, 10, v13\ns_lshl_b32 s56, s{S_GRP}, 7\nv_add_u32 v13, s56, v13")
    for i in range(3):
        A(f"global_load_dwordx4 {v(20+4*i,4)}, v13, s[14:15]")
        if i < 2:
            A("v_add_u32 v13, 8192, v13")
    A("Lside0:")
    A(f"s_mov_b32 s{S_XO}, s47")
    for t in x_loads():
        A(t)
    st.mark(A, "xis", False)
    npf = int(OPT["pf"] == 2)
    if npf:
        touch()
    srd(A, SWS, 26, WS_BYTES)
    A(f"s_mul_i32 s{S_SLOT}, s{S_GRP}, {GRPS}\ns_lshl_b32 s56, s{S_IDX}, 7\ns_add_u32 s{S_SLOT}, s{S_SLOT}, s56")
    def ftouch():
        A(f"v_min_u32 v11, 5, v0\nv_lshlrev_b32 v11, 16, v11\ns_cmp_eq_u32 s{S_W}, 1\ns_cselect_b32 s56, 0, {OOB:#x}")
        A(f"s_add_u32 s56, s56, s{S_SLOT}\ns_add_u32 s56, s56, {STAT:#x}")
        A(f"buffer_load_dword v{VT+1}, v11, s[{SWS}:{SWS+3}], s56 offen sc1")
    npf += 1
    if OPT.get("ft", 3) == 1:
        ftouch()
    if OPT.get("ft", 3) == 3:
        A(f"v_lshrrev_b32 v11, 3, v0\nv_min_u32 v11, 5, v11\nv_lshlrev_b32 v11, 16, v11\nv_and_b32 v14, 0x70, v{VDMA}\nv_add_u32 v11, v11, v14")
        A(f"v_mov_b32 v132, 0\nv_mov_b32 v133, -1\nv_mov_b32 v134, 0\nv_mov_b32 v135, 0")
        A(f"s_cmp_eq_u32 s{S_W}, 0\ns_cselect_b32 s56, 0, {OOB:#x}\ns_add_u32 s56, s56, s{S_SLOT}\ns_add_u32 s56, s56, {STAT:#x}")
        A(f"buffer_store_dwordx4 v[132:135], v11, s[{SWS}:{SWS+3}], s56 offen sc1")
    if OPT["tlb"]:
        npf += 1
        A(f"s_cmp_ge_u32 s{S_IDX}, 24\ns_cselect_b32 s{SD}, s22, s26\ns_cselect_b32 s{SD+1}, s23, s27\ns_mov_b32 s56, 0x3000000\ns_cselect_b32 s{SD+2}, 0x800000, s56\ns_cselect_b32 s57, 24, 0")
        A(f"s_cmp_ge_u32 s{S_IDX}, 29\ns_cselect_b32 s{SD}, s20, s{SD}\ns_cselect_b32 s{SD+1}, s21, s{SD+1}\ns_cselect_b32 s{SD+2}, {512*9216}, s{SD+2}\ns_cselect_b32 s57, 29, s57")
        A(f"s_sub_u32 s57, s{S_IDX}, s57\ns_lshl_b32 s57, s57, 21\ns_sub_u32 s56, s{SD+2}, 4\ns_min_u32 s57, s57, s56")
        A(f"s_cmp_eq_u32 s{S_W}, 1\ns_cselect_b32 s{SD+2}, s{SD+2}, 0\ns_mov_b32 s{SD+3}, 0x20000")
        A(f"buffer_load_dword v253, off, s[{SD}:{SD+3}], s57 sc1")
    A(f"v_mul_u32_u24 v{VD}, {OS}, v10\nv_lshl_add_u32 v{VD}, v9, 4, v{VD}")
    A(f"s_mul_i32 s46, s{S_B}, {64*OS}\ns_add_u32 s56, s46, {D1 - 1024:#x}\ns_mul_i32 s57, s44, {4*OS}\ns_add_u32 s46, s46, s57")
    A(f"s_add_u32 s{SD}, s26, s56\ns_addc_u32 s{SD+1}, s27, 0\ns_mov_b32 s{SD+2}, {64*OS + 1024:#x}\ns_mov_b32 s{SD+3}, 0x20000")
    A(f"s_lshl_b32 s56, s45, 11\ns_add_u32 s{S_RA}, s46, s56\ns_add_u32 s{S_RA}, s{S_RA}, {D1:#x}")
    A(f"s_cmp_eq_u32 s{S_W}, 3\ns_cselect_b32 s56, 1024, 0\ns_cselect_b32 s57, 0, 1024\ns_add_u32 s{S_RB2}, s{S_RA}, s57\ns_add_u32 s{S_RA}, s{S_RA}, s56")
    A(f"s_lshl_b32 s56, s44, 6\nv_lshlrev_b32 v237, 4, v10\nv_add_u32 v237, s56, v237")
    A(f"v_add_u32 v{VDMA2}, 4096, v{VDMA}")
    A(f"s_cmp_eq_u32 s{S_RB}, 0\ns_cselect_b32 s56, {OOB:#x}, 0\nv_add_u32 v{VTOP}, s56, v{VDMA}")
    A(f"s_cmp_eq_u32 s{S_RB}, 15\ns_cselect_b32 s56, {OOB:#x}, 0\nv_add_u32 v{VBOT}, s56, v{VDMA2}")
    A(f"v_lshrrev_b32 v11, 2, v9\nv_lshlrev_b32 v11, 8, v11\nv_lshl_add_u32 v11, v10, 6, v11")
    A(f"v_and_b32 v14, 3, v9\nv_lshl_add_u32 v{VU}, v14, 4, v11")
    A(f"s_lshl_b32 s57, s{S_W}, 10\ns_lshr_b32 s56, s{S_W}, 1\ns_sub_u32 s58, 2, s56\ns_lshl_b32 s58, s58, 10\ns_lshl_b32 s56, s56, 11")
    A(f"v_mul_u32_u24 v11, 6144, v10\nv_lshl_add_u32 v11, v9, 4, v11")
    A(f"v_add_u32 v14, s56, v11\ns_xor_b32 s56, s56, 2048\nv_add_u32 v11, s56, v11")
    A(f"v_add_u32 v{VA}, s57, v14\nv_add_u32 v{VB}, s58, v14\nv_add_u32 v{VA1}, s57, v11\nv_add_u32 v{VB1}, s58, v11")
    A(f"s_mov_b32 s56, 0xbc00bc00\ns_cmp_eq_u32 s{S_W}, 1\ns_cselect_b32 s{S_SGN}, 0x3c003c00, s56")
    A(f"s_mul_i32 s{S_M0}, s{S_W}, 6144")
    for phi in (1, 2, 3):
        A(f"s_xor_b32 s56, s{S_W}, {phi}\ns_mul_i32 s56, s56, 3\ns_add_u32 s56, s56, {phi-1}\ns_lshl_b32 s56, s56, 13\nv_add_u32 v{VW[phi]}, s56, v{VDMA}")
    A(f"s_lshl_b32 s57, s{S_W}, 2\ns_mul_i32 s58, s{S_W}, 3")
    for r, tab in zip(VR, (0x1100, 0x0221, 0x2012)):
        A(f"s_lshr_b32 s56, {tab:#x}, s57\ns_and_b32 s56, s56, 15\ns_add_u32 s56, s56, s58\ns_lshl_b32 s56, s56, 13\nv_add_u32 v{r}, s56, v{VDMA}")
    A(f"s_cmp_eq_u32 s{S_W}, 3\ns_cselect_b32 s{S_AG}, -1.0, 1.0\ns_cmp_ge_u32 s{S_W}, 2\ns_cselect_b32 s{S_AG+1}, 1.0, -1.0")
    A(f"s_xor_b32 s{S_BB+1}, s{S_AG+1}, 0x80000000\ns_add_u32 s56, s{S_W}, 1\ns_bitcmp1_b32 s56, 1")
    A(f"s_cselect_b32 s{S_BB}, 0, 1.0\ns_cselect_b32 s{S_BB+1}, s{S_BB+1}, 0")
    A(f"v_cmp_eq_u32 vcc, 63, v0\nv_mov_b32 v11, {OOB:#x}\nv_mov_b32 v{VXL}, {XLDS}\nv_cndmask_b32 v{V63}, v11, 0, vcc")
    A(f"s_mov_b32 s{S_IT}, 0")
    A("v_and_b32 v35, 7, v0\nv_lshlrev_b32 v35, 5, v35\nv_lshl_add_u32 v35, v10, 3, v35")
    A(f"s_and_b32 s56, s{S_IDX}, 1\ns_lshl_b32 s56, s56, 7\ns_add_u32 s56, s56, s{S_OQ}\ns_lshl_b32 s56, s56, 8\ns_add_u32 s{S_E2}, s56, {EMBP:#x}")
    A(f"v_and_b32 v11, 3, v0\nv_lshrrev_b32 v14, 2, v0\nv_mul_u32_u24 v11, {WROW}, v11\nv_mul_u32_u24 v14, 144, v14")
    A(f"s_mul_i32 s58, s{S_W}, 2304\ns_add_u32 s58, s58, {WLDS}\nv_add3_u32 v{VJ}, v11, v14, s58")
    A(f"v_mul_u32_u24 v{VS}, 49152, v10\nv_lshl_add_u32 v{VS}, v9, 4, v{VS}")
    A(f"s_mul_i32 s56, s{S_GRP}, 786432\ns_add_u32 s56, s56, {U1:#x}")
    A(f"s_bfe_u32 s58, s{S_RB}, 0x10003\ns_lshl_b32 s58, s58, 11\ns_add_u32 s56, s56, s58")
    A(f"s_and_b32 s58, s{S_RB}, 1\ns_lshl_b32 s58, s58, 10\ns_add_u32 s56, s56, s58")
    A(f"s_bfe_u32 s58, s{S_RB}, 0x20001\ns_lshl_b32 s58, s58, 8\ns_add_u32 s56, s56, s58")
    A(f"s_mul_i32 s58, s{S_W}, {4*49152}\ns_add_u32 s56, s56, s58\ns_xor_b32 s58, s56, 2048")
    A(f"s_bitcmp1_b32 s{S_IDX}, 0\ns_cselect_b32 s{S_J0}, s58, s56\ns_cselect_b32 s{S_J1}, s56, s58")
    A(f"s_cselect_b32 s58, {3*12288}, 0\ns_cselect_b32 s59, 12288, 0")
    A(f"s_add_u32 s{S_J0}, s{S_J0}, s58\ns_add_u32 s{S_J1}, s{S_J1}, s59\ns_add_u32 s{S_J1}, s{S_J1}, 12288")
    wk = OPT.get("wk", 9)
    wsp = OPT.get("wsp", (2, 2, 2, 3, 0))
    nextw = f"s_mov_b32 s{SO}, s20\ns_mov_b32 s{SO+1}, s21"
    if wk < 0:
        A("\n".join(w_loads(WLDS, 56, 57)) + "\n" + nextw)
    st.mark(A, "wis", False)
    nlate = 0
    if OPT["pf"] == 3:
        touch(); nlate += 1; npf += 1
    if OPT.get("ft", 3) == 2 and wk < 0:
        ftouch(); nlate += 1
    if wk == 9 and OPT.get("ft", 3) == 2:
        npf -= 1
    w1l = w_loads(WLDS, 44, 46)
    A(f"s_cmp_lt_u32 s{S_W}, 2\ns_cbranch_scc1 Lside1\ns_waitcnt vmcnt({16 + 9*(wk < 0) + npf})\ns_cmp_eq_u32 s{S_W}, 3\ns_cbranch_scc1 Lside4")
    A("v_mov_b32 v12, 0\nv_mov_b32 v13, 0")
    for d in range(16):
        unpack_bf16(A, 16 + d, 14, 15)
        A(f"v_max3_f32 v{12 + d//8}, |v14|, |v15|, v{12 + d//8}")
    A("s_nop 0")
    wave_reduce(A, [12, 13], "v_max_f32")
    for r in (12, 13):
        A(f"v_frexp_exp_i32_f32 v{r}, v{r}\nv_min_i32 v{r}, 60, v{r}\nv_max_i32 v{r}, 0xffffffc4, v{r}")
    A(LANE63)
    A(f"ds_write_b64 v{VXL}, v[12:13] offset:72\ns_mov_b64 exec, -1\ns_branch Lside1")
    A("Lside4:")
    for i in range(3):
        A(f"v_lshlrev_b32 v{16+i}, 16, v{16+i}")
    for op in (f"v_mul_f32 v{{t}}, {NLOG2E:#x}, v{{x}}", "v_exp_f32 v{t}, v{t}", "v_add_f32 v{t}, 1.0, v{t}",
               "v_rcp_f32 v{t}, v{t}", "v_mul_f32 v{x}, v{x}, v{t}"):
        for i in range(3):
            A(op.format(t=32+i, x=16+i))
    for i in range(3):
        for d in range(4):
            unpack_bf16(A, 20 + 4*i + d, 44 + 2*d, 45 + 2*d)
        for k in range(8):
            A(f"v_mul_f32 v{36+k}, v{44+k}, v{16+i}" if i == 0 else f"v_fmac_f32 v{36+k}, v{44+k}, v{16+i}")
    for k in range(8):
        A(f"v_add_f32_dpp v{36+k}, v{36+k}, v{36+k} row_ror:8 row_mask:0xf bank_mask:0xf")
    A("s_nop 1")
    for k in (0, 1, 4, 5):
        A(f"v_permlane16_swap_b32 v{36+k}, v{38+k}")
    for k in (0, 1, 4, 5):
        A(f"v_add_f32 v{36+k}, v{36+k}, v{38+k}")
    A("s_nop 1")
    for k in (0, 1):
        A(f"v_permlane32_swap_b32 v{36+k}, v{40+k}")
    for k in (0, 1):
        A(f"v_add_f32 v{36+k}, v{36+k}, v{40+k}")
    A("Lside1:")
    st.mark(A, "side", False)
    P = 116

    def sums(A, x, a, first):
        if first:
            A(f"v_pk_mul_f32 {v(a+4,2)}, {v(x,2)}, {v(x,2)}\nv_pk_mul_f32 {v(a,2)}, {v(x,2)}, 1.0 op_sel_hi:[1,0]")
        else:
            A(f"v_pk_add_f32 {v(a,2)}, {v(a,2)}, {v(x,2)}\nv_pk_fma_f32 {v(a+4,2)}, {v(x,2)}, {v(x,2)}, {v(a+4,2)}")
    for k in range(0, 8, 2):
        A(f"s_waitcnt vmcnt({12 + (sum(wsp[:k//2]) if wk == 9 else 9*(wk < k)) + (OPT['tlb'] if k == 6 and OPT.get('ft', 3) == 3 else npf) - 2*k})")
        if k == 6:
            st.mark(A, "xin", False)
        B = Asm()
        for kk in (k, k+1):
            for rho in range(2):
                r = XR + (rho*8 + kk)*2
                unpack_bf16(B, r, H + (rho*4 + 0)*8 + kk, H + (rho*4 + 1)*8 + kk)
                unpack_bf16(B, r+1, H + (rho*4 + 2)*8 + kk, H + (rho*4 + 3)*8 + kk)
        for p in range(8):
            sums(B, H + p*8 + k, P + 2*(p & 1), k == 0 and p < 2)
        if k == wk:
            weave(A, B.L, w_loads(WLDS, 56, 57))
            A(nextw)
        else:
            A("\n".join(B.L))
        if wk == 9:
            A("\n".join(w1l[sum(wsp[:k//2]):sum(wsp[:k//2 + 1])]))

    A("Lstats:")
    A(f"v_pk_add_f32 {v(P,2)}, {v(P,2)}, {v(P+2,2)}")
    A(f"v_pk_add_f32 {v(P+4,2)}, {v(P+4,2)}, {v(P+6,2)}")
    A(f"v_add_f32 v{P}, v{P}, v{P+1}\nv_add_f32 v{P+1}, v{P+4}, v{P+5}")
    wave_reduce(A, [P, P+1])
    A(f"s_lshl_b32 s56, s{S_W}, 3\nv_add_u32 v{P+2}, s56, v{VXL}")
    A(LANE63)
    A(f"ds_write_b64 v{P+2}, {v(P,2)}")
    A("s_mov_b64 exec, -1")
    A(f"s_lshl_b32 s59, s{S_IT}, 16\ns_add_u32 s56, s59, s{S_SLOT}\ns_add_u32 s56, s56, {STAT:#x}")
    A(f"s_cmp_eq_u32 s{S_IT}, 0\ns_cbranch_scc1 Lb1\ns_waitcnt vmcnt(0)\nLb1:")
    A(f"s_waitcnt lgkmcnt(0)\ns_barrier\ns_add_u32 s{S_TAG}, s{S_ASC}, {TAGSTEP:#x}")
    A(f"s_cmp_lg_u32 s{S_W}, 0\ns_cbranch_scc1 Lnopub")
    A(f"ds_read_b128 {v(P,4)}, v{VXL}\nds_read_b128 {v(P+4,4)}, v{VXL} offset:16")
    A(f"v_mov_b32 v133, s{S_TAG}\nv_mov_b32 v135, s{S_TAG}\ns_waitcnt lgkmcnt(0)")
    A(f"v_pk_add_f32 {v(P,2)}, {v(P,2)}, {v(P+2,2)}\nv_pk_add_f32 {v(P+4,2)}, {v(P+4,2)}, {v(P+6,2)}")
    A(f"v_add_f32 v132, v{P}, v{P+4}\nv_add_f32 v134, v{P+1}, v{P+5}")
    if OPT.get("fl", 1):
        A(f"v_and_b32 v{P}, 0x70, v{VDMA}\nbuffer_store_dwordx4 v[132:135], v{P}, s[{SWS}:{SWS+3}], s56 offen sc1")
    else:
        A(f"buffer_store_dwordx4 v[132:135], v{V63}, s[{SWS}:{SWS+3}], s56 offen sc1")
    A("Lnopub:")
    st.mark(A, "pub")
    A(f"s_mul_i32 s{S_POLL}, s{S_GRP}, {GRPS}\ns_add_u32 s{S_POLL}, s{S_POLL}, s59\ns_add_u32 s{S_POLL}, s{S_POLL}, {STAT:#x}")
    A(f"v_cmp_gt_u32 vcc, 32, v0\nv_mov_b32 v{P}, {OOB:#x}\nv_lshlrev_b32 v{VPOLL}, 7, v0\nv_cndmask_b32 v{VPOLL}, v{P}, v{VPOLL}, vcc")
    A(f"s_cmp_lg_u32 s{S_IT}, 0\ns_cbranch_scc1 Ljob")
    if wk == 9:
        A("\n".join(w1l[sum(wsp[:4]):]) + "\n" + nextw)
        if OPT.get("ft", 3) == 2:
            ftouch(); nlate = 1
    A(f"global_load_dwordx4 {v(GR,4)}, v237, s[8:9]\nglobal_load_dwordx4 {v(BR,4)}, v237, s[10:11]")
    A(f"s_cmp_eq_u32 s{S_W}, 3\ns_cselect_b32 s56, s{S_E2}, {OOB:#x}")
    A(f"buffer_store_dwordx2 v[36:37], v35, s[{SWS}:{SWS+3}], s56 offen sc1")
    if wk == 9 and wsp[4]:
        A(f"s_waitcnt vmcnt({3 + nlate})\ns_barrier")
    else:
        A(f"s_cmp_eq_u32 s{S_W}, 0\ns_cbranch_scc1 Lw3\ns_waitcnt vmcnt({3 + nlate})\nLw3:\ns_waitcnt vmcnt({4 + nlate})\ns_barrier")
    A("Ljob:")
    st.mark(A, "win")
    def totals(first):
        spin(A, "Ls", POLL4, f"v_cmp_ne_u32 vcc, s{S_TAG}, v{PLD+1}\nv_cmp_ne_u32 s[56:57], s{S_TAG}, v{PLD+3}\ns_nop 1\ns_or_b32 s56, s56, vcc_lo", first)
        wave_reduce(A, [PLD, PLD+2])
        A(f"v_mul_f32 v{PLD}, 0xb6000000, v{PLD}\nv_mul_f32 v{PLD+2}, 0x36000000, v{PLD+2}")
        A(f"v_fma_f32 v{PLD+2}, -v{PLD}, v{PLD}, v{PLD+2}\nv_max_f32 v{PLD+2}, 0, v{PLD+2}")
        A(f"v_add_f32 v{PLD+2}, 0x3727c5ac, v{PLD+2}\nv_rsq_f32 v{PLD+1}, v{PLD+2}")
        A(LANE63)
        A(f"ds_write_b64 v{VXL}, {v(PLD,2)} offset:64")
        A("s_mov_b64 exec, -1")
    jpos, late = (), []
    if OPT.get("gate", 0):
        A1, B1, KK, TT, OUT = 96, 104, 112, 8, 24

        def gate():
            A(f"s_mov_b32 s56, {NLOG2E:#x}\ns_waitcnt vmcnt(2)\ns_cmp_eq_u32 s{S_W}, 0\ns_cbranch_scc1 Lg0\ns_waitcnt vmcnt(1)\nLg0:")
            for d in range(4):
                unpack_bf16(A, GR + d, A1 + 2*d, A1 + 2*d + 1)
                unpack_bf16(A, BR + d, B1 + 2*d, B1 + 2*d + 1)
            for k in range(0, 16, 2):
                A(f"v_pk_mul_f32 {v(A1+k,2)}, {v(A1+k,2)}, s[56:57] {LO2}")
            A(f"s_cmp_lg_u32 s{S_W}, 0\ns_cbranch_scc1 Ljoin")
            totals(True)
            A("Ljoin:")
        job(A, f"s_cmp_lg_u32 s{S_W}, 0\ns_cbranch_scc1 Ljob_mid\n{POLL4}\nLjob_mid:", job_stores(), gate)
        st.mark(A, "b4")
        A(f"s_cmp_lg_u32 s{S_IT}, 0\ns_cselect_b64 vcc, -1, 0\ns_mov_b32 s56, {NLOG2E:#x}")
        A(f"v_cndmask_b32 v{KK}, v{PLD+2}, v{PLD+3}, vcc")
        A(f"v_add_u32 v{KK}, 124, v{KK}\nv_lshlrev_b32 v{KK}, 23, v{KK}\nv_mul_f32 v{KK+1}, s56, v{KK}")
        A(f"v_readfirstlane_b32 s{S_INV}, v{KK}\nv_mul_f32 v{KK}, s56, v{KK}")
    else:
        job(A, f"s_cmp_lg_u32 s{S_W}, 0\ns_cbranch_scc1 Ljob_mid\n{POLL4}\nLjob_mid:", job_stores())
        st.mark(A, "job0")
        A1, B1, KK, TT, OUT = 8, 16, 24, 32, 80
        pre = Asm()
        pre(f"ds_read_b64 {v(KK,2)}, v{VXL} offset:72\ns_mov_b32 s56, {NLOG2E:#x}\ns_waitcnt vmcnt(6)")
        for d in range(4):
            unpack_bf16(pre, GR + d, A1 + 2*d, A1 + 2*d + 1)
            unpack_bf16(pre, BR + d, B1 + 2*d, B1 + 2*d + 1)
        A(f"s_cmp_lg_u32 s{S_W}, 0\ns_cbranch_scc1 Ljoin")
        A(f"s_mov_b32 s58, {SPIN_MAX}\ns_waitcnt vmcnt(6)\ns_branch Ls_chk")
        spin(A, "Ls", POLL4, f"v_cmp_ne_u32 vcc, s{S_TAG}, v{PLD+1}\nv_cmp_ne_u32 s[56:57], s{S_TAG}, v{PLD+3}\ns_nop 1\ns_or_b32 s56, s56, vcc_lo", None)
        wave_reduce(A, [PLD, PLD+2])
        A(f"v_mul_f32 v{PLD}, 0xb6000000, v{PLD}\nv_mul_f32 v{PLD+2}, 0x36000000, v{PLD+2}")
        A(f"v_fma_f32 v{PLD+2}, -v{PLD}, v{PLD}, v{PLD+2}\nv_max_f32 v{PLD+2}, 0, v{PLD+2}")
        A(f"v_add_f32 v{PLD+2}, 0x3727c5ac, v{PLD+2}\nv_rsq_f32 v{PLD+1}, v{PLD+2}")
        A(LANE63)
        A(f"ds_write_b64 v{VXL}, {v(PLD,2)} offset:64")
        A("s_mov_b64 exec, -1")
        A("Ljoin:")
        A("\n".join(pre.L))
        A(f"s_cmp_lg_u32 s{S_IT}, 0\ns_cselect_b64 vcc, -1, 0\ns_waitcnt lgkmcnt(0)\ns_barrier")
        st.mark(A, "b4")
        A(f"ds_read_b64 {v(PLD,2)}, v{VXL} offset:64")
        jpos = OPT.get("jpos", (-1, -1, 0, 0, 1, 1)) if OPT["jst"] == 2 else ()
        late = list(zip(jpos, job_stores()))
        if late:
            A(late.pop(0)[1])
        A(f"v_cndmask_b32 v{KK}, v{KK}, v{KK+1}, vcc")
        A(f"v_add_u32 v{KK}, 124, v{KK}\nv_lshlrev_b32 v{KK}, 23, v{KK}")
        for k in range(0, 16, 2):
            A(f"v_pk_mul_f32 {v(A1+k,2)}, {v(A1+k,2)}, s[56:57] {LO2}")
        A(f"v_readfirstlane_b32 s{S_INV}, v{KK}\nv_mul_f32 v{KK+1}, s56, v{KK}\nv_mul_f32 v{KK}, s56, v{KK}")
        while late and late[0][0] < 0:
            A(late.pop(0)[1])
        A("s_waitcnt lgkmcnt(0)")
        st.mark(A, "tot")
    for k in range(0, 8, 2):
        A(f"v_pk_mul_f32 {v(A1+k,2)}, {v(A1+k,2)}, {v(PLD,2)} {HI2}")
    for k in range(0, 8, 2):
        A(f"v_pk_fma_f32 {v(B1+k,2)}, {v(A1+k,2)}, {v(PLD,2)}, {v(B1+k,2)} {LO3}")
    A(f"v_mov_b32 v{VT}, s{S_TAG}\nv_mov_b32 v{VT+1}, s{S_TAG}")
    A(f"s_lshl_b32 s59, s{S_IT}, 16\ns_add_u32 s57, s59, s{S_SLOT}\ns_lshl_b32 s56, s{S_W}, 4\ns_add_u32 s56, s56, s57\ns_add_u32 s{S_E2}, s56, {UF:#x}")
    uflag = (f"v_mov_b32 v{BR}, s{S_TAG}\nv_mov_b32 v{BR+1}, s{S_TAG}\nv_mov_b32 v{BR+2}, s{S_WS}\ns_waitcnt vmcnt(%d)\n"
             f"buffer_store_dwordx4 {v(BR,4)}, v{V63}, s[{SWS}:{SWS+3}], s{S_E2} offen sc1")
    ufp = OPT.get("ufp", 4)
    for p in range(8):
        o = OUT + 4*p
        B = Asm()
        silu(B, H + p*8, A1, B1, KK, TT + 8*(p & 1), o)
        weave(A, B.L, [t for q, t in late if q == p] or [""], 8, 32)
        A(f"buffer_store_dwordx4 {v(o,4)}, v{VD}, s[{SWS}:{SWS+3}], s{S_RA + (p >> 2)} offen offset:{256*(p & 3)} sc1")
        if p == ufp:
            A(uflag % (ufp + 1 - max((0,) + jpos)))
    st.mark(A, "silu")
    VUP, S_UP = 239, S_RET
    A(f"v_lshrrev_b32 v8, 2, v0\nv_lshlrev_b32 v8, 8, v8\nv_and_b32 v9, 3, v0\nv_lshl_add_u32 v{VUP}, v9, 4, v8")
    A(f"s_mul_i32 s{S_UP}, s{S_NB}, {GRPS}\ns_lshr_b32 s56, s{S_W}, 1\ns_lshl_b32 s56, s56, 7\ns_add_u32 s{S_UP}, s{S_UP}, s56")
    A(f"s_add_u32 s{S_UP}, s{S_UP}, s59\ns_add_u32 s{S_UP}, s{S_UP}, {UF:#x}")
    A(f"s_add_u32 s57, s57, {DF:#x}")
    A(f"s_mul_i32 s{S_U0}, s{S_NB}, 786432\ns_mul_i32 s56, s{S_W}, 12288\ns_add_u32 s{S_U0}, s{S_U0}, s56")
    A(f"s_lshl_b32 s56, s{S_IT}, 23\ns_add_u32 s{S_U0}, s{S_U0}, s56")
    A(f"s_add_u32 s{S_U0}, s{S_U0}, {U1:#x}\ns_add_u32 s{S_U1}, s{S_U0}, 4096\ns_add_u32 s{S_U2}, s{S_U0}, 8192")
    A(f"s_mul_i32 s{S_DMA}, s{S_W}, {OS}\ns_lshl_b32 s56, s{S_RB}, 12\ns_add_u32 s{S_DMA}, s{S_DMA}, s56")
    A(f"v_lshrrev_b32 v8, 3, v0\nv_min_u32 v8, 2, v8\nv_add_u32 v8, s{S_RB}, v8\nv_add_u32 v8, -1, v8\nv_med3_i32 v8, v8, 0, 15")
    A(f"v_and_b32 v9, 1, v0\nv_lshl_add_u32 v8, v8, 1, v9\nv_lshlrev_b32 v8, 7, v8")
    A(f"v_bfe_u32 v9, v0, 1, 2\nv_mul_u32_u24 v9, {GRPS}, v9\nv_add_u32 v{VPOLL}, v8, v9")
    A(f"s_mul_i32 s{S_POLL}, s{S_B}, {4*GRPS}\ns_add_u32 s{S_POLL}, s{S_POLL}, s59\ns_add_u32 s{S_POLL}, s{S_POLL}, {DF:#x}")
    upoll = f"buffer_load_dwordx2 {v(GR,2)}, v{VUP}, s[{SWS}:{SWS+3}], s{S_UP} offen sc1"
    ucheck = f"v_cmp_ne_u32 vcc, s{S_TAG}, v{GR}\nv_cmp_ne_u32 s[56:57], s{S_TAG}, v{GR+1}\ns_nop 1\ns_or_b64 s[56:57], s[56:57], vcc"
    dflag = f"buffer_store_dwordx2 {v(VT,2)}, v{V63}, s[{SWS}:{SWS+3}], s57 offen sc1"
    zero = [f"v_accvgpr_write_b32 a{i}, 0" for i in range(256)]
    nz1 = OPT.get("nz1", 160)
    Q0, Q1 = Seq(), Seq()

    def ulist(Q, kj):
        L = []
        for k, j in kj:
            for nu in range(4):
                u_load(Q, k, j, nu)
                L.append(Seq.text(Q.take()))
        return L

    def dma_list(Q, k):
        L = []
        for p in range(6):
            if p in (0, 4):
                dma_m0(Q, k, p >> 2); Q.raw("s_nop 0")
            dma(Q, k, p)
            L.append(Seq.text(Q.take()))
        return L
    Q = Q1
    nz1 = OPT.get("nz1", 128)
    weave(A, zero[:nz1], [upoll], OPT.get("nz0", 100))
    A("s_waitcnt vmcnt(1)\ns_barrier")
    st.mark(A, "b5")
    A(f"s_cmp_lg_u32 s{S_W}, 0\ns_cbranch_scc1 Lnodf")
    A(f"{dflag}\nLnodf:")
    A("\n".join(zero[nz1:]))
    A(f"s_mov_b32 s58, {SPIN_MAX}\ns_waitcnt vmcnt(1)\ns_cmp_eq_u32 s{S_W}, 0\ns_cbranch_scc1 Lu_chk\ns_branch Lu_wait")
    spin(A, "Lu", upoll, ucheck, None)
    st.mark(A, "uok")
    A(f"s_cmp_lg_u32 s{S_W}, 0\ns_cbranch_scc1 Lnp")
    A(f"{POLL4}\nLnp:")
    A("\n".join(ulist(Q, ((0, 0), (0, 1), (0, 2), (1, 0)))))
    st.mark(A, "job1")
    A(f"s_cmp_lg_u32 s{S_W}, 0\ns_cbranch_scc1 Ld_ok")
    A(f"s_mov_b32 s58, {SPIN_MAX}\ns_waitcnt vmcnt(16)\ns_branch Ld_chk")
    spin(A, "Ld", POLL4, f"v_cmp_ne_u32 vcc, s{S_TAG}, v{PLD}\nv_cmp_ne_u32 s[56:57], s{S_TAG}, v{PLD+1}\ns_nop 1\ns_or_b64 s[56:57], s[56:57], vcc", None)
    A("s_barrier")
    st.mark(A, "b6")
    A("\n".join(dma_list(Q, 0) + dma_list(Q, 1)))
    A(f"s_xor_b32 s{S_M0}, s{S_M0}, 0x10000\ns_mov_b32 s{S_CNT}, 7")
    d2 = dma_list(Q, 2)
    nd2 = OPT.get("nd2", 4)
    A("\n".join(d2[:nd2]))
    A(f"s_lshl_b32 s56, s{S_W}, 5\nv_and_b32 v8, 31, v0\nv_add_u32 v8, s56, v8")
    gen.code_touch(A, "Ltail", "Lcode_end", 8, 234, "Lpc2", 56)
    if OPT.get("l2pf", 0):
        first = OPT.get("l2first", 4)
        A(f"s_and_b32 s56, s{S_IDX}, 1\ns_lshl_b32 s56, s56, 2\ns_add_u32 s56, s56, s{S_W}\ns_lshl_b32 s57, s{S_B}, 6\ns_add_u32 s56, s56, s57")
        A(f"s_mul_i32 s56, s56, {OS}\ns_lshl_b32 s57, s{S_RB}, 12\ns_add_u32 s56, s56, s57")
        A(f"s_mul_i32 s57, s{S_IT}, {D2-D1}\ns_add_u32 s56, s56, s57\ns_add_u32 s56, s56, {D1 + first*4*OS}")
        A(f"s_lshl_b32 s57, s{S_RB}, 2\ns_add_u32 s57, s57, s{S_W}\ns_mul_i32 s57, s57, 1536\ns_mul_i32 s58, s{S_NB}, 786432\ns_add_u32 s57, s57, s58")
        A(f"s_lshl_b32 s58, s{S_IT}, 23\ns_add_u32 s57, s57, s58\ns_add_u32 s57, s57, {U1 + first*49152 - 4096}")
        A(f"v_cmp_gt_u32 vcc, 32, v0\nv_mov_b32 v8, s57\nv_mov_b32 v9, s56\nv_min_u32 v10, 43, v0\nv_cndmask_b32 v8, v8, v9, vcc")
        if OPT.get("l2u", 1):
            A("v_mov_b32 v8, s57\nv_max_u32 v10, 32, v10\ns_mov_b64 vcc, 0")
        A(f"v_lshl_add_u32 v232, v10, 7, v8\nv_mov_b32 v8, {2*49152}\nv_mov_b32 v9, {8*OS}\nv_cndmask_b32 v233, v8, v9, vcc")
    A(f"s_waitcnt vmcnt({6 + nd2})\ns_barrier")
    st.mark(A, "b7")
    for par in range(2):
        for tb in range(4):
            raw_read(Q, 0, par, tb, 0); raw_read(Q, 0, par, tb, 1)
    for par in range(2):
        for tb in range(4):
            Q.wait(lg=[("rd", 0, par, tb)])
            for d in range(4):
                h_op(Q, 0, par, tb, d)
    main = Seq.text(Q.take()).split("\n")
    weave(A, main, d2[nd2:] + ulist(Q, ((1, 1),)), 12)
    l2 = OPT.get("l2pf", 0)
    pfl = f"buffer_load_dword v{VT+1}, v232, s[{SWS}:{SWS+3}], %s offen sc1"
    pfa = "v_add_u32 v232, v232, v233"
    Q.wait(vm=[("raw", 1)])
    A(Seq.text(Q.take()))
    if l2:
        for _ in range((l2 - OPT.get("l2first", 4))//2):
            A(pfl % "0" + "\n" + pfa)
    if OPT.get("sched", 1):
        A(f"s_mov_b32 s{S_USTEP}, 49152\ns_sub_u32 s{S_U1}, s{S_U1}, 49152")
    A(f"s_cmp_eq_u32 s{S_IT}, 0\ns_cbranch_scc1 Lgo")
    A(f"s_cmp_lg_u32 s2, 2\ns_cbranch_scc1 Lgo\ns_cmp_lg_u32 s{S_W}, 0\ns_cbranch_scc1 Lgo")
    A(f"buffer_store_dword v{VT}, v{V63}, s[{SWS}:{SWS+3}], 0 offen offset:{GEN} sc1")
    A("Lgo:")
    st.mark(A, "loop")
    bodies = []
    for Q in (Q1,):
        for n in range(7):
            ex = None
            if l2:
                g = OPT.get("l2gap", 56)
                ex = {g - 2: [lambda: Q.raw(f"s_cmp_gt_u32 s{S_CNT}, {l2//2 - 1}")], g - 1: [lambda: Q.raw(f"s_cselect_b32 s56, 0, {OOB:#x}")],
                      g: [lambda: Q.vmem(pfl % "s56", "pf")], g + 2: [lambda: Q.raw(pfa)]}
            step(Q, 2*n, None, ex)
            step(Q, 2*n + 1, None, {61: [lambda: Q.raw(f"s_sub_u32 s{S_CNT}, s{S_CNT}, 1")],
                                    62: [lambda: Q.raw(f"s_cmp_gt_u32 s{S_CNT}, 1")],
                                    63: [lambda: Q.raw("s_cbranch_scc1 Lloop")]})
            bodies.append(Q.take())
    A(".p2align 6\nLloop:")
    A(Seq.text(merge(bodies)))
    A(f"s_cmp_eq_u32 s{S_CNT}, 0\ns_cbranch_scc1 Ltail\nglobal_load_dword v{VT+1}, v[234:235], off\ns_branch Lloop\nLtail:")
    st.mark(A, "l14")
    gm = {9: 15, 11: 18, 17: 22, 19: 25, 22: 29, 26: 32, 33: 36, 35: 39, 38: 43, 42: 46, 49: 53, 63: 63}
    remap = lambda ex: {gm[g]: f for g, f in ex.items()} if OPT.get("sched", 1) else ex
    R = lambda t: [lambda: Q.raw(t)]
    M = lambda t: [lambda: Q.vmem(t, "ep")]
    sc_ld = [f"buffer_load_dword v{SCR+h}, v{VT}, s[{SWS}:{SWS+3}], s56 offen offset:{8 + 256*h} sc1" for h in range(2)]
    em_ld = [f"buffer_load_dwordx4 {v(EMR+4*h,4)}, v{VPOLL}, s[{SWS}:{SWS+3}], s57 offen offset:{16*h} sc1" for h in range(2)]
    gb_ld = [f"global_load_dwordx4 {v(GR,4)}, v237, s[16:17]", f"global_load_dwordx4 {v(BR,4)}, v237, s[18:19]"]
    unscale = f"v_pk_mul_f32 {v(SCR,2)}, {v(SCR,2)}, s[{S_ASC}:{S_INV}] op_sel:[0,1] op_sel_hi:[1,1]"
    red = [f"v_add_f32_dpp v{EMR+k}, v{EMR+k}, v{EMR+k} row_ror:{sh} row_mask:0xf bank_mask:0xf" for sh in (8, 4, 2, 1) for k in range(8)]
    wl = w_loads(WLDS, 58, 59)
    ex = {9: R(f"v_and_b32 v{VT}, 127, v237\nv_lshlrev_b32 v239, 1, v{VT}\nv_lshlrev_b32 v{VT}, 5, v{VT}"),
          11: M(wl[0]),
          17: R(f"s_mul_i32 s56, s{S_NB}, {GRPS}\ns_lshl_b32 s57, s{S_IT}, 16\ns_add_u32 s56, s56, s57\ns_add_u32 s56, s56, {UF:#x}"),
          19: R(f"s_lshl_b32 s57, s{S_B}, 3\ns_add_u32 s57, s57, s{S_NB}\ns_lshl_b32 s57, s57, 12\ns_add_u32 s57, s57, {EMBP:#x}"),
          22: R(f"v_and_b32 v{VPOLL}, 15, v0\nv_lshl_add_u32 v{VPOLL}, v{VPOLL}, 8, v239"),
          26: M(wl[1]),
          33: M(em_ld[0]), 35: M(em_ld[1]), 38: M(sc_ld[0]), 42: [lambda: Q.vmem(sc_ld[1], "sc")],
          49: M(wl[2]), 63: M(wl[3])}
    step(Q, 14, remap(ex))
    ex = {2: M(gb_ld[0]), 9: M(wl[4]), 5: M(gb_ld[1]), 22: M(wl[5]),
          33: M(wl[6]), 42: M(wl[7]), 55: M(wl[8]),
          39: [lambda: Q.wait(vm=["sc"]), lambda: Q.raw(unscale)]}
    slots = [43, 46, 49, 50, 51, 52, 53, 54, 56, 57, 58, 59, 60, 61, 62, 63]
    for i, g in enumerate(slots):
        ex[g] = R("\n".join(red[2*i:2*i + 2]))
    step(Q, 15, ex)
    A(Seq.text(Q.take()))
    A("Lepi:")
    st.mark(A, "end")
    RB_, ZB = [8, 40], [72, 88]
    XB = [8, 20, 72, 84]
    LO, HI = LO3, HI3
    ag, bb = f"s[{S_AG}:{S_AG+1}]", f"s[{S_BB}:{S_BB+1}]"
    XF, OUT = 40, 104
    for nul in range(2):
        stream, ready = [], []
        for n, phi in enumerate((2, 1, 3, 0)):
            sg, nup = phi >> 1, phi & 1
            nu = 2*nup + nul
            Rr = RB_[n & 1]
            Z = (lambda q, zb=ZB[n & 1]: zb + 4*q) if phi else (lambda q: H + q*8 + nul*4)
            m = lambda j, be, r=0: Rr + j*8 + be*4 + r
            E = stream.append

            def rdacc(*jb):
                for j, be in jb:
                    for r in range(4):
                        E(f"v_accvgpr_read_b32 v{m(j,be,r)}, a{j*64 + nu*16 + (2*sg + be)*4 + r}")

            def pk(q, x, y, neg, first=False):
                for r in (0, 2):
                    E(f"v_pk_add_f32 {v(Z(q)+r,2)}, {v((x if first else Z(q))+r,2)}, {v(y+r,2)} {NEG1 if neg else ''}")

            def done(q):
                if phi:
                    ready.append((len(stream), f"ds_write_b128 v{VW[phi]}, {v(Z(q),4)} offset:{(nul*4 + q)*1024}"))
            rdacc((0, 0), (0, 1), (1, 0), (2, 0))
            if n == 2:
                E("@war")
            pk(1, m(1,0), m(2,0), 0, True); pk(0, m(1,0), m(2,0), 1, True)
            pk(1, None, m(0,0), 1); pk(1, None, m(0,1), 0); done(1)
            rdacc((3, 1), (3, 0))
            for r in range(4):
                E(f"v_add_f32_dpp v{Z(0)+r}, v{m(3,1,r)}, v{Z(0)+r} row_shr:1 row_mask:0xf bank_mask:0xf bound_ctrl:1")
            pk(0, None, m(3,0), 1)
            done(0)
            rdacc((1, 1), (2, 1))
            pk(2, m(1,1), m(2,1), 1, True); pk(3, m(1,1), m(2,1), 0, True)
            pk(2, None, m(3,1), 1); pk(2, None, m(3,0), 0); done(2)
            for r in range(4):
                E(f"v_add_f32_dpp v{Z(3)+r}, v{m(0,0,r)}, v{Z(3)+r} row_shl:1 row_mask:0xf bank_mask:0xf bound_ctrl:1")
            pk(3, None, m(0,1), 1)
            done(3)
        where, last = {}, -99
        for pos, t in ready:
            last = max(pos, last + OPT.get("wgap", 15))
            where[last] = t
        bpos = last + OPT.get("bgap", 14)
        nw = 0
        rds = [f"ds_read_b128 {v(XB[q] + 4*k, 4)}, v{VR[k]} offset:{(nul*4 + q)*1024}" for q in range(4) for k in range(3)]
        for i, t in enumerate(stream):
            if i in where:
                A(where[i]); nw += 1
            if i == bpos:
                A("s_waitcnt lgkmcnt(0)\ns_barrier")
            if i >= bpos and (i - bpos) % OPT.get("rgap", 2) == 0 and rds:
                for _ in range(OPT.get("rnum", 1)):
                    A(rds.pop(0))
            A(f"s_waitcnt lgkmcnt({nw - 4})" if t == "@war" else t)
        assert nw == 12 and 181 <= bpos and not rds
        for q in range(4):
            if q in (0, 2):
                A(f"s_waitcnt lgkmcnt({6 - 3*q})")
            x = XB[q]
            ha, hb = H + q*8 + nul*4, H + 32 + q*8 + nul*4
            for r in (0, 2):
                A(f"v_pk_fma_f32 {v(hb+r,2)}, {v(x+4+r,2)}, {ag}, {v(x+8+r,2)} {HI}")
            for r in (0, 2):
                A(f"v_pk_fma_f32 {v(x+4+r,2)}, {v(x+4+r,2)}, {ag}, {v(x+r,2)} {LO}")
            for r in (0, 2):
                A(f"v_pk_fma_f32 {v(hb+r,2)}, {v(x+r,2)}, {bb}, {v(hb+r,2)} {LO}")
            for r in (0, 2):
                A(f"v_pk_fma_f32 {v(hb+r,2)}, {v(ha+r,2)}, {bb}, {v(hb+r,2)} {HI}")
            for r in (0, 2):
                A(f"v_pk_add_f32 {v(ha+r,2)}, {v(ha+r,2)}, {v(x+4+r,2)}")
        if nul:
            st.mark(A, "hh")
        sel = HI if nul else LO
        A(f"s_cmp_lg_u32 s{S_IT}, 0\ns_cbranch_scc1 Lfinal{nul}")
        for p0 in range(0, 8, 2):
            xs = [(H + p*8 + k, k) for p in (p0, p0 + 1) for k in (4*nul, 4*nul + 2)]
            for x, k in xs:
                A(f"v_pk_fma_f32 {v(x,2)}, {v(x,2)}, {v(SCR,2)}, {v(EMR+k,2)} {sel}")
            for i, (x, k) in enumerate(xs):
                sums(A, x, P + (k & 2), nul == 0 and p0 == 0 and i < 2)
        if nul == 0:
            A("s_branch Lhalf")
        else:
            st.flush(A, 0, 7)
            st.mark(A, "start")
            A(f"s_mov_b32 s{S_IT}, 1\ns_mov_b32 s{SO+2}, 0")
            A(f"s_add_u32 s{S_RA}, s{S_RA}, {D2-D1:#x}\ns_add_u32 s{S_RB2}, s{S_RB2}, {D2-D1:#x}")
            A(f"s_add_u32 s{SD}, s{SD}, {D2-D1:#x}\ns_addc_u32 s{SD+1}, s{SD+1}, 0")
            A("s_branch Lstats")
        A(f"Lfinal{nul}:")
        if nul == 0:
            A(f"s_mov_b32 s{SO}, s22\ns_mov_b32 s{SO+1}, s23\ns_mov_b32 s{SO+2}, 0x800000\ns_waitcnt vmcnt(0)")
            if OPT.get("wide", 0):
                A(f"s_mov_b32 vcc_lo, 0xaaaaaaaa\ns_mov_b32 vcc_hi, 0xaaaaaaaa\nv_add_u32 v{VX+1}, -8, v{VX+1}\nv_cndmask_b32 v{VX}, v{VX}, v{VX+1}, vcc")
        for k in (4*nul, 4*nul + 2):
            xf = lambda p, kk: XF + p*4 + (kk & 3)
            for rho in range(2):
                for kk in (k, k+1):
                    r = XR + (rho*8 + kk)*2
                    unpack_bf16(A, r, xf(rho*4, kk), xf(rho*4 + 1, kk))
                    unpack_bf16(A, r+1, xf(rho*4 + 2, kk), xf(rho*4 + 3, kk))
            for p in range(8):
                x = H + p*8 + k
                A(f"v_pk_fma_f32 {v(x,2)}, {v(x,2)}, {v(SCR,2)}, {v(xf(p, k),2)} {sel}")
            if OPT.get("wide", 0):
                t = XF + (k & 2)
                cv = lambda kk, rho, d: XF + (kk & 1)*16 + rho*8 + d*4 + (k & 2)
                for kk in (k, k+1):
                    for rho in range(2):
                        h = H + rho*32 + kk
                        A(f"v_cvt_pk_bf16_f32 v{cv(kk,rho,0)}, v{h}, v{h+8}\nv_cvt_pk_bf16_f32 v{cv(kk,rho,1)}, v{h+16}, v{h+24}")
                for half in range(2):
                    A("s_not_b64 vcc, vcc")
                    for kk in (k, k+1):
                        for d in range(2):
                            A(f"v_cndmask_b32_dpp v{OUT + kk*4 + 2*half + d}, v{cv(kk,1-half,d)}, v{cv(kk,half,d)}, vcc quad_perm:[1,0,3,2] row_mask:0xf bank_mask:0xf")
                for kk in (k, k+1):
                    A(f"buffer_store_dwordx4 {v(OUT + kk*4,4)}, v{VX}, s[{SO}:{SO+3}], s{S_XO} offen {OPT['sto']}")
                    A(f"s_add_u32 s{S_XO}, s{S_XO}, 8192")
                continue
            for kk in (k, k+1):
                for rho in range(2):
                    o = OUT + (rho*8 + kk)*2
                    h = H + rho*32 + kk
                    A(f"v_cvt_pk_bf16_f32 v{o}, v{h}, v{h+8}")
                    A(f"v_cvt_pk_bf16_f32 v{o+1}, v{h+16}, v{h+24}")
                    A(f"buffer_store_dwordx2 {v(o,2)}, v{VX+rho}, s[{SO}:{SO+3}], s{S_XO} offen {OPT['sto']}")
                A(f"s_add_u32 s{S_XO}, s{S_XO}, 8192")
        if nul == 0:
            A("Lhalf:")
    if stamps:
        A("s_waitcnt vmcnt(0)")
        A("s_memrealtime s[20:21]\ns_memtime s[22:23]\ns_waitcnt lgkmcnt(0)")
        st.flush(A, 1, 7)
        A("s_mov_b32 s72, s20\ns_mov_b32 s74, s22")
        st.flush(A, 2, 1)
    A("Lexit:\ns_endpgm")
    A("Lcode_end:")
    descriptor(A, NAME, 512, 256)
    return A


HEAD = """; ADM ResBlock: GN+SiLU -> conv3x3 -> +emb -> GN+SiLU -> conv3x3 -> +x   (B=2, C=512, 64x64, bf16 in/out)
; operands carry run-time power-of-two scales (max|w| per 4 output channels, max|gamma|,|beta|) undone afterwards.
%s
.amdgcn_target "amdgcn-amd-amdhsa--gfx950"
"""

if __name__ == "__main__":
    for a in sys.argv[2:]:
        if "=" in a:
            k, val = a.split("=")
            OPT[k] = int(val) if val.lstrip("-").isdigit() else (eval(val) if val.startswith("(") else val.replace("+", " "))
    D1 += OPT.get("base", 0) << 20; D2 += (OPT.get("base", 0) + OPT.get("d2", 0)) << 20
    U1 += OPT.get("base", 0) << 20; U2 += OPT.get("base", 0) << 20
    stamps = "stamps" in sys.argv[2:]
    launch = "; @launch " + (f"kernel={NAME} " if "list" in sys.argv[2:] else "") + "grid=(256,1,1) block=(256,1,1) lds=152064"
    text = HEAD % launch + kernel(stamps).text()
    open(sys.argv[1], "w").write(align_pass(text) if OPT["align"] else text)
```

```python
import sys
sys.path.insert(0, "tools")
import gen
def probe(src, pts, offs):
    A = gen.Asm()
    gen.header(A, "probe_kernel")
    A("s_cmp_ge_u32 s2, 1\ns_cbranch_scc1 Lq_exit")
    A("s_load_dwordx2 s[26:27], s[0:1], 88\ns_waitcnt lgkmcnt(0)")
    gen.srd(A, 28, 26, gen.WS_BYTES)
    A("v_lshlrev_b32 v1, 6, v0")
    A(f"s_mov_b32 s4, {gen.STAMP:#x}\nbuffer_load_dword v40, off, s[28:31], s4\ns_waitcnt vmcnt(0)\nv_subrev_u32 v40, 1000, v40")
    for n, (k, i, f) in enumerate(pts):
        for j in range(16):
            A(f"s_mov_b32 s4, {gen.STAMP + k*0x20000 + j*4096 + 8*i:#x}")
            A(f"buffer_load_dword v{2 + j}, v1, s[28:31], s4 offen")
        A("s_waitcnt vmcnt(0)")
        for j in range(16):
            A(f"v_sub_u32 v{2+j}, v{2+j}, v40")
            if f == "min": A(f"v_sub_u32 v{2+j}, 0x100000, v{2+j}")
        for j in range(1, 16): A(f"v_max_u32 v2, v2, v{2+j}")
        A("s_nop 1")
        gen.wave_reduce(A, [2], "v_max_u32")
        A(f"s_nop 1\nv_readlane_b32 s{8+n}, v2, 63\ns_nop 3")
        if f == "min": A(f"s_sub_u32 s{8+n}, 0x100000, s{8+n}")
    A("s_mov_b32 s6, 0")
    for n, o in enumerate(offs):
        A(f"s_sub_u32 s5, s{9+n}, s{8+n}\ns_sub_i32 s5, s5, {int(o*100)}\ns_max_i32 s5, s5, 0\ns_mul_i32 s5, s5, 2622\ns_lshr_b32 s5, s5, 16\ns_min_u32 s5, s5, 15")
        A("s_lshl_b32 s6, s6, 4\ns_add_u32 s6, s6, s5")
    A("s_mul_i32 s6, s6, 800")
    A("s_memrealtime s[14:15]\ns_waitcnt lgkmcnt(0)")
    A("Lq_spin:\ns_memrealtime s[16:17]\ns_waitcnt lgkmcnt(0)\ns_sub_u32 s16, s16, s14\ns_cmp_lt_u32 s16, s6\ns_cbranch_scc1 Lq_spin")
    A("Lq_exit:\ns_endpgm")
    gen.descriptor(A, "probe_kernel", 64, 64)
    lines = src.split("\n")
    last = max(i for i, l in enumerate(lines) if l.startswith("; @launch"))
    lines.insert(last + 1, "; @launch kernel=probe_kernel grid=(1,1,1) block=(64,1,1) lds=0")
    return "\n".join(lines) + A.text()
if __name__ == "__main__":
    if sys.argv[1] == "decode":
        offs = [float(x) for x in sys.argv[2].split(",")]
        for r in sys.argv[3:]:
            n = int(round((float(r) - 61)/8)); d = [(n >> 8) & 15, (n >> 4) & 15, n & 15]
            print(r, [o + 0.25*x for o, x in zip(offs, d)], "rest", round(float(r) - 8*n, 1))
    else:
        pts = [(int(p.split(",")[0]), int(p.split(",")[1]), p.split(",")[2]) for p in sys.argv[3:7]]
        open(sys.argv[2], "w").write(probe(open(sys.argv[1]).read(), pts, [float(x) for x in sys.argv[7].split(",")]))
```

```python
import sys
sys.path.insert(0, "tools")
import gen
from gen import (Asm, v, acc, NEG1, srd, wave_reduce, header, descriptor, gn_coeffs, silu8, unpack_bf16, trim,
                 align_pass, OPT, OOB, NLOG2E, SPIN_MAX, TAGSTEP, S_MASK, WS_BYTES, WROW, STAMP,
                 SLOT, VDMA, VDMA2, VTOP, VBOT, VU, VA, VB, VA1, VB1, WLDS, XLDS, C, PP, TMP, UU,
                 SWS, SD, SX, SO, S_W, S_DMA, S_M0, S_U0, S_U1, S_U2, S_SGN, S_CNT, S_GRP, S_IDX, S_B, S_NB, S_RB,
                 u_load, dma_m0, dma, raw_read, h_op, D1, D2, U1, U2, SC1, SC2)

NAME = "standalone__adm_resblock__diffusion_kernel"
GEN, EMBP = 0x0, 0x10000
STAT, UF, DF = 0x40000, 0x60000, 0x80000
GRPS = 4352
OS, US = 65536 + 256, 786432 + 4096
D1 = 0x100000
D2 = D1 + 128*OS
U1 = D2 + 128*OS
U2 = U1 + 8*US
OPT.update(tlb=1, g2=0, ldx="nt", ldw="nt", jst=1, wpos=(2, 8, 14, 20), ldu="sc1", ldd="sc1", trimU=3, trimD=3, pf=1, delay=0, delayd=6, slp=1)

S_IT, S_TAG, S_ASC, S_INV, S_WS, S_E2, S_RA, S_RB2, S_J0, S_J1, S_OQ = 60, 61, 62, 63, 64, 65, 66, 67, 68, 69, 71
S_RET, S_POLL, S_SLOT, S_XO, S_USTEP = 24, 25, 12, 13, 101
S_AG, S_BB = 6, 14
VW, VR = (None, 240, 241, 242), (243, 244, 245)
VD, VX, V63, VXL, VPOLL, VT = 246, 247, 249, 250, 251, 252
H, XR, SCR, EMR, GR, BR, PLD, VS, VJ = 136, 200, 232, 104, 124, 128, 232, 236, 238

LANE63 = "s_mov_b32 exec_lo, 0\ns_mov_b32 exec_hi, 0x80000000"


class Seq(gen.Seq):
    def wait(self, vm=(), lg=()):
        a = [n for n in (self._n(self.vm, t) for t in vm) if n is not None]
        b = [n for n in (self._n(self.lg, t) for t in lg) if n is not None]
        self.out.append(("wait", a[-1] if a else None, b[-1] if b else None))

    @staticmethod
    def text(out):
        L = []
        for x in out:
            if isinstance(x, tuple):
                p = ([f"vmcnt({x[1]})"] if x[1] is not None else []) + ([f"lgkmcnt({x[2]})"] if x[2] is not None else [])
                assert (x[1] or 0) < 64 and (x[2] or 0) < 16
                if p:
                    L.append("s_waitcnt " + " ".join(p))
            else:
                L.append(x)
        return "\n".join(L)

    def take(self):
        o, self.out = self.out, []
        return o


def merge(bodies):
    res = []
    for items in zip(*bodies):
        if isinstance(items[0], tuple):
            f = lambda i: min([x[i] for x in items if x[i] is not None], default=None)
            res.append(("wait", f(1), f(2)))
            if res[-1] != bodies[3][len(res) - 1]:
                print("note: wait tightened", res[-1], items, file=sys.stderr)
        else:
            assert all(x == items[0] for x in items), items
            res.append(items[0])
    return res


class Stamps:
    def __init__(self, on):
        self.on = on

    def mark(self, A, name, wait=True):
        sel = OPT.get("marks", "start,pub,tot,silu,loop,end,hh").split(",")
        if self.on and name in sel:
            i = sel.index(name)
            A(f"s_memrealtime s[{72+4*i}:{73+4*i}]\ns_memtime s[{74+4*i}:{75+4*i}]")
            if wait:
                A("s_waitcnt lgkmcnt(0)")

    def flush(self, A, kid, n):
        if self.on:
            A(f"s_lshl_b32 s100, s2, 2\ns_add_u32 s100, s100, s{S_W}\ns_lshl_b32 s100, s100, 6")
            A(f"s_add_u32 s100, s100, {STAMP + kid*0x20000:#x}")
            for i in range(n):
                A(f"v_mov_b32 v{VT}, s{72+4*i}\nv_mov_b32 v{VT+1}, s{74+4*i}")
                A(f"buffer_store_dwordx2 {v(VT,2)}, v{V63}, s[{SWS}:{SWS+3}], s100 offen offset:{8*i}")
                A("s_nop 1")


def weave(A, main, side, first=0, last=None):
    last = len(main) if last is None else last
    pos = {}
    for i, t in enumerate(side):
        pos.setdefault(first + (i*(last - first))//len(side), []).append(t)
    for i, m in enumerate(main):
        for t in pos.get(i, []):
            A(t)
        A(m)


def w_loads(base, so, sm):
    ld = []
    for k in range(9):
        t = ""
        if k == 0:
            t = (f"s_mul_i32 s{sm}, s{S_W}, {WROW}\ns_add_u32 m0, s{sm}, {base}\n"
                 f"s_lshl_b32 s{so}, s{S_OQ}, 2\ns_add_u32 s{so}, s{so}, s{S_W}\ns_mul_i32 s{so}, s{so}, 9216\n")
        elif k in (4, 8):
            t = f"s_add_u32 m0, s{sm}, {base + 1024*k}\ns_add_u32 s{so}, s{so}, 4096\n"
        ld.append(t + f"buffer_load_dwordx4 v{VDMA}, s[{SO}:{SO+3}], s{so} offen offset:{1024*(k & 3)} {OPT.get('ldw', '')} lds")
    return ld


def spin(A, L, load, check, first_in_flight=False, c=58):
    if first_in_flight is not None:
        A(f"s_mov_b32 s{c}, {SPIN_MAX}")
    if first_in_flight:
        A(f"s_branch {L}_wait")
    A(f"{L}_poll:\n{load}\n{L}_wait:\ns_waitcnt vmcnt(0)\n{L}_chk:")
    A(check)
    A(f"s_cbranch_scc0 {L}_ok")
    A(f"s_sleep {OPT['slp']}\ns_sub_u32 s{c}, s{c}, 1\ns_cmp_lg_u32 s{c}, 0\ns_cbranch_scc1 {L}_poll")
    A(f"{L}_ok:")


POLL4 = f"buffer_load_dwordx4 {v(PLD,4)}, v{VPOLL}, s[{SWS}:{SWS+3}], s{S_POLL} offen sc1"


JG, JM, JRW, JOUT = 8, 80, 80, 56
LO2, HI2 = "op_sel_hi:[1,0]", "op_sel:[0,1] op_sel_hi:[1,1]"
LO3, HI3 = "op_sel_hi:[1,0,1]", "op_sel:[0,1,0] op_sel_hi:[1,1,1]"


def job(A, hook, stores, gate=None, early=None):
    G, M, RW, T = JG, 116, JRW, 80

    def greg(e):
        return G + (e % 9)*8 + e//9
    for k in range(9):
        A(f"ds_read_b128 {v(RW+4*k,4)}, v{VJ} offset:{16*k}")
    A(f"s_bitcmp1_b32 s{S_IDX}, 0\ns_cselect_b32 s56, -1.0, 1.0\ns_lshl_b32 s58, s{S_W}, 2\nv_add_u32 v{M+1}, s58, v{VXL}")
    for k in range(9):
        if k in (0, 1, 3, 6):
            A(f"s_waitcnt lgkmcnt({(8, 6, 0, 3, 0, 0, 0)[k]})")
        for d in range(4):
            e = 8*k + 2*d
            unpack_bf16(A, RW + 4*k + d, greg(e), greg(e+1))
        for d in range(4):
            e = 8*k + 2*d
            A(f"v_max3_f32 v{M}, |v{greg(e)}|, |v{greg(e+1)}|, {'0' if e == 0 else f'v{M}'}")
        if gate and k == OPT.get("hk", 3):
            A(hook)
        if early and k == OPT.get("hk", 3):
            A(early[0])
    B = Asm()
    for x in range(0, 24, 2):
        B(f"v_pk_fma_f32 {v(G+24+x,2)}, {v(G+24+x,2)}, s[56:57], {v(G+x,2)} {LO3}")
    for x in range(0, 24, 2):
        B(f"v_pk_add_f32 {v(G+24+x,2)}, {v(G+24+x,2)}, {v(G+48+x,2)}")
    red = [f"v_max_f32_dpp v{M}, v{M}, v{M} row_shr:{n} row_mask:0xf bank_mask:0xf bound_ctrl:1" for n in (1, 2, 4, 8)]
    red += [f"v_max_f32_dpp v{M}, v{M}, v{M} row_bcast:{n} row_mask:{m} bank_mask:0xf" for n, m in ((15, "0xa"), (31, "0xc"))]
    red += [f"{LANE63}\nds_write_b32 v{M+1}, v{M} offset:128\ns_mov_b64 exec, -1"]
    weave(A, B.L, red, 2, 16)

    def wsum(dst, src):
        for cp in range(0, 8, 2):
            A(f"v_pk_add_f32 {v(T+cp,2)}, {v(src+cp,2)}, {v(src+16+cp,2)}")
        for cp in range(0, 8, 2):
            A(f"v_pk_add_f32 {v(dst+cp,2)}, {v(T+cp,2)}, {v(src+8+cp,2)}")
            A(f"v_pk_add_f32 {v(dst+8+cp,2)}, {v(T+cp,2)}, {v(src+8+cp,2)} {NEG1}")
        if dst != src:
            for cp in range(0, 8, 2):
                A(f"v_pk_mul_f32 {v(dst+16+cp,2)}, {v(src+16+cp,2)}, 1.0 {LO2}")
    def sums():
        wsum(G + 24, G + 24)
        A(f"s_bitcmp1_b32 s{S_IDX}, 0\ns_cbranch_scc1 Ljp1")
        wsum(G, G)
        A("s_branch Ljp2\nLjp1:")
        wsum(G, G + 48)
        A("Ljp2:")
    if gate:
        sums()
        gate()
    if early:
        early[1]()
    A("s_waitcnt lgkmcnt(0)\ns_barrier")
    A(f"ds_read_b128 {v(M+4,4)}, v{VXL} offset:128")
    if gate:
        A(f"ds_read_b128 {v(PLD,4)}, v{VXL} offset:64")
    else:
        sums()
        A(hook)
    A("s_waitcnt lgkmcnt(0)")
    K = 88
    A(f"v_max3_f32 v{M+4}, v{M+4}, v{M+5}, v{M+6}\nv_max_f32 v{M+4}, v{M+4}, v{M+7}")
    A(f"v_frexp_exp_i32_f32 v{M+4}, v{M+4}\nv_min_i32 v{M+4}, 60, v{M+4}\nv_max_i32 v{M+4}, 0xffffffc4, v{M+4}")
    A(f"v_add_u32 v{M}, 119, v{M+4}\nv_lshlrev_b32 v{M}, 23, v{M}")
    A(f"v_sub_u32 v{K}, 135, v{M+4}\nv_lshlrev_b32 v{K}, 23, v{K}\nv_readfirstlane_b32 s{S_WS}, v{M}")
    A(f"v_mul_f32 v{K+2}, 0x47000080, v{K}\nv_mul_f32 v{K+3}, 0xc7000000, v{K}")
    A(f"v_pk_mul_f32 {v(K+4,2)}, {v(K+2,2)}, 0.5 {LO2}")
    for i, r in enumerate((G, G + 24)):
        for j, src in enumerate((r+16, r, r+8)):
            o = JOUT + (i*3 + j)*4
            kk = K + 2*(i + (j > 0))
            for cp in range(0, 8, 2):
                A(f"v_pk_mul_f32 {v(T+cp,2)}, {v(src+cp,2)}, {v(kk,2)} {LO2}")
            if i or j:
                for cp in range(0, 8, 2):
                    A(f"v_pk_fma_f32 {v(T+cp,2)}, {v(src+cp,2)}, {v(kk,2)}, {v(T+cp,2)} {HI3}")
            for d in range(4):
                A(f"v_cvt_pk_f16_f32 v{o+d}, v{T+2*d}, v{T+2*d+1}")
            A(stores[i*3 + j])


def job_stores(VS=VS):
    st = []
    for i in range(2):
        for j in range(3):
            st.append(f"buffer_store_dwordx4 {v(JOUT + (i*3 + j)*4, 4)}, v{VS}, s[{SWS}:{SWS+3}], s{S_J0+i} offen sc1\n"
                      f"s_add_u32 s{S_J0+i}, s{S_J0+i}, {4096 if j < 2 else U2 - U1 - 8192}")
    return st


def silu(A, x, A1, B1, kk, t, out):
    for k in range(0, 8, 2):
        A(f"v_pk_fma_f32 {v(x+k,2)}, {v(x+k,2)}, {v(A1+k,2)}, {v(B1+k,2)}")
    for k in range(8):
        A(f"v_exp_f32 v{t+k}, v{x+k}")
    for k in range(0, 8, 2):
        A(f"v_pk_fma_f32 {v(t+k,2)}, {v(t+k,2)}, {v(kk,2)}, {v(kk,2)}")
    for k in range(8):
        A(f"v_rcp_f32 v{t+k}, v{t+k}")
    for k in range(0, 8, 2):
        A(f"v_pk_mul_f32 {v(x+k,2)}, {v(x+k,2)}, {v(t+k,2)}")
    for k in range(0, 8, 2):
        A(f"v_cvt_pk_f16_f32 v{out+k//2}, v{x+k}, v{x+k+1}")
    trim(A, out, 4, OPT["trimD"])


def x_loads():
    ld = []
    for k in range(8):
        for rho in range(2):
            t = f"buffer_load_dwordx2 {v(XR + (rho*8 + k)*2, 2)}, v{VX+rho}, s[{SX}:{SX+3}], s59 offen {OPT['ldx']}"
            if rho == 1 and k < 7:
                t += f"\ns_add_u32 s59, s59, {32768 if OPT.get('xperm') else 8192}"
            ld.append(t)
    ld[0] = f"s_mov_b32 s59, s{S_XO}\n" + ld[0]
    return ld


VG = (1, 4, 8, 11, 15, 18, 22, 25, 29, 32, 36, 39, 43, 46, 50, 53, 57, 60)


def step(Q, k, extra=None, scal=None):
    if OPT.get("sched", 1) == 0:
        return gen.step(Q, k, extra)
    cs = k & 1
    c0, c1 = C[cs]
    u0, u1, u2 = UU[cs]
    ld_u2, ld_u, ld_d, rd = k + 1 <= 15, k + 2 <= 15, k + 3 <= 16, k + 1 <= 15
    G = [[] for _ in range(64)]
    at = lambda g, f: G[g].append(f)
    R = lambda t: (lambda: Q.raw(t))

    def put(lst, gaps):
        it = iter(lst)
        for g, n in gaps:
            for _ in range(n):
                at(g, next(it))
        assert next(it, None) is None

    def uld(kk, j, nu):
        r = UU[kk & 1][j] + 4*nu
        return lambda: Q.vmem(f"buffer_load_dwordx4 {v(r,4)}, v{VU}, s[{SWS}:{SWS+3}], s{S_U0+j} offen offset:{1024*nu} {OPT['ldu']}", ("u", kk, j))

    def dld(kk, p):
        vo = (VTOP, VDMA, VDMA, VDMA, VDMA2, VBOT)[p]
        return lambda: Q.vmem(f"buffer_load_dwordx4 v{vo}, s[{SD}:{SD+3}], s{S_DMA} offen offset:{1024*(p & 3)} {OPT['ldd']} lds", ("raw", kk))
    w4 = OPT.get("w4", 1)
    uinc = lambda j: R(f"s_add_u32 s{S_U0+j}, s{S_U0+j}, " + (f"s{S_USTEP}" if w4 else "49152"))
    rr = lambda par, tb, w: (lambda: raw_read(Q, k+1, par, tb, w))
    if ld_u2:
        put([uld(k+1, 2, nu) for nu in range(4)], [(g, 1) for g in VG[0:4]])
    if ld_d:
        put([dld(k+3, p) for p in range(6)], [(g, 1) for g in VG[4:10]])
        at(12, lambda: dma_m0(Q, k+3, 0))
        at(27, lambda: dma_m0(Q, k+3, 1))
        at(40, R(f"s_add_u32 s{S_DMA}, s{S_DMA}, {gen.DSTEP:#x}"))
        if cs == 0:
            at(41, R(f"s_xor_b32 s{S_M0}, s{S_M0}, 0x10000"))
    if ld_u:
        put([uld(k+2, 0, nu) for nu in range(4)], [(g, 1) for g in VG[10:14]])
        put([uld(k+2, 1, nu) for nu in range(4)], [(g, 1) for g in VG[14:18]])
    at(13, uinc(2))
    at(14, lambda: Q.wait(vm=[("u", k, 1)]))
    at(30, uinc(1))
    at(31, lambda: Q.wait(vm=[("u", k, 2)], lg=[("rd", k+1, 1, 3)]))
    if rd:
        at(51, uinc(0))
        at(52, lambda: Q.wait(lg=[("rd", k+1, 1, 3)]))
        put([rr(0, tb, w) for tb in range(4) for w in range(2)] + [rr(1, tb, 0) for tb in range(4)],
            [(0, 2), (2, 2), (3, 2), (5, 2), (6, 1), (7, 1), (9, 1), (10, 1)])
        put([rr(1, tb, 1) for tb in range(4)], [(33, 1), (34, 1), (35, 1), (37, 1)])
    if scal:
        for g, fs in scal.items():
            G[g] += fs
    put([R(f"v_pk_add_f16 v{PP+i}, v{c0+i}, v{c1+i}") for i in range(16)],
        [(0, 1), (2, 1), (5, 1), (6, 2), (7, 1), (9, 2), (10, 1), (12, 2), (13, 3), (14, 2)] if rd else
        [(g, 2) for g in (0, 3, 6, 7, 10, 12, 13, 14)])
    put([R(f"v_pk_add_f16 v{c0+i}, v{c0+i}, v{c1+i} {NEG1}") for i in range(16)],
        [(16, 3), (17, 3), (19, 1), (21, 2), (23, 1), (26, 2), (27, 1), (30, 3)] if rd else
        [(g, 2) for g in (16, 17, 18, 21, 25, 26, 29, 30)])
    put([R(f"v_pk_add_f16 v{u1+i}, v{u1+i}, v{u0+i} {NEG1}") for i in range(16)],
        [(19, 2), (20, 2), (23, 2), (24, 2), (27, 2), (28, 2), (31, 2), (33, 1), (34, 1)] if rd else
        [(g, 2) for g in (19, 20, 23, 24, 27, 28, 31, 32)])
    put([R(f"v_pk_add_f16 v{u2+i}, v{u1+i}, v{u2+i}") for i in range(16)],
        [(35, 2), (37, 2), (40, 2), (41, 2), (44, 2), (45, 2), (47, 2), (48, 2)])
    if rd:
        put([(lambda i=i: h_op(Q, k+1, 0, i >> 2, i & 3)) for i in range(16)],
            [(33, 1), (34, 1), (38, 3), (42, 3), (44, 1), (45, 1), (47, 1), (49, 3), (51, 2)])
        put([(lambda i=i: h_op(Q, k+1, 1, i >> 2, i & 3)) for i in range(16)],
            [(52, 2), (54, 2), (55, 2), (56, 2), (58, 2), (59, 2), (61, 2), (62, 2)])
        if cs == 0:
            at(21, R(f"v_xor_b32 v{VA}, 0x10000, v{VA}")); at(26, R(f"v_xor_b32 v{VA1}, 0x10000, v{VA1}"))
            at(55, R(f"v_xor_b32 v{VB}, 0x10000, v{VB}")); at(59, R(f"v_xor_b32 v{VB1}, 0x10000, v{VB1}"))
    if extra:
        for g, fs in extra.items():
            G[g] += fs
    Q.wait(vm=[("raw", k+1), ("u", k, 0)])
    Q.raw("s_barrier")
    for g in range(64):
        j, nu, tb = g >> 4, (g >> 2) & 3, g & 3
        if nu & 1:
            tb = 3 - tb
        a = (u0, u1, u2, u2)[j] + 4*nu
        b = (c0, PP, c0, c1)[j] + 4*tb
        d = j*64 + nu*16 + tb*4
        Q.raw(f"v_mfma_f32_16x16x32_f16 {acc(d,4)}, {v(a,4)}, {v(b,4)}, {acc(d,4)}")
        for f in G[g]:
            f()


def kernel(stamps):
    A = Asm()
    st = Stamps(stamps)
    header(A, NAME)
    st.mark(A, "start", False)
    A("s_cmp_ge_u32 s2, 256\ns_cbranch_scc1 Lexit")
    A("s_load_dwordx16 s[4:19], s[0:1], 0")
    A("s_load_dwordx8 s[20:27], s[0:1], 64")
    A("v_lshrrev_b32 v8, 6, v0\nv_and_b32 v0, 63, v0")
    A(f"v_readfirstlane_b32 s{S_W}, v8")
    A(f"s_and_b32 s{S_GRP}, s2, 7\ns_lshr_b32 s{S_IDX}, s2, 3\ns_lshr_b32 s{S_B}, s{S_GRP}, 2")
    A(f"s_and_b32 s{S_NB}, s{S_GRP}, 3\ns_lshl_b32 s{S_NB}, s{S_NB}, 1\ns_and_b32 s56, s{S_IDX}, 1\ns_add_u32 s{S_NB}, s{S_NB}, s56")
    A(f"s_lshr_b32 s{S_RB}, s{S_IDX}, 1\ns_lshl_b32 s{S_OQ}, s{S_GRP}, 4\ns_add_u32 s{S_OQ}, s{S_OQ}, s{S_RB}")

    def touch():
        A(f"s_lshl_b32 s56, s{S_IDX}, 2\ns_add_u32 s56, s56, s{S_W}\nv_and_b32 v8, 1, v0\nv_lshl_add_u32 v8, v8, 7, s56")
        gen.code_touch(A, "Lpf", "Lcode_end", 8, 72, "Lpc", 56)
        A("global_load_dword v253, v[72:73], off\nLpf:")
    if OPT["pf"] == 1:
        touch()
    A("v_and_b32 v9, 15, v0\nv_lshrrev_b32 v10, 4, v0")
    A(f"v_lshlrev_b32 v{VDMA}, 4, v0")
    A(f"s_and_b32 s44, s{S_W}, 1\ns_lshl_b32 s56, s{S_NB}, 1\ns_add_u32 s44, s44, s56")
    A(f"s_lshr_b32 s45, s{S_W}, 1\ns_lshl_b32 s56, s{S_RB}, 1\ns_add_u32 s45, s45, s56")
    A(f"s_lshl_b32 s46, s{S_B}, 22\ns_lshl_b32 s56, s44, 18\ns_add_u32 s46, s46, s56")
    A(f"s_lshl_b32 s47, s45, 8\ns_add_u32 s47, s47, s46")
    gen.DSTEP = 4*OS
    A(f"v_lshlrev_b32 v11, {13 if OPT.get('xperm') else 16}, v10\nv_lshl_add_u32 v11, v9, 3, v11")
    A(f"s_cmp_eq_u32 s{S_W}, 3\ns_cselect_b32 s56, 128, 0\nv_add_u32 v{VX}, s56, v11\nv_xor_b32 v{VX+1}, 128, v{VX}")
    A(f"s_mov_b32 s{S_MASK}, 0xffff0000")
    A("s_waitcnt lgkmcnt(0)")
    st.mark(A, "karg", False)
    srd(A, SX, 4, 0x800000)
    srd(A, SO, 12, 512*9216)
    A(f"s_load_dword s{S_ASC}, s[26:27], {GEN}")
    A(f"s_cmp_lt_u32 s{S_W}, 2\ns_cbranch_scc1 Lside0\ns_cmp_eq_u32 s{S_W}, 3\ns_cbranch_scc1 Lside3")
    for i, p in enumerate((8, 10, 16, 18)):
        A(f"global_load_dwordx4 {v(16+4*i,4)}, v{VDMA}, s[{p}:{p+1}]")
    A("s_branch Lside0\nLside3:")
    A(f"v_lshrrev_b32 v12, 3, v0\ns_mul_i32 s56, s{S_RB}, 24\nv_add_u32 v12, s56, v12")
    A(f"s_and_b32 s56, s{S_IDX}, 1\ns_mul_i32 s56, s56, 768\nv_lshl_add_u32 v13, v12, 1, s56")
    for i in range(3):
        A(f"global_load_ushort v{16+i}, v13, s[6:7] offset:{16*i}")
    A(f"v_and_b32 v13, 7, v0\nv_lshlrev_b32 v13, 4, v13\nv_lshl_add_u32 v13, v12, 10, v13\ns_lshl_b32 s56, s{S_GRP}, 7\nv_add_u32 v13, s56, v13")
    for i in range(3):
        A(f"global_load_dwordx4 {v(20+4*i,4)}, v13, s[14:15]")
        if i < 2:
            A("v_add_u32 v13, 8192, v13")
    A("Lside0:")
    A(f"s_mov_b32 s{S_XO}, s47")
    for t in x_loads():
        A(t)
    st.mark(A, "xis", False)
    npf = int(OPT["pf"] == 2)
    if npf:
        touch()
    srd(A, SWS, 26, WS_BYTES)
    A(f"s_mul_i32 s{S_SLOT}, s{S_GRP}, {GRPS}\ns_lshl_b32 s56, s{S_IDX}, 7\ns_add_u32 s{S_SLOT}, s{S_SLOT}, s56")
    def ftouch():
        A(f"v_min_u32 v11, 5, v0\nv_lshlrev_b32 v11, 16, v11\ns_cmp_eq_u32 s{S_W}, 1\ns_cselect_b32 s56, 0, {OOB:#x}")
        A(f"s_add_u32 s56, s56, s{S_SLOT}\ns_add_u32 s56, s56, {STAT:#x}")
        A(f"buffer_load_dword v{VT+1}, v11, s[{SWS}:{SWS+3}], s56 offen sc1")
    npf += 1
    if OPT.get("ft", 3) == 1:
        ftouch()
    A(f"s_cmp_eq_u32 s{S_W}, 0\ns_cselect_b32 s58, 5, 0")
    A(f"v_lshrrev_b32 v11, 3, v0\nv_min_u32 v11, s58, v11\nv_lshlrev_b32 v11, 16, v11\nv_and_b32 v14, 0x70, v{VDMA}\nv_add_u32 v11, v11, v14")
    A(f"v_mov_b32 v132, 0\nv_mov_b32 v133, -1\nv_mov_b32 v134, 0\nv_mov_b32 v135, 0")
    A(f"s_lshl_b32 s56, s{S_IDX}, 4\ns_add_u32 s56, s56, s{S_GRP}\ns_mul_i32 s56, s56, {OS}\ns_add_u32 s56, s56, {D1 + 9*OS - 256}")
    A(f"s_mul_i32 s57, s{S_IDX}, {US}\ns_lshl_b32 s58, s{S_GRP}, 8\ns_add_u32 s57, s57, s58\ns_add_u32 s57, s57, {U1 - 15*US - 4096}")
    A(f"s_cmp_lt_u32 s{S_IDX}, 16\ns_cselect_b32 s57, s56, s57")
    A(f"s_mov_b32 s{SD+2}, {WS_BYTES:#x}\ns_mov_b32 s{SD+3}, 0x20000")
    A(f"s_cmp_eq_u32 s{S_W}, 2\ns_cselect_b32 s{SD}, s22, s26\ns_cselect_b32 s{SD+1}, s23, s27\ns_cselect_b32 s{SD+2}, 0x800000, s{SD+2}\ns_cselect_b32 s57, s{S_XO}, s57")
    if OPT.get("tlbi"):
        A(f"s_bitcmp1_b32 {OPT['tlbi']:#x}, s{S_IDX}\ns_cselect_b32 s57, s57, {OOB:#x}")
    A(f"s_bitcmp1_b32 {OPT.get('tlbw', 6) if OPT['tlb'] else 0}, s{S_W}\ns_cselect_b32 s57, s57, {OOB:#x}")
    A(f"s_add_u32 s56, s{S_SLOT}, {STAT:#x}\ns_cmp_eq_u32 s{S_W}, 0\ns_cselect_b32 s57, s56, s57")
    A(f"buffer_store_dwordx4 v[132:135], v11, s[{SD}:{SD+3}], s57 offen sc1")
    A(f"v_mul_u32_u24 v{VD}, {OS}, v10\nv_lshl_add_u32 v{VD}, v9, 4, v{VD}")
    A(f"s_mul_i32 s46, s{S_B}, {64*OS}\ns_add_u32 s56, s46, {D1 - 1024:#x}\ns_mul_i32 s57, s44, {4*OS}\ns_add_u32 s46, s46, s57")
    A(f"s_add_u32 s{SD}, s26, s56\ns_addc_u32 s{SD+1}, s27, 0\ns_mov_b32 s{SD+2}, {64*OS + 1024:#x}\ns_mov_b32 s{SD+3}, 0x20000")
    A(f"s_lshl_b32 s56, s45, 11\ns_add_u32 s{S_RA}, s46, s56\ns_add_u32 s{S_RA}, s{S_RA}, {D1:#x}")
    A(f"s_cmp_eq_u32 s{S_W}, 3\ns_cselect_b32 s56, 1024, 0\ns_cselect_b32 s57, 0, 1024\ns_add_u32 s{S_RB2}, s{S_RA}, s57\ns_add_u32 s{S_RA}, s{S_RA}, s56")
    A(f"s_lshl_b32 s56, s44, 6\nv_lshlrev_b32 v237, 4, v10\nv_add_u32 v237, s56, v237")
    A(f"v_add_u32 v{VDMA2}, 4096, v{VDMA}")
    A(f"s_cmp_eq_u32 s{S_RB}, 0\ns_cselect_b32 s56, {OOB:#x}, 0\nv_add_u32 v{VTOP}, s56, v{VDMA}")
    A(f"s_cmp_eq_u32 s{S_RB}, 15\ns_cselect_b32 s56, {OOB:#x}, 0\nv_add_u32 v{VBOT}, s56, v{VDMA2}")
    A(f"v_lshrrev_b32 v11, 2, v9\nv_lshlrev_b32 v11, 8, v11\nv_lshl_add_u32 v11, v10, 6, v11")
    A(f"v_and_b32 v14, 3, v9\nv_lshl_add_u32 v{VU}, v14, 4, v11")
    A(f"s_lshl_b32 s57, s{S_W}, 10\ns_lshr_b32 s56, s{S_W}, 1\ns_sub_u32 s58, 2, s56\ns_lshl_b32 s58, s58, 10\ns_lshl_b32 s56, s56, 11")
    A(f"v_mul_u32_u24 v11, 6144, v10\nv_lshl_add_u32 v11, v9, 4, v11")
    A(f"v_add_u32 v14, s56, v11\ns_xor_b32 s56, s56, 2048\nv_add_u32 v11, s56, v11")
    A(f"v_add_u32 v{VA}, s57, v14\nv_add_u32 v{VB}, s58, v14\nv_add_u32 v{VA1}, s57, v11\nv_add_u32 v{VB1}, s58, v11")
    A(f"s_mov_b32 s56, 0xbc00bc00\ns_cmp_eq_u32 s{S_W}, 1\ns_cselect_b32 s{S_SGN}, 0x3c003c00, s56")
    A(f"s_mul_i32 s{S_M0}, s{S_W}, 6144")
    for phi in (1, 2, 3):
        A(f"s_xor_b32 s56, s{S_W}, {phi}\ns_mul_i32 s56, s56, 3\ns_add_u32 s56, s56, {phi-1}\ns_lshl_b32 s56, s56, 13\nv_add_u32 v{VW[phi]}, s56, v{VDMA}")
    A(f"s_lshl_b32 s57, s{S_W}, 2\ns_mul_i32 s58, s{S_W}, 3")
    for r, tab in zip(VR, (0x1100, 0x0221, 0x2012)):
        A(f"s_lshr_b32 s56, {tab:#x}, s57\ns_and_b32 s56, s56, 15\ns_add_u32 s56, s56, s58\ns_lshl_b32 s56, s56, 13\nv_add_u32 v{r}, s56, v{VDMA}")
    A(f"s_cmp_eq_u32 s{S_W}, 3\ns_cselect_b32 s{S_AG}, -1.0, 1.0\ns_cmp_ge_u32 s{S_W}, 2\ns_cselect_b32 s{S_AG+1}, 1.0, -1.0")
    A(f"s_xor_b32 s{S_BB+1}, s{S_AG+1}, 0x80000000\ns_add_u32 s56, s{S_W}, 1\ns_bitcmp1_b32 s56, 1")
    A(f"s_cselect_b32 s{S_BB}, 0, 1.0\ns_cselect_b32 s{S_BB+1}, s{S_BB+1}, 0")
    A(f"v_cmp_eq_u32 vcc, 63, v0\nv_mov_b32 v11, {OOB:#x}\nv_mov_b32 v{VXL}, {XLDS}\nv_cndmask_b32 v{V63}, v11, 0, vcc")
    A(f"s_mov_b32 s{S_IT}, 0")
    A("v_and_b32 v35, 7, v0\nv_lshlrev_b32 v35, 5, v35\nv_lshl_add_u32 v35, v10, 3, v35")
    A(f"s_and_b32 s56, s{S_IDX}, 1\ns_lshl_b32 s56, s56, 7\ns_add_u32 s56, s56, s{S_OQ}\ns_lshl_b32 s56, s56, 8\ns_add_u32 s{S_E2}, s56, {EMBP:#x}")
    A(f"v_and_b32 v11, 3, v0\nv_lshrrev_b32 v14, 2, v0\nv_mul_u32_u24 v11, {WROW}, v11\nv_mul_u32_u24 v14, 144, v14")
    A(f"s_mul_i32 s58, s{S_W}, 2304\ns_add_u32 s58, s58, {WLDS}\nv_add3_u32 v{VJ}, v11, v14, s58")
    A(f"v_mul_u32_u24 v{VS}, 49152, v10\nv_lshl_add_u32 v{VS}, v9, 4, v{VS}")
    A(f"s_mul_i32 s56, s{S_GRP}, {US}\ns_add_u32 s56, s56, {U1:#x}")
    A(f"s_bfe_u32 s58, s{S_RB}, 0x10003\ns_lshl_b32 s58, s58, 11\ns_add_u32 s56, s56, s58")
    A(f"s_and_b32 s58, s{S_RB}, 1\ns_lshl_b32 s58, s58, 10\ns_add_u32 s56, s56, s58")
    A(f"s_bfe_u32 s58, s{S_RB}, 0x20001\ns_lshl_b32 s58, s58, 8\ns_add_u32 s56, s56, s58")
    A(f"s_mul_i32 s58, s{S_W}, {4*49152}\ns_add_u32 s56, s56, s58\ns_xor_b32 s58, s56, 2048")
    A(f"s_bitcmp1_b32 s{S_IDX}, 0\ns_cselect_b32 s{S_J0}, s58, s56\ns_cselect_b32 s{S_J1}, s56, s58")
    A(f"s_cselect_b32 s58, {3*12288}, 0\ns_cselect_b32 s59, 12288, 0")
    A(f"s_add_u32 s{S_J0}, s{S_J0}, s58\ns_add_u32 s{S_J1}, s{S_J1}, s59\ns_add_u32 s{S_J1}, s{S_J1}, 12288")
    wk = OPT.get("wk", 9)
    wsp = OPT.get("wsp", (2, 2, 2, 3, 0))
    nextw = f"s_mov_b32 s{SO}, s20\ns_mov_b32 s{SO+1}, s21"
    if wk < 0:
        A("\n".join(w_loads(WLDS, 56, 57)) + "\n" + nextw)
    st.mark(A, "wis", False)
    nlate = 0
    if OPT["pf"] == 3:
        touch(); nlate += 1; npf += 1
    if OPT.get("ft", 3) == 2 and wk < 0:
        ftouch(); nlate += 1
    if wk == 9 and OPT.get("ft", 3) == 2:
        npf -= 1
    w1l = w_loads(WLDS, 44, 46)
    A(f"s_cmp_lt_u32 s{S_W}, 2\ns_cbranch_scc1 Lside1\ns_waitcnt vmcnt({16 + 9*(wk < 0) + npf})\ns_cmp_eq_u32 s{S_W}, 3\ns_cbranch_scc1 Lside4")
    A("v_mov_b32 v12, 0\nv_mov_b32 v13, 0")
    for d in range(16):
        unpack_bf16(A, 16 + d, 14, 15)
        A(f"v_max3_f32 v{12 + d//8}, |v14|, |v15|, v{12 + d//8}")
    A("s_nop 0")
    wave_reduce(A, [12, 13], "v_max_f32")
    for r in (12, 13):
        A(f"v_frexp_exp_i32_f32 v{r}, v{r}\nv_min_i32 v{r}, 60, v{r}\nv_max_i32 v{r}, 0xffffffc4, v{r}")
    A(LANE63)
    A(f"ds_write_b64 v{VXL}, v[12:13] offset:72\ns_mov_b64 exec, -1\ns_branch Lside1")
    A("Lside4:")
    for i in range(3):
        A(f"v_lshlrev_b32 v{16+i}, 16, v{16+i}")
    for op in (f"v_mul_f32 v{{t}}, {NLOG2E:#x}, v{{x}}", "v_exp_f32 v{t}, v{t}", "v_add_f32 v{t}, 1.0, v{t}",
               "v_rcp_f32 v{t}, v{t}", "v_mul_f32 v{x}, v{x}, v{t}"):
        for i in range(3):
            A(op.format(t=32+i, x=16+i))
    for i in range(3):
        for d in range(4):
            unpack_bf16(A, 20 + 4*i + d, 44 + 2*d, 45 + 2*d)
        for k in range(8):
            A(f"v_mul_f32 v{36+k}, v{44+k}, v{16+i}" if i == 0 else f"v_fmac_f32 v{36+k}, v{44+k}, v{16+i}")
    for k in range(8):
        A(f"v_add_f32_dpp v{36+k}, v{36+k}, v{36+k} row_ror:8 row_mask:0xf bank_mask:0xf")
    A("s_nop 1")
    for k in (0, 1, 4, 5):
        A(f"v_permlane16_swap_b32 v{36+k}, v{38+k}")
    for k in (0, 1, 4, 5):
        A(f"v_add_f32 v{36+k}, v{36+k}, v{38+k}")
    A("s_nop 1")
    for k in (0, 1):
        A(f"v_permlane32_swap_b32 v{36+k}, v{40+k}")
    for k in (0, 1):
        A(f"v_add_f32 v{36+k}, v{36+k}, v{40+k}")
    A("Lside1:")
    st.mark(A, "side", False)
    P = 116

    def sums(A, x, a, first):
        if first:
            A(f"v_pk_mul_f32 {v(a+4,2)}, {v(x,2)}, {v(x,2)}\nv_pk_mul_f32 {v(a,2)}, {v(x,2)}, 1.0 op_sel_hi:[1,0]")
        else:
            A(f"v_pk_add_f32 {v(a,2)}, {v(a,2)}, {v(x,2)}\nv_pk_fma_f32 {v(a+4,2)}, {v(x,2)}, {v(x,2)}, {v(a+4,2)}")
    for k in range(0, 8, 2):
        A(f"s_waitcnt vmcnt({12 + (sum(wsp[:k//2]) if wk == 9 else 9*(wk < k)) + (0 if k == 6 and OPT.get('ft', 3) == 3 else npf) - 2*k})")
        if k == 6:
            st.mark(A, "xin", False)
        B = Asm()
        for kk in (k, k+1):
            for rho in range(2):
                r = XR + (rho*8 + kk)*2
                unpack_bf16(B, r, H + (rho*4 + 0)*8 + kk, H + (rho*4 + 1)*8 + kk)
                unpack_bf16(B, r+1, H + (rho*4 + 2)*8 + kk, H + (rho*4 + 3)*8 + kk)
        for p in range(8):
            sums(B, H + p*8 + k, P + 2*(p & 1), k == 0 and p < 2)
        if k == wk:
            weave(A, B.L, w_loads(WLDS, 56, 57))
            A(nextw)
        else:
            A("\n".join(B.L))
        if wk == 9:
            A("\n".join(w1l[sum(wsp[:k//2]):sum(wsp[:k//2 + 1])]))

    A("Lstats:")
    A(f"v_pk_add_f32 {v(P,2)}, {v(P,2)}, {v(P+2,2)}")
    A(f"v_pk_add_f32 {v(P+4,2)}, {v(P+4,2)}, {v(P+6,2)}")
    A(f"v_add_f32 v{P}, v{P}, v{P+1}\nv_add_f32 v{P+1}, v{P+4}, v{P+5}")
    wave_reduce(A, [P, P+1])
    A(f"s_lshl_b32 s56, s{S_W}, 3\nv_add_u32 v{P+2}, s56, v{VXL}")
    A(LANE63)
    A(f"ds_write_b64 v{P+2}, {v(P,2)}")
    A("s_mov_b64 exec, -1")
    A(f"s_lshl_b32 s59, s{S_IT}, 16\ns_add_u32 s56, s59, s{S_SLOT}\ns_add_u32 s56, s56, {STAT:#x}")
    A(f"s_cmp_eq_u32 s{S_IT}, 0\ns_cbranch_scc1 Lb1\ns_waitcnt vmcnt(0)\nLb1:")
    A(f"s_waitcnt lgkmcnt(0)\ns_barrier\ns_add_u32 s{S_TAG}, s{S_ASC}, {TAGSTEP:#x}")
    A(f"s_cmp_lg_u32 s{S_W}, 0\ns_cbranch_scc1 Lnopub")
    A(f"ds_read_b128 {v(P,4)}, v{VXL}\nds_read_b128 {v(P+4,4)}, v{VXL} offset:16")
    A(f"v_mov_b32 v133, s{S_TAG}\nv_mov_b32 v135, s{S_TAG}\ns_waitcnt lgkmcnt(0)")
    A(f"v_pk_add_f32 {v(P,2)}, {v(P,2)}, {v(P+2,2)}\nv_pk_add_f32 {v(P+4,2)}, {v(P+4,2)}, {v(P+6,2)}")
    A(f"v_add_f32 v132, v{P}, v{P+4}\nv_add_f32 v134, v{P+1}, v{P+5}")
    if OPT.get("fl", 1):
        A(f"v_and_b32 v{P}, 0x70, v{VDMA}\nbuffer_store_dwordx4 v[132:135], v{P}, s[{SWS}:{SWS+3}], s56 offen sc1")
    else:
        A(f"buffer_store_dwordx4 v[132:135], v{V63}, s[{SWS}:{SWS+3}], s56 offen sc1")
    A("Lnopub:")
    st.mark(A, "pub")
    A(f"s_mul_i32 s{S_POLL}, s{S_GRP}, {GRPS}\ns_add_u32 s{S_POLL}, s{S_POLL}, s59\ns_add_u32 s{S_POLL}, s{S_POLL}, {STAT:#x}")
    A(f"v_cmp_gt_u32 vcc, 32, v0\nv_mov_b32 v{P}, {OOB:#x}\nv_lshlrev_b32 v{VPOLL}, 7, v0\nv_cndmask_b32 v{VPOLL}, v{P}, v{VPOLL}, vcc")
    A(f"s_cmp_lg_u32 s{S_IT}, 0\ns_cbranch_scc1 Ljob")
    if wk == 9:
        A("\n".join(w1l[sum(wsp[:4]):]) + "\n" + nextw)
        if OPT.get("ft", 3) == 2:
            ftouch(); nlate = 1
    A(f"global_load_dwordx4 {v(GR,4)}, v237, s[8:9]\nglobal_load_dwordx4 {v(BR,4)}, v237, s[10:11]")
    A(f"s_cmp_eq_u32 s{S_W}, 3\ns_cselect_b32 s56, s{S_E2}, {OOB:#x}")
    A(f"buffer_store_dwordx2 v[36:37], v35, s[{SWS}:{SWS+3}], s56 offen sc1")
    if wk == 9 and wsp[4]:
        A(f"s_waitcnt vmcnt({3 + nlate})\ns_barrier")
    else:
        A(f"s_cmp_eq_u32 s{S_W}, 0\ns_cbranch_scc1 Lw3\ns_waitcnt vmcnt({3 + nlate})\nLw3:\ns_waitcnt vmcnt({4 + nlate})\ns_barrier")
    A("Ljob:")
    st.mark(A, "win")
    def totals(first):
        spin(A, "Ls", POLL4, f"v_cmp_ne_u32 vcc, s{S_TAG}, v{PLD+1}\nv_cmp_ne_u32 s[56:57], s{S_TAG}, v{PLD+3}\ns_nop 1\ns_or_b32 s56, s56, vcc_lo", first)
        wave_reduce(A, [PLD, PLD+2])
        A(f"v_mul_f32 v{PLD}, 0xb6000000, v{PLD}\nv_mul_f32 v{PLD+2}, 0x36000000, v{PLD+2}")
        A(f"v_fma_f32 v{PLD+2}, -v{PLD}, v{PLD}, v{PLD+2}\nv_max_f32 v{PLD+2}, 0, v{PLD+2}")
        A(f"v_add_f32 v{PLD+2}, 0x3727c5ac, v{PLD+2}\nv_rsq_f32 v{PLD+1}, v{PLD+2}")
        A(LANE63)
        A(f"ds_write_b64 v{VXL}, {v(PLD,2)} offset:64")
        A("s_mov_b64 exec, -1")
    jpos, late = (), []
    if OPT.get("gate", 0):
        A1, B1, KK, TT, OUT = 96, 104, 112, 8, 24

        def gate():
            A(f"s_mov_b32 s56, {NLOG2E:#x}\ns_waitcnt vmcnt(2)\ns_cmp_eq_u32 s{S_W}, 0\ns_cbranch_scc1 Lg0\ns_waitcnt vmcnt(1)\nLg0:")
            for d in range(4):
                unpack_bf16(A, GR + d, A1 + 2*d, A1 + 2*d + 1)
                unpack_bf16(A, BR + d, B1 + 2*d, B1 + 2*d + 1)
            for k in range(0, 16, 2):
                A(f"v_pk_mul_f32 {v(A1+k,2)}, {v(A1+k,2)}, s[56:57] {LO2}")
            A(f"s_cmp_lg_u32 s{S_W}, 0\ns_cbranch_scc1 Ljoin")
            totals(True)
            A("Ljoin:")
        job(A, f"s_cmp_lg_u32 s{S_W}, 0\ns_cbranch_scc1 Ljob_mid\n{POLL4}\nLjob_mid:", job_stores(), gate)
        st.mark(A, "b4")
        A(f"s_cmp_lg_u32 s{S_IT}, 0\ns_cselect_b64 vcc, -1, 0\ns_mov_b32 s56, {NLOG2E:#x}")
        A(f"v_cndmask_b32 v{KK}, v{PLD+2}, v{PLD+3}, vcc")
        A(f"v_add_u32 v{KK}, 124, v{KK}\nv_lshlrev_b32 v{KK}, 23, v{KK}\nv_mul_f32 v{KK+1}, s56, v{KK}")
        A(f"v_readfirstlane_b32 s{S_INV}, v{KK}\nv_mul_f32 v{KK}, s56, v{KK}")
    else:
        scheck = f"v_cmp_ne_u32 vcc, s{S_TAG}, v{PLD+1}\nv_cmp_ne_u32 s[58:59], s{S_TAG}, v{PLD+3}\ns_nop 1\ns_or_b32 s58, s58, vcc_lo"
        g2 = OPT.get("g2", 1)
        if g2:
            who = f"s_or_b32 s57, s{S_W}, s{S_IT}" if g2 == 1 else f"s_cmp_lg_u32 s{S_W}, 0"

            def hold():
                st.mark(A, "ja")
                A(f"{who}\ns_cbranch_scc1 Le_ok")
                spin(A, "Le", POLL4, scheck, True, 57)
                st.mark(A, "held")
            job(A, f"s_cmp_ge_u32 s{S_W}, s{S_IT}\ns_cbranch_scc1 Ljob_mid\n{POLL4}\nLjob_mid:" if g2 == 1 else "", job_stores(),
                early=(f"{who}\ns_cbranch_scc1 Ljob_e\n{POLL4}\nLjob_e:", hold))
        else:
            job(A, f"s_cmp_lg_u32 s{S_W}, 0\ns_cbranch_scc1 Ljob_mid\n{POLL4}\nLjob_mid:", job_stores())
        st.mark(A, "job0")
        A1, B1, KK, TT, OUT = 8, 16, 24, 32, 80
        pre = Asm()
        pre(f"ds_read_b64 {v(KK,2)}, v{VXL} offset:72\ns_mov_b32 s56, {NLOG2E:#x}\ns_waitcnt vmcnt(6)")
        for d in range(4):
            unpack_bf16(pre, GR + d, A1 + 2*d, A1 + 2*d + 1)
            unpack_bf16(pre, BR + d, B1 + 2*d, B1 + 2*d + 1)
        A(f"s_cmp_lg_u32 s{S_W}, 0\ns_cbranch_scc1 Ljoin")
        A(f"s_mov_b32 s58, {SPIN_MAX}\ns_waitcnt vmcnt(6)\ns_branch Ls_chk")
        spin(A, "Ls", POLL4, f"v_cmp_ne_u32 vcc, s{S_TAG}, v{PLD+1}\nv_cmp_ne_u32 s[56:57], s{S_TAG}, v{PLD+3}\ns_nop 1\ns_or_b32 s56, s56, vcc_lo", None)
        wave_reduce(A, [PLD, PLD+2])
        A(f"v_mul_f32 v{PLD}, 0xb6000000, v{PLD}\nv_mul_f32 v{PLD+2}, 0x36000000, v{PLD+2}")
        A(f"v_fma_f32 v{PLD+2}, -v{PLD}, v{PLD}, v{PLD+2}\nv_max_f32 v{PLD+2}, 0, v{PLD+2}")
        A(f"v_add_f32 v{PLD+2}, 0x3727c5ac, v{PLD+2}\nv_rsq_f32 v{PLD+1}, v{PLD+2}")
        A(LANE63)
        A(f"ds_write_b64 v{VXL}, {v(PLD,2)} offset:64")
        A("s_mov_b64 exec, -1")
        A("Ljoin:")
        A("\n".join(pre.L))
        A(f"s_cmp_lg_u32 s{S_IT}, 0\ns_cselect_b64 vcc, -1, 0\ns_waitcnt lgkmcnt(0)\ns_barrier")
        st.mark(A, "b4")
        A(f"ds_read_b64 {v(PLD,2)}, v{VXL} offset:64")
        jpos = OPT.get("jpos", (-1, -1, 0, 0, 1, 1)) if OPT["jst"] == 2 else ()
        late = list(zip(jpos, job_stores()))
        if late:
            A(late.pop(0)[1])
        A(f"v_cndmask_b32 v{KK}, v{KK}, v{KK+1}, vcc")
        A(f"v_add_u32 v{KK}, 124, v{KK}\nv_lshlrev_b32 v{KK}, 23, v{KK}")
        for k in range(0, 16, 2):
            A(f"v_pk_mul_f32 {v(A1+k,2)}, {v(A1+k,2)}, s[56:57] {LO2}")
        A(f"v_readfirstlane_b32 s{S_INV}, v{KK}\nv_mul_f32 v{KK+1}, s56, v{KK}\nv_mul_f32 v{KK}, s56, v{KK}")
        while late and late[0][0] < 0:
            A(late.pop(0)[1])
        A("s_waitcnt lgkmcnt(0)")
        st.mark(A, "tot")
    for k in range(0, 8, 2):
        A(f"v_pk_mul_f32 {v(A1+k,2)}, {v(A1+k,2)}, {v(PLD,2)} {HI2}")
    for k in range(0, 8, 2):
        A(f"v_pk_fma_f32 {v(B1+k,2)}, {v(A1+k,2)}, {v(PLD,2)}, {v(B1+k,2)} {LO3}")
    A(f"v_mov_b32 v{VT}, s{S_TAG}\nv_mov_b32 v{VT+1}, s{S_TAG}")
    A(f"s_lshl_b32 s59, s{S_IT}, 16\ns_add_u32 s57, s59, s{S_SLOT}\ns_lshl_b32 s56, s{S_W}, 4\ns_add_u32 s56, s56, s57\ns_add_u32 s{S_E2}, s56, {UF:#x}")
    uflag = (f"v_mov_b32 v{BR}, s{S_TAG}\nv_mov_b32 v{BR+1}, s{S_TAG}\nv_mov_b32 v{BR+2}, s{S_WS}\ns_waitcnt vmcnt(%d)\n"
             f"buffer_store_dwordx4 {v(BR,4)}, v{V63}, s[{SWS}:{SWS+3}], s{S_E2} offen sc1")
    ufp = OPT.get("ufp", 4)
    for p in range(8):
        o = OUT + 4*p
        B = Asm()
        silu(B, H + p*8, A1, B1, KK, TT + 8*(p & 1), o)
        weave(A, B.L, [t for q, t in late if q == p] or [""], 8, 32)
        A(f"buffer_store_dwordx4 {v(o,4)}, v{VD}, s[{SWS}:{SWS+3}], s{S_RA + (p >> 2)} offen offset:{256*(p & 3)} sc1")
        if p == ufp:
            A(uflag % (ufp + 1 - max((0,) + jpos)))
    st.mark(A, "silu")
    VUP, S_UP = 239, S_RET
    A(f"v_lshrrev_b32 v8, 2, v0\nv_lshlrev_b32 v8, 8, v8\nv_and_b32 v9, 3, v0\nv_lshl_add_u32 v{VUP}, v9, 4, v8")
    A(f"s_mul_i32 s{S_UP}, s{S_NB}, {GRPS}\ns_lshr_b32 s56, s{S_W}, 1\ns_lshl_b32 s56, s56, 7\ns_add_u32 s{S_UP}, s{S_UP}, s56")
    A(f"s_add_u32 s{S_UP}, s{S_UP}, s59\ns_add_u32 s{S_UP}, s{S_UP}, {UF:#x}")
    A(f"s_add_u32 s57, s57, {DF:#x}")
    A(f"s_mul_i32 s{S_U0}, s{S_NB}, {US}\ns_mul_i32 s56, s{S_W}, 12288\ns_add_u32 s{S_U0}, s{S_U0}, s56")
    A(f"s_mul_i32 s56, s{S_IT}, {U2-U1}\ns_add_u32 s{S_U0}, s{S_U0}, s56")
    A(f"s_add_u32 s{S_U0}, s{S_U0}, {U1:#x}\ns_add_u32 s{S_U1}, s{S_U0}, 4096\ns_add_u32 s{S_U2}, s{S_U0}, 8192")
    A(f"s_mul_i32 s{S_DMA}, s{S_W}, {OS}\ns_lshl_b32 s56, s{S_RB}, 12\ns_add_u32 s{S_DMA}, s{S_DMA}, s56")
    A(f"v_lshrrev_b32 v8, 3, v0\nv_min_u32 v8, 2, v8\nv_add_u32 v8, s{S_RB}, v8\nv_add_u32 v8, -1, v8\nv_med3_i32 v8, v8, 0, 15")
    A(f"v_and_b32 v9, 1, v0\nv_lshl_add_u32 v8, v8, 1, v9\nv_lshlrev_b32 v8, 7, v8")
    A(f"v_bfe_u32 v9, v0, 1, 2\nv_mul_u32_u24 v9, {GRPS}, v9\nv_add_u32 v{VPOLL}, v8, v9")
    A(f"s_mul_i32 s{S_POLL}, s{S_B}, {4*GRPS}\ns_add_u32 s{S_POLL}, s{S_POLL}, s59\ns_add_u32 s{S_POLL}, s{S_POLL}, {DF:#x}")
    upoll = f"buffer_load_dwordx2 {v(GR,2)}, v{VUP}, s[{SWS}:{SWS+3}], s{S_UP} offen sc1"
    ucheck = f"v_cmp_ne_u32 vcc, s{S_TAG}, v{GR}\nv_cmp_ne_u32 s[56:57], s{S_TAG}, v{GR+1}\ns_nop 1\ns_or_b64 s[56:57], s[56:57], vcc"
    dflag = f"buffer_store_dwordx2 {v(VT,2)}, v{V63}, s[{SWS}:{SWS+3}], s57 offen sc1"
    zero = [f"v_accvgpr_write_b32 a{i}, 0" for i in range(256)]
    nz1 = OPT.get("nz1", 160)
    Q0, Q1 = Seq(), Seq()

    def ulist(Q, kj):
        L = []
        for k, j in kj:
            for nu in range(4):
                u_load(Q, k, j, nu)
                L.append(Seq.text(Q.take()))
        return L

    def dma_list(Q, k):
        L = []
        for p in range(6):
            if p in (0, 4):
                dma_m0(Q, k, p >> 2); Q.raw("s_nop 0")
            dma(Q, k, p)
            L.append(Seq.text(Q.take()))
        return L
    Q = Q1
    nz1 = OPT.get("nz1", 128)
    weave(A, zero[:nz1], [upoll], OPT.get("nz0", 100))
    A("s_waitcnt vmcnt(1)\ns_barrier")
    st.mark(A, "b5")
    A(f"s_cmp_lg_u32 s{S_W}, 0\ns_cbranch_scc1 Lnodf")
    A(f"{dflag}\nLnodf:")
    A("\n".join(zero[nz1:]))
    A(f"s_mov_b32 s58, {SPIN_MAX}\ns_waitcnt vmcnt(1)\ns_cmp_eq_u32 s{S_W}, 0\ns_cbranch_scc1 Lu_chk\ns_branch Lu_wait")
    spin(A, "Lu", upoll, ucheck, None)
    st.mark(A, "uok")
    A(f"s_cmp_lg_u32 s{S_W}, 0\ns_cbranch_scc1 Lnp")
    A(f"{POLL4}\nLnp:")
    A("\n".join(ulist(Q, ((0, 0), (0, 1), (0, 2), (1, 0)))))
    st.mark(A, "job1")
    A(f"s_cmp_lg_u32 s{S_W}, 0\ns_cbranch_scc1 Ld_ok")
    A(f"s_mov_b32 s58, {SPIN_MAX}\ns_waitcnt vmcnt(16)\ns_branch Ld_chk")
    spin(A, "Ld", POLL4, f"v_cmp_ne_u32 vcc, s{S_TAG}, v{PLD}\nv_cmp_ne_u32 s[56:57], s{S_TAG}, v{PLD+1}\ns_nop 1\ns_or_b64 s[56:57], s[56:57], vcc", None)
    A("s_barrier")
    st.mark(A, "b6")
    A("\n".join(dma_list(Q, 0) + dma_list(Q, 1)))
    A(f"s_xor_b32 s{S_M0}, s{S_M0}, 0x10000\ns_mov_b32 s{S_CNT}, 7")
    d2 = dma_list(Q, 2)
    nd2 = OPT.get("nd2", 4)
    A("\n".join(d2[:nd2]))
    A(f"s_lshl_b32 s56, s{S_W}, 5\nv_and_b32 v8, 31, v0\nv_add_u32 v8, s56, v8")
    gen.code_touch(A, "Ltail", "Lcode_end", 8, 234, "Lpc2", 56)
    if OPT.get("l2pf", 0):
        first = OPT.get("l2first", 4)
        A(f"s_and_b32 s56, s{S_IDX}, 1\ns_lshl_b32 s56, s56, 2\ns_add_u32 s56, s56, s{S_W}\ns_lshl_b32 s57, s{S_B}, 6\ns_add_u32 s56, s56, s57")
        A(f"s_mul_i32 s56, s56, {OS}\ns_lshl_b32 s57, s{S_RB}, 12\ns_add_u32 s56, s56, s57")
        A(f"s_mul_i32 s57, s{S_IT}, {D2-D1}\ns_add_u32 s56, s56, s57\ns_add_u32 s56, s56, {D1 + first*4*OS}")
        A(f"s_lshl_b32 s57, s{S_RB}, 2\ns_add_u32 s57, s57, s{S_W}\ns_mul_i32 s57, s57, 1536\ns_mul_i32 s58, s{S_NB}, 786432\ns_add_u32 s57, s57, s58")
        A(f"s_lshl_b32 s58, s{S_IT}, 23\ns_add_u32 s57, s57, s58\ns_add_u32 s57, s57, {U1 + first*49152 - 4096}")
        A(f"v_cmp_gt_u32 vcc, 32, v0\nv_mov_b32 v8, s57\nv_mov_b32 v9, s56\nv_min_u32 v10, 43, v0\nv_cndmask_b32 v8, v8, v9, vcc")
        if OPT.get("l2u", 1):
            A("v_mov_b32 v8, s57\nv_max_u32 v10, 32, v10\ns_mov_b64 vcc, 0")
        A(f"v_lshl_add_u32 v232, v10, 7, v8\nv_mov_b32 v8, {2*49152}\nv_mov_b32 v9, {8*OS}\nv_cndmask_b32 v233, v8, v9, vcc")
    A(f"s_waitcnt vmcnt({6 + nd2})\ns_barrier")
    st.mark(A, "b7")
    for par in range(2):
        for tb in range(4):
            raw_read(Q, 0, par, tb, 0); raw_read(Q, 0, par, tb, 1)
    for par in range(2):
        for tb in range(4):
            Q.wait(lg=[("rd", 0, par, tb)])
            for d in range(4):
                h_op(Q, 0, par, tb, d)
    main = Seq.text(Q.take()).split("\n")
    weave(A, main, d2[nd2:] + ulist(Q, ((1, 1),)), 12)
    l2 = OPT.get("l2pf", 0)
    pfl = f"buffer_load_dword v{VT+1}, v232, s[{SWS}:{SWS+3}], %s offen sc1"
    pfa = "v_add_u32 v232, v232, v233"
    Q.wait(vm=[("raw", 1)])
    A(Seq.text(Q.take()))
    if l2:
        for _ in range((l2 - OPT.get("l2first", 4))//2):
            A(pfl % "0" + "\n" + pfa)
    if OPT.get("sched", 1):
        A(f"s_mov_b32 s{S_USTEP}, 49152\ns_sub_u32 s{S_U1}, s{S_U1}, 49152")
    A(f"s_cmp_eq_u32 s{S_IT}, 0\ns_cbranch_scc1 Lgo")
    A(f"s_cmp_lg_u32 s2, 2\ns_cbranch_scc1 Lgo\ns_cmp_lg_u32 s{S_W}, 0\ns_cbranch_scc1 Lgo")
    A(f"buffer_store_dword v{VT}, v{V63}, s[{SWS}:{SWS+3}], 0 offen offset:{GEN} sc1")
    A("Lgo:")
    st.mark(A, "loop")
    bodies = []
    for Q in (Q1,):
        for n in range(7):
            ex = None
            if l2:
                g = OPT.get("l2gap", 56)
                ex = {g - 2: [lambda: Q.raw(f"s_cmp_gt_u32 s{S_CNT}, {l2//2 - 1}")], g - 1: [lambda: Q.raw(f"s_cselect_b32 s56, 0, {OOB:#x}")],
                      g: [lambda: Q.vmem(pfl % "s56", "pf")], g + 2: [lambda: Q.raw(pfa)]}
            step(Q, 2*n, None, ex)
            step(Q, 2*n + 1, None, {61: [lambda: Q.raw(f"s_sub_u32 s{S_CNT}, s{S_CNT}, 1")],
                                    62: [lambda: Q.raw(f"s_cmp_gt_u32 s{S_CNT}, 1")],
                                    63: [lambda: Q.raw("s_cbranch_scc1 Lloop")]})
            bodies.append(Q.take())
    A(".p2align 6\nLloop:")
    A(Seq.text(merge(bodies)))
    A(f"s_cmp_eq_u32 s{S_CNT}, 0\ns_cbranch_scc1 Ltail\nglobal_load_dword v{VT+1}, v[234:235], off\ns_branch Lloop\nLtail:")
    st.mark(A, "l14")
    gm = {9: 15, 11: 18, 17: 22, 19: 25, 22: 29, 26: 32, 33: 36, 35: 39, 38: 43, 42: 46, 49: 53, 63: 63}
    remap = lambda ex: {gm[g]: f for g, f in ex.items()} if OPT.get("sched", 1) else ex
    R = lambda t: [lambda: Q.raw(t)]
    M = lambda t: [lambda: Q.vmem(t, "ep")]
    sc_ld = [f"buffer_load_dword v{SCR+h}, v{VT}, s[{SWS}:{SWS+3}], s56 offen offset:{8 + 256*h} sc1" for h in range(2)]
    em_ld = [f"buffer_load_dwordx4 {v(EMR+4*h,4)}, v{VPOLL}, s[{SWS}:{SWS+3}], s57 offen offset:{16*h} sc1" for h in range(2)]
    gb_ld = [f"global_load_dwordx4 {v(GR,4)}, v237, s[16:17]", f"global_load_dwordx4 {v(BR,4)}, v237, s[18:19]"]
    unscale = f"v_pk_mul_f32 {v(SCR,2)}, {v(SCR,2)}, s[{S_ASC}:{S_INV}] op_sel:[0,1] op_sel_hi:[1,1]"
    red = [f"v_add_f32_dpp v{EMR+k}, v{EMR+k}, v{EMR+k} row_ror:{sh} row_mask:0xf bank_mask:0xf" for sh in (8, 4, 2, 1) for k in range(8)]
    wl = w_loads(WLDS, 58, 59)
    ex = {9: R(f"v_and_b32 v{VT}, 127, v237\nv_lshlrev_b32 v239, 1, v{VT}\nv_lshlrev_b32 v{VT}, 5, v{VT}"),
          11: M(wl[0]),
          17: R(f"s_mul_i32 s56, s{S_NB}, {GRPS}\ns_lshl_b32 s57, s{S_IT}, 16\ns_add_u32 s56, s56, s57\ns_add_u32 s56, s56, {UF:#x}"),
          19: R(f"s_lshl_b32 s57, s{S_B}, 3\ns_add_u32 s57, s57, s{S_NB}\ns_lshl_b32 s57, s57, 12\ns_add_u32 s57, s57, {EMBP:#x}"),
          22: R(f"v_and_b32 v{VPOLL}, 15, v0\nv_lshl_add_u32 v{VPOLL}, v{VPOLL}, 8, v239"),
          26: M(wl[1]),
          33: M(em_ld[0]), 35: M(em_ld[1]), 38: M(sc_ld[0]), 42: [lambda: Q.vmem(sc_ld[1], "sc")],
          49: M(wl[2]), 63: M(wl[3])}
    step(Q, 14, remap(ex))
    ex = {2: M(gb_ld[0]), 9: M(wl[4]), 5: M(gb_ld[1]), 22: M(wl[5]),
          33: M(wl[6]), 42: M(wl[7]), 55: M(wl[8]),
          39: [lambda: Q.wait(vm=["sc"]), lambda: Q.raw(unscale)]}
    slots = [43, 46, 49, 50, 51, 52, 53, 54, 56, 57, 58, 59, 60, 61, 62, 63]
    for i, g in enumerate(slots):
        ex[g] = R("\n".join(red[2*i:2*i + 2]))
    step(Q, 15, ex)
    A(Seq.text(Q.take()))
    A("Lepi:")
    st.mark(A, "end")
    RB_, ZB = [8, 40], [72, 88]
    XB = [8, 20, 72, 84]
    LO, HI = LO3, HI3
    ag, bb = f"s[{S_AG}:{S_AG+1}]", f"s[{S_BB}:{S_BB+1}]"
    XF, OUT = 40, 104
    for nul in range(2):
        stream, ready = [], []
        for n, phi in enumerate((2, 1, 3, 0)):
            sg, nup = phi >> 1, phi & 1
            nu = 2*nup + nul
            Rr = RB_[n & 1]
            Z = (lambda q, zb=ZB[n & 1]: zb + 4*q) if phi else (lambda q: H + q*8 + nul*4)
            m = lambda j, be, r=0: Rr + j*8 + be*4 + r
            E = stream.append

            def rdacc(*jb):
                for j, be in jb:
                    for r in range(4):
                        E(f"v_accvgpr_read_b32 v{m(j,be,r)}, a{j*64 + nu*16 + (2*sg + be)*4 + r}")

            def pk(q, x, y, neg, first=False):
                for r in (0, 2):
                    E(f"v_pk_add_f32 {v(Z(q)+r,2)}, {v((x if first else Z(q))+r,2)}, {v(y+r,2)} {NEG1 if neg else ''}")

            def done(q):
                if phi:
                    ready.append((len(stream), f"ds_write_b128 v{VW[phi]}, {v(Z(q),4)} offset:{(nul*4 + q)*1024}"))
            rdacc((0, 0), (0, 1), (1, 0), (2, 0))
            if n == 2:
                E("@war")
            pk(1, m(1,0), m(2,0), 0, True); pk(0, m(1,0), m(2,0), 1, True)
            pk(1, None, m(0,0), 1); pk(1, None, m(0,1), 0); done(1)
            rdacc((3, 1), (3, 0))
            for r in range(4):
                E(f"v_add_f32_dpp v{Z(0)+r}, v{m(3,1,r)}, v{Z(0)+r} row_shr:1 row_mask:0xf bank_mask:0xf bound_ctrl:1")
            pk(0, None, m(3,0), 1)
            done(0)
            rdacc((1, 1), (2, 1))
            pk(2, m(1,1), m(2,1), 1, True); pk(3, m(1,1), m(2,1), 0, True)
            pk(2, None, m(3,1), 1); pk(2, None, m(3,0), 0); done(2)
            for r in range(4):
                E(f"v_add_f32_dpp v{Z(3)+r}, v{m(0,0,r)}, v{Z(3)+r} row_shl:1 row_mask:0xf bank_mask:0xf bound_ctrl:1")
            pk(3, None, m(0,1), 1)
            done(3)
        where, last = {}, -99
        for pos, t in ready:
            last = max(pos, last + OPT.get("wgap", 15))
            where[last] = t
        bpos = last + OPT.get("bgap", 14)
        nw = 0
        rds = [f"ds_read_b128 {v(XB[q] + 4*k, 4)}, v{VR[k]} offset:{(nul*4 + q)*1024}" for q in range(4) for k in range(3)]
        for i, t in enumerate(stream):
            if i in where:
                A(where[i]); nw += 1
            if i == bpos:
                A("s_waitcnt lgkmcnt(0)\ns_barrier")
            if i >= bpos and (i - bpos) % OPT.get("rgap", 2) == 0 and rds:
                for _ in range(OPT.get("rnum", 1)):
                    A(rds.pop(0))
            A(f"s_waitcnt lgkmcnt({nw - 4})" if t == "@war" else t)
        assert nw == 12 and 181 <= bpos and not rds
        for q in range(4):
            if q in (0, 2):
                A(f"s_waitcnt lgkmcnt({6 - 3*q})")
            x = XB[q]
            ha, hb = H + q*8 + nul*4, H + 32 + q*8 + nul*4
            for r in (0, 2):
                A(f"v_pk_fma_f32 {v(hb+r,2)}, {v(x+4+r,2)}, {ag}, {v(x+8+r,2)} {HI}")
            for r in (0, 2):
                A(f"v_pk_fma_f32 {v(x+4+r,2)}, {v(x+4+r,2)}, {ag}, {v(x+r,2)} {LO}")
            for r in (0, 2):
                A(f"v_pk_fma_f32 {v(hb+r,2)}, {v(x+r,2)}, {bb}, {v(hb+r,2)} {LO}")
            for r in (0, 2):
                A(f"v_pk_fma_f32 {v(hb+r,2)}, {v(ha+r,2)}, {bb}, {v(hb+r,2)} {HI}")
            for r in (0, 2):
                A(f"v_pk_add_f32 {v(ha+r,2)}, {v(ha+r,2)}, {v(x+4+r,2)}")
        if nul:
            st.mark(A, "hh")
        sel = HI if nul else LO
        A(f"s_cmp_lg_u32 s{S_IT}, 0\ns_cbranch_scc1 Lfinal{nul}")
        for p0 in range(0, 8, 2):
            xs = [(H + p*8 + k, k) for p in (p0, p0 + 1) for k in (4*nul, 4*nul + 2)]
            for x, k in xs:
                A(f"v_pk_fma_f32 {v(x,2)}, {v(x,2)}, {v(SCR,2)}, {v(EMR+k,2)} {sel}")
            for i, (x, k) in enumerate(xs):
                sums(A, x, P + (k & 2), nul == 0 and p0 == 0 and i < 2)
        if nul == 0:
            A("s_branch Lhalf")
        else:
            st.flush(A, 0, 7)
            st.mark(A, "start")
            A(f"s_mov_b32 s{S_IT}, 1\ns_mov_b32 s{SO+2}, 0")
            A(f"s_add_u32 s{S_RA}, s{S_RA}, {D2-D1:#x}\ns_add_u32 s{S_RB2}, s{S_RB2}, {D2-D1:#x}")
            A(f"s_add_u32 s{SD}, s{SD}, {D2-D1:#x}\ns_addc_u32 s{SD+1}, s{SD+1}, 0")
            A("s_branch Lstats")
        A(f"Lfinal{nul}:")
        if nul == 0:
            A(f"s_mov_b32 s{SO}, s22\ns_mov_b32 s{SO+1}, s23\ns_mov_b32 s{SO+2}, 0x800000\ns_waitcnt vmcnt(0)")
            if OPT.get("wide", 0):
                A(f"s_mov_b32 vcc_lo, 0xaaaaaaaa\ns_mov_b32 vcc_hi, 0xaaaaaaaa\nv_add_u32 v{VX+1}, -8, v{VX+1}\nv_cndmask_b32 v{VX}, v{VX}, v{VX+1}, vcc")
        for k in (4*nul, 4*nul + 2):
            xf = lambda p, kk: XF + p*4 + (kk & 3)
            for rho in range(2):
                for kk in (k, k+1):
                    r = XR + (rho*8 + kk)*2
                    unpack_bf16(A, r, xf(rho*4, kk), xf(rho*4 + 1, kk))
                    unpack_bf16(A, r+1, xf(rho*4 + 2, kk), xf(rho*4 + 3, kk))
            for p in range(8):
                x = H + p*8 + k
                A(f"v_pk_fma_f32 {v(x,2)}, {v(x,2)}, {v(SCR,2)}, {v(xf(p, k),2)} {sel}")
            if OPT.get("wide", 0):
                t = XF + (k & 2)
                cv = lambda kk, rho, d: XF + (kk & 1)*16 + rho*8 + d*4 + (k & 2)
                for kk in (k, k+1):
                    for rho in range(2):
                        h = H + rho*32 + kk
                        A(f"v_cvt_pk_bf16_f32 v{cv(kk,rho,0)}, v{h}, v{h+8}\nv_cvt_pk_bf16_f32 v{cv(kk,rho,1)}, v{h+16}, v{h+24}")
                for half in range(2):
                    A("s_not_b64 vcc, vcc")
                    for kk in (k, k+1):
                        for d in range(2):
                            A(f"v_cndmask_b32_dpp v{OUT + kk*4 + 2*half + d}, v{cv(kk,1-half,d)}, v{cv(kk,half,d)}, vcc quad_perm:[1,0,3,2] row_mask:0xf bank_mask:0xf")
                for kk in (k, k+1):
                    A(f"buffer_store_dwordx4 {v(OUT + kk*4,4)}, v{VX}, s[{SO}:{SO+3}], s{S_XO} offen {OPT['sto']}")
                    A(f"s_add_u32 s{S_XO}, s{S_XO}, 8192")
                continue
            for kk in (k, k+1):
                for rho in range(2):
                    o = OUT + (rho*8 + kk)*2
                    h = H + rho*32 + kk
                    A(f"v_cvt_pk_bf16_f32 v{o}, v{h}, v{h+8}")
                    A(f"v_cvt_pk_bf16_f32 v{o+1}, v{h+16}, v{h+24}")
                    A(f"buffer_store_dwordx2 {v(o,2)}, v{VX+rho}, s[{SO}:{SO+3}], s{S_XO} offen {OPT['sto']}")
                A(f"s_add_u32 s{S_XO}, s{S_XO}, 8192")
        if nul == 0:
            A("Lhalf:")
    if stamps:
        A("s_waitcnt vmcnt(0)")
        A("s_memrealtime s[20:21]\ns_memtime s[22:23]\ns_waitcnt lgkmcnt(0)")
        st.flush(A, 1, 7)
        A("s_mov_b32 s72, s20\ns_mov_b32 s74, s22")
        st.flush(A, 2, 1)
    A("Lexit:\ns_endpgm")
    A("Lcode_end:")
    descriptor(A, NAME, 512, 256)
    return A


HEAD = """; ADM ResBlock: GN+SiLU -> conv3x3 -> +emb -> GN+SiLU -> conv3x3 -> +x   (B=2, C=512, 64x64, bf16 in/out)
; operands carry run-time power-of-two scales (max|w| per 4 output channels, max|gamma|,|beta|) undone afterwards.
%s
.amdgcn_target "amdgcn-amd-amdhsa--gfx950"
"""

if __name__ == "__main__":
    for a in sys.argv[2:]:
        if "=" in a:
            k, val = a.split("=")
            OPT[k] = int(val) if val.lstrip("-").isdigit() else (eval(val) if val.startswith("(") else val.replace("+", " "))
    D1 += OPT.get("base", 0) << 20; D2 += (OPT.get("base", 0) + OPT.get("d2", 0)) << 20
    U1 += OPT.get("base", 0) << 20; U2 += OPT.get("base", 0) << 20
    stamps = "stamps" in sys.argv[2:]
    launch = "; @launch " + (f"kernel={NAME} " if "list" in sys.argv[2:] else "") + "grid=(256,1,1) block=(256,1,1) lds=152064"
    text = HEAD % launch + kernel(stamps).text()
    open(sys.argv[1], "w").write(align_pass(text) if OPT["align"] else text)
```

```python
import sys
sys.path.insert(0, "tools")
import gen
from gen import (Asm, v, acc, NEG1, srd, wave_reduce, header, descriptor, gn_coeffs, silu8, unpack_bf16, trim,
                 align_pass, OPT, OOB, NLOG2E, SPIN_MAX, TAGSTEP, S_MASK, WS_BYTES, WROW, STAMP,
                 SLOT, VDMA, VDMA2, VTOP, VBOT, VU, VA, VB, VA1, VB1, WLDS, XLDS, C, PP, TMP, UU,
                 SWS, SD, SX, SO, S_W, S_DMA, S_M0, S_U0, S_U1, S_U2, S_SGN, S_CNT, S_GRP, S_IDX, S_B, S_NB, S_RB,
                 u_load, dma_m0, dma, raw_read, h_op, D1, D2, U1, U2, SC1, SC2)

NAME = "standalone__adm_resblock__diffusion_kernel"
GEN, EMBP = 0x0, 0x10000
STAT, UF, DF = 0x40000, 0x60000, 0x80000
GRPS = 4352
OS, US = 65536 + 256, 786432 + 4096
D1 = 0x100000
D2 = D1 + 128*OS
U1 = D2 + 128*OS
U2 = U1 + 8*US
OPT.update(tlb=0, g2=0, ldx="nt", ldw="nt", jst=1, wpos=(2, 8, 14, 20), ldu="sc1", ldd="sc1", trimU=3, trimD=3, pf=1, delay=0, delayd=6, slp=1)

S_IT, S_TAG, S_ASC, S_INV, S_WS, S_E2, S_RA, S_RB2, S_J0, S_J1, S_OQ = 60, 61, 62, 63, 64, 65, 66, 67, 68, 69, 71
S_RET, S_POLL, S_SLOT, S_XO, S_USTEP = 24, 25, 12, 13, 101
S_AG, S_BB = 6, 14
VW, VR = (None, 240, 241, 242), (243, 244, 245)
VD, VX, V63, VXL, VPOLL, VT = 246, 247, 249, 250, 251, 252
H, XR, SCR, EMR, GR, BR, PLD, VS, VJ = 136, 200, 232, 104, 124, 128, 232, 236, 238

LANE63 = "s_mov_b32 exec_lo, 0\ns_mov_b32 exec_hi, 0x80000000"


class Seq(gen.Seq):
    def wait(self, vm=(), lg=()):
        a = [n for n in (self._n(self.vm, t) for t in vm) if n is not None]
        b = [n for n in (self._n(self.lg, t) for t in lg) if n is not None]
        self.out.append(("wait", a[-1] if a else None, b[-1] if b else None))

    @staticmethod
    def text(out):
        L = []
        for x in out:
            if isinstance(x, tuple):
                p = ([f"vmcnt({x[1]})"] if x[1] is not None else []) + ([f"lgkmcnt({x[2]})"] if x[2] is not None else [])
                assert (x[1] or 0) < 64 and (x[2] or 0) < 16
                if p:
                    L.append("s_waitcnt " + " ".join(p))
            else:
                L.append(x)
        return "\n".join(L)

    def take(self):
        o, self.out = self.out, []
        return o


def merge(bodies):
    res = []
    for items in zip(*bodies):
        if isinstance(items[0], tuple):
            f = lambda i: min([x[i] for x in items if x[i] is not None], default=None)
            res.append(("wait", f(1), f(2)))
            if res[-1] != bodies[3][len(res) - 1]:
                print("note: wait tightened", res[-1], items, file=sys.stderr)
        else:
            assert all(x == items[0] for x in items), items
            res.append(items[0])
    return res


class Stamps:
    def __init__(self, on):
        self.on = on

    def mark(self, A, name, wait=True):
        sel = OPT.get("marks", "start,pub,tot,silu,loop,end,hh").split(",")
        if self.on and name in sel:
            i = sel.index(name)
            A(f"s_memrealtime s[{72+4*i}:{73+4*i}]\ns_memtime s[{74+4*i}:{75+4*i}]")
            if wait:
                A("s_waitcnt lgkmcnt(0)")

    def flush(self, A, kid, n):
        if self.on:
            A(f"s_lshl_b32 s100, s2, 2\ns_add_u32 s100, s100, s{S_W}\ns_lshl_b32 s100, s100, 6")
            A(f"s_add_u32 s100, s100, {STAMP + kid*0x20000:#x}")
            for i in range(n):
                A(f"v_mov_b32 v{VT}, s{72+4*i}\nv_mov_b32 v{VT+1}, s{74+4*i}")
                A(f"buffer_store_dwordx2 {v(VT,2)}, v{V63}, s[{SWS}:{SWS+3}], s100 offen offset:{8*i}")
                A("s_nop 1")


def weave(A, main, side, first=0, last=None):
    last = len(main) if last is None else last
    pos = {}
    for i, t in enumerate(side):
        pos.setdefault(first + (i*(last - first))//len(side), []).append(t)
    for i, m in enumerate(main):
        for t in pos.get(i, []):
            A(t)
        A(m)


def w_loads(base, so, sm):
    ld = []
    for k in range(9):
        t = ""
        if k == 0:
            t = (f"s_mul_i32 s{sm}, s{S_W}, {WROW}\ns_add_u32 m0, s{sm}, {base}\n"
                 f"s_lshl_b32 s{so}, s{S_OQ}, 2\ns_add_u32 s{so}, s{so}, s{S_W}\ns_mul_i32 s{so}, s{so}, 9216\n")
        elif k in (4, 8):
            t = f"s_add_u32 m0, s{sm}, {base + 1024*k}\ns_add_u32 s{so}, s{so}, 4096\n"
        ld.append(t + f"buffer_load_dwordx4 v{VDMA}, s[{SO}:{SO+3}], s{so} offen offset:{1024*(k & 3)} {OPT.get('ldw', '')} lds")
    return ld


def spin(A, L, load, check, first_in_flight=False, c=58):
    if first_in_flight is not None:
        A(f"s_mov_b32 s{c}, {SPIN_MAX}")
    if first_in_flight:
        A(f"s_branch {L}_wait")
    A(f"{L}_poll:\n{load}\n{L}_wait:\ns_waitcnt vmcnt(0)\n{L}_chk:")
    A(check)
    A(f"s_cbranch_scc0 {L}_ok")
    A(f"s_sleep {OPT['slp']}\ns_sub_u32 s{c}, s{c}, 1\ns_cmp_lg_u32 s{c}, 0\ns_cbranch_scc1 {L}_poll")
    A(f"{L}_ok:")


POLL4 = f"buffer_load_dwordx4 {v(PLD,4)}, v{VPOLL}, s[{SWS}:{SWS+3}], s{S_POLL} offen sc1"


JG, JM, JRW, JOUT = 8, 80, 80, 56
LO2, HI2 = "op_sel_hi:[1,0]", "op_sel:[0,1] op_sel_hi:[1,1]"
LO3, HI3 = "op_sel_hi:[1,0,1]", "op_sel:[0,1,0] op_sel_hi:[1,1,1]"


def job(A, hook, stores, gate=None, early=None):
    G, M, RW, T = JG, 116, JRW, 80

    def greg(e):
        return G + (e % 9)*8 + e//9
    for k in range(9):
        A(f"ds_read_b128 {v(RW+4*k,4)}, v{VJ} offset:{16*k}")
    A(f"s_bitcmp1_b32 s{S_IDX}, 0\ns_cselect_b32 s56, -1.0, 1.0\ns_lshl_b32 s58, s{S_W}, 2\nv_add_u32 v{M+1}, s58, v{VXL}")
    for k in range(9):
        if k in (0, 1, 3, 6):
            A(f"s_waitcnt lgkmcnt({(8, 6, 0, 3, 0, 0, 0)[k]})")
        for d in range(4):
            e = 8*k + 2*d
            unpack_bf16(A, RW + 4*k + d, greg(e), greg(e+1))
        for d in range(4):
            e = 8*k + 2*d
            A(f"v_max3_f32 v{M}, |v{greg(e)}|, |v{greg(e+1)}|, {'0' if e == 0 else f'v{M}'}")
        if gate and k == OPT.get("hk", 3):
            A(hook)
        if early and k == OPT.get("hk", 3):
            A(early[0])
    B = Asm()
    for x in range(0, 24, 2):
        B(f"v_pk_fma_f32 {v(G+24+x,2)}, {v(G+24+x,2)}, s[56:57], {v(G+x,2)} {LO3}")
    for x in range(0, 24, 2):
        B(f"v_pk_add_f32 {v(G+24+x,2)}, {v(G+24+x,2)}, {v(G+48+x,2)}")
    red = [f"v_max_f32_dpp v{M}, v{M}, v{M} row_shr:{n} row_mask:0xf bank_mask:0xf bound_ctrl:1" for n in (1, 2, 4, 8)]
    red += [f"v_max_f32_dpp v{M}, v{M}, v{M} row_bcast:{n} row_mask:{m} bank_mask:0xf" for n, m in ((15, "0xa"), (31, "0xc"))]
    red += [f"{LANE63}\nds_write_b32 v{M+1}, v{M} offset:128\ns_mov_b64 exec, -1"]
    weave(A, B.L, red, 2, 16)

    def wsum(dst, src):
        for cp in range(0, 8, 2):
            A(f"v_pk_add_f32 {v(T+cp,2)}, {v(src+cp,2)}, {v(src+16+cp,2)}")
        for cp in range(0, 8, 2):
            A(f"v_pk_add_f32 {v(dst+cp,2)}, {v(T+cp,2)}, {v(src+8+cp,2)}")
            A(f"v_pk_add_f32 {v(dst+8+cp,2)}, {v(T+cp,2)}, {v(src+8+cp,2)} {NEG1}")
        if dst != src:
            for cp in range(0, 8, 2):
                A(f"v_pk_mul_f32 {v(dst+16+cp,2)}, {v(src+16+cp,2)}, 1.0 {LO2}")
    def sums():
        wsum(G + 24, G + 24)
        A(f"s_bitcmp1_b32 s{S_IDX}, 0\ns_cbranch_scc1 Ljp1")
        wsum(G, G)
        A("s_branch Ljp2\nLjp1:")
        wsum(G, G + 48)
        A("Ljp2:")
    if gate:
        sums()
        gate()
    if early:
        early[1]()
    A("s_waitcnt lgkmcnt(0)\ns_barrier")
    A(f"ds_read_b128 {v(M+4,4)}, v{VXL} offset:128")
    if gate:
        A(f"ds_read_b128 {v(PLD,4)}, v{VXL} offset:64")
    else:
        sums()
        A(hook)
    A("s_waitcnt lgkmcnt(0)")
    K = 88
    A(f"v_max3_f32 v{M+4}, v{M+4}, v{M+5}, v{M+6}\nv_max_f32 v{M+4}, v{M+4}, v{M+7}")
    A(f"v_frexp_exp_i32_f32 v{M+4}, v{M+4}\nv_min_i32 v{M+4}, 60, v{M+4}\nv_max_i32 v{M+4}, 0xffffffc4, v{M+4}")
    A(f"v_add_u32 v{M}, 119, v{M+4}\nv_lshlrev_b32 v{M}, 23, v{M}")
    A(f"v_sub_u32 v{K}, 135, v{M+4}\nv_lshlrev_b32 v{K}, 23, v{K}\nv_readfirstlane_b32 s{S_WS}, v{M}")
    A(f"v_mul_f32 v{K+2}, 0x47000080, v{K}\nv_mul_f32 v{K+3}, 0xc7000000, v{K}")
    A(f"v_pk_mul_f32 {v(K+4,2)}, {v(K+2,2)}, 0.5 {LO2}")
    for i, r in enumerate((G, G + 24)):
        for j, src in enumerate((r+16, r, r+8)):
            o = JOUT + (i*3 + j)*4
            kk = K + 2*(i + (j > 0))
            for cp in range(0, 8, 2):
                A(f"v_pk_mul_f32 {v(T+cp,2)}, {v(src+cp,2)}, {v(kk,2)} {LO2}")
            if i or j:
                for cp in range(0, 8, 2):
                    A(f"v_pk_fma_f32 {v(T+cp,2)}, {v(src+cp,2)}, {v(kk,2)}, {v(T+cp,2)} {HI3}")
            for d in range(4):
                A(f"v_cvt_pk_f16_f32 v{o+d}, v{T+2*d}, v{T+2*d+1}")
            A(stores[i*3 + j])


def job_stores(VS=VS):
    st = []
    for i in range(2):
        for j in range(3):
            st.append(f"buffer_store_dwordx4 {v(JOUT + (i*3 + j)*4, 4)}, v{VS}, s[{SWS}:{SWS+3}], s{S_J0+i} offen sc1\n"
                      f"s_add_u32 s{S_J0+i}, s{S_J0+i}, {4096 if j < 2 else U2 - U1 - 8192}")
    return st


def silu(A, x, A1, B1, kk, t, out):
    for k in range(0, 8, 2):
        A(f"v_pk_fma_f32 {v(x+k,2)}, {v(x+k,2)}, {v(A1+k,2)}, {v(B1+k,2)}")
    for k in range(8):
        A(f"v_exp_f32 v{t+k}, v{x+k}")
    for k in range(0, 8, 2):
        A(f"v_pk_fma_f32 {v(t+k,2)}, {v(t+k,2)}, {v(kk,2)}, {v(kk,2)}")
    for k in range(8):
        A(f"v_rcp_f32 v{t+k}, v{t+k}")
    for k in range(0, 8, 2):
        A(f"v_pk_mul_f32 {v(x+k,2)}, {v(x+k,2)}, {v(t+k,2)}")
    for k in range(0, 8, 2):
        A(f"v_cvt_pk_f16_f32 v{out+k//2}, v{x+k}, v{x+k+1}")
    trim(A, out, 4, OPT["trimD"])


def x_loads():
    ld = []
    for k in range(8):
        for rho in range(2):
            t = f"buffer_load_dwordx2 {v(XR + (rho*8 + k)*2, 2)}, v{VX+rho}, s[{SX}:{SX+3}], s59 offen {OPT['ldx']}"
            if rho == 1 and k < 7:
                t += f"\ns_add_u32 s59, s59, {32768 if OPT.get('xperm') else 8192}"
            ld.append(t)
    ld[0] = f"s_mov_b32 s59, s{S_XO}\n" + ld[0]
    return ld


VG = (1, 4, 8, 11, 15, 18, 22, 25, 29, 32, 36, 39, 43, 46, 50, 53, 57, 60)


def step(Q, k, extra=None, scal=None):
    if OPT.get("sched", 1) == 0:
        return gen.step(Q, k, extra)
    cs = k & 1
    c0, c1 = C[cs]
    u0, u1, u2 = UU[cs]
    ld_u2, ld_u, ld_d, rd = k + 1 <= 15, k + 2 <= 15, k + 3 <= 16, k + 1 <= 15
    G = [[] for _ in range(64)]
    at = lambda g, f: G[g].append(f)
    R = lambda t: (lambda: Q.raw(t))

    def put(lst, gaps):
        it = iter(lst)
        for g, n in gaps:
            for _ in range(n):
                at(g, next(it))
        assert next(it, None) is None

    def uld(kk, j, nu):
        r = UU[kk & 1][j] + 4*nu
        return lambda: Q.vmem(f"buffer_load_dwordx4 {v(r,4)}, v{VU}, s[{SWS}:{SWS+3}], s{S_U0+j} offen offset:{1024*nu} {OPT['ldu']}", ("u", kk, j))

    def dld(kk, p):
        vo = (VTOP, VDMA, VDMA, VDMA, VDMA2, VBOT)[p]
        return lambda: Q.vmem(f"buffer_load_dwordx4 v{vo}, s[{SD}:{SD+3}], s{S_DMA} offen offset:{1024*(p & 3)} {OPT['ldd']} lds", ("raw", kk))
    w4 = OPT.get("w4", 1)
    uinc = lambda j: R(f"s_add_u32 s{S_U0+j}, s{S_U0+j}, " + (f"s{S_USTEP}" if w4 else "49152"))
    rr = lambda par, tb, w: (lambda: raw_read(Q, k+1, par, tb, w))
    if ld_u2:
        put([uld(k+1, 2, nu) for nu in range(4)], [(g, 1) for g in VG[0:4]])
    if ld_d:
        put([dld(k+3, p) for p in range(6)], [(g, 1) for g in VG[4:10]])
        at(12, lambda: dma_m0(Q, k+3, 0))
        at(27, lambda: dma_m0(Q, k+3, 1))
        at(40, R(f"s_add_u32 s{S_DMA}, s{S_DMA}, {gen.DSTEP:#x}"))
        if cs == 0:
            at(41, R(f"s_xor_b32 s{S_M0}, s{S_M0}, 0x10000"))
    if ld_u:
        put([uld(k+2, 0, nu) for nu in range(4)], [(g, 1) for g in VG[10:14]])
        put([uld(k+2, 1, nu) for nu in range(4)], [(g, 1) for g in VG[14:18]])
    at(13, uinc(2))
    at(14, lambda: Q.wait(vm=[("u", k, 1)]))
    at(30, uinc(1))
    at(31, lambda: Q.wait(vm=[("u", k, 2)], lg=[("rd", k+1, 1, 3)]))
    if rd:
        at(51, uinc(0))
        at(52, lambda: Q.wait(lg=[("rd", k+1, 1, 3)]))
        put([rr(0, tb, w) for tb in range(4) for w in range(2)] + [rr(1, tb, 0) for tb in range(4)],
            [(0, 2), (2, 2), (3, 2), (5, 2), (6, 1), (7, 1), (9, 1), (10, 1)])
        put([rr(1, tb, 1) for tb in range(4)], [(33, 1), (34, 1), (35, 1), (37, 1)])
    if scal:
        for g, fs in scal.items():
            G[g] += fs
    put([R(f"v_pk_add_f16 v{PP+i}, v{c0+i}, v{c1+i}") for i in range(16)],
        [(0, 1), (2, 1), (5, 1), (6, 2), (7, 1), (9, 2), (10, 1), (12, 2), (13, 3), (14, 2)] if rd else
        [(g, 2) for g in (0, 3, 6, 7, 10, 12, 13, 14)])
    put([R(f"v_pk_add_f16 v{c0+i}, v{c0+i}, v{c1+i} {NEG1}") for i in range(16)],
        [(16, 3), (17, 3), (19, 1), (21, 2), (23, 1), (26, 2), (27, 1), (30, 3)] if rd else
        [(g, 2) for g in (16, 17, 18, 21, 25, 26, 29, 30)])
    put([R(f"v_pk_add_f16 v{u1+i}, v{u1+i}, v{u0+i} {NEG1}") for i in range(16)],
        [(19, 2), (20, 2), (23, 2), (24, 2), (27, 2), (28, 2), (31, 2), (33, 1), (34, 1)] if rd else
        [(g, 2) for g in (19, 20, 23, 24, 27, 28, 31, 32)])
    put([R(f"v_pk_add_f16 v{u2+i}, v{u1+i}, v{u2+i}") for i in range(16)],
        [(35, 2), (37, 2), (40, 2), (41, 2), (44, 2), (45, 2), (47, 2), (48, 2)])
    if rd:
        put([(lambda i=i: h_op(Q, k+1, 0, i >> 2, i & 3)) for i in range(16)],
            [(33, 1), (34, 1), (38, 3), (42, 3), (44, 1), (45, 1), (47, 1), (49, 3), (51, 2)])
        put([(lambda i=i: h_op(Q, k+1, 1, i >> 2, i & 3)) for i in range(16)],
            [(52, 2), (54, 2), (55, 2), (56, 2), (58, 2), (59, 2), (61, 2), (62, 2)])
        if cs == 0:
            at(21, R(f"v_xor_b32 v{VA}, 0x10000, v{VA}")); at(26, R(f"v_xor_b32 v{VA1}, 0x10000, v{VA1}"))
            at(55, R(f"v_xor_b32 v{VB}, 0x10000, v{VB}")); at(59, R(f"v_xor_b32 v{VB1}, 0x10000, v{VB1}"))
    if extra:
        for g, fs in extra.items():
            G[g] += fs
    Q.wait(vm=[("raw", k+1), ("u", k, 0)])
    Q.raw("s_barrier")
    for g in range(64):
        j, nu, tb = g >> 4, (g >> 2) & 3, g & 3
        if nu & 1:
            tb = 3 - tb
        a = (u0, u1, u2, u2)[j] + 4*nu
        b = (c0, PP, c0, c1)[j] + 4*tb
        d = j*64 + nu*16 + tb*4
        Q.raw(f"v_mfma_f32_16x16x32_f16 {acc(d,4)}, {v(a,4)}, {v(b,4)}, {acc(d,4)}")
        for f in G[g]:
            f()


def kernel(stamps):
    A = Asm()
    st = Stamps(stamps)
    header(A, NAME)
    st.mark(A, "start", False)
    A("s_cmp_ge_u32 s2, 256\ns_cbranch_scc1 Lexit")
    A("s_load_dwordx16 s[4:19], s[0:1], 0")
    A("s_load_dwordx8 s[20:27], s[0:1], 64")
    A("v_lshrrev_b32 v8, 6, v0\nv_and_b32 v0, 63, v0")
    A(f"v_readfirstlane_b32 s{S_W}, v8")
    A(f"s_and_b32 s{S_GRP}, s2, 7\ns_lshr_b32 s{S_IDX}, s2, 3\ns_lshr_b32 s{S_B}, s{S_GRP}, 2")
    A(f"s_and_b32 s{S_NB}, s{S_GRP}, 3\ns_lshl_b32 s{S_NB}, s{S_NB}, 1\ns_and_b32 s56, s{S_IDX}, 1\ns_add_u32 s{S_NB}, s{S_NB}, s56")
    A(f"s_lshr_b32 s{S_RB}, s{S_IDX}, 1\ns_lshl_b32 s{S_OQ}, s{S_GRP}, 4\ns_add_u32 s{S_OQ}, s{S_OQ}, s{S_RB}")

    def touch():
        A(f"s_lshl_b32 s56, s{S_IDX}, 2\ns_add_u32 s56, s56, s{S_W}\nv_and_b32 v8, 1, v0\nv_lshl_add_u32 v8, v8, 7, s56")
        gen.code_touch(A, "Lpf", "Lcode_end", 8, 72, "Lpc", 56)
        A(f"global_load_dword v253, v[72:73], off {OPT.get('pfn', '')}\nLpf:")
    if OPT["pf"] == 1:
        touch()
    A("v_and_b32 v9, 15, v0\nv_lshrrev_b32 v10, 4, v0")
    A(f"v_lshlrev_b32 v{VDMA}, 4, v0")
    A(f"s_and_b32 s44, s{S_W}, 1\ns_lshl_b32 s56, s{S_NB}, 1\ns_add_u32 s44, s44, s56")
    A(f"s_lshr_b32 s45, s{S_W}, 1\ns_lshl_b32 s56, s{S_RB}, 1\ns_add_u32 s45, s45, s56")
    A(f"s_lshl_b32 s46, s{S_B}, 22\ns_lshl_b32 s56, s44, 18\ns_add_u32 s46, s46, s56")
    A(f"s_lshl_b32 s47, s45, 8\ns_add_u32 s47, s47, s46")
    gen.DSTEP = 4*OS
    A(f"v_lshlrev_b32 v11, {13 if OPT.get('xperm') else 16}, v10\nv_lshl_add_u32 v11, v9, 3, v11")
    A(f"s_cmp_eq_u32 s{S_W}, 3\ns_cselect_b32 s56, 128, 0\nv_add_u32 v{VX}, s56, v11\nv_xor_b32 v{VX+1}, 128, v{VX}")
    A(f"s_mov_b32 s{S_MASK}, 0xffff0000")
    A("s_waitcnt lgkmcnt(0)")
    st.mark(A, "karg", False)
    A(f"s_load_dword s{S_ASC}, s[26:27], {GEN}")
    srd(A, SX, 4, 0x800000)
    xf = OPT.get("xf", 1)
    if xf:
        A("\n".join(x_loads()).replace(f"s_mov_b32 s59, s{S_XO}", "s_mov_b32 s59, s47"))
        st.mark(A, "xis", False)
    srd(A, SO, 12, 512*9216)
    A(f"s_cmp_lt_u32 s{S_W}, 2\ns_cbranch_scc1 Lside0\ns_cmp_eq_u32 s{S_W}, 3\ns_cbranch_scc1 Lside3")
    for i, p in enumerate((8, 10, 16, 18)):
        A(f"global_load_dwordx4 {v(16+4*i,4)}, v{VDMA}, s[{p}:{p+1}]")
    A("s_branch Lside0\nLside3:")
    A(f"v_lshrrev_b32 v12, 3, v0\ns_mul_i32 s56, s{S_RB}, 24\nv_add_u32 v12, s56, v12")
    A(f"s_and_b32 s56, s{S_IDX}, 1\ns_mul_i32 s56, s56, 768\nv_lshl_add_u32 v13, v12, 1, s56")
    for i in range(3):
        A(f"global_load_ushort v{16+i}, v13, s[6:7] offset:{16*i}")
    A(f"v_and_b32 v13, 7, v0\nv_lshlrev_b32 v13, 4, v13\nv_lshl_add_u32 v13, v12, 10, v13\ns_lshl_b32 s56, s{S_GRP}, 7\nv_add_u32 v13, s56, v13")
    for i in range(3):
        A(f"global_load_dwordx4 {v(20+4*i,4)}, v13, s[14:15]")
        if i < 2:
            A("v_add_u32 v13, 8192, v13")
    A("Lside0:")
    A(f"s_mov_b32 s{S_XO}, s47")
    if not xf:
        A("\n".join(x_loads()))
        st.mark(A, "xis", False)
    npf = int(OPT["pf"] == 2)
    if npf:
        touch()
    srd(A, SWS, 26, WS_BYTES)
    A(f"s_mul_i32 s{S_SLOT}, s{S_GRP}, {GRPS}\ns_lshl_b32 s56, s{S_IDX}, 7\ns_add_u32 s{S_SLOT}, s{S_SLOT}, s56")
    def ftouch():
        A(f"v_min_u32 v11, 5, v0\nv_lshlrev_b32 v11, 16, v11\ns_cmp_eq_u32 s{S_W}, 1\ns_cselect_b32 s56, 0, {OOB:#x}")
        A(f"s_add_u32 s56, s56, s{S_SLOT}\ns_add_u32 s56, s56, {STAT:#x}")
        A(f"buffer_load_dword v{VT+1}, v11, s[{SWS}:{SWS+3}], s56 offen sc1")
    npf += 1
    if OPT.get("ft", 3) == 1:
        ftouch()
    A(f"s_cmp_eq_u32 s{S_W}, 0\ns_cselect_b32 s58, 5, 0")
    A(f"v_lshrrev_b32 v11, 3, v0\nv_min_u32 v11, s58, v11\nv_lshlrev_b32 v11, 16, v11\nv_and_b32 v14, 0x70, v{VDMA}\nv_add_u32 v11, v11, v14")
    A(f"v_mov_b32 v132, 0\nv_mov_b32 v133, -1\nv_mov_b32 v134, 0\nv_mov_b32 v135, 0")
    if OPT["tlb"]:
        A(f"s_mul_i32 s56, s{S_GRP}, {16*OS}\ns_add_u32 s56, s56, {D1 + 8*OS - 256}")
        A(f"s_mul_i32 s57, s{S_GRP}, {US}\ns_mul_i32 s58, s{S_IDX}, {US - 128}\ns_add_u32 s57, s57, s58\ns_add_u32 s57, s57, {U1 - 128}")
        A(f"s_cmp_eq_u32 s{S_IDX}, 2\ns_cselect_b32 s57, s56, s57\ns_cmp_gt_u32 s{S_IDX}, 2\ns_cselect_b32 s57, {OOB:#x}, s57")
        A(f"s_cmp_eq_u32 s{S_W}, 1\ns_cselect_b32 s57, s57, {OOB:#x}")
    else:
        A(f"s_mov_b32 s57, {OOB:#x}")
    A(f"s_add_u32 s56, s{S_SLOT}, {STAT:#x}\ns_cmp_eq_u32 s{S_W}, 0\ns_cselect_b32 s57, s56, s57")
    A(f"buffer_store_dwordx4 v[132:135], v11, s[{SWS}:{SWS+3}], s57 offen sc1")
    A(f"v_mul_u32_u24 v{VD}, {OS}, v10\nv_lshl_add_u32 v{VD}, v9, 4, v{VD}")
    A(f"s_mul_i32 s46, s{S_B}, {64*OS}\ns_add_u32 s56, s46, {D1 - 1024:#x}\ns_mul_i32 s57, s44, {4*OS}\ns_add_u32 s46, s46, s57")
    A(f"s_add_u32 s{SD}, s26, s56\ns_addc_u32 s{SD+1}, s27, 0\ns_mov_b32 s{SD+2}, {64*OS + 1024:#x}\ns_mov_b32 s{SD+3}, 0x20000")
    A(f"s_lshl_b32 s56, s45, 11\ns_add_u32 s{S_RA}, s46, s56\ns_add_u32 s{S_RA}, s{S_RA}, {D1:#x}")
    A(f"s_cmp_eq_u32 s{S_W}, 3\ns_cselect_b32 s56, 1024, 0\ns_cselect_b32 s57, 0, 1024\ns_add_u32 s{S_RB2}, s{S_RA}, s57\ns_add_u32 s{S_RA}, s{S_RA}, s56")
    A(f"s_lshl_b32 s56, s44, 6\nv_lshlrev_b32 v237, 4, v10\nv_add_u32 v237, s56, v237")
    A(f"v_add_u32 v{VDMA2}, 4096, v{VDMA}")
    A(f"s_cmp_eq_u32 s{S_RB}, 0\ns_cselect_b32 s56, {OOB:#x}, 0\nv_add_u32 v{VTOP}, s56, v{VDMA}")
    A(f"s_cmp_eq_u32 s{S_RB}, 15\ns_cselect_b32 s56, {OOB:#x}, 0\nv_add_u32 v{VBOT}, s56, v{VDMA2}")
    A(f"v_lshrrev_b32 v11, 2, v9\nv_lshlrev_b32 v11, 8, v11\nv_lshl_add_u32 v11, v10, 6, v11")
    A(f"v_and_b32 v14, 3, v9\nv_lshl_add_u32 v{VU}, v14, 4, v11")
    A(f"s_lshl_b32 s57, s{S_W}, 10\ns_lshr_b32 s56, s{S_W}, 1\ns_sub_u32 s58, 2, s56\ns_lshl_b32 s58, s58, 10\ns_lshl_b32 s56, s56, 11")
    A(f"v_mul_u32_u24 v11, 6144, v10\nv_lshl_add_u32 v11, v9, 4, v11")
    A(f"v_add_u32 v14, s56, v11\ns_xor_b32 s56, s56, 2048\nv_add_u32 v11, s56, v11")
    A(f"v_add_u32 v{VA}, s57, v14\nv_add_u32 v{VB}, s58, v14\nv_add_u32 v{VA1}, s57, v11\nv_add_u32 v{VB1}, s58, v11")
    A(f"s_mov_b32 s56, 0xbc00bc00\ns_cmp_eq_u32 s{S_W}, 1\ns_cselect_b32 s{S_SGN}, 0x3c003c00, s56")
    A(f"s_mul_i32 s{S_M0}, s{S_W}, 6144")
    for phi in (1, 2, 3):
        A(f"s_xor_b32 s56, s{S_W}, {phi}\ns_mul_i32 s56, s56, 3\ns_add_u32 s56, s56, {phi-1}\ns_lshl_b32 s56, s56, 13\nv_add_u32 v{VW[phi]}, s56, v{VDMA}")
    A(f"s_lshl_b32 s57, s{S_W}, 2\ns_mul_i32 s58, s{S_W}, 3")
    for r, tab in zip(VR, (0x1100, 0x0221, 0x2012)):
        A(f"s_lshr_b32 s56, {tab:#x}, s57\ns_and_b32 s56, s56, 15\ns_add_u32 s56, s56, s58\ns_lshl_b32 s56, s56, 13\nv_add_u32 v{r}, s56, v{VDMA}")
    A(f"s_cmp_eq_u32 s{S_W}, 3\ns_cselect_b32 s{S_AG}, -1.0, 1.0\ns_cmp_ge_u32 s{S_W}, 2\ns_cselect_b32 s{S_AG+1}, 1.0, -1.0")
    A(f"s_xor_b32 s{S_BB+1}, s{S_AG+1}, 0x80000000\ns_add_u32 s56, s{S_W}, 1\ns_bitcmp1_b32 s56, 1")
    A(f"s_cselect_b32 s{S_BB}, 0, 1.0\ns_cselect_b32 s{S_BB+1}, s{S_BB+1}, 0")
    A(f"v_cmp_eq_u32 vcc, 63, v0\nv_mov_b32 v11, {OOB:#x}\nv_mov_b32 v{VXL}, {XLDS}\nv_cndmask_b32 v{V63}, v11, 0, vcc")
    A(f"s_mov_b32 s{S_IT}, 0")
    A("v_and_b32 v35, 7, v0\nv_lshlrev_b32 v35, 5, v35\nv_lshl_add_u32 v35, v10, 3, v35")
    A(f"s_and_b32 s56, s{S_IDX}, 1\ns_lshl_b32 s56, s56, 7\ns_add_u32 s56, s56, s{S_OQ}\ns_lshl_b32 s56, s56, 8\ns_add_u32 s{S_E2}, s56, {EMBP:#x}")
    A(f"v_and_b32 v11, 3, v0\nv_lshrrev_b32 v14, 2, v0\nv_mul_u32_u24 v11, {WROW}, v11\nv_mul_u32_u24 v14, 144, v14")
    A(f"s_mul_i32 s58, s{S_W}, 2304\ns_add_u32 s58, s58, {WLDS}\nv_add3_u32 v{VJ}, v11, v14, s58")
    A(f"v_mul_u32_u24 v{VS}, 49152, v10\nv_lshl_add_u32 v{VS}, v9, 4, v{VS}")
    A(f"s_mul_i32 s56, s{S_GRP}, {US}\ns_add_u32 s56, s56, {U1:#x}")
    A(f"s_bfe_u32 s58, s{S_RB}, 0x10003\ns_lshl_b32 s58, s58, 11\ns_add_u32 s56, s56, s58")
    A(f"s_and_b32 s58, s{S_RB}, 1\ns_lshl_b32 s58, s58, 10\ns_add_u32 s56, s56, s58")
    A(f"s_bfe_u32 s58, s{S_RB}, 0x20001\ns_lshl_b32 s58, s58, 8\ns_add_u32 s56, s56, s58")
    A(f"s_mul_i32 s58, s{S_W}, {4*49152}\ns_add_u32 s56, s56, s58\ns_xor_b32 s58, s56, 2048")
    A(f"s_bitcmp1_b32 s{S_IDX}, 0\ns_cselect_b32 s{S_J0}, s58, s56\ns_cselect_b32 s{S_J1}, s56, s58")
    A(f"s_cselect_b32 s58, {3*12288}, 0\ns_cselect_b32 s59, 12288, 0")
    A(f"s_add_u32 s{S_J0}, s{S_J0}, s58\ns_add_u32 s{S_J1}, s{S_J1}, s59\ns_add_u32 s{S_J1}, s{S_J1}, 12288")
    wk = OPT.get("wk", 9)
    wsp = OPT.get("wsp", (3, 3, 3, 0, 0))
    nextw = f"s_mov_b32 s{SO}, s20\ns_mov_b32 s{SO+1}, s21"
    if wk < 0:
        A("\n".join(w_loads(WLDS, 56, 57)) + "\n" + nextw)
    st.mark(A, "wis", False)
    nlate = 0
    if OPT["pf"] == 3:
        touch(); nlate += 1; npf += 1
    if OPT.get("ft", 3) == 2 and wk < 0:
        ftouch(); nlate += 1
    if wk == 9 and OPT.get("ft", 3) == 2:
        npf -= 1
    w1l = w_loads(WLDS, 44, 46)
    def side_work():
        A(f"s_cmp_lt_u32 s{S_W}, 2\ns_cbranch_scc1 Lside1\n{'s_nop 0' if xf else 's_waitcnt vmcnt(%d)' % (16 + 9*(wk < 0) + npf)}\ns_cmp_eq_u32 s{S_W}, 3\ns_cbranch_scc1 Lside4")
        A("v_mov_b32 v12, 0\nv_mov_b32 v13, 0")
        for d in range(16):
            unpack_bf16(A, 16 + d, 14, 15)
            A(f"v_max3_f32 v{12 + d//8}, |v14|, |v15|, v{12 + d//8}")
        A("s_nop 0")
        wave_reduce(A, [12, 13], "v_max_f32")
        for r in (12, 13):
            A(f"v_frexp_exp_i32_f32 v{r}, v{r}\nv_min_i32 v{r}, 60, v{r}\nv_max_i32 v{r}, 0xffffffc4, v{r}")
        A(LANE63)
        A(f"ds_write_b64 v{VXL}, v[12:13] offset:72\ns_mov_b64 exec, -1\ns_branch Lside1")
        A("Lside4:")
        for i in range(3):
            A(f"v_lshlrev_b32 v{16+i}, 16, v{16+i}")
        for op in (f"v_mul_f32 v{{t}}, {NLOG2E:#x}, v{{x}}", "v_exp_f32 v{t}, v{t}", "v_add_f32 v{t}, 1.0, v{t}",
                   "v_rcp_f32 v{t}, v{t}", "v_mul_f32 v{x}, v{x}, v{t}"):
            for i in range(3):
                A(op.format(t=32+i, x=16+i))
        for i in range(3):
            for d in range(4):
                unpack_bf16(A, 20 + 4*i + d, 44 + 2*d, 45 + 2*d)
            for k in range(8):
                A(f"v_mul_f32 v{36+k}, v{44+k}, v{16+i}" if i == 0 else f"v_fmac_f32 v{36+k}, v{44+k}, v{16+i}")
        for k in range(8):
            A(f"v_add_f32_dpp v{36+k}, v{36+k}, v{36+k} row_ror:8 row_mask:0xf bank_mask:0xf")
        A("s_nop 1")
        for k in (0, 1, 4, 5):
            A(f"v_permlane16_swap_b32 v{36+k}, v{38+k}")
        for k in (0, 1, 4, 5):
            A(f"v_add_f32 v{36+k}, v{36+k}, v{38+k}")
        A("s_nop 1")
        for k in (0, 1):
            A(f"v_permlane32_swap_b32 v{36+k}, v{40+k}")
        for k in (0, 1):
            A(f"v_add_f32 v{36+k}, v{36+k}, v{40+k}")
        A("Lside1:")
    if not xf:
        side_work()
    st.mark(A, "side", False)
    P = 116

    def sums(A, x, a, first):
        if first:
            A(f"v_pk_mul_f32 {v(a+4,2)}, {v(x,2)}, {v(x,2)}\nv_pk_mul_f32 {v(a,2)}, {v(x,2)}, 1.0 op_sel_hi:[1,0]")
        else:
            A(f"v_pk_add_f32 {v(a,2)}, {v(a,2)}, {v(x,2)}\nv_pk_fma_f32 {v(a+4,2)}, {v(x,2)}, {v(x,2)}, {v(a+4,2)}")
    for k in range(0, 8, 2):
        if k == 0:
            st.mark(A, "set", False)
        if k == 2:
            st.mark(A, "x0", False)
        A(f"s_waitcnt vmcnt({12 + (sum(wsp[:k//2]) if wk == 9 else 9*(wk < k)) + (0 if k == 6 and OPT.get('ft', 3) == 3 else npf) - 2*k})")
        if k == 6:
            st.mark(A, "xin", False)
        B = Asm()
        for kk in (k, k+1):
            for rho in range(2):
                r = XR + (rho*8 + kk)*2
                unpack_bf16(B, r, H + (rho*4 + 0)*8 + kk, H + (rho*4 + 1)*8 + kk)
                unpack_bf16(B, r+1, H + (rho*4 + 2)*8 + kk, H + (rho*4 + 3)*8 + kk)
        for p in range(8):
            sums(B, H + p*8 + k, P + 2*(p & 1), k == 0 and p < 2)
        if k == wk:
            weave(A, B.L, w_loads(WLDS, 56, 57))
            A(nextw)
        else:
            A("\n".join(B.L))
        if wk == 9:
            A("\n".join(w1l[sum(wsp[:k//2]):sum(wsp[:k//2 + 1])]))

    A("Lstats:")
    A(f"v_pk_add_f32 {v(P,2)}, {v(P,2)}, {v(P+2,2)}")
    A(f"v_pk_add_f32 {v(P+4,2)}, {v(P+4,2)}, {v(P+6,2)}")
    A(f"v_add_f32 v{P}, v{P}, v{P+1}\nv_add_f32 v{P+1}, v{P+4}, v{P+5}")
    wave_reduce(A, [P, P+1])
    A(f"s_lshl_b32 s56, s{S_W}, 3\nv_add_u32 v{P+2}, s56, v{VXL}")
    A(LANE63)
    A(f"ds_write_b64 v{P+2}, {v(P,2)}")
    A("s_mov_b64 exec, -1")
    A(f"s_lshl_b32 s59, s{S_IT}, 16\ns_add_u32 s56, s59, s{S_SLOT}\ns_add_u32 s56, s56, {STAT:#x}")
    A(f"s_cmp_eq_u32 s{S_IT}, 0\ns_cbranch_scc1 Lb1\ns_waitcnt vmcnt(0)\nLb1:")
    A(f"s_waitcnt lgkmcnt(0)\ns_barrier\ns_add_u32 s{S_TAG}, s{S_ASC}, {TAGSTEP:#x}")
    A(f"s_cmp_lg_u32 s{S_W}, 0\ns_cbranch_scc1 Lnopub")
    A(f"ds_read_b128 {v(P,4)}, v{VXL}\nds_read_b128 {v(P+4,4)}, v{VXL} offset:16")
    A(f"v_mov_b32 v133, s{S_TAG}\nv_mov_b32 v135, s{S_TAG}\ns_waitcnt lgkmcnt(0)")
    A(f"v_pk_add_f32 {v(P,2)}, {v(P,2)}, {v(P+2,2)}\nv_pk_add_f32 {v(P+4,2)}, {v(P+4,2)}, {v(P+6,2)}")
    A(f"v_add_f32 v132, v{P}, v{P+4}\nv_add_f32 v134, v{P+1}, v{P+5}")
    if OPT.get("fl", 1):
        A(f"v_and_b32 v{P}, 0x70, v{VDMA}\nbuffer_store_dwordx4 v[132:135], v{P}, s[{SWS}:{SWS+3}], s56 offen sc1")
    else:
        A(f"buffer_store_dwordx4 v[132:135], v{V63}, s[{SWS}:{SWS+3}], s56 offen sc1")
    A("Lnopub:")
    st.mark(A, "pub")
    A(f"s_mul_i32 s{S_POLL}, s{S_GRP}, {GRPS}\ns_add_u32 s{S_POLL}, s{S_POLL}, s59\ns_add_u32 s{S_POLL}, s{S_POLL}, {STAT:#x}")
    A(f"v_cmp_gt_u32 vcc, 32, v0\nv_mov_b32 v{P}, {OOB:#x}\nv_lshlrev_b32 v{VPOLL}, 7, v0\nv_cndmask_b32 v{VPOLL}, v{P}, v{VPOLL}, vcc")
    A(f"s_cmp_lg_u32 s{S_IT}, 0\ns_cbranch_scc1 Ljob")
    if wk == 9:
        A("\n".join(w1l[sum(wsp[:4]):]) + "\n" + nextw)
        if OPT.get("ft", 3) == 2:
            ftouch(); nlate = 1
    A(f"global_load_dwordx4 {v(GR,4)}, v237, s[8:9]\nglobal_load_dwordx4 {v(BR,4)}, v237, s[10:11]")
    if xf:
        side_work()
    A(f"s_cmp_eq_u32 s{S_W}, 3\ns_cselect_b32 s56, s{S_E2}, {OOB:#x}")
    A(f"buffer_store_dwordx2 v[36:37], v35, s[{SWS}:{SWS+3}], s56 offen sc1")
    if wk == 9 and wsp[4]:
        A(f"s_waitcnt vmcnt({3 + nlate})\ns_barrier")
    else:
        A(f"s_cmp_eq_u32 s{S_W}, 0\ns_cbranch_scc1 Lw3\ns_waitcnt vmcnt({3 + nlate})\nLw3:\ns_waitcnt vmcnt({4 + nlate})\ns_barrier")
    A("Ljob:")
    st.mark(A, "win")
    def totals(first):
        spin(A, "Ls", POLL4, f"v_cmp_ne_u32 vcc, s{S_TAG}, v{PLD+1}\nv_cmp_ne_u32 s[56:57], s{S_TAG}, v{PLD+3}\ns_nop 1\ns_or_b32 s56, s56, vcc_lo", first)
        wave_reduce(A, [PLD, PLD+2])
        A(f"v_mul_f32 v{PLD}, 0xb6000000, v{PLD}\nv_mul_f32 v{PLD+2}, 0x36000000, v{PLD+2}")
        A(f"v_fma_f32 v{PLD+2}, -v{PLD}, v{PLD}, v{PLD+2}\nv_max_f32 v{PLD+2}, 0, v{PLD+2}")
        A(f"v_add_f32 v{PLD+2}, 0x3727c5ac, v{PLD+2}\nv_rsq_f32 v{PLD+1}, v{PLD+2}")
        A(LANE63)
        A(f"ds_write_b64 v{VXL}, {v(PLD,2)} offset:64")
        A("s_mov_b64 exec, -1")
    jpos, late = (), []
    if OPT.get("gate", 0):
        A1, B1, KK, TT, OUT = 96, 104, 112, 8, 24

        def gate():
            A(f"s_mov_b32 s56, {NLOG2E:#x}\ns_waitcnt vmcnt(2)\ns_cmp_eq_u32 s{S_W}, 0\ns_cbranch_scc1 Lg0\ns_waitcnt vmcnt(1)\nLg0:")
            for d in range(4):
                unpack_bf16(A, GR + d, A1 + 2*d, A1 + 2*d + 1)
                unpack_bf16(A, BR + d, B1 + 2*d, B1 + 2*d + 1)
            for k in range(0, 16, 2):
                A(f"v_pk_mul_f32 {v(A1+k,2)}, {v(A1+k,2)}, s[56:57] {LO2}")
            A(f"s_cmp_lg_u32 s{S_W}, 0\ns_cbranch_scc1 Ljoin")
            totals(True)
            A("Ljoin:")
        job(A, f"s_cmp_lg_u32 s{S_W}, 0\ns_cbranch_scc1 Ljob_mid\n{POLL4}\nLjob_mid:", job_stores(), gate)
        st.mark(A, "b4")
        A(f"s_cmp_lg_u32 s{S_IT}, 0\ns_cselect_b64 vcc, -1, 0\ns_mov_b32 s56, {NLOG2E:#x}")
        A(f"v_cndmask_b32 v{KK}, v{PLD+2}, v{PLD+3}, vcc")
        A(f"v_add_u32 v{KK}, 124, v{KK}\nv_lshlrev_b32 v{KK}, 23, v{KK}\nv_mul_f32 v{KK+1}, s56, v{KK}")
        A(f"v_readfirstlane_b32 s{S_INV}, v{KK}\nv_mul_f32 v{KK}, s56, v{KK}")
    else:
        scheck = f"v_cmp_ne_u32 vcc, s{S_TAG}, v{PLD+1}\nv_cmp_ne_u32 s[58:59], s{S_TAG}, v{PLD+3}\ns_nop 1\ns_or_b32 s58, s58, vcc_lo"
        g2 = OPT.get("g2", 1)
        if g2:
            who = f"s_or_b32 s57, s{S_W}, s{S_IT}" if g2 == 1 else f"s_cmp_lg_u32 s{S_W}, 0"

            def hold():
                st.mark(A, "ja")
                A(f"{who}\ns_cbranch_scc1 Le_ok")
                spin(A, "Le", POLL4, scheck, True, 57)
                st.mark(A, "held")
            job(A, f"s_cmp_ge_u32 s{S_W}, s{S_IT}\ns_cbranch_scc1 Ljob_mid\n{POLL4}\nLjob_mid:" if g2 == 1 else "", job_stores(),
                early=(f"{who}\ns_cbranch_scc1 Ljob_e\n{POLL4}\nLjob_e:", hold))
        else:
            job(A, f"s_cmp_lg_u32 s{S_W}, 0\ns_cbranch_scc1 Ljob_mid\n{POLL4}\nLjob_mid:", job_stores())
        st.mark(A, "job0")
        A1, B1, KK, TT, OUT = 8, 16, 24, 32, 80
        pre = Asm()
        pre(f"ds_read_b64 {v(KK,2)}, v{VXL} offset:72\ns_mov_b32 s56, {NLOG2E:#x}\ns_waitcnt vmcnt(6)")
        for d in range(4):
            unpack_bf16(pre, GR + d, A1 + 2*d, A1 + 2*d + 1)
            unpack_bf16(pre, BR + d, B1 + 2*d, B1 + 2*d + 1)
        A(f"s_cmp_lg_u32 s{S_W}, 0\ns_cbranch_scc1 Ljoin")
        A(f"s_mov_b32 s58, {SPIN_MAX}\ns_waitcnt vmcnt(6)\ns_branch Ls_chk")
        spin(A, "Ls", POLL4, f"v_cmp_ne_u32 vcc, s{S_TAG}, v{PLD+1}\nv_cmp_ne_u32 s[56:57], s{S_TAG}, v{PLD+3}\ns_nop 1\ns_or_b32 s56, s56, vcc_lo", None)
        wave_reduce(A, [PLD, PLD+2])
        A(f"v_mul_f32 v{PLD}, 0xb6000000, v{PLD}\nv_mul_f32 v{PLD+2}, 0x36000000, v{PLD+2}")
        A(f"v_fma_f32 v{PLD+2}, -v{PLD}, v{PLD}, v{PLD+2}\nv_max_f32 v{PLD+2}, 0, v{PLD+2}")
        A(f"v_add_f32 v{PLD+2}, 0x3727c5ac, v{PLD+2}\nv_rsq_f32 v{PLD+1}, v{PLD+2}")
        A(LANE63)
        A(f"ds_write_b64 v{VXL}, {v(PLD,2)} offset:64")
        A("s_mov_b64 exec, -1")
        A("Ljoin:")
        A("\n".join(pre.L))
        A(f"s_cmp_lg_u32 s{S_IT}, 0\ns_cselect_b64 vcc, -1, 0\ns_waitcnt lgkmcnt(0)\ns_barrier")
        st.mark(A, "b4")
        A(f"ds_read_b64 {v(PLD,2)}, v{VXL} offset:64")
        jpos = OPT.get("jpos", (-1, -1, 0, 0, 1, 1)) if OPT["jst"] == 2 else ()
        late = list(zip(jpos, job_stores()))
        if late:
            A(late.pop(0)[1])
        A(f"v_cndmask_b32 v{KK}, v{KK}, v{KK+1}, vcc")
        A(f"v_add_u32 v{KK}, 124, v{KK}\nv_lshlrev_b32 v{KK}, 23, v{KK}")
        for k in range(0, 16, 2):
            A(f"v_pk_mul_f32 {v(A1+k,2)}, {v(A1+k,2)}, s[56:57] {LO2}")
        A(f"v_readfirstlane_b32 s{S_INV}, v{KK}\nv_mul_f32 v{KK+1}, s56, v{KK}\nv_mul_f32 v{KK}, s56, v{KK}")
        while late and late[0][0] < 0:
            A(late.pop(0)[1])
        A("s_waitcnt lgkmcnt(0)")
        st.mark(A, "tot")
    for k in range(0, 8, 2):
        A(f"v_pk_mul_f32 {v(A1+k,2)}, {v(A1+k,2)}, {v(PLD,2)} {HI2}")
    for k in range(0, 8, 2):
        A(f"v_pk_fma_f32 {v(B1+k,2)}, {v(A1+k,2)}, {v(PLD,2)}, {v(B1+k,2)} {LO3}")
    A(f"v_mov_b32 v{VT}, s{S_TAG}\nv_mov_b32 v{VT+1}, s{S_TAG}")
    A(f"s_lshl_b32 s59, s{S_IT}, 16\ns_add_u32 s57, s59, s{S_SLOT}\ns_lshl_b32 s56, s{S_W}, 4\ns_add_u32 s56, s56, s57\ns_add_u32 s{S_E2}, s56, {UF:#x}")
    uflag = (f"v_mov_b32 v{BR}, s{S_TAG}\nv_mov_b32 v{BR+1}, s{S_TAG}\nv_mov_b32 v{BR+2}, s{S_WS}\ns_waitcnt vmcnt(%d)\n"
             f"buffer_store_dwordx4 {v(BR,4)}, v{V63}, s[{SWS}:{SWS+3}], s{S_E2} offen sc1")
    ufp = OPT.get("ufp", 4)
    for p in range(8):
        o = OUT + 4*p
        B = Asm()
        silu(B, H + p*8, A1, B1, KK, TT + 8*(p & 1), o)
        weave(A, B.L, [t for q, t in late if q == p] or [""], 8, 32)
        A(f"buffer_store_dwordx4 {v(o,4)}, v{VD}, s[{SWS}:{SWS+3}], s{S_RA + (p >> 2)} offen offset:{256*(p & 3)} sc1")
        if p == ufp:
            A(uflag % (ufp + 1 - max((0,) + jpos)))
    st.mark(A, "silu")
    VUP, S_UP = 239, S_RET
    A(f"v_lshrrev_b32 v8, 2, v0\nv_lshlrev_b32 v8, 8, v8\nv_and_b32 v9, 3, v0\nv_lshl_add_u32 v{VUP}, v9, 4, v8")
    A(f"s_mul_i32 s{S_UP}, s{S_NB}, {GRPS}\ns_lshr_b32 s56, s{S_W}, 1\ns_lshl_b32 s56, s56, 7\ns_add_u32 s{S_UP}, s{S_UP}, s56")
    A(f"s_add_u32 s{S_UP}, s{S_UP}, s59\ns_add_u32 s{S_UP}, s{S_UP}, {UF:#x}")
    A(f"s_add_u32 s57, s57, {DF:#x}")
    A(f"s_mul_i32 s{S_U0}, s{S_NB}, {US}\ns_mul_i32 s56, s{S_W}, 12288\ns_add_u32 s{S_U0}, s{S_U0}, s56")
    A(f"s_mul_i32 s56, s{S_IT}, {U2-U1}\ns_add_u32 s{S_U0}, s{S_U0}, s56")
    A(f"s_add_u32 s{S_U0}, s{S_U0}, {U1:#x}\ns_add_u32 s{S_U1}, s{S_U0}, 4096\ns_add_u32 s{S_U2}, s{S_U0}, 8192")
    A(f"s_mul_i32 s{S_DMA}, s{S_W}, {OS}\ns_lshl_b32 s56, s{S_RB}, 12\ns_add_u32 s{S_DMA}, s{S_DMA}, s56")
    A(f"v_lshrrev_b32 v8, 3, v0\nv_min_u32 v8, 2, v8\nv_add_u32 v8, s{S_RB}, v8\nv_add_u32 v8, -1, v8\nv_med3_i32 v8, v8, 0, 15")
    A(f"v_and_b32 v9, 1, v0\nv_lshl_add_u32 v8, v8, 1, v9\nv_lshlrev_b32 v8, 7, v8")
    A(f"v_bfe_u32 v9, v0, 1, 2\nv_mul_u32_u24 v9, {GRPS}, v9\nv_add_u32 v{VPOLL}, v8, v9")
    A(f"s_mul_i32 s{S_POLL}, s{S_B}, {4*GRPS}\ns_add_u32 s{S_POLL}, s{S_POLL}, s59\ns_add_u32 s{S_POLL}, s{S_POLL}, {DF:#x}")
    upoll = f"buffer_load_dwordx2 {v(GR,2)}, v{VUP}, s[{SWS}:{SWS+3}], s{S_UP} offen sc1"
    ucheck = f"v_cmp_ne_u32 vcc, s{S_TAG}, v{GR}\nv_cmp_ne_u32 s[56:57], s{S_TAG}, v{GR+1}\ns_nop 1\ns_or_b64 s[56:57], s[56:57], vcc"
    dflag = f"buffer_store_dwordx2 {v(VT,2)}, v{V63}, s[{SWS}:{SWS+3}], s57 offen sc1"
    zero = [f"v_accvgpr_write_b32 a{i}, 0" for i in range(256)]
    nz1 = OPT.get("nz1", 160)
    Q0, Q1 = Seq(), Seq()

    def ulist(Q, kj):
        L = []
        for k, j in kj:
            for nu in range(4):
                u_load(Q, k, j, nu)
                L.append(Seq.text(Q.take()))
        return L

    def dma_list(Q, k):
        L = []
        for p in range(6):
            if p in (0, 4):
                dma_m0(Q, k, p >> 2); Q.raw("s_nop 0")
            dma(Q, k, p)
            L.append(Seq.text(Q.take()))
        return L
    Q = Q1
    nz1 = OPT.get("nz1", 128)
    weave(A, zero[:nz1], [upoll], OPT.get("nz0", 100))
    A("s_waitcnt vmcnt(1)\ns_barrier")
    st.mark(A, "b5")
    A(f"s_cmp_lg_u32 s{S_W}, 0\ns_cbranch_scc1 Lnodf")
    A(f"{dflag}\nLnodf:")
    A("\n".join(zero[nz1:]))
    A(f"s_mov_b32 s58, {SPIN_MAX}\ns_waitcnt vmcnt(1)\ns_cmp_eq_u32 s{S_W}, 0\ns_cbranch_scc1 Lu_chk\ns_branch Lu_wait")
    spin(A, "Lu", upoll, ucheck, None)
    st.mark(A, "uok")
    A(f"s_cmp_lg_u32 s{S_W}, 0\ns_cbranch_scc1 Lnp")
    A(f"{POLL4}\nLnp:")
    A("\n".join(ulist(Q, ((0, 0), (0, 1), (0, 2), (1, 0)))))
    st.mark(A, "job1")
    A(f"s_cmp_lg_u32 s{S_W}, 0\ns_cbranch_scc1 Ld_ok")
    A(f"s_mov_b32 s58, {SPIN_MAX}\ns_waitcnt vmcnt(16)\ns_branch Ld_chk")
    spin(A, "Ld", POLL4, f"v_cmp_ne_u32 vcc, s{S_TAG}, v{PLD}\nv_cmp_ne_u32 s[56:57], s{S_TAG}, v{PLD+1}\ns_nop 1\ns_or_b64 s[56:57], s[56:57], vcc", None)
    A("s_barrier")
    st.mark(A, "b6")
    A("\n".join(dma_list(Q, 0) + dma_list(Q, 1)))
    A(f"s_xor_b32 s{S_M0}, s{S_M0}, 0x10000\ns_mov_b32 s{S_CNT}, 7")
    d2 = dma_list(Q, 2)
    nd2 = OPT.get("nd2", 4)
    A("\n".join(d2[:nd2]))
    A(f"s_lshl_b32 s56, s{S_W}, 5\nv_and_b32 v8, 31, v0\nv_add_u32 v8, s56, v8")
    gen.code_touch(A, "Ltail", "Lcode_end", 8, 234, "Lpc2", 56)
    if OPT.get("l2pf", 0):
        first = OPT.get("l2first", 4)
        A(f"s_and_b32 s56, s{S_IDX}, 1\ns_lshl_b32 s56, s56, 2\ns_add_u32 s56, s56, s{S_W}\ns_lshl_b32 s57, s{S_B}, 6\ns_add_u32 s56, s56, s57")
        A(f"s_mul_i32 s56, s56, {OS}\ns_lshl_b32 s57, s{S_RB}, 12\ns_add_u32 s56, s56, s57")
        A(f"s_mul_i32 s57, s{S_IT}, {D2-D1}\ns_add_u32 s56, s56, s57\ns_add_u32 s56, s56, {D1 + first*4*OS}")
        A(f"s_lshl_b32 s57, s{S_RB}, 2\ns_add_u32 s57, s57, s{S_W}\ns_mul_i32 s57, s57, 1536\ns_mul_i32 s58, s{S_NB}, 786432\ns_add_u32 s57, s57, s58")
        A(f"s_lshl_b32 s58, s{S_IT}, 23\ns_add_u32 s57, s57, s58\ns_add_u32 s57, s57, {U1 + first*49152 - 4096}")
        A(f"v_cmp_gt_u32 vcc, 32, v0\nv_mov_b32 v8, s57\nv_mov_b32 v9, s56\nv_min_u32 v10, 43, v0\nv_cndmask_b32 v8, v8, v9, vcc")
        if OPT.get("l2u", 1):
            A("v_mov_b32 v8, s57\nv_max_u32 v10, 32, v10\ns_mov_b64 vcc, 0")
        A(f"v_lshl_add_u32 v232, v10, 7, v8\nv_mov_b32 v8, {2*49152}\nv_mov_b32 v9, {8*OS}\nv_cndmask_b32 v233, v8, v9, vcc")
    A(f"s_waitcnt vmcnt({6 + nd2})\ns_barrier")
    st.mark(A, "b7")
    for par in range(2):
        for tb in range(4):
            raw_read(Q, 0, par, tb, 0); raw_read(Q, 0, par, tb, 1)
    for par in range(2):
        for tb in range(4):
            Q.wait(lg=[("rd", 0, par, tb)])
            for d in range(4):
                h_op(Q, 0, par, tb, d)
    main = Seq.text(Q.take()).split("\n")
    weave(A, main, d2[nd2:] + ulist(Q, ((1, 1),)), 12)
    l2 = OPT.get("l2pf", 0)
    pfl = f"buffer_load_dword v{VT+1}, v232, s[{SWS}:{SWS+3}], %s offen sc1"
    pfa = "v_add_u32 v232, v232, v233"
    Q.wait(vm=[("raw", 1)])
    A(Seq.text(Q.take()))
    if l2:
        for _ in range((l2 - OPT.get("l2first", 4))//2):
            A(pfl % "0" + "\n" + pfa)
    if OPT.get("sched", 1):
        A(f"s_mov_b32 s{S_USTEP}, 49152\ns_sub_u32 s{S_U1}, s{S_U1}, 49152")
    A(f"s_cmp_eq_u32 s{S_IT}, 0\ns_cbranch_scc1 Lgo")
    A(f"s_cmp_lg_u32 s2, 2\ns_cbranch_scc1 Lgo\ns_cmp_lg_u32 s{S_W}, 0\ns_cbranch_scc1 Lgo")
    A(f"buffer_store_dword v{VT}, v{V63}, s[{SWS}:{SWS+3}], 0 offen offset:{GEN} sc1")
    A("Lgo:")
    st.mark(A, "loop")
    bodies = []
    for Q in (Q1,):
        for n in range(7):
            ex = None
            if l2:
                g = OPT.get("l2gap", 56)
                ex = {g - 2: [lambda: Q.raw(f"s_cmp_gt_u32 s{S_CNT}, {l2//2 - 1}")], g - 1: [lambda: Q.raw(f"s_cselect_b32 s56, 0, {OOB:#x}")],
                      g: [lambda: Q.vmem(pfl % "s56", "pf")], g + 2: [lambda: Q.raw(pfa)]}
            step(Q, 2*n, None, ex)
            step(Q, 2*n + 1, None, {61: [lambda: Q.raw(f"s_sub_u32 s{S_CNT}, s{S_CNT}, 1")],
                                    62: [lambda: Q.raw(f"s_cmp_gt_u32 s{S_CNT}, 1")],
                                    63: [lambda: Q.raw("s_cbranch_scc1 Lloop")]})
            bodies.append(Q.take())
    A(".p2align 6\nLloop:")
    A(Seq.text(merge(bodies)))
    A(f"s_cmp_eq_u32 s{S_CNT}, 0\ns_cbranch_scc1 Ltail\nglobal_load_dword v{VT+1}, v[234:235], off\ns_branch Lloop\nLtail:")
    st.mark(A, "l14")
    gm = {9: 15, 11: 18, 17: 22, 19: 25, 22: 29, 26: 32, 33: 36, 35: 39, 38: 43, 42: 46, 49: 53, 63: 63}
    remap = lambda ex: {gm[g]: f for g, f in ex.items()} if OPT.get("sched", 1) else ex
    R = lambda t: [lambda: Q.raw(t)]
    M = lambda t: [lambda: Q.vmem(t, "ep")]
    sc_ld = [f"buffer_load_dword v{SCR+h}, v{VT}, s[{SWS}:{SWS+3}], s56 offen offset:{8 + 256*h} sc1" for h in range(2)]
    em_ld = [f"buffer_load_dwordx4 {v(EMR+4*h,4)}, v{VPOLL}, s[{SWS}:{SWS+3}], s57 offen offset:{16*h} sc1" for h in range(2)]
    gb_ld = [f"global_load_dwordx4 {v(GR,4)}, v237, s[16:17]", f"global_load_dwordx4 {v(BR,4)}, v237, s[18:19]"]
    unscale = f"v_pk_mul_f32 {v(SCR,2)}, {v(SCR,2)}, s[{S_ASC}:{S_INV}] op_sel:[0,1] op_sel_hi:[1,1]"
    red = [f"v_add_f32_dpp v{EMR+k}, v{EMR+k}, v{EMR+k} row_ror:{sh} row_mask:0xf bank_mask:0xf" for sh in (8, 4, 2, 1) for k in range(8)]
    wl = w_loads(WLDS, 58, 59)
    ex = {9: R(f"v_and_b32 v{VT}, 127, v237\nv_lshlrev_b32 v239, 1, v{VT}\nv_lshlrev_b32 v{VT}, 5, v{VT}"),
          11: M(wl[0]),
          17: R(f"s_mul_i32 s56, s{S_NB}, {GRPS}\ns_lshl_b32 s57, s{S_IT}, 16\ns_add_u32 s56, s56, s57\ns_add_u32 s56, s56, {UF:#x}"),
          19: R(f"s_lshl_b32 s57, s{S_B}, 3\ns_add_u32 s57, s57, s{S_NB}\ns_lshl_b32 s57, s57, 12\ns_add_u32 s57, s57, {EMBP:#x}"),
          22: R(f"v_and_b32 v{VPOLL}, 15, v0\nv_lshl_add_u32 v{VPOLL}, v{VPOLL}, 8, v239"),
          26: M(wl[1]),
          33: M(em_ld[0]), 35: M(em_ld[1]), 38: M(sc_ld[0]), 42: [lambda: Q.vmem(sc_ld[1], "sc")],
          49: M(wl[2]), 63: M(wl[3])}
    step(Q, 14, remap(ex))
    ex = {2: M(gb_ld[0]), 9: M(wl[4]), 5: M(gb_ld[1]), 22: M(wl[5]),
          33: M(wl[6]), 42: M(wl[7]), 55: M(wl[8]),
          39: [lambda: Q.wait(vm=["sc"]), lambda: Q.raw(unscale)]}
    slots = [43, 46, 49, 50, 51, 52, 53, 54, 56, 57, 58, 59, 60, 61, 62, 63]
    for i, g in enumerate(slots):
        ex[g] = R("\n".join(red[2*i:2*i + 2]))
    step(Q, 15, ex)
    A(Seq.text(Q.take()))
    A("Lepi:")
    st.mark(A, "end")
    RB_, ZB = [8, 40], [72, 88]
    XB = [8, 20, 72, 84]
    LO, HI = LO3, HI3
    ag, bb = f"s[{S_AG}:{S_AG+1}]", f"s[{S_BB}:{S_BB+1}]"
    XF, OUT = 40, 104
    for nul in range(2):
        stream, ready = [], []
        for n, phi in enumerate((2, 1, 3, 0)):
            sg, nup = phi >> 1, phi & 1
            nu = 2*nup + nul
            Rr = RB_[n & 1]
            Z = (lambda q, zb=ZB[n & 1]: zb + 4*q) if phi else (lambda q: H + q*8 + nul*4)
            m = lambda j, be, r=0: Rr + j*8 + be*4 + r
            E = stream.append

            def rdacc(*jb):
                for j, be in jb:
                    for r in range(4):
                        E(f"v_accvgpr_read_b32 v{m(j,be,r)}, a{j*64 + nu*16 + (2*sg + be)*4 + r}")

            def pk(q, x, y, neg, first=False):
                for r in (0, 2):
                    E(f"v_pk_add_f32 {v(Z(q)+r,2)}, {v((x if first else Z(q))+r,2)}, {v(y+r,2)} {NEG1 if neg else ''}")

            def done(q):
                if phi:
                    ready.append((len(stream), f"ds_write_b128 v{VW[phi]}, {v(Z(q),4)} offset:{(nul*4 + q)*1024}"))
            rdacc((0, 0), (0, 1), (1, 0), (2, 0))
            if n == 2:
                E("@war")
            pk(1, m(1,0), m(2,0), 0, True); pk(0, m(1,0), m(2,0), 1, True)
            pk(1, None, m(0,0), 1); pk(1, None, m(0,1), 0); done(1)
            rdacc((3, 1), (3, 0))
            for r in range(4):
                E(f"v_add_f32_dpp v{Z(0)+r}, v{m(3,1,r)}, v{Z(0)+r} row_shr:1 row_mask:0xf bank_mask:0xf bound_ctrl:1")
            pk(0, None, m(3,0), 1)
            done(0)
            rdacc((1, 1), (2, 1))
            pk(2, m(1,1), m(2,1), 1, True); pk(3, m(1,1), m(2,1), 0, True)
            pk(2, None, m(3,1), 1); pk(2, None, m(3,0), 0); done(2)
            for r in range(4):
                E(f"v_add_f32_dpp v{Z(3)+r}, v{m(0,0,r)}, v{Z(3)+r} row_shl:1 row_mask:0xf bank_mask:0xf bound_ctrl:1")
            pk(3, None, m(0,1), 1)
            done(3)
        where, last = {}, -99
        for pos, t in ready:
            last = max(pos, last + OPT.get("wgap", 15))
            where[last] = t
        bpos = last + OPT.get("bgap", 14)
        nw = 0
        rds = [f"ds_read_b128 {v(XB[q] + 4*k, 4)}, v{VR[k]} offset:{(nul*4 + q)*1024}" for q in range(4) for k in range(3)]
        for i, t in enumerate(stream):
            if i in where:
                A(where[i]); nw += 1
            if i == bpos:
                A("s_waitcnt lgkmcnt(0)\ns_barrier")
            if i >= bpos and (i - bpos) % OPT.get("rgap", 2) == 0 and rds:
                for _ in range(OPT.get("rnum", 1)):
                    A(rds.pop(0))
            A(f"s_waitcnt lgkmcnt({nw - 4})" if t == "@war" else t)
        assert nw == 12 and 181 <= bpos and not rds
        for q in range(4):
            if q in (0, 2):
                A(f"s_waitcnt lgkmcnt({6 - 3*q})")
            x = XB[q]
            ha, hb = H + q*8 + nul*4, H + 32 + q*8 + nul*4
            for r in (0, 2):
                A(f"v_pk_fma_f32 {v(hb+r,2)}, {v(x+4+r,2)}, {ag}, {v(x+8+r,2)} {HI}")
            for r in (0, 2):
                A(f"v_pk_fma_f32 {v(x+4+r,2)}, {v(x+4+r,2)}, {ag}, {v(x+r,2)} {LO}")
            for r in (0, 2):
                A(f"v_pk_fma_f32 {v(hb+r,2)}, {v(x+r,2)}, {bb}, {v(hb+r,2)} {LO}")
            for r in (0, 2):
                A(f"v_pk_fma_f32 {v(hb+r,2)}, {v(ha+r,2)}, {bb}, {v(hb+r,2)} {HI}")
            for r in (0, 2):
                A(f"v_pk_add_f32 {v(ha+r,2)}, {v(ha+r,2)}, {v(x+4+r,2)}")
        if nul:
            st.mark(A, "hh")
        sel = HI if nul else LO
        A(f"s_cmp_lg_u32 s{S_IT}, 0\ns_cbranch_scc1 Lfinal{nul}")
        for p0 in range(0, 8, 2):
            xs = [(H + p*8 + k, k) for p in (p0, p0 + 1) for k in (4*nul, 4*nul + 2)]
            for x, k in xs:
                A(f"v_pk_fma_f32 {v(x,2)}, {v(x,2)}, {v(SCR,2)}, {v(EMR+k,2)} {sel}")
            for i, (x, k) in enumerate(xs):
                sums(A, x, P + (k & 2), nul == 0 and p0 == 0 and i < 2)
        if nul == 0:
            A("s_branch Lhalf")
        else:
            st.flush(A, 0, 7)
            st.mark(A, "start")
            A(f"s_mov_b32 s{S_IT}, 1\ns_mov_b32 s{SO+2}, 0")
            A(f"s_add_u32 s{S_RA}, s{S_RA}, {D2-D1:#x}\ns_add_u32 s{S_RB2}, s{S_RB2}, {D2-D1:#x}")
            A(f"s_add_u32 s{SD}, s{SD}, {D2-D1:#x}\ns_addc_u32 s{SD+1}, s{SD+1}, 0")
            A("s_branch Lstats")
        A(f"Lfinal{nul}:")
        if nul == 0:
            A(f"s_mov_b32 s{SO}, s22\ns_mov_b32 s{SO+1}, s23\ns_mov_b32 s{SO+2}, 0x800000\ns_waitcnt vmcnt(0)")
            if OPT.get("wide", 0):
                A(f"s_mov_b32 vcc_lo, 0xaaaaaaaa\ns_mov_b32 vcc_hi, 0xaaaaaaaa\nv_add_u32 v{VX+1}, -8, v{VX+1}\nv_cndmask_b32 v{VX}, v{VX}, v{VX+1}, vcc")
        for k in (4*nul, 4*nul + 2):
            xf = lambda p, kk: XF + p*4 + (kk & 3)
            for rho in range(2):
                for kk in (k, k+1):
                    r = XR + (rho*8 + kk)*2
                    unpack_bf16(A, r, xf(rho*4, kk), xf(rho*4 + 1, kk))
                    unpack_bf16(A, r+1, xf(rho*4 + 2, kk), xf(rho*4 + 3, kk))
            for p in range(8):
                x = H + p*8 + k
                A(f"v_pk_fma_f32 {v(x,2)}, {v(x,2)}, {v(SCR,2)}, {v(xf(p, k),2)} {sel}")
            if OPT.get("wide", 0):
                t = XF + (k & 2)
                cv = lambda kk, rho, d: XF + (kk & 1)*16 + rho*8 + d*4 + (k & 2)
                for kk in (k, k+1):
                    for rho in range(2):
                        h = H + rho*32 + kk
                        A(f"v_cvt_pk_bf16_f32 v{cv(kk,rho,0)}, v{h}, v{h+8}\nv_cvt_pk_bf16_f32 v{cv(kk,rho,1)}, v{h+16}, v{h+24}")
                for half in range(2):
                    A("s_not_b64 vcc, vcc")
                    for kk in (k, k+1):
                        for d in range(2):
                            A(f"v_cndmask_b32_dpp v{OUT + kk*4 + 2*half + d}, v{cv(kk,1-half,d)}, v{cv(kk,half,d)}, vcc quad_perm:[1,0,3,2] row_mask:0xf bank_mask:0xf")
                for kk in (k, k+1):
                    A(f"buffer_store_dwordx4 {v(OUT + kk*4,4)}, v{VX}, s[{SO}:{SO+3}], s{S_XO} offen {OPT['sto']}")
                    A(f"s_add_u32 s{S_XO}, s{S_XO}, 8192")
                continue
            for kk in (k, k+1):
                for rho in range(2):
                    o = OUT + (rho*8 + kk)*2
                    h = H + rho*32 + kk
                    A(f"v_cvt_pk_bf16_f32 v{o}, v{h}, v{h+8}")
                    A(f"v_cvt_pk_bf16_f32 v{o+1}, v{h+16}, v{h+24}")
                    A(f"buffer_store_dwordx2 {v(o,2)}, v{VX+rho}, s[{SO}:{SO+3}], s{S_XO} offen {OPT['sto']}")
                A(f"s_add_u32 s{S_XO}, s{S_XO}, 8192")
        if nul == 0:
            A("Lhalf:")
    if stamps:
        A("s_waitcnt vmcnt(0)")
        A("s_memrealtime s[20:21]\ns_memtime s[22:23]\ns_waitcnt lgkmcnt(0)")
        st.flush(A, 1, 7)
        A("s_mov_b32 s72, s20\ns_mov_b32 s74, s22")
        st.flush(A, 2, 1)
    A("Lexit:\ns_endpgm")
    A("Lcode_end:")
    descriptor(A, NAME, 512, 256)
    return A


HEAD = """; ADM ResBlock: GN+SiLU -> conv3x3 -> +emb -> GN+SiLU -> conv3x3 -> +x   (B=2, C=512, 64x64, bf16 in/out)
; operands carry run-time power-of-two scales (max|w| per 4 output channels, max|gamma|,|beta|) undone afterwards.
%s
.amdgcn_target "amdgcn-amd-amdhsa--gfx950"
"""

if __name__ == "__main__":
    for a in sys.argv[2:]:
        if "=" in a:
            k, val = a.split("=")
            OPT[k] = int(val) if val.lstrip("-").isdigit() else (eval(val) if val.startswith("(") else val.replace("+", " "))
    D1 += OPT.get("base", 0) << 20; D2 += (OPT.get("base", 0) + OPT.get("d2", 0)) << 20
    U1 += OPT.get("base", 0) << 20; U2 += OPT.get("base", 0) << 20
    stamps = "stamps" in sys.argv[2:]
    launch = "; @launch " + (f"kernel={NAME} " if "list" in sys.argv[2:] else "") + "grid=(256,1,1) block=(256,1,1) lds=152064"
    text = HEAD % launch + kernel(stamps).text()
    open(sys.argv[1], "w").write(align_pass(text) if OPT["align"] else text)
```

```python
import sys
sys.path.insert(0, "tools")
import gen
from gen import (Asm, v, acc, NEG1, srd, wave_reduce, header, descriptor, gn_coeffs, silu8, unpack_bf16, trim,
                 align_pass, OPT, OOB, NLOG2E, SPIN_MAX, TAGSTEP, S_MASK, WS_BYTES, WROW, STAMP,
                 SLOT, VDMA, VDMA2, VTOP, VBOT, VU, VA, VB, VA1, VB1, WLDS, XLDS, C, PP, TMP, UU,
                 SWS, SD, SX, SO, S_W, S_DMA, S_M0, S_U0, S_U1, S_U2, S_SGN, S_CNT, S_GRP, S_IDX, S_B, S_NB, S_RB,
                 u_load, dma_m0, dma, raw_read, h_op, D1, D2, U1, U2, SC1, SC2)

NAME = "standalone__adm_resblock__diffusion_kernel"
GEN, EMBP = 0x0, 0x10000
STAT, UF, DF = 0x40000, 0x60000, 0x80000
GRPS = 4352
OS, US = 65536 + 256, 786432 + 4096
D1 = 0x100000
D2 = D1 + 128*OS
U1 = D2 + 128*OS
U2 = U1 + 8*US
OPT.update(tlb=0, g2=0, ldx="nt", ldw="nt", jst=1, wpos=(2, 8, 14, 20), ldu="sc1", ldd="sc1", trimU=3, trimD=3, pf=1, delay=0, delayd=6, slp=1)

S_IT, S_TAG, S_ASC, S_INV, S_WS, S_E2, S_RA, S_RB2, S_J0, S_J1, S_OQ = 60, 61, 62, 63, 64, 65, 66, 67, 68, 69, 71
S_RET, S_POLL, S_SLOT, S_XO, S_USTEP = 24, 25, 12, 13, 101
S_AG, S_BB = 6, 14
VW, VR = (None, 240, 241, 242), (243, 244, 245)
VD, VX, V63, VXL, VPOLL, VT = 246, 247, 249, 250, 251, 252
H, XR, SCR, EMR, GR, BR, PLD, VS, VJ = 136, 200, 232, 104, 124, 128, 232, 236, 238

LANE63 = "s_mov_b32 exec_lo, 0\ns_mov_b32 exec_hi, 0x80000000"


class Seq(gen.Seq):
    def wait(self, vm=(), lg=()):
        a = [n for n in (self._n(self.vm, t) for t in vm) if n is not None]
        b = [n for n in (self._n(self.lg, t) for t in lg) if n is not None]
        self.out.append(("wait", a[-1] if a else None, b[-1] if b else None))

    @staticmethod
    def text(out):
        L = []
        for x in out:
            if isinstance(x, tuple):
                p = ([f"vmcnt({x[1]})"] if x[1] is not None else []) + ([f"lgkmcnt({x[2]})"] if x[2] is not None else [])
                assert (x[1] or 0) < 64 and (x[2] or 0) < 16
                if p:
                    L.append("s_waitcnt " + " ".join(p))
            else:
                L.append(x)
        return "\n".join(L)

    def take(self):
        o, self.out = self.out, []
        return o


def merge(bodies):
    res = []
    for items in zip(*bodies):
        if isinstance(items[0], tuple):
            f = lambda i: min([x[i] for x in items if x[i] is not None], default=None)
            res.append(("wait", f(1), f(2)))
            if res[-1] != bodies[3][len(res) - 1]:
                print("note: wait tightened", res[-1], items, file=sys.stderr)
        else:
            assert all(x == items[0] for x in items), items
            res.append(items[0])
    return res


class Stamps:
    def __init__(self, on):
        self.on = on

    def mark(self, A, name, wait=True):
        sel = OPT.get("marks", "start,pub,tot,silu,loop,end,hh").split(",")
        if self.on and name in sel:
            i = sel.index(name)
            A(f"s_memrealtime s[{72+4*i}:{73+4*i}]\ns_memtime s[{74+4*i}:{75+4*i}]")
            if wait:
                A("s_waitcnt lgkmcnt(0)")

    def flush(self, A, kid, n):
        if self.on:
            A(f"s_lshl_b32 s100, s2, 2\ns_add_u32 s100, s100, s{S_W}\ns_lshl_b32 s100, s100, 6")
            A(f"s_add_u32 s100, s100, {STAMP + kid*0x20000:#x}")
            for i in range(n):
                A(f"v_mov_b32 v{VT}, s{72+4*i}\nv_mov_b32 v{VT+1}, s{74+4*i}")
                A(f"buffer_store_dwordx2 {v(VT,2)}, v{V63}, s[{SWS}:{SWS+3}], s100 offen offset:{8*i}")
                A("s_nop 1")


def weave(A, main, side, first=0, last=None):
    last = len(main) if last is None else last
    pos = {}
    for i, t in enumerate(side):
        pos.setdefault(first + (i*(last - first))//len(side), []).append(t)
    for i, m in enumerate(main):
        for t in pos.get(i, []):
            A(t)
        A(m)


def w_loads(base, so, sm):
    ld = []
    for k in range(9):
        t = ""
        if k == 0:
            t = (f"s_mul_i32 s{sm}, s{S_W}, {WROW}\ns_add_u32 m0, s{sm}, {base}\n"
                 f"s_lshl_b32 s{so}, s{S_OQ}, 2\ns_add_u32 s{so}, s{so}, s{S_W}\ns_mul_i32 s{so}, s{so}, 9216\n")
        elif k in (4, 8):
            t = f"s_add_u32 m0, s{sm}, {base + 1024*k}\ns_add_u32 s{so}, s{so}, 4096\n"
        ld.append(t + f"buffer_load_dwordx4 v{VDMA}, s[{SO}:{SO+3}], s{so} offen offset:{1024*(k & 3)} {OPT.get('ldw', '')} lds")
    return ld


def spin(A, L, load, check, first_in_flight=False, c=58):
    if first_in_flight is not None:
        A(f"s_mov_b32 s{c}, {SPIN_MAX}")
    if first_in_flight:
        A(f"s_branch {L}_wait")
    A(f"{L}_poll:\n{load}\n{L}_wait:\ns_waitcnt vmcnt(0)\n{L}_chk:")
    A(check)
    A(f"s_cbranch_scc0 {L}_ok")
    A(f"s_sleep {OPT['slp']}\ns_sub_u32 s{c}, s{c}, 1\ns_cmp_lg_u32 s{c}, 0\ns_cbranch_scc1 {L}_poll")
    A(f"{L}_ok:")


POLL4 = f"buffer_load_dwordx4 {v(PLD,4)}, v{VPOLL}, s[{SWS}:{SWS+3}], s{S_POLL} offen sc1"


JG, JM, JRW, JOUT = 8, 80, 80, 56
LO2, HI2 = "op_sel_hi:[1,0]", "op_sel:[0,1] op_sel_hi:[1,1]"
LO3, HI3 = "op_sel_hi:[1,0,1]", "op_sel:[0,1,0] op_sel_hi:[1,1,1]"


def job(A, hook, stores, gate=None, early=None):
    G, M, RW, T = JG, 116, JRW, 80

    def greg(e):
        return G + (e % 9)*8 + e//9
    for k in range(9):
        A(f"ds_read_b128 {v(RW+4*k,4)}, v{VJ} offset:{16*k}")
    A(f"s_bitcmp1_b32 s{S_IDX}, 0\ns_cselect_b32 s56, -1.0, 1.0\ns_lshl_b32 s58, s{S_W}, 2\nv_add_u32 v{M+1}, s58, v{VXL}")
    for k in range(9):
        if k in (0, 1, 3, 6):
            A(f"s_waitcnt lgkmcnt({(8, 6, 0, 3, 0, 0, 0)[k]})")
        for d in range(4):
            e = 8*k + 2*d
            unpack_bf16(A, RW + 4*k + d, greg(e), greg(e+1))
        for d in range(4):
            e = 8*k + 2*d
            A(f"v_max3_f32 v{M}, |v{greg(e)}|, |v{greg(e+1)}|, {'0' if e == 0 else f'v{M}'}")
        if gate and k == OPT.get("hk", 3):
            A(hook)
        if early and k == OPT.get("hk", 3):
            A(early[0])
    B = Asm()
    for x in range(0, 24, 2):
        B(f"v_pk_fma_f32 {v(G+24+x,2)}, {v(G+24+x,2)}, s[56:57], {v(G+x,2)} {LO3}")
    for x in range(0, 24, 2):
        B(f"v_pk_add_f32 {v(G+24+x,2)}, {v(G+24+x,2)}, {v(G+48+x,2)}")
    red = [f"v_max_f32_dpp v{M}, v{M}, v{M} row_shr:{n} row_mask:0xf bank_mask:0xf bound_ctrl:1" for n in (1, 2, 4, 8)]
    red += [f"v_max_f32_dpp v{M}, v{M}, v{M} row_bcast:{n} row_mask:{m} bank_mask:0xf" for n, m in ((15, "0xa"), (31, "0xc"))]
    red += [f"{LANE63}\nds_write_b32 v{M+1}, v{M} offset:128\ns_mov_b64 exec, -1"]
    weave(A, B.L, red, 2, 16)

    def wsum(dst, src):
        for cp in range(0, 8, 2):
            A(f"v_pk_add_f32 {v(T+cp,2)}, {v(src+cp,2)}, {v(src+16+cp,2)}")
        for cp in range(0, 8, 2):
            A(f"v_pk_add_f32 {v(dst+cp,2)}, {v(T+cp,2)}, {v(src+8+cp,2)}")
            A(f"v_pk_add_f32 {v(dst+8+cp,2)}, {v(T+cp,2)}, {v(src+8+cp,2)} {NEG1}")
        if dst != src:
            for cp in range(0, 8, 2):
                A(f"v_pk_mul_f32 {v(dst+16+cp,2)}, {v(src+16+cp,2)}, 1.0 {LO2}")
    def sums():
        wsum(G + 24, G + 24)
        A(f"s_bitcmp1_b32 s{S_IDX}, 0\ns_cbranch_scc1 Ljp1")
        wsum(G, G)
        A("s_branch Ljp2\nLjp1:")
        wsum(G, G + 48)
        A("Ljp2:")
    if gate:
        sums()
        gate()
    if early:
        early[1]()
    A("s_waitcnt lgkmcnt(0)\ns_barrier")
    A(f"ds_read_b128 {v(M+4,4)}, v{VXL} offset:128")
    if gate:
        A(f"ds_read_b128 {v(PLD,4)}, v{VXL} offset:64")
    else:
        sums()
        A(hook)
    A("s_waitcnt lgkmcnt(0)")
    K = 88
    A(f"v_max3_f32 v{M+4}, v{M+4}, v{M+5}, v{M+6}\nv_max_f32 v{M+4}, v{M+4}, v{M+7}")
    A(f"v_frexp_exp_i32_f32 v{M+4}, v{M+4}\nv_min_i32 v{M+4}, 60, v{M+4}\nv_max_i32 v{M+4}, 0xffffffc4, v{M+4}")
    A(f"v_add_u32 v{M}, 119, v{M+4}\nv_lshlrev_b32 v{M}, 23, v{M}")
    A(f"v_sub_u32 v{K}, 135, v{M+4}\nv_lshlrev_b32 v{K}, 23, v{K}\nv_readfirstlane_b32 s{S_WS}, v{M}")
    A(f"v_mul_f32 v{K+2}, 0x47000080, v{K}\nv_mul_f32 v{K+3}, 0xc7000000, v{K}")
    A(f"v_pk_mul_f32 {v(K+4,2)}, {v(K+2,2)}, 0.5 {LO2}")
    for i, r in enumerate((G, G + 24)):
        for j, src in enumerate((r+16, r, r+8)):
            o = JOUT + (i*3 + j)*4
            kk = K + 2*(i + (j > 0))
            for cp in range(0, 8, 2):
                A(f"v_pk_mul_f32 {v(T+cp,2)}, {v(src+cp,2)}, {v(kk,2)} {LO2}")
            if i or j:
                for cp in range(0, 8, 2):
                    A(f"v_pk_fma_f32 {v(T+cp,2)}, {v(src+cp,2)}, {v(kk,2)}, {v(T+cp,2)} {HI3}")
            for d in range(4):
                A(f"v_cvt_pk_f16_f32 v{o+d}, v{T+2*d}, v{T+2*d+1}")
            A(stores[i*3 + j])


def job_stores(VS=VS):
    st = []
    for i in range(2):
        for j in range(3):
            st.append(f"buffer_store_dwordx4 {v(JOUT + (i*3 + j)*4, 4)}, v{VS}, s[{SWS}:{SWS+3}], s{S_J0+i} offen sc1\n"
                      f"s_add_u32 s{S_J0+i}, s{S_J0+i}, {4096 if j < 2 else U2 - U1 - 8192}")
    return st


def silu(A, x, A1, B1, kk, t, out):
    for k in range(0, 8, 2):
        A(f"v_pk_fma_f32 {v(x+k,2)}, {v(x+k,2)}, {v(A1+k,2)}, {v(B1+k,2)}")
    for k in range(8):
        A(f"v_exp_f32 v{t+k}, v{x+k}")
    for k in range(0, 8, 2):
        A(f"v_pk_fma_f32 {v(t+k,2)}, {v(t+k,2)}, {v(kk,2)}, {v(kk,2)}")
    for k in range(8):
        A(f"v_rcp_f32 v{t+k}, v{t+k}")
    for k in range(0, 8, 2):
        A(f"v_pk_mul_f32 {v(x+k,2)}, {v(x+k,2)}, {v(t+k,2)}")
    for k in range(0, 8, 2):
        A(f"v_cvt_pk_f16_f32 v{out+k//2}, v{x+k}, v{x+k+1}")
    trim(A, out, 4, OPT["trimD"])


def x_loads():
    ld = []
    for k in range(8):
        for rho in range(2):
            t = f"buffer_load_dwordx2 {v(XR + (rho*8 + k)*2, 2)}, v{VX+rho}, s[{SX}:{SX+3}], s59 offen {OPT['ldx']}"
            if rho == 1 and k < 7:
                t += f"\ns_add_u32 s59, s59, {32768 if OPT.get('xperm') else 8192}"
            ld.append(t)
    ld[0] = f"s_mov_b32 s59, s{S_XO}\n" + ld[0]
    return ld


VG = (1, 4, 8, 11, 15, 18, 22, 25, 29, 32, 36, 39, 43, 46, 50, 53, 57, 60)


def step(Q, k, extra=None, scal=None):
    if OPT.get("sched", 1) == 0:
        return gen.step(Q, k, extra)
    cs = k & 1
    c0, c1 = C[cs]
    u0, u1, u2 = UU[cs]
    ld_u2, ld_u, ld_d, rd = k + 1 <= 15, k + 2 <= 15, k + 3 <= 16, k + 1 <= 15
    G = [[] for _ in range(64)]
    at = lambda g, f: G[g].append(f)
    R = lambda t: (lambda: Q.raw(t))

    def put(lst, gaps):
        it = iter(lst)
        for g, n in gaps:
            for _ in range(n):
                at(g, next(it))
        assert next(it, None) is None

    def uld(kk, j, nu):
        r = UU[kk & 1][j] + 4*nu
        return lambda: Q.vmem(f"buffer_load_dwordx4 {v(r,4)}, v{VU}, s[{SWS}:{SWS+3}], s{S_U0+j} offen offset:{1024*nu} {OPT['ldu']}", ("u", kk, j))

    def dld(kk, p):
        vo = (VTOP, VDMA, VDMA, VDMA, VDMA2, VBOT)[p]
        return lambda: Q.vmem(f"buffer_load_dwordx4 v{vo}, s[{SD}:{SD+3}], s{S_DMA} offen offset:{1024*(p & 3)} {OPT['ldd']} lds", ("raw", kk))
    w4 = OPT.get("w4", 1)
    uinc = lambda j: R(f"s_add_u32 s{S_U0+j}, s{S_U0+j}, " + (f"s{S_USTEP}" if w4 else "49152"))
    rr = lambda par, tb, w: (lambda: raw_read(Q, k+1, par, tb, w))
    if ld_u2:
        put([uld(k+1, 2, nu) for nu in range(4)], [(g, 1) for g in VG[0:4]])
    if ld_d:
        put([dld(k+3, p) for p in range(6)], [(g, 1) for g in VG[4:10]])
        at(12, lambda: dma_m0(Q, k+3, 0))
        at(27, lambda: dma_m0(Q, k+3, 1))
        at(40, R(f"s_add_u32 s{S_DMA}, s{S_DMA}, {gen.DSTEP:#x}"))
        if cs == 0:
            at(41, R(f"s_xor_b32 s{S_M0}, s{S_M0}, 0x10000"))
    if ld_u:
        put([uld(k+2, 0, nu) for nu in range(4)], [(g, 1) for g in VG[10:14]])
        put([uld(k+2, 1, nu) for nu in range(4)], [(g, 1) for g in VG[14:18]])
    at(13, uinc(2))
    at(14, lambda: Q.wait(vm=[("u", k, 1)]))
    at(30, uinc(1))
    at(31, lambda: Q.wait(vm=[("u", k, 2)], lg=[("rd", k+1, 1, 3)]))
    if rd:
        at(51, uinc(0))
        at(52, lambda: Q.wait(lg=[("rd", k+1, 1, 3)]))
        put([rr(0, tb, w) for tb in range(4) for w in range(2)] + [rr(1, tb, 0) for tb in range(4)],
            [(0, 2), (2, 2), (3, 2), (5, 2), (6, 1), (7, 1), (9, 1), (10, 1)])
        put([rr(1, tb, 1) for tb in range(4)], [(33, 1), (34, 1), (35, 1), (37, 1)])
    if scal:
        for g, fs in scal.items():
            G[g] += fs
    put([R(f"v_pk_add_f16 v{PP+i}, v{c0+i}, v{c1+i}") for i in range(16)],
        [(0, 1), (2, 1), (5, 1), (6, 2), (7, 1), (9, 2), (10, 1), (12, 2), (13, 3), (14, 2)] if rd else
        [(g, 2) for g in (0, 3, 6, 7, 10, 12, 13, 14)])
    put([R(f"v_pk_add_f16 v{c0+i}, v{c0+i}, v{c1+i} {NEG1}") for i in range(16)],
        [(16, 3), (17, 3), (19, 1), (21, 2), (23, 1), (26, 2), (27, 1), (30, 3)] if rd else
        [(g, 2) for g in (16, 17, 18, 21, 25, 26, 29, 30)])
    put([R(f"v_pk_add_f16 v{u1+i}, v{u1+i}, v{u0+i} {NEG1}") for i in range(16)],
        [(19, 2), (20, 2), (23, 2), (24, 2), (27, 2), (28, 2), (31, 2), (33, 1), (34, 1)] if rd else
        [(g, 2) for g in (19, 20, 23, 24, 27, 28, 31, 32)])
    put([R(f"v_pk_add_f16 v{u2+i}, v{u1+i}, v{u2+i}") for i in range(16)],
        [(35, 2), (37, 2), (40, 2), (41, 2), (44, 2), (45, 2), (47, 2), (48, 2)])
    if rd:
        put([(lambda i=i: h_op(Q, k+1, 0, i >> 2, i & 3)) for i in range(16)],
            [(33, 1), (34, 1), (38, 3), (42, 3), (44, 1), (45, 1), (47, 1), (49, 3), (51, 2)])
        put([(lambda i=i: h_op(Q, k+1, 1, i >> 2, i & 3)) for i in range(16)],
            [(52, 2), (54, 2), (55, 2), (56, 2), (58, 2), (59, 2), (61, 2), (62, 2)])
        if cs == 0:
            at(21, R(f"v_xor_b32 v{VA}, 0x10000, v{VA}")); at(26, R(f"v_xor_b32 v{VA1}, 0x10000, v{VA1}"))
            at(55, R(f"v_xor_b32 v{VB}, 0x10000, v{VB}")); at(59, R(f"v_xor_b32 v{VB1}, 0x10000, v{VB1}"))
    if extra:
        for g, fs in extra.items():
            G[g] += fs
    Q.wait(vm=[("raw", k+1), ("u", k, 0)])
    Q.raw("s_barrier")
    for g in range(64):
        j, nu, tb = g >> 4, (g >> 2) & 3, g & 3
        if nu & 1:
            tb = 3 - tb
        a = (u0, u1, u2, u2)[j] + 4*nu
        b = (c0, PP, c0, c1)[j] + 4*tb
        d = j*64 + nu*16 + tb*4
        Q.raw(f"v_mfma_f32_16x16x32_f16 {acc(d,4)}, {v(a,4)}, {v(b,4)}, {acc(d,4)}")
        for f in G[g]:
            f()


def kernel(stamps):
    A = Asm()
    st = Stamps(stamps)
    header(A, NAME)
    st.mark(A, "start", False)
    A("s_cmp_ge_u32 s2, 256\ns_cbranch_scc1 Lexit")
    A("s_load_dwordx16 s[4:19], s[0:1], 0")
    A("s_load_dwordx8 s[20:27], s[0:1], 64")
    A("v_lshrrev_b32 v8, 6, v0\nv_and_b32 v0, 63, v0")
    A(f"v_readfirstlane_b32 s{S_W}, v8")
    A(f"s_and_b32 s{S_GRP}, s2, 7\ns_lshr_b32 s{S_IDX}, s2, 3\ns_lshr_b32 s{S_B}, s{S_GRP}, 2")
    A(f"s_and_b32 s{S_NB}, s{S_GRP}, 3\ns_lshl_b32 s{S_NB}, s{S_NB}, 1\ns_and_b32 s56, s{S_IDX}, 1\ns_add_u32 s{S_NB}, s{S_NB}, s56")
    A(f"s_lshr_b32 s{S_RB}, s{S_IDX}, 1\ns_lshl_b32 s{S_OQ}, s{S_GRP}, 4\ns_add_u32 s{S_OQ}, s{S_OQ}, s{S_RB}")

    def touch():
        A(f"s_lshl_b32 s56, s{S_IDX}, 2\ns_add_u32 s56, s56, s{S_W}\nv_and_b32 v8, 1, v0\nv_lshl_add_u32 v8, v8, 7, s56")
        gen.code_touch(A, "Lpf", "Lcode_end", 8, 72, "Lpc", 56)
        A(f"global_load_dword v253, v[72:73], off {OPT.get('pfn', '')}\nLpf:")
    if OPT["pf"] == 1:
        touch()
    A("v_and_b32 v9, 15, v0\nv_lshrrev_b32 v10, 4, v0")
    A(f"v_lshlrev_b32 v{VDMA}, 4, v0")
    A(f"s_and_b32 s44, s{S_W}, 1\ns_lshl_b32 s56, s{S_NB}, 1\ns_add_u32 s44, s44, s56")
    A(f"s_lshr_b32 s45, s{S_W}, 1\ns_lshl_b32 s56, s{S_RB}, 1\ns_add_u32 s45, s45, s56")
    A(f"s_lshl_b32 s46, s{S_B}, 22\ns_lshl_b32 s56, s44, 18\ns_add_u32 s46, s46, s56")
    A(f"s_lshl_b32 s47, s45, 8\ns_add_u32 s47, s47, s46")
    gen.DSTEP = 4*OS
    A(f"v_lshlrev_b32 v11, {13 if OPT.get('xperm') else 16}, v10\nv_lshl_add_u32 v11, v9, 3, v11")
    A(f"s_cmp_eq_u32 s{S_W}, 3\ns_cselect_b32 s56, 128, 0\nv_add_u32 v{VX}, s56, v11\nv_xor_b32 v{VX+1}, 128, v{VX}")
    A(f"s_mov_b32 s{S_MASK}, 0xffff0000")
    A("s_waitcnt lgkmcnt(0)")
    st.mark(A, "karg", False)
    A(f"s_load_dword s{S_ASC}, s[26:27], {GEN}")
    srd(A, SX, 4, 0x800000)
    xf = OPT.get("xf", 1)
    if xf:
        A("\n".join(x_loads()).replace(f"s_mov_b32 s59, s{S_XO}", "s_mov_b32 s59, s47"))
        st.mark(A, "xis", False)
    srd(A, SO, 12, 512*9216)
    A(f"s_cmp_lt_u32 s{S_W}, 2\ns_cbranch_scc1 Lside0\ns_cmp_eq_u32 s{S_W}, 3\ns_cbranch_scc1 Lside3")
    for i, p in enumerate((8, 10, 16, 18)):
        A(f"global_load_dwordx4 {v(16+4*i,4)}, v{VDMA}, s[{p}:{p+1}]")
    A("s_branch Lside0\nLside3:")
    A(f"v_lshrrev_b32 v12, 3, v0\ns_mul_i32 s56, s{S_RB}, 24\nv_add_u32 v12, s56, v12")
    A(f"s_and_b32 s56, s{S_IDX}, 1\ns_mul_i32 s56, s56, 768\nv_lshl_add_u32 v13, v12, 1, s56")
    for i in range(3):
        A(f"global_load_ushort v{16+i}, v13, s[6:7] offset:{16*i}")
    A(f"v_and_b32 v13, 7, v0\nv_lshlrev_b32 v13, 4, v13\nv_lshl_add_u32 v13, v12, 10, v13\ns_lshl_b32 s56, s{S_GRP}, 7\nv_add_u32 v13, s56, v13")
    for i in range(3):
        A(f"global_load_dwordx4 {v(20+4*i,4)}, v13, s[14:15]")
        if i < 2:
            A("v_add_u32 v13, 8192, v13")
    A("Lside0:")
    A(f"s_mov_b32 s{S_XO}, s47")
    if not xf:
        A("\n".join(x_loads()))
        st.mark(A, "xis", False)
    npf = int(OPT["pf"] == 2)
    if npf:
        touch()
    srd(A, SWS, 26, WS_BYTES)
    A(f"s_mul_i32 s{S_SLOT}, s{S_GRP}, {GRPS}\ns_lshl_b32 s56, s{S_IDX}, 7\ns_add_u32 s{S_SLOT}, s{S_SLOT}, s56")
    def ftouch():
        A(f"v_min_u32 v11, 5, v0\nv_lshlrev_b32 v11, 16, v11\ns_cmp_eq_u32 s{S_W}, 1\ns_cselect_b32 s56, 0, {OOB:#x}")
        A(f"s_add_u32 s56, s56, s{S_SLOT}\ns_add_u32 s56, s56, {STAT:#x}")
        A(f"buffer_load_dword v{VT+1}, v11, s[{SWS}:{SWS+3}], s56 offen sc1")
    npf += 1
    if OPT.get("ft", 3) == 1:
        ftouch()
    A(f"s_cmp_eq_u32 s{S_W}, 0\ns_cselect_b32 s58, 5, 0")
    A(f"v_lshrrev_b32 v11, 3, v0\nv_min_u32 v11, s58, v11\nv_lshlrev_b32 v11, 16, v11\nv_and_b32 v14, 0x70, v{VDMA}\nv_add_u32 v11, v11, v14")
    A(f"v_mov_b32 v132, 0\nv_mov_b32 v133, -1\nv_mov_b32 v134, 0\nv_mov_b32 v135, 0")
    if OPT["tlb"]:
        A(f"s_mul_i32 s56, s{S_GRP}, {16*OS}\ns_add_u32 s56, s56, {D1 + 8*OS - 256}")
        A(f"s_mul_i32 s57, s{S_GRP}, {US}\ns_mul_i32 s58, s{S_IDX}, {US - 128}\ns_add_u32 s57, s57, s58\ns_add_u32 s57, s57, {U1 - 128}")
        A(f"s_cmp_eq_u32 s{S_IDX}, 2\ns_cselect_b32 s57, s56, s57\ns_cmp_gt_u32 s{S_IDX}, 2\ns_cselect_b32 s57, {OOB:#x}, s57")
        A(f"s_cmp_eq_u32 s{S_W}, 1\ns_cselect_b32 s57, s57, {OOB:#x}")
    else:
        A(f"s_mov_b32 s57, {OOB:#x}")
    A(f"s_add_u32 s56, s{S_SLOT}, {STAT:#x}\ns_cmp_eq_u32 s{S_W}, 0\ns_cselect_b32 s57, s56, s57")
    A(f"buffer_store_dwordx4 v[132:135], v11, s[{SWS}:{SWS+3}], s57 offen sc1")
    A(f"v_mul_u32_u24 v{VD}, {OS}, v10\nv_lshl_add_u32 v{VD}, v9, 4, v{VD}")
    A(f"s_mul_i32 s46, s{S_B}, {64*OS}\ns_add_u32 s56, s46, {D1 - 1024:#x}\ns_mul_i32 s57, s44, {4*OS}\ns_add_u32 s46, s46, s57")
    A(f"s_add_u32 s{SD}, s26, s56\ns_addc_u32 s{SD+1}, s27, 0\ns_mov_b32 s{SD+2}, {64*OS + 1024:#x}\ns_mov_b32 s{SD+3}, 0x20000")
    A(f"s_lshl_b32 s56, s45, 11\ns_add_u32 s{S_RA}, s46, s56\ns_add_u32 s{S_RA}, s{S_RA}, {D1:#x}")
    A(f"s_cmp_eq_u32 s{S_W}, 3\ns_cselect_b32 s56, 1024, 0\ns_cselect_b32 s57, 0, 1024\ns_add_u32 s{S_RB2}, s{S_RA}, s57\ns_add_u32 s{S_RA}, s{S_RA}, s56")
    A(f"s_lshl_b32 s56, s44, 6\nv_lshlrev_b32 v237, 4, v10\nv_add_u32 v237, s56, v237")
    A(f"v_add_u32 v{VDMA2}, 4096, v{VDMA}")
    A(f"s_cmp_eq_u32 s{S_RB}, 0\ns_cselect_b32 s56, {OOB:#x}, 0\nv_add_u32 v{VTOP}, s56, v{VDMA}")
    A(f"s_cmp_eq_u32 s{S_RB}, 15\ns_cselect_b32 s56, {OOB:#x}, 0\nv_add_u32 v{VBOT}, s56, v{VDMA2}")
    A(f"v_lshrrev_b32 v11, 2, v9\nv_lshlrev_b32 v11, 8, v11\nv_lshl_add_u32 v11, v10, 6, v11")
    A(f"v_and_b32 v14, 3, v9\nv_lshl_add_u32 v{VU}, v14, 4, v11")
    A(f"s_lshl_b32 s57, s{S_W}, 10\ns_lshr_b32 s56, s{S_W}, 1\ns_sub_u32 s58, 2, s56\ns_lshl_b32 s58, s58, 10\ns_lshl_b32 s56, s56, 11")
    A(f"v_mul_u32_u24 v11, 6144, v10\nv_lshl_add_u32 v11, v9, 4, v11")
    A(f"v_add_u32 v14, s56, v11\ns_xor_b32 s56, s56, 2048\nv_add_u32 v11, s56, v11")
    A(f"v_add_u32 v{VA}, s57, v14\nv_add_u32 v{VB}, s58, v14\nv_add_u32 v{VA1}, s57, v11\nv_add_u32 v{VB1}, s58, v11")
    A(f"s_mov_b32 s56, 0xbc00bc00\ns_cmp_eq_u32 s{S_W}, 1\ns_cselect_b32 s{S_SGN}, 0x3c003c00, s56")
    A(f"s_mul_i32 s{S_M0}, s{S_W}, 6144")
    for phi in (1, 2, 3):
        A(f"s_xor_b32 s56, s{S_W}, {phi}\ns_mul_i32 s56, s56, 3\ns_add_u32 s56, s56, {phi-1}\ns_lshl_b32 s56, s56, 13\nv_add_u32 v{VW[phi]}, s56, v{VDMA}")
    A(f"s_lshl_b32 s57, s{S_W}, 2\ns_mul_i32 s58, s{S_W}, 3")
    for r, tab in zip(VR, (0x1100, 0x0221, 0x2012)):
        A(f"s_lshr_b32 s56, {tab:#x}, s57\ns_and_b32 s56, s56, 15\ns_add_u32 s56, s56, s58\ns_lshl_b32 s56, s56, 13\nv_add_u32 v{r}, s56, v{VDMA}")
    A(f"s_cmp_eq_u32 s{S_W}, 3\ns_cselect_b32 s{S_AG}, -1.0, 1.0\ns_cmp_ge_u32 s{S_W}, 2\ns_cselect_b32 s{S_AG+1}, 1.0, -1.0")
    A(f"s_xor_b32 s{S_BB+1}, s{S_AG+1}, 0x80000000\ns_add_u32 s56, s{S_W}, 1\ns_bitcmp1_b32 s56, 1")
    A(f"s_cselect_b32 s{S_BB}, 0, 1.0\ns_cselect_b32 s{S_BB+1}, s{S_BB+1}, 0")
    A(f"v_cmp_eq_u32 vcc, 63, v0\nv_mov_b32 v11, {OOB:#x}\nv_mov_b32 v{VXL}, {XLDS}\nv_cndmask_b32 v{V63}, v11, 0, vcc")
    A(f"s_mov_b32 s{S_IT}, 0")
    A("v_and_b32 v35, 7, v0\nv_lshlrev_b32 v35, 5, v35\nv_lshl_add_u32 v35, v10, 3, v35")
    A(f"s_and_b32 s56, s{S_IDX}, 1\ns_lshl_b32 s56, s56, 7\ns_add_u32 s56, s56, s{S_OQ}\ns_lshl_b32 s56, s56, 8\ns_add_u32 s{S_E2}, s56, {EMBP:#x}")
    A(f"v_and_b32 v11, 3, v0\nv_lshrrev_b32 v14, 2, v0\nv_mul_u32_u24 v11, {WROW}, v11\nv_mul_u32_u24 v14, 144, v14")
    A(f"s_mul_i32 s58, s{S_W}, 2304\ns_add_u32 s58, s58, {WLDS}\nv_add3_u32 v{VJ}, v11, v14, s58")
    A(f"v_mul_u32_u24 v{VS}, 49152, v10\nv_lshl_add_u32 v{VS}, v9, 4, v{VS}")
    A(f"s_mul_i32 s56, s{S_GRP}, {US}\ns_add_u32 s56, s56, {U1:#x}")
    A(f"s_bfe_u32 s58, s{S_RB}, 0x10003\ns_lshl_b32 s58, s58, 11\ns_add_u32 s56, s56, s58")
    A(f"s_and_b32 s58, s{S_RB}, 1\ns_lshl_b32 s58, s58, 10\ns_add_u32 s56, s56, s58")
    A(f"s_bfe_u32 s58, s{S_RB}, 0x20001\ns_lshl_b32 s58, s58, 8\ns_add_u32 s56, s56, s58")
    A(f"s_mul_i32 s58, s{S_W}, {4*49152}\ns_add_u32 s56, s56, s58\ns_xor_b32 s58, s56, 2048")
    A(f"s_bitcmp1_b32 s{S_IDX}, 0\ns_cselect_b32 s{S_J0}, s58, s56\ns_cselect_b32 s{S_J1}, s56, s58")
    A(f"s_cselect_b32 s58, {3*12288}, 0\ns_cselect_b32 s59, 12288, 0")
    A(f"s_add_u32 s{S_J0}, s{S_J0}, s58\ns_add_u32 s{S_J1}, s{S_J1}, s59\ns_add_u32 s{S_J1}, s{S_J1}, 12288")
    wk = OPT.get("wk", 9)
    wsp = OPT.get("wsp", (3, 3, 3, 0, 0))
    nextw = f"s_mov_b32 s{SO}, s20\ns_mov_b32 s{SO+1}, s21"
    if wk < 0:
        A("\n".join(w_loads(WLDS, 56, 57)) + "\n" + nextw)
    st.mark(A, "wis", False)
    nlate = 0
    if OPT["pf"] == 3:
        touch(); nlate += 1; npf += 1
    if OPT.get("ft", 3) == 2 and wk < 0:
        ftouch(); nlate += 1
    if wk == 9 and OPT.get("ft", 3) == 2:
        npf -= 1
    w1l = w_loads(WLDS, 44, 46)
    def side_work():
        A(f"s_cmp_lt_u32 s{S_W}, 2\ns_cbranch_scc1 Lside1\n{'s_nop 0' if xf else 's_waitcnt vmcnt(%d)' % (16 + 9*(wk < 0) + npf)}\ns_cmp_eq_u32 s{S_W}, 3\ns_cbranch_scc1 Lside4")
        A("v_mov_b32 v12, 0\nv_mov_b32 v13, 0")
        for d in range(16):
            unpack_bf16(A, 16 + d, 14, 15)
            A(f"v_max3_f32 v{12 + d//8}, |v14|, |v15|, v{12 + d//8}")
        A("s_nop 0")
        wave_reduce(A, [12, 13], "v_max_f32")
        for r in (12, 13):
            A(f"v_frexp_exp_i32_f32 v{r}, v{r}\nv_min_i32 v{r}, 60, v{r}\nv_max_i32 v{r}, 0xffffffc4, v{r}")
        A(LANE63)
        A(f"ds_write_b64 v{VXL}, v[12:13] offset:72\ns_mov_b64 exec, -1\ns_branch Lside1")
        A("Lside4:")
        for i in range(3):
            A(f"v_lshlrev_b32 v{16+i}, 16, v{16+i}")
        for op in (f"v_mul_f32 v{{t}}, {NLOG2E:#x}, v{{x}}", "v_exp_f32 v{t}, v{t}", "v_add_f32 v{t}, 1.0, v{t}",
                   "v_rcp_f32 v{t}, v{t}", "v_mul_f32 v{x}, v{x}, v{t}"):
            for i in range(3):
                A(op.format(t=32+i, x=16+i))
        for i in range(3):
            for d in range(4):
                unpack_bf16(A, 20 + 4*i + d, 44 + 2*d, 45 + 2*d)
            for k in range(8):
                A(f"v_mul_f32 v{36+k}, v{44+k}, v{16+i}" if i == 0 else f"v_fmac_f32 v{36+k}, v{44+k}, v{16+i}")
        for k in range(8):
            A(f"v_add_f32_dpp v{36+k}, v{36+k}, v{36+k} row_ror:8 row_mask:0xf bank_mask:0xf")
        A("s_nop 1")
        for k in (0, 1, 4, 5):
            A(f"v_permlane16_swap_b32 v{36+k}, v{38+k}")
        for k in (0, 1, 4, 5):
            A(f"v_add_f32 v{36+k}, v{36+k}, v{38+k}")
        A("s_nop 1")
        for k in (0, 1):
            A(f"v_permlane32_swap_b32 v{36+k}, v{40+k}")
        for k in (0, 1):
            A(f"v_add_f32 v{36+k}, v{36+k}, v{40+k}")
        A("Lside1:")
    if not xf:
        side_work()
    st.mark(A, "side", False)
    P = 116

    def sums(A, x, a, first):
        if first:
            A(f"v_pk_mul_f32 {v(a+4,2)}, {v(x,2)}, {v(x,2)}\nv_pk_mul_f32 {v(a,2)}, {v(x,2)}, 1.0 op_sel_hi:[1,0]")
        else:
            A(f"v_pk_add_f32 {v(a,2)}, {v(a,2)}, {v(x,2)}\nv_pk_fma_f32 {v(a+4,2)}, {v(x,2)}, {v(x,2)}, {v(a+4,2)}")
    for k in range(0, 8, 2):
        if k == 0:
            st.mark(A, "set", False)
        if k == 2:
            st.mark(A, "x0", False)
        A(f"s_waitcnt vmcnt({12 + (sum(wsp[:k//2]) if wk == 9 else 9*(wk < k)) + (0 if k == 6 and OPT.get('ft', 3) == 3 else npf) - 2*k})")
        if k == 6:
            st.mark(A, "xin", False)
        B = Asm()
        for kk in (k, k+1):
            for rho in range(2):
                r = XR + (rho*8 + kk)*2
                unpack_bf16(B, r, H + (rho*4 + 0)*8 + kk, H + (rho*4 + 1)*8 + kk)
                unpack_bf16(B, r+1, H + (rho*4 + 2)*8 + kk, H + (rho*4 + 3)*8 + kk)
        for p in range(8):
            sums(B, H + p*8 + k, P + 2*(p & 1), k == 0 and p < 2)
        if k == wk:
            weave(A, B.L, w_loads(WLDS, 56, 57))
            A(nextw)
        else:
            A("\n".join(B.L))
        if wk == 9:
            A("\n".join(w1l[sum(wsp[:k//2]):sum(wsp[:k//2 + 1])]))

    A("Lstats:")
    A(f"v_pk_add_f32 {v(P,2)}, {v(P,2)}, {v(P+2,2)}")
    A(f"v_pk_add_f32 {v(P+4,2)}, {v(P+4,2)}, {v(P+6,2)}")
    A(f"v_add_f32 v{P}, v{P}, v{P+1}\nv_add_f32 v{P+1}, v{P+4}, v{P+5}")
    wave_reduce(A, [P, P+1])
    A(f"s_lshl_b32 s56, s{S_W}, 3\nv_add_u32 v{P+2}, s56, v{VXL}")
    A(LANE63)
    A(f"ds_write_b64 v{P+2}, {v(P,2)}")
    A("s_mov_b64 exec, -1")
    A(f"s_lshl_b32 s59, s{S_IT}, 16\ns_add_u32 s56, s59, s{S_SLOT}\ns_add_u32 s56, s56, {STAT:#x}")
    A(f"s_cmp_eq_u32 s{S_IT}, 0\ns_cbranch_scc1 Lb1\ns_waitcnt vmcnt(0)\nLb1:")
    A(f"s_waitcnt lgkmcnt(0)\ns_barrier\ns_add_u32 s{S_TAG}, s{S_ASC}, {TAGSTEP:#x}")
    A(f"s_cmp_lg_u32 s{S_W}, 0\ns_cbranch_scc1 Lnopub")
    A(f"ds_read_b128 {v(P,4)}, v{VXL}\nds_read_b128 {v(P+4,4)}, v{VXL} offset:16")
    A(f"v_mov_b32 v133, s{S_TAG}\nv_mov_b32 v135, s{S_TAG}\ns_waitcnt lgkmcnt(0)")
    A(f"v_pk_add_f32 {v(P,2)}, {v(P,2)}, {v(P+2,2)}\nv_pk_add_f32 {v(P+4,2)}, {v(P+4,2)}, {v(P+6,2)}")
    A(f"v_add_f32 v132, v{P}, v{P+4}\nv_add_f32 v134, v{P+1}, v{P+5}")
    if OPT.get("fl", 1):
        A(f"v_and_b32 v{P}, 0x70, v{VDMA}\nbuffer_store_dwordx4 v[132:135], v{P}, s[{SWS}:{SWS+3}], s56 offen sc1")
    else:
        A(f"buffer_store_dwordx4 v[132:135], v{V63}, s[{SWS}:{SWS+3}], s56 offen sc1")
    A("Lnopub:")
    st.mark(A, "pub")
    A(f"s_mul_i32 s{S_POLL}, s{S_GRP}, {GRPS}\ns_add_u32 s{S_POLL}, s{S_POLL}, s59\ns_add_u32 s{S_POLL}, s{S_POLL}, {STAT:#x}")
    A(f"v_cmp_gt_u32 vcc, 32, v0\nv_mov_b32 v{P}, {OOB:#x}\nv_lshlrev_b32 v{VPOLL}, 7, v0\nv_cndmask_b32 v{VPOLL}, v{P}, v{VPOLL}, vcc")
    A(f"s_cmp_lg_u32 s{S_IT}, 0\ns_cbranch_scc1 Ljob")
    if wk == 9:
        A("\n".join(w1l[sum(wsp[:4]):]) + "\n" + nextw)
        if OPT.get("ft", 3) == 2:
            ftouch(); nlate = 1
    A(f"global_load_dwordx4 {v(GR,4)}, v237, s[8:9]\nglobal_load_dwordx4 {v(BR,4)}, v237, s[10:11]")
    if xf:
        side_work()
    A(f"s_cmp_eq_u32 s{S_W}, 3\ns_cselect_b32 s56, s{S_E2}, {OOB:#x}")
    A(f"buffer_store_dwordx2 v[36:37], v35, s[{SWS}:{SWS+3}], s56 offen sc1")
    if wk == 9 and wsp[4]:
        A(f"s_waitcnt vmcnt({3 + nlate})\ns_barrier")
    else:
        A(f"s_cmp_eq_u32 s{S_W}, 0\ns_cbranch_scc1 Lw3\ns_waitcnt vmcnt({3 + nlate})\nLw3:\ns_waitcnt vmcnt({4 + nlate})\ns_barrier")
    A("Ljob:")
    st.mark(A, "win")
    def totals(first):
        spin(A, "Ls", POLL4, f"v_cmp_ne_u32 vcc, s{S_TAG}, v{PLD+1}\nv_cmp_ne_u32 s[56:57], s{S_TAG}, v{PLD+3}\ns_nop 1\ns_or_b32 s56, s56, vcc_lo", first)
        wave_reduce(A, [PLD, PLD+2])
        A(f"v_mul_f32 v{PLD}, 0xb6000000, v{PLD}\nv_mul_f32 v{PLD+2}, 0x36000000, v{PLD+2}")
        A(f"v_fma_f32 v{PLD+2}, -v{PLD}, v{PLD}, v{PLD+2}\nv_max_f32 v{PLD+2}, 0, v{PLD+2}")
        A(f"v_add_f32 v{PLD+2}, 0x3727c5ac, v{PLD+2}\nv_rsq_f32 v{PLD+1}, v{PLD+2}")
        A(LANE63)
        A(f"ds_write_b64 v{VXL}, {v(PLD,2)} offset:64")
        A("s_mov_b64 exec, -1")
    jpos, late = (), []
    if OPT.get("gate", 0):
        A1, B1, KK, TT, OUT = 96, 104, 112, 8, 24

        def gate():
            A(f"s_mov_b32 s56, {NLOG2E:#x}\ns_waitcnt vmcnt(2)\ns_cmp_eq_u32 s{S_W}, 0\ns_cbranch_scc1 Lg0\ns_waitcnt vmcnt(1)\nLg0:")
            for d in range(4):
                unpack_bf16(A, GR + d, A1 + 2*d, A1 + 2*d + 1)
                unpack_bf16(A, BR + d, B1 + 2*d, B1 + 2*d + 1)
            for k in range(0, 16, 2):
                A(f"v_pk_mul_f32 {v(A1+k,2)}, {v(A1+k,2)}, s[56:57] {LO2}")
            A(f"s_cmp_lg_u32 s{S_W}, 0\ns_cbranch_scc1 Ljoin")
            totals(True)
            A("Ljoin:")
        job(A, f"s_cmp_lg_u32 s{S_W}, 0\ns_cbranch_scc1 Ljob_mid\n{POLL4}\nLjob_mid:", job_stores(), gate)
        st.mark(A, "b4")
        A(f"s_cmp_lg_u32 s{S_IT}, 0\ns_cselect_b64 vcc, -1, 0\ns_mov_b32 s56, {NLOG2E:#x}")
        A(f"v_cndmask_b32 v{KK}, v{PLD+2}, v{PLD+3}, vcc")
        A(f"v_add_u32 v{KK}, 124, v{KK}\nv_lshlrev_b32 v{KK}, 23, v{KK}\nv_mul_f32 v{KK+1}, s56, v{KK}")
        A(f"v_readfirstlane_b32 s{S_INV}, v{KK}\nv_mul_f32 v{KK}, s56, v{KK}")
    else:
        scheck = f"v_cmp_ne_u32 vcc, s{S_TAG}, v{PLD+1}\nv_cmp_ne_u32 s[58:59], s{S_TAG}, v{PLD+3}\ns_nop 1\ns_or_b32 s58, s58, vcc_lo"
        g2 = OPT.get("g2", 1)
        if g2:
            who = f"s_or_b32 s57, s{S_W}, s{S_IT}" if g2 == 1 else f"s_cmp_lg_u32 s{S_W}, 0"

            def hold():
                st.mark(A, "ja")
                A(f"{who}\ns_cbranch_scc1 Le_ok")
                spin(A, "Le", POLL4, scheck, True, 57)
                st.mark(A, "held")
            job(A, f"s_cmp_ge_u32 s{S_W}, s{S_IT}\ns_cbranch_scc1 Ljob_mid\n{POLL4}\nLjob_mid:" if g2 == 1 else "", job_stores(),
                early=(f"{who}\ns_cbranch_scc1 Ljob_e\n{POLL4}\nLjob_e:", hold))
        else:
            job(A, f"s_cmp_lg_u32 s{S_W}, 0\ns_cbranch_scc1 Ljob_mid\n{POLL4}\nLjob_mid:", job_stores())
        st.mark(A, "job0")
        A1, B1, KK, TT, OUT = 8, 16, 24, 32, 80
        pre = Asm()
        pre(f"ds_read_b64 {v(KK,2)}, v{VXL} offset:72\ns_mov_b32 s56, {NLOG2E:#x}\ns_waitcnt vmcnt(6)")
        for d in range(4):
            unpack_bf16(pre, GR + d, A1 + 2*d, A1 + 2*d + 1)
            unpack_bf16(pre, BR + d, B1 + 2*d, B1 + 2*d + 1)
        A(f"s_cmp_lg_u32 s{S_W}, 0\ns_cbranch_scc1 Ljoin")
        A(f"s_mov_b32 s58, {SPIN_MAX}\ns_waitcnt vmcnt(6)\ns_branch Ls_chk")
        spin(A, "Ls", POLL4, f"v_cmp_ne_u32 vcc, s{S_TAG}, v{PLD+1}\nv_cmp_ne_u32 s[56:57], s{S_TAG}, v{PLD+3}\ns_nop 1\ns_or_b32 s56, s56, vcc_lo", None)
        wave_reduce(A, [PLD, PLD+2])
        A(f"v_mul_f32 v{PLD}, 0xb6000000, v{PLD}\nv_mul_f32 v{PLD+2}, 0x36000000, v{PLD+2}")
        A(f"v_fma_f32 v{PLD+2}, -v{PLD}, v{PLD}, v{PLD+2}\nv_max_f32 v{PLD+2}, 0, v{PLD+2}")
        A(f"v_add_f32 v{PLD+2}, 0x3727c5ac, v{PLD+2}\nv_rsq_f32 v{PLD+1}, v{PLD+2}")
        A(LANE63)
        A(f"ds_write_b64 v{VXL}, {v(PLD,2)} offset:64")
        A("s_mov_b64 exec, -1")
        A("Ljoin:")
        A("\n".join(pre.L))
        A(f"s_cmp_lg_u32 s{S_IT}, 0\ns_cselect_b64 vcc, -1, 0\ns_waitcnt lgkmcnt(0)\ns_barrier")
        st.mark(A, "b4")
        A(f"ds_read_b64 {v(PLD,2)}, v{VXL} offset:64")
        jpos = OPT.get("jpos", (-1, -1, 0, 0, 1, 1)) if OPT["jst"] == 2 else ()
        late = list(zip(jpos, job_stores()))
        if late:
            A(late.pop(0)[1])
        A(f"v_cndmask_b32 v{KK}, v{KK}, v{KK+1}, vcc")
        A(f"v_add_u32 v{KK}, 124, v{KK}\nv_lshlrev_b32 v{KK}, 23, v{KK}")
        for k in range(0, 16, 2):
            A(f"v_pk_mul_f32 {v(A1+k,2)}, {v(A1+k,2)}, s[56:57] {LO2}")
        A(f"v_readfirstlane_b32 s{S_INV}, v{KK}\nv_mul_f32 v{KK+1}, s56, v{KK}\nv_mul_f32 v{KK}, s56, v{KK}")
        while late and late[0][0] < 0:
            A(late.pop(0)[1])
        A("s_waitcnt lgkmcnt(0)")
        st.mark(A, "tot")
    for k in range(0, 8, 2):
        A(f"v_pk_mul_f32 {v(A1+k,2)}, {v(A1+k,2)}, {v(PLD,2)} {HI2}")
    for k in range(0, 8, 2):
        A(f"v_pk_fma_f32 {v(B1+k,2)}, {v(A1+k,2)}, {v(PLD,2)}, {v(B1+k,2)} {LO3}")
    A(f"v_mov_b32 v{VT}, s{S_TAG}\nv_mov_b32 v{VT+1}, s{S_TAG}")
    A(f"s_lshl_b32 s59, s{S_IT}, 16\ns_add_u32 s57, s59, s{S_SLOT}\ns_lshl_b32 s56, s{S_W}, 4\ns_add_u32 s56, s56, s57\ns_add_u32 s{S_E2}, s56, {UF:#x}")
    uflag = (f"v_mov_b32 v{BR}, s{S_TAG}\nv_mov_b32 v{BR+1}, s{S_TAG}\nv_mov_b32 v{BR+2}, s{S_WS}\ns_waitcnt vmcnt(%d)\n"
             f"buffer_store_dwordx4 {v(BR,4)}, v{V63}, s[{SWS}:{SWS+3}], s{S_E2} offen sc1")
    ufp = OPT.get("ufp", 4)
    for p in range(8):
        o = OUT + 4*p
        B = Asm()
        silu(B, H + p*8, A1, B1, KK, TT + 8*(p & 1), o)
        weave(A, B.L, [t for q, t in late if q == p] or [""], 8, 32)
        A(f"buffer_store_dwordx4 {v(o,4)}, v{VD}, s[{SWS}:{SWS+3}], s{S_RA + (p >> 2)} offen offset:{256*(p & 3)} sc1")
        if p == ufp:
            A(uflag % (ufp + 1 - max((0,) + jpos)))
    st.mark(A, "silu")
    VUP, S_UP = 239, S_RET
    A(f"v_lshrrev_b32 v8, 2, v0\nv_lshlrev_b32 v8, 8, v8\nv_and_b32 v9, 3, v0\nv_lshl_add_u32 v{VUP}, v9, 4, v8")
    A(f"s_mul_i32 s{S_UP}, s{S_NB}, {GRPS}\ns_lshr_b32 s56, s{S_W}, 1\ns_lshl_b32 s56, s56, 7\ns_add_u32 s{S_UP}, s{S_UP}, s56")
    A(f"s_add_u32 s{S_UP}, s{S_UP}, s59\ns_add_u32 s{S_UP}, s{S_UP}, {UF:#x}")
    A(f"s_add_u32 s57, s57, {DF:#x}")
    A(f"s_mul_i32 s{S_U0}, s{S_NB}, {US}\ns_mul_i32 s56, s{S_W}, 12288\ns_add_u32 s{S_U0}, s{S_U0}, s56")
    A(f"s_mul_i32 s56, s{S_IT}, {U2-U1}\ns_add_u32 s{S_U0}, s{S_U0}, s56")
    A(f"s_add_u32 s{S_U0}, s{S_U0}, {U1:#x}\ns_add_u32 s{S_U1}, s{S_U0}, 4096\ns_add_u32 s{S_U2}, s{S_U0}, 8192")
    A(f"s_mul_i32 s{S_DMA}, s{S_W}, {OS}\ns_lshl_b32 s56, s{S_RB}, 12\ns_add_u32 s{S_DMA}, s{S_DMA}, s56")
    A(f"v_lshrrev_b32 v8, 3, v0\nv_min_u32 v8, 2, v8\nv_add_u32 v8, s{S_RB}, v8\nv_add_u32 v8, -1, v8\nv_med3_i32 v8, v8, 0, 15")
    A(f"v_and_b32 v9, 1, v0\nv_lshl_add_u32 v8, v8, 1, v9\nv_lshlrev_b32 v8, 7, v8")
    A(f"v_bfe_u32 v9, v0, 1, 2\nv_mul_u32_u24 v9, {GRPS}, v9\nv_add_u32 v{VPOLL}, v8, v9")
    A(f"s_mul_i32 s{S_POLL}, s{S_B}, {4*GRPS}\ns_add_u32 s{S_POLL}, s{S_POLL}, s59\ns_add_u32 s{S_POLL}, s{S_POLL}, {DF:#x}")
    upoll = f"buffer_load_dwordx2 {v(GR,2)}, v{VUP}, s[{SWS}:{SWS+3}], s{S_UP} offen sc1"
    ucheck = f"v_cmp_ne_u32 vcc, s{S_TAG}, v{GR}\nv_cmp_ne_u32 s[56:57], s{S_TAG}, v{GR+1}\ns_nop 1\ns_or_b64 s[56:57], s[56:57], vcc"
    dflag = f"buffer_store_dwordx2 {v(VT,2)}, v{V63}, s[{SWS}:{SWS+3}], s57 offen sc1"
    zero = [f"v_accvgpr_write_b32 a{i}, 0" for i in range(256)]
    nz1 = OPT.get("nz1", 160)
    Q0, Q1 = Seq(), Seq()

    def ulist(Q, kj):
        L = []
        for k, j in kj:
            for nu in range(4):
                u_load(Q, k, j, nu)
                L.append(Seq.text(Q.take()))
        return L

    def dma_list(Q, k):
        L = []
        for p in range(6):
            if p in (0, 4):
                dma_m0(Q, k, p >> 2); Q.raw("s_nop 0")
            dma(Q, k, p)
            L.append(Seq.text(Q.take()))
        return L
    Q = Q1
    nz1 = OPT.get("nz1", 128)
    weave(A, zero[:nz1], [upoll], OPT.get("nz0", 100))
    A("s_waitcnt vmcnt(1)\ns_barrier")
    st.mark(A, "b5")
    A(f"s_cmp_lg_u32 s{S_W}, 0\ns_cbranch_scc1 Lnodf")
    A(f"{dflag}\nLnodf:")
    A("\n".join(zero[nz1:]))
    A(f"s_mov_b32 s58, {SPIN_MAX}\ns_waitcnt vmcnt(1)\ns_cmp_eq_u32 s{S_W}, 0\ns_cbranch_scc1 Lu_chk\ns_branch Lu_wait")
    spin(A, "Lu", upoll, ucheck, None)
    st.mark(A, "uok")
    ul = ulist(Q, ((0, 0), (0, 1), (0, 2), (1, 0)))
    dchk = lambda r: f"v_cmp_ne_u32 vcc, s{S_TAG}, v{r}\nv_cmp_ne_u32 s[56:57], s{S_TAG}, v{r+1}\ns_nop 1\ns_or_b64 s[56:57], s[56:57], vcc"
    dpol = lambda r: f"buffer_load_dwordx2 {v(r,2)}, v{VPOLL}, s[{SWS}:{SWS+3}], s{S_POLL} offen sc1"
    pp = OPT.get("pp", (4, 16))
    A(f"s_cmp_lg_u32 s{S_W}, 0\ns_cbranch_scc0 Lw0")
    A("\n".join(ul) + "\ns_branch Ld_ok\nLw0:")
    for i in range(17):
        if i in pp:
            A(dpol(8 + 2*pp.index(i)))
        if i < 16:
            A(ul[i])
    A(f"s_mov_b32 s58, {SPIN_MAX}")
    for n, i in enumerate(pp):
        A(f"s_waitcnt vmcnt({16 - i + len(pp) - 1 - n})\n{dchk(8 + 2*n)}\ns_cbranch_scc0 Ld_ok")
    spin(A, "Ld", dpol(8), dchk(8), None)
    A("s_barrier")
    st.mark(A, "b6")
    A("\n".join(dma_list(Q, 0) + dma_list(Q, 1)))
    A(f"s_xor_b32 s{S_M0}, s{S_M0}, 0x10000\ns_mov_b32 s{S_CNT}, 7")
    d2 = dma_list(Q, 2)
    nd2 = OPT.get("nd2", 4)
    A("\n".join(d2[:nd2]))
    A(f"s_lshl_b32 s56, s{S_W}, 5\nv_and_b32 v8, 31, v0\nv_add_u32 v8, s56, v8")
    gen.code_touch(A, "Ltail", "Lcode_end", 8, 234, "Lpc2", 56)
    if OPT.get("l2pf", 0):
        first = OPT.get("l2first", 4)
        A(f"s_and_b32 s56, s{S_IDX}, 1\ns_lshl_b32 s56, s56, 2\ns_add_u32 s56, s56, s{S_W}\ns_lshl_b32 s57, s{S_B}, 6\ns_add_u32 s56, s56, s57")
        A(f"s_mul_i32 s56, s56, {OS}\ns_lshl_b32 s57, s{S_RB}, 12\ns_add_u32 s56, s56, s57")
        A(f"s_mul_i32 s57, s{S_IT}, {D2-D1}\ns_add_u32 s56, s56, s57\ns_add_u32 s56, s56, {D1 + first*4*OS}")
        A(f"s_lshl_b32 s57, s{S_RB}, 2\ns_add_u32 s57, s57, s{S_W}\ns_mul_i32 s57, s57, 1536\ns_mul_i32 s58, s{S_NB}, 786432\ns_add_u32 s57, s57, s58")
        A(f"s_lshl_b32 s58, s{S_IT}, 23\ns_add_u32 s57, s57, s58\ns_add_u32 s57, s57, {U1 + first*49152 - 4096}")
        A(f"v_cmp_gt_u32 vcc, 32, v0\nv_mov_b32 v8, s57\nv_mov_b32 v9, s56\nv_min_u32 v10, 43, v0\nv_cndmask_b32 v8, v8, v9, vcc")
        if OPT.get("l2u", 1):
            A("v_mov_b32 v8, s57\nv_max_u32 v10, 32, v10\ns_mov_b64 vcc, 0")
        A(f"v_lshl_add_u32 v232, v10, 7, v8\nv_mov_b32 v8, {2*49152}\nv_mov_b32 v9, {8*OS}\nv_cndmask_b32 v233, v8, v9, vcc")
    A(f"s_waitcnt vmcnt({6 + nd2})\ns_barrier")
    st.mark(A, "b7")
    for par in range(2):
        for tb in range(4):
            raw_read(Q, 0, par, tb, 0); raw_read(Q, 0, par, tb, 1)
    for par in range(2):
        for tb in range(4):
            Q.wait(lg=[("rd", 0, par, tb)])
            for d in range(4):
                h_op(Q, 0, par, tb, d)
    main = Seq.text(Q.take()).split("\n")
    weave(A, main, d2[nd2:] + ulist(Q, ((1, 1),)), 12)
    l2 = OPT.get("l2pf", 0)
    pfl = f"buffer_load_dword v{VT+1}, v232, s[{SWS}:{SWS+3}], %s offen sc1"
    pfa = "v_add_u32 v232, v232, v233"
    Q.wait(vm=[("raw", 1)])
    A(Seq.text(Q.take()))
    if l2:
        for _ in range((l2 - OPT.get("l2first", 4))//2):
            A(pfl % "0" + "\n" + pfa)
    if OPT.get("sched", 1):
        A(f"s_mov_b32 s{S_USTEP}, 49152\ns_sub_u32 s{S_U1}, s{S_U1}, 49152")
    A(f"s_cmp_eq_u32 s{S_IT}, 0\ns_cbranch_scc1 Lgo")
    A(f"s_cmp_lg_u32 s2, 2\ns_cbranch_scc1 Lgo\ns_cmp_lg_u32 s{S_W}, 0\ns_cbranch_scc1 Lgo")
    A(f"buffer_store_dword v{VT}, v{V63}, s[{SWS}:{SWS+3}], 0 offen offset:{GEN} sc1")
    A("Lgo:")
    st.mark(A, "loop")
    bodies = []
    for Q in (Q1,):
        for n in range(7):
            ex = None
            if l2:
                g = OPT.get("l2gap", 56)
                ex = {g - 2: [lambda: Q.raw(f"s_cmp_gt_u32 s{S_CNT}, {l2//2 - 1}")], g - 1: [lambda: Q.raw(f"s_cselect_b32 s56, 0, {OOB:#x}")],
                      g: [lambda: Q.vmem(pfl % "s56", "pf")], g + 2: [lambda: Q.raw(pfa)]}
            step(Q, 2*n, None, ex)
            step(Q, 2*n + 1, None, {61: [lambda: Q.raw(f"s_sub_u32 s{S_CNT}, s{S_CNT}, 1")],
                                    62: [lambda: Q.raw(f"s_cmp_gt_u32 s{S_CNT}, 1")],
                                    63: [lambda: Q.raw("s_cbranch_scc1 Lloop")]})
            bodies.append(Q.take())
    A(".p2align 6\nLloop:")
    A(Seq.text(merge(bodies)))
    A(f"s_cmp_eq_u32 s{S_CNT}, 0\ns_cbranch_scc1 Ltail\nglobal_load_dword v{VT+1}, v[234:235], off\ns_branch Lloop\nLtail:")
    st.mark(A, "l14")
    gm = {9: 15, 11: 18, 17: 22, 19: 25, 22: 29, 26: 32, 33: 36, 35: 39, 38: 43, 42: 46, 49: 53, 63: 63}
    remap = lambda ex: {gm[g]: f for g, f in ex.items()} if OPT.get("sched", 1) else ex
    R = lambda t: [lambda: Q.raw(t)]
    M = lambda t: [lambda: Q.vmem(t, "ep")]
    sc_ld = [f"buffer_load_dword v{SCR+h}, v{VT}, s[{SWS}:{SWS+3}], s56 offen offset:{8 + 256*h} sc1" for h in range(2)]
    em_ld = [f"buffer_load_dwordx4 {v(EMR+4*h,4)}, v{VPOLL}, s[{SWS}:{SWS+3}], s57 offen offset:{16*h} sc1" for h in range(2)]
    gb_ld = [f"global_load_dwordx4 {v(GR,4)}, v237, s[16:17]", f"global_load_dwordx4 {v(BR,4)}, v237, s[18:19]"]
    unscale = f"v_pk_mul_f32 {v(SCR,2)}, {v(SCR,2)}, s[{S_ASC}:{S_INV}] op_sel:[0,1] op_sel_hi:[1,1]"
    red = [f"v_add_f32_dpp v{EMR+k}, v{EMR+k}, v{EMR+k} row_ror:{sh} row_mask:0xf bank_mask:0xf" for sh in (8, 4, 2, 1) for k in range(8)]
    wl = w_loads(WLDS, 58, 59)
    ex = {9: R(f"v_and_b32 v{VT}, 127, v237\nv_lshlrev_b32 v239, 1, v{VT}\nv_lshlrev_b32 v{VT}, 5, v{VT}"),
          11: M(wl[0]),
          17: R(f"s_mul_i32 s56, s{S_NB}, {GRPS}\ns_lshl_b32 s57, s{S_IT}, 16\ns_add_u32 s56, s56, s57\ns_add_u32 s56, s56, {UF:#x}"),
          19: R(f"s_lshl_b32 s57, s{S_B}, 3\ns_add_u32 s57, s57, s{S_NB}\ns_lshl_b32 s57, s57, 12\ns_add_u32 s57, s57, {EMBP:#x}"),
          22: R(f"v_and_b32 v{VPOLL}, 15, v0\nv_lshl_add_u32 v{VPOLL}, v{VPOLL}, 8, v239"),
          26: M(wl[1]),
          33: M(em_ld[0]), 35: M(em_ld[1]), 38: M(sc_ld[0]), 42: [lambda: Q.vmem(sc_ld[1], "sc")],
          49: M(wl[2]), 63: M(wl[3])}
    step(Q, 14, remap(ex))
    ex = {2: M(gb_ld[0]), 9: M(wl[4]), 5: M(gb_ld[1]), 22: M(wl[5]),
          33: M(wl[6]), 42: M(wl[7]), 55: M(wl[8]),
          39: [lambda: Q.wait(vm=["sc"]), lambda: Q.raw(unscale)]}
    slots = [43, 46, 49, 50, 51, 52, 53, 54, 56, 57, 58, 59, 60, 61, 62, 63]
    for i, g in enumerate(slots):
        ex[g] = R("\n".join(red[2*i:2*i + 2]))
    step(Q, 15, ex)
    A(Seq.text(Q.take()))
    A("Lepi:")
    st.mark(A, "end")
    RB_, ZB = [8, 40], [72, 88]
    XB = [8, 20, 72, 84]
    LO, HI = LO3, HI3
    ag, bb = f"s[{S_AG}:{S_AG+1}]", f"s[{S_BB}:{S_BB+1}]"
    XF, OUT = 40, 104
    for nul in range(2):
        stream, ready = [], []
        for n, phi in enumerate((2, 1, 3, 0)):
            sg, nup = phi >> 1, phi & 1
            nu = 2*nup + nul
            Rr = RB_[n & 1]
            Z = (lambda q, zb=ZB[n & 1]: zb + 4*q) if phi else (lambda q: H + q*8 + nul*4)
            m = lambda j, be, r=0: Rr + j*8 + be*4 + r
            E = stream.append

            def rdacc(*jb):
                for j, be in jb:
                    for r in range(4):
                        E(f"v_accvgpr_read_b32 v{m(j,be,r)}, a{j*64 + nu*16 + (2*sg + be)*4 + r}")

            def pk(q, x, y, neg, first=False):
                for r in (0, 2):
                    E(f"v_pk_add_f32 {v(Z(q)+r,2)}, {v((x if first else Z(q))+r,2)}, {v(y+r,2)} {NEG1 if neg else ''}")

            def done(q):
                if phi:
                    ready.append((len(stream), f"ds_write_b128 v{VW[phi]}, {v(Z(q),4)} offset:{(nul*4 + q)*1024}"))
            rdacc((0, 0), (0, 1), (1, 0), (2, 0))
            if n == 2:
                E("@war")
            pk(1, m(1,0), m(2,0), 0, True); pk(0, m(1,0), m(2,0), 1, True)
            pk(1, None, m(0,0), 1); pk(1, None, m(0,1), 0); done(1)
            rdacc((3, 1), (3, 0))
            for r in range(4):
                E(f"v_add_f32_dpp v{Z(0)+r}, v{m(3,1,r)}, v{Z(0)+r} row_shr:1 row_mask:0xf bank_mask:0xf bound_ctrl:1")
            pk(0, None, m(3,0), 1)
            done(0)
            rdacc((1, 1), (2, 1))
            pk(2, m(1,1), m(2,1), 1, True); pk(3, m(1,1), m(2,1), 0, True)
            pk(2, None, m(3,1), 1); pk(2, None, m(3,0), 0); done(2)
            for r in range(4):
                E(f"v_add_f32_dpp v{Z(3)+r}, v{m(0,0,r)}, v{Z(3)+r} row_shl:1 row_mask:0xf bank_mask:0xf bound_ctrl:1")
            pk(3, None, m(0,1), 1)
            done(3)
        where, last = {}, -99
        for pos, t in ready:
            last = max(pos, last + OPT.get("wgap", 15))
            where[last] = t
        bpos = last + OPT.get("bgap", 14)
        nw = 0
        rds = [f"ds_read_b128 {v(XB[q] + 4*k, 4)}, v{VR[k]} offset:{(nul*4 + q)*1024}" for q in range(4) for k in range(3)]
        for i, t in enumerate(stream):
            if i in where:
                A(where[i]); nw += 1
            if i == bpos:
                A("s_waitcnt lgkmcnt(0)\ns_barrier")
            if i >= bpos and (i - bpos) % OPT.get("rgap", 2) == 0 and rds:
                for _ in range(OPT.get("rnum", 1)):
                    A(rds.pop(0))
            A(f"s_waitcnt lgkmcnt({nw - 4})" if t == "@war" else t)
        assert nw == 12 and 181 <= bpos and not rds
        for q in range(4):
            if q in (0, 2):
                A(f"s_waitcnt lgkmcnt({6 - 3*q})")
            x = XB[q]
            ha, hb = H + q*8 + nul*4, H + 32 + q*8 + nul*4
            for r in (0, 2):
                A(f"v_pk_fma_f32 {v(hb+r,2)}, {v(x+4+r,2)}, {ag}, {v(x+8+r,2)} {HI}")
            for r in (0, 2):
                A(f"v_pk_fma_f32 {v(x+4+r,2)}, {v(x+4+r,2)}, {ag}, {v(x+r,2)} {LO}")
            for r in (0, 2):
                A(f"v_pk_fma_f32 {v(hb+r,2)}, {v(x+r,2)}, {bb}, {v(hb+r,2)} {LO}")
            for r in (0, 2):
                A(f"v_pk_fma_f32 {v(hb+r,2)}, {v(ha+r,2)}, {bb}, {v(hb+r,2)} {HI}")
            for r in (0, 2):
                A(f"v_pk_add_f32 {v(ha+r,2)}, {v(ha+r,2)}, {v(x+4+r,2)}")
        if nul:
            st.mark(A, "hh")
        sel = HI if nul else LO
        A(f"s_cmp_lg_u32 s{S_IT}, 0\ns_cbranch_scc1 Lfinal{nul}")
        for p0 in range(0, 8, 2):
            xs = [(H + p*8 + k, k) for p in (p0, p0 + 1) for k in (4*nul, 4*nul + 2)]
            for x, k in xs:
                A(f"v_pk_fma_f32 {v(x,2)}, {v(x,2)}, {v(SCR,2)}, {v(EMR+k,2)} {sel}")
            for i, (x, k) in enumerate(xs):
                sums(A, x, P + (k & 2), nul == 0 and p0 == 0 and i < 2)
        if nul == 0:
            A("s_branch Lhalf")
        else:
            st.flush(A, 0, 7)
            st.mark(A, "start")
            A(f"s_mov_b32 s{S_IT}, 1\ns_mov_b32 s{SO+2}, 0")
            A(f"s_add_u32 s{S_RA}, s{S_RA}, {D2-D1:#x}\ns_add_u32 s{S_RB2}, s{S_RB2}, {D2-D1:#x}")
            A(f"s_add_u32 s{SD}, s{SD}, {D2-D1:#x}\ns_addc_u32 s{SD+1}, s{SD+1}, 0")
            A("s_branch Lstats")
        A(f"Lfinal{nul}:")
        if nul == 0:
            A(f"s_mov_b32 s{SO}, s22\ns_mov_b32 s{SO+1}, s23\ns_mov_b32 s{SO+2}, 0x800000\ns_waitcnt vmcnt(0)")
            if OPT.get("wide", 0):
                A(f"s_mov_b32 vcc_lo, 0xaaaaaaaa\ns_mov_b32 vcc_hi, 0xaaaaaaaa\nv_add_u32 v{VX+1}, -8, v{VX+1}\nv_cndmask_b32 v{VX}, v{VX}, v{VX+1}, vcc")
        for k in (4*nul, 4*nul + 2):
            xf = lambda p, kk: XF + p*4 + (kk & 3)
            for rho in range(2):
                for kk in (k, k+1):
                    r = XR + (rho*8 + kk)*2
                    unpack_bf16(A, r, xf(rho*4, kk), xf(rho*4 + 1, kk))
                    unpack_bf16(A, r+1, xf(rho*4 + 2, kk), xf(rho*4 + 3, kk))
            for p in range(8):
                x = H + p*8 + k
                A(f"v_pk_fma_f32 {v(x,2)}, {v(x,2)}, {v(SCR,2)}, {v(xf(p, k),2)} {sel}")
            if OPT.get("wide", 0):
                t = XF + (k & 2)
                cv = lambda kk, rho, d: XF + (kk & 1)*16 + rho*8 + d*4 + (k & 2)
                for kk in (k, k+1):
                    for rho in range(2):
                        h = H + rho*32 + kk
                        A(f"v_cvt_pk_bf16_f32 v{cv(kk,rho,0)}, v{h}, v{h+8}\nv_cvt_pk_bf16_f32 v{cv(kk,rho,1)}, v{h+16}, v{h+24}")
                for half in range(2):
                    A("s_not_b64 vcc, vcc")
                    for kk in (k, k+1):
                        for d in range(2):
                            A(f"v_cndmask_b32_dpp v{OUT + kk*4 + 2*half + d}, v{cv(kk,1-half,d)}, v{cv(kk,half,d)}, vcc quad_perm:[1,0,3,2] row_mask:0xf bank_mask:0xf")
                for kk in (k, k+1):
                    A(f"buffer_store_dwordx4 {v(OUT + kk*4,4)}, v{VX}, s[{SO}:{SO+3}], s{S_XO} offen {OPT['sto']}")
                    A(f"s_add_u32 s{S_XO}, s{S_XO}, 8192")
                continue
            for kk in (k, k+1):
                for rho in range(2):
                    o = OUT + (rho*8 + kk)*2
                    h = H + rho*32 + kk
                    A(f"v_cvt_pk_bf16_f32 v{o}, v{h}, v{h+8}")
                    A(f"v_cvt_pk_bf16_f32 v{o+1}, v{h+16}, v{h+24}")
                    A(f"buffer_store_dwordx2 {v(o,2)}, v{VX+rho}, s[{SO}:{SO+3}], s{S_XO} offen {OPT['sto']}")
                A(f"s_add_u32 s{S_XO}, s{S_XO}, 8192")
        if nul == 0:
            A("Lhalf:")
    if stamps:
        A("s_waitcnt vmcnt(0)")
        A("s_memrealtime s[20:21]\ns_memtime s[22:23]\ns_waitcnt lgkmcnt(0)")
        st.flush(A, 1, 7)
        A("s_mov_b32 s72, s20\ns_mov_b32 s74, s22")
        st.flush(A, 2, 1)
    A("Lexit:\ns_endpgm")
    A("Lcode_end:")
    descriptor(A, NAME, 512, 256)
    return A


HEAD = """; ADM ResBlock: GN+SiLU -> conv3x3 -> +emb -> GN+SiLU -> conv3x3 -> +x   (B=2, C=512, 64x64, bf16 in/out)
; operands carry run-time power-of-two scales (max|w| per 4 output channels, max|gamma|,|beta|) undone afterwards.
%s
.amdgcn_target "amdgcn-amd-amdhsa--gfx950"
"""

if __name__ == "__main__":
    for a in sys.argv[2:]:
        if "=" in a:
            k, val = a.split("=")
            OPT[k] = int(val) if val.lstrip("-").isdigit() else (eval(val) if val.startswith("(") else val.replace("+", " "))
    D1 += OPT.get("base", 0) << 20; D2 += (OPT.get("base", 0) + OPT.get("d2", 0)) << 20
    U1 += OPT.get("base", 0) << 20; U2 += OPT.get("base", 0) << 20
    stamps = "stamps" in sys.argv[2:]
    launch = "; @launch " + (f"kernel={NAME} " if "list" in sys.argv[2:] else "") + "grid=(256,1,1) block=(256,1,1) lds=152064"
    text = HEAD % launch + kernel(stamps).text()
    open(sys.argv[1], "w").write(align_pass(text) if OPT["align"] else text)
```

```python
import sys
sys.path.insert(0, "tools")
import gen
def probe(src, pts, offs):
    A = gen.Asm()
    gen.header(A, "probe_kernel")
    A("s_cmp_ge_u32 s2, 1\ns_cbranch_scc1 Lq_exit")
    A("s_load_dwordx2 s[26:27], s[0:1], 88\ns_waitcnt lgkmcnt(0)")
    gen.srd(A, 28, 26, gen.WS_BYTES)
    A("v_lshlrev_b32 v1, 6, v0")
    A(f"s_mov_b32 s4, {gen.STAMP:#x}\nbuffer_load_dword v40, off, s[28:31], s4\ns_waitcnt vmcnt(0)\nv_subrev_u32 v40, 1000, v40")
    for n, (k, i, f) in enumerate(pts):
        for j in range(16):
            A(f"s_mov_b32 s4, {gen.STAMP + k*0x20000 + j*4096 + 8*i:#x}")
            A(f"buffer_load_dword v{2 + j}, v1, s[28:31], s4 offen")
        A("s_waitcnt vmcnt(0)")
        for j in range(16):
            A(f"v_sub_u32 v{2+j}, v{2+j}, v40")
            if f == "min": A(f"v_sub_u32 v{2+j}, 0x100000, v{2+j}")
        for j in range(1, 16): A(f"v_max_u32 v2, v2, v{2+j}")
        A("s_nop 1")
        gen.wave_reduce(A, [2], "v_max_u32")
        A(f"s_nop 1\nv_readlane_b32 s{8+n}, v2, 63\ns_nop 3")
        if f == "min": A(f"s_sub_u32 s{8+n}, 0x100000, s{8+n}")
    A("s_mov_b32 s6, 0")
    for n, o in enumerate(offs):
        hi, lo = ((11, 8), (9, 8), (10, 9))[n]
        A(f"s_sub_u32 s5, s{hi}, s{lo}\ns_sub_i32 s5, s5, {int(o*100)}\ns_max_i32 s5, s5, 0\ns_mul_i32 s5, s5, 1311\ns_lshr_b32 s5, s5, 16\ns_min_u32 s5, s5, {15 if n == 0 else 7}")
        A("s_lshl_b32 s6, s6, 3\ns_add_u32 s6, s6, s5")
    A("s_mul_i32 s6, s6, 1200")
    A("s_memrealtime s[14:15]\ns_waitcnt lgkmcnt(0)")
    A("Lq_spin:\ns_memrealtime s[16:17]\ns_waitcnt lgkmcnt(0)\ns_sub_u32 s16, s16, s14\ns_cmp_lt_u32 s16, s6\ns_cbranch_scc1 Lq_spin")
    A("Lq_exit:\ns_endpgm")
    gen.descriptor(A, "probe_kernel", 64, 64)
    lines = src.split("\n")
    last = max(i for i, l in enumerate(lines) if l.startswith("; @launch"))
    lines.insert(last + 1, "; @launch kernel=probe_kernel grid=(1,1,1) block=(64,1,1) lds=0")
    return "\n".join(lines) + A.text()
if __name__ == "__main__":
    if sys.argv[1] == "decode":
        offs = [float(x) for x in sys.argv[2].split(",")]
        for r in sys.argv[3:]:
            n = int((float(r) - 58)/12); d = [n >> 6, (n >> 3) & 7, n & 7]
            print(r, [o + 0.5*x for o, x in zip(offs, d)], "rest", round(float(r) - 12*n, 1))
    else:
        pts = [(int(p.split(",")[0]), int(p.split(",")[1]), p.split(",")[2]) for p in sys.argv[3:7]]
        open(sys.argv[2], "w").write(probe(open(sys.argv[1]).read(), pts, [float(x) for x in sys.argv[7].split(",")]))
```

```python
import sys
sys.path.insert(0, "tools")
import gen
from gen import (Asm, v, acc, NEG1, srd, wave_reduce, header, descriptor, gn_coeffs, silu8, unpack_bf16, trim,
                 align_pass, OPT, OOB, NLOG2E, SPIN_MAX, TAGSTEP, S_MASK, WS_BYTES, WROW, STAMP,
                 SLOT, VDMA, VDMA2, VTOP, VBOT, VU, VA, VB, VA1, VB1, WLDS, XLDS, C, PP, TMP, UU,
                 SWS, SD, SX, SO, S_W, S_DMA, S_M0, S_U0, S_U1, S_U2, S_SGN, S_CNT, S_GRP, S_IDX, S_B, S_NB, S_RB,
                 u_load, dma_m0, dma, raw_read, h_op, D1, D2, U1, U2, SC1, SC2)

NAME = "standalone__adm_resblock__diffusion_kernel"
GEN, EMBP = 0x0, 0x10000
STAT, UF, DF = 0x40000, 0x60000, 0x80000
GRPS = 4352
OS, US = 65536 + 256, 786432 + 4096
D1 = 0x100000
D2 = D1 + 128*OS
U1 = D2 + 128*OS
U2 = U1 + 8*US
OPT.update(tlb=0, g2=0, ldx="nt", ldw="nt", jst=1, wpos=(2, 8, 14, 20), ldu="sc1", ldd="sc1", trimU=3, trimD=3, pf=1, delay=0, delayd=6, slp=0)

S_IT, S_TAG, S_ASC, S_INV, S_WS, S_E2, S_RA, S_RB2, S_J0, S_J1, S_OQ = 60, 61, 62, 63, 64, 65, 66, 67, 68, 69, 71
S_RET, S_POLL, S_SLOT, S_XO, S_USTEP, S_EX = 24, 25, 12, 13, 101, 4
S_AG, S_BB = 6, 14
VW, VR = (None, 240, 241, 242), (243, 244, 245)
VD, VX, V63, VXL, VPOLL, VT = 246, 247, 249, 250, 251, 252
H, XR, SCR, EMR, GR, BR, PLD, VS, VJ = 136, 200, 232, 104, 124, 128, 232, 236, 238

LANE63 = "s_mov_b32 exec_lo, 0\ns_mov_b32 exec_hi, 0x80000000"


class Seq(gen.Seq):
    def wait(self, vm=(), lg=()):
        a = [n for n in (self._n(self.vm, t) for t in vm) if n is not None]
        b = [n for n in (self._n(self.lg, t) for t in lg) if n is not None]
        self.out.append(("wait", a[-1] if a else None, b[-1] if b else None))

    @staticmethod
    def text(out):
        L = []
        for x in out:
            if isinstance(x, tuple):
                p = ([f"vmcnt({x[1]})"] if x[1] is not None else []) + ([f"lgkmcnt({x[2]})"] if x[2] is not None else [])
                assert (x[1] or 0) < 64 and (x[2] or 0) < 16
                if p:
                    L.append("s_waitcnt " + " ".join(p))
            else:
                L.append(x)
        return "\n".join(L)

    def take(self):
        o, self.out = self.out, []
        return o


def merge(bodies):
    res = []
    for items in zip(*bodies):
        if isinstance(items[0], tuple):
            f = lambda i: min([x[i] for x in items if x[i] is not None], default=None)
            res.append(("wait", f(1), f(2)))
            if res[-1] != bodies[3][len(res) - 1]:
                print("note: wait tightened", res[-1], items, file=sys.stderr)
        else:
            assert all(x == items[0] for x in items), items
            res.append(items[0])
    return res


class Stamps:
    def __init__(self, on):
        self.on = on

    def mark(self, A, name, wait=True):
        sel = OPT.get("marks", "start,pub,tot,silu,loop,end,hh").split(",")
        if self.on and name in sel:
            i = sel.index(name)
            A(f"s_memrealtime s[{72+4*i}:{73+4*i}]\ns_memtime s[{74+4*i}:{75+4*i}]")
            if wait:
                A("s_waitcnt lgkmcnt(0)")

    def flush(self, A, kid, n):
        if self.on:
            A(f"s_lshl_b32 s100, s2, 2\ns_add_u32 s100, s100, s{S_W}\ns_lshl_b32 s100, s100, 6")
            A(f"s_add_u32 s100, s100, {STAMP + kid*0x20000:#x}")
            for i in range(n):
                A(f"v_mov_b32 v{VT}, s{72+4*i}\nv_mov_b32 v{VT+1}, s{74+4*i}")
                A(f"buffer_store_dwordx2 {v(VT,2)}, v{V63}, s[{SWS}:{SWS+3}], s100 offen offset:{8*i}")
                A("s_nop 1")


def weave(A, main, side, first=0, last=None):
    last = len(main) if last is None else last
    pos = {}
    for i, t in enumerate(side):
        pos.setdefault(first + (i*(last - first))//len(side), []).append(t)
    for i, m in enumerate(main):
        for t in pos.get(i, []):
            A(t)
        A(m)


def w_loads(base, so, sm):
    ld = []
    for k in range(9):
        t = ""
        if k == 0:
            t = (f"s_mul_i32 s{sm}, s{S_W}, {WROW}\ns_add_u32 m0, s{sm}, {base}\n"
                 f"s_lshl_b32 s{so}, s{S_OQ}, 2\ns_add_u32 s{so}, s{so}, s{S_W}\ns_mul_i32 s{so}, s{so}, 9216\n")
        elif k in (4, 8):
            t = f"s_add_u32 m0, s{sm}, {base + 1024*k}\ns_add_u32 s{so}, s{so}, 4096\n"
        ld.append(t + f"buffer_load_dwordx4 v{VDMA}, s[{SO}:{SO+3}], s{so} offen offset:{1024*(k & 3)} {OPT.get('ldw', '')} lds")
    return ld


def spin(A, L, load, check, first_in_flight=False, c=58):
    if first_in_flight is not None:
        A(f"s_mov_b32 s{c}, {SPIN_MAX}")
    if first_in_flight:
        A(f"s_branch {L}_wait")
    A(f"{L}_poll:\n{load}\n{L}_wait:\ns_waitcnt vmcnt(0)\n{L}_chk:")
    A(check)
    A(f"s_cbranch_scc0 {L}_ok")
    if OPT["slp"]:
        A(f"s_sleep {OPT['slp']}")
    A(f"s_sub_u32 s{c}, s{c}, 1\ns_cmp_lg_u32 s{c}, 0\ns_cbranch_scc1 {L}_poll")
    A(f"{L}_ok:")


POLL4 = f"buffer_load_dwordx4 {v(PLD,4)}, v{VPOLL}, s[{SWS}:{SWS+3}], s{S_POLL} offen sc1"


JG, JM, JRW, JOUT = 8, 80, 80, 56
LO2, HI2 = "op_sel_hi:[1,0]", "op_sel:[0,1] op_sel_hi:[1,1]"
LO3, HI3 = "op_sel_hi:[1,0,1]", "op_sel:[0,1,0] op_sel_hi:[1,1,1]"


def job(A, hook, stores, gate=None, early=None):
    G, M, RW, T = JG, 116, JRW, 80

    def greg(e):
        return G + (e % 9)*8 + e//9
    for k in range(9):
        A(f"ds_read_b128 {v(RW+4*k,4)}, v{VJ} offset:{16*k}")
    A(f"s_bitcmp1_b32 s{S_IDX}, 0\ns_cselect_b32 s56, -1.0, 1.0\ns_lshl_b32 s58, s{S_W}, 2\nv_add_u32 v{M+1}, s58, v{VXL}")
    for k in range(9):
        if k in (0, 1, 3, 6):
            A(f"s_waitcnt lgkmcnt({(8, 6, 0, 3, 0, 0, 0)[k]})")
        for d in range(4):
            e = 8*k + 2*d
            unpack_bf16(A, RW + 4*k + d, greg(e), greg(e+1))
        for d in range(4):
            e = 8*k + 2*d
            A(f"v_max3_f32 v{M}, |v{greg(e)}|, |v{greg(e+1)}|, {'0' if e == 0 else f'v{M}'}")
        if gate and k == OPT.get("hk", 3):
            A(hook)
        if early and k == OPT.get("hk", 3):
            A(early[0])
    B = Asm()
    for x in range(0, 24, 2):
        B(f"v_pk_fma_f32 {v(G+24+x,2)}, {v(G+24+x,2)}, s[56:57], {v(G+x,2)} {LO3}")
    for x in range(0, 24, 2):
        B(f"v_pk_add_f32 {v(G+24+x,2)}, {v(G+24+x,2)}, {v(G+48+x,2)}")
    red = [f"v_max_f32_dpp v{M}, v{M}, v{M} row_shr:{n} row_mask:0xf bank_mask:0xf bound_ctrl:1" for n in (1, 2, 4, 8)]
    red += [f"v_max_f32_dpp v{M}, v{M}, v{M} row_bcast:{n} row_mask:{m} bank_mask:0xf" for n, m in ((15, "0xa"), (31, "0xc"))]
    red += [f"{LANE63}\nds_write_b32 v{M+1}, v{M} offset:128\ns_mov_b64 exec, -1"]
    weave(A, B.L, red, 2, 16)

    def wsum(dst, src):
        for cp in range(0, 8, 2):
            A(f"v_pk_add_f32 {v(T+cp,2)}, {v(src+cp,2)}, {v(src+16+cp,2)}")
        for cp in range(0, 8, 2):
            A(f"v_pk_add_f32 {v(dst+cp,2)}, {v(T+cp,2)}, {v(src+8+cp,2)}")
            A(f"v_pk_add_f32 {v(dst+8+cp,2)}, {v(T+cp,2)}, {v(src+8+cp,2)} {NEG1}")
        if dst != src:
            for cp in range(0, 8, 2):
                A(f"v_pk_mul_f32 {v(dst+16+cp,2)}, {v(src+16+cp,2)}, 1.0 {LO2}")
    def sums():
        wsum(G + 24, G + 24)
        A(f"s_bitcmp1_b32 s{S_IDX}, 0\ns_cbranch_scc1 Ljp1")
        wsum(G, G)
        A("s_branch Ljp2\nLjp1:")
        wsum(G, G + 48)
        A("Ljp2:")
    if gate:
        sums()
        gate()
    if early:
        early[1]()
    A("s_waitcnt lgkmcnt(0)\ns_barrier")
    A(f"ds_read_b128 {v(M+4,4)}, v{VXL} offset:128")
    if gate:
        A(f"ds_read_b128 {v(PLD,4)}, v{VXL} offset:64")
    else:
        sums()
        A(hook)
    A("s_waitcnt lgkmcnt(0)")
    K = 88
    A(f"v_max3_f32 v{M+4}, v{M+4}, v{M+5}, v{M+6}\nv_max_f32 v{M+4}, v{M+4}, v{M+7}")
    A(f"v_frexp_exp_i32_f32 v{M+4}, v{M+4}\nv_min_i32 v{M+4}, 60, v{M+4}\nv_max_i32 v{M+4}, 0xffffffc4, v{M+4}")
    A(f"v_add_u32 v{M}, 119, v{M+4}\nv_lshlrev_b32 v{M}, 23, v{M}")
    A(f"v_sub_u32 v{K}, 135, v{M+4}\nv_lshlrev_b32 v{K}, 23, v{K}\nv_readfirstlane_b32 s{S_WS}, v{M}")
    A(f"v_mul_f32 v{K+2}, 0x47000080, v{K}\nv_mul_f32 v{K+3}, 0xc7000000, v{K}")
    A(f"v_pk_mul_f32 {v(K+4,2)}, {v(K+2,2)}, 0.5 {LO2}")
    for i, r in enumerate((G, G + 24)):
        for j, src in enumerate((r+16, r, r+8)):
            o = JOUT + (i*3 + j)*4
            kk = K + 2*(i + (j > 0))
            for cp in range(0, 8, 2):
                A(f"v_pk_mul_f32 {v(T+cp,2)}, {v(src+cp,2)}, {v(kk,2)} {LO2}")
            if i or j:
                for cp in range(0, 8, 2):
                    A(f"v_pk_fma_f32 {v(T+cp,2)}, {v(src+cp,2)}, {v(kk,2)}, {v(T+cp,2)} {HI3}")
            for d in range(4):
                A(f"v_cvt_pk_f16_f32 v{o+d}, v{T+2*d}, v{T+2*d+1}")
            A(stores[i*3 + j])


def job_stores(VS=VS):
    st = []
    for i in range(2):
        for j in range(3):
            st.append(f"buffer_store_dwordx4 {v(JOUT + (i*3 + j)*4, 4)}, v{VS}, s[{SWS}:{SWS+3}], s{S_J0+i} offen sc1\n"
                      f"s_add_u32 s{S_J0+i}, s{S_J0+i}, {(4096 if j < 2 else U2 - U1 - 8192) & 0xffffffff:#x}")
    return st


def silu(A, x, A1, B1, kk, t, out):
    for k in range(0, 8, 2):
        A(f"v_pk_fma_f32 {v(x+k,2)}, {v(x+k,2)}, {v(A1+k,2)}, {v(B1+k,2)}")
    for k in range(8):
        A(f"v_exp_f32 v{t+k}, v{x+k}")
    for k in range(0, 8, 2):
        A(f"v_pk_fma_f32 {v(t+k,2)}, {v(t+k,2)}, {v(kk,2)}, {v(kk,2)}")
    for k in range(8):
        A(f"v_rcp_f32 v{t+k}, v{t+k}")
    for k in range(0, 8, 2):
        A(f"v_pk_mul_f32 {v(x+k,2)}, {v(x+k,2)}, {v(t+k,2)}")
    for k in range(0, 8, 2):
        A(f"v_cvt_pk_f16_f32 v{out+k//2}, v{x+k}, v{x+k+1}")
    if OPT.get("t1"):
        for d in range(4):
            A(f"v_and_b32 v{out+d}, 0xfff8fff8, v{out+d}")
    else:
        trim(A, out, 4, OPT["trimD"])


def x_loads():
    ld = []
    for k in range(8):
        for rho in range(2):
            t = f"buffer_load_dwordx2 {v(XR + (rho*8 + k)*2, 2)}, v{VX+rho}, s[{SX}:{SX+3}], s59 offen {OPT['ldx']}"
            if rho == 1 and k < 7:
                t += f"\ns_add_u32 s59, s59, {32768 if OPT.get('xperm') else 8192}"
            ld.append(t)
    ld[0] = f"s_mov_b32 s59, s{S_XO}\n" + ld[0]
    return ld


VG = (1, 4, 8, 11, 15, 18, 22, 25, 29, 32, 36, 39, 43, 46, 50, 53, 57, 60)


def step(Q, k, extra=None, scal=None):
    if OPT.get("sched", 1) == 0:
        return gen.step(Q, k, extra)
    cs = k & 1
    c0, c1 = C[cs]
    u0, u1, u2 = UU[cs]
    ld_u2, ld_u, ld_d, rd = k + 1 <= 15, k + 2 <= 15, k + 3 <= 16, k + 1 <= 15
    G = [[] for _ in range(64)]
    at = lambda g, f: G[g].append(f)
    R = lambda t: (lambda: Q.raw(t))

    def put(lst, gaps):
        it = iter(lst)
        for g, n in gaps:
            for _ in range(n):
                at(g, next(it))
        assert next(it, None) is None

    def uld(kk, j, nu):
        r = UU[kk & 1][j] + 4*nu
        return lambda: Q.vmem(f"buffer_load_dwordx4 {v(r,4)}, v{VU}, s[{SWS}:{SWS+3}], s{S_U0+j} offen offset:{1024*nu} {OPT['ldu']}", ("u", kk, j))

    def dld(kk, p):
        vo = (VTOP, VDMA, VDMA, VDMA, VDMA2, VBOT)[p]
        return lambda: Q.vmem(f"buffer_load_dwordx4 v{vo}, s[{SD}:{SD+3}], s{S_DMA} offen offset:{1024*(p & 3)} {OPT['ldd']} lds", ("raw", kk))
    w4 = OPT.get("w4", 1)
    uinc = lambda j: R(f"s_add_u32 s{S_U0+j}, s{S_U0+j}, " + (f"s{S_USTEP}" if w4 else "49152"))
    rr = lambda par, tb, w: (lambda: raw_read(Q, k+1, par, tb, w))
    if ld_u2:
        put([uld(k+1, 2, nu) for nu in range(4)], [(g, 1) for g in VG[0:4]])
    if ld_d:
        put([dld(k+3, p) for p in range(6)], [(g, 1) for g in VG[4:10]])
        at(12, lambda: dma_m0(Q, k+3, 0))
        at(27, lambda: dma_m0(Q, k+3, 1))
        at(40, R(f"s_add_u32 s{S_DMA}, s{S_DMA}, {gen.DSTEP:#x}"))
        if cs == 0:
            at(41, R(f"s_xor_b32 s{S_M0}, s{S_M0}, 0x10000"))
    if ld_u:
        put([uld(k+2, 0, nu) for nu in range(4)], [(g, 1) for g in VG[10:14]])
        put([uld(k+2, 1, nu) for nu in range(4)], [(g, 1) for g in VG[14:18]])
    at(13, uinc(2))
    at(14, lambda: Q.wait(vm=[("u", k, 1)]))
    at(30, uinc(1))
    at(31, lambda: Q.wait(vm=[("u", k, 2)], lg=[("rd", k+1, 1, 3)]))
    share = OPT.get("share", 1) and rd
    if share:
        kn = k + 1

        def rs(dst, areg, par, be):
            off = (kn & 1)*SLOT + (2*be + par)*256
            return lambda: Q.lds(f"ds_read_b128 {v(dst,4)}, v{areg} offset:{off}", ("rd", kn, 1, 3))
        cn = lambda par, tb: C[kn & 1][par] + 4*tb
        tn = lambda par, be: TMP + 8*par + 4*be
        pb = [(par, be) for par in range(2) for be in range(2)]
        put([f for par, be in pb for f in (rs(cn(par, be), VA, par, be), rs(tn(par, be), VB, par, be))] +
            [rs(cn(par, 2 + be), VB1, par, be) for par, be in pb],
            [(0, 2), (2, 2), (3, 2), (5, 2), (6, 1), (7, 1), (9, 1), (10, 1)])
        for g, two in ((47, pb[:2]), (48, pb[2:])):
            at(g, R(f"s_mov_b64 exec, s[{S_EX}:{S_EX+1}]"))
            for par, be in two:
                at(g, rs(tn(par, be), VA1, par, be))
            at(g, R("s_mov_b64 exec, -1"))
        at(52, uinc(0))
        at(54, lambda: Q.wait(lg=[("rd", kn, 1, 3)]))
    elif rd:
        at(51, uinc(0))
        at(52, lambda: Q.wait(lg=[("rd", k+1, 1, 3)]))
        put([rr(0, tb, w) for tb in range(4) for w in range(2)] + [rr(1, tb, 0) for tb in range(4)],
            [(0, 2), (2, 2), (3, 2), (5, 2), (6, 1), (7, 1), (9, 1), (10, 1)])
        put([rr(1, tb, 1) for tb in range(4)], [(33, 1), (34, 1), (35, 1), (37, 1)])
    if scal:
        for g, fs in scal.items():
            G[g] += fs
    put([R(f"v_pk_add_f16 v{PP+i}, v{c0+i}, v{c1+i}") for i in range(16)],
        [(0, 1), (2, 1), (5, 1), (6, 2), (7, 1), (9, 2), (10, 1), (12, 2), (13, 3), (14, 2)] if rd else
        [(g, 2) for g in (0, 3, 6, 7, 10, 12, 13, 14)])
    put([R(f"v_pk_add_f16 v{c0+i}, v{c0+i}, v{c1+i} {NEG1}") for i in range(16)],
        [(16, 3), (17, 3), (19, 1), (21, 2), (23, 1), (26, 2), (27, 1), (30, 3)] if rd else
        [(g, 2) for g in (16, 17, 18, 21, 25, 26, 29, 30)])
    put([R(f"v_pk_add_f16 v{u1+i}, v{u1+i}, v{u0+i} {NEG1}") for i in range(16)],
        [(19, 2), (20, 2), (23, 2), (24, 2), (27, 2), (28, 2), (31, 2), (33, 1), (34, 1)] if rd else
        [(g, 2) for g in (19, 20, 23, 24, 27, 28, 31, 32)])
    put([R(f"v_pk_add_f16 v{u2+i}, v{u1+i}, v{u2+i}") for i in range(16)],
        [(35, 1), (37, 1), (40, 2), (42, 2), (45, 2), (49, 3), (51, 3), (52, 2)] if share else
        [(35, 2), (37, 2), (40, 2), (41, 2), (44, 2), (45, 2), (47, 2), (48, 2)])
    if share:
        put([R(f"v_pk_fma_f16 v{cn(par, be)+d}, v{tn(par, be)+d}, s{S_SGN}, v{cn(par, be)+d}") for par, be in pb for d in range(4)],
            [(33, 2), (34, 2), (35, 2), (37, 2), (38, 3), (41, 2), (44, 3)])
        put([R(f"v_pk_fma_f16 v{cn(par, 2+be)+d}, v{cn(par, 2+be)+d}, s{S_SGN}, v{tn(par, be)+d}") for par, be in pb for d in range(4)],
            [(54, 2), (55, 3), (56, 2), (58, 3), (59, 2), (61, 2), (62, 2)])
        if cs == 0:
            at(21, R(f"v_xor_b32 v{VA}, 0x10000, v{VA}")); at(26, R(f"v_xor_b32 v{VB}, 0x10000, v{VB}"))
            at(41, R(f"v_xor_b32 v{VB1}, 0x10000, v{VB1}")); at(56, R(f"v_xor_b32 v{VA1}, 0x10000, v{VA1}"))
    elif rd:
        put([(lambda i=i: h_op(Q, k+1, 0, i >> 2, i & 3)) for i in range(16)],
            [(33, 1), (34, 1), (38, 3), (42, 3), (44, 1), (45, 1), (47, 1), (49, 3), (51, 2)])
        put([(lambda i=i: h_op(Q, k+1, 1, i >> 2, i & 3)) for i in range(16)],
            [(52, 2), (54, 2), (55, 2), (56, 2), (58, 2), (59, 2), (61, 2), (62, 2)])
        if cs == 0:
            at(21, R(f"v_xor_b32 v{VA}, 0x10000, v{VA}")); at(26, R(f"v_xor_b32 v{VA1}, 0x10000, v{VA1}"))
            at(55, R(f"v_xor_b32 v{VB}, 0x10000, v{VB}")); at(59, R(f"v_xor_b32 v{VB1}, 0x10000, v{VB1}"))
    if extra:
        for g, fs in extra.items():
            G[g] += fs
    Q.wait(vm=[("raw", k+1), ("u", k, 0)])
    Q.raw("s_barrier")
    for g in range(64):
        j, nu, tb = g >> 4, (g >> 2) & 3, g & 3
        if nu & 1:
            tb = 3 - tb
        a = (u0, u1, u2, u2)[j] + 4*nu
        b = (c0, PP, c0, c1)[j] + 4*tb
        d = j*64 + nu*16 + tb*4
        Q.raw(f"v_mfma_f32_16x16x32_f16 {acc(d,4)}, {v(a,4)}, {v(b,4)}, {acc(d,4)}")
        for f in G[g]:
            f()


def kernel(stamps):
    A = Asm()
    st = Stamps(stamps)
    header(A, NAME)
    st.mark(A, "start", False)
    A("s_cmp_ge_u32 s2, 256\ns_cbranch_scc1 Lexit")
    A("s_load_dwordx16 s[4:19], s[0:1], 0")
    A("s_load_dwordx8 s[20:27], s[0:1], 64")
    A("v_lshrrev_b32 v8, 6, v0\nv_and_b32 v0, 63, v0")
    A(f"v_readfirstlane_b32 s{S_W}, v8")
    A(f"s_and_b32 s{S_GRP}, s2, 7\ns_lshr_b32 s{S_IDX}, s2, 3\ns_lshr_b32 s{S_B}, s{S_GRP}, 2")
    A(f"s_and_b32 s{S_NB}, s{S_GRP}, 3\ns_lshl_b32 s{S_NB}, s{S_NB}, 1\ns_and_b32 s56, s{S_IDX}, 1\ns_add_u32 s{S_NB}, s{S_NB}, s56")
    A(f"s_lshr_b32 s{S_RB}, s{S_IDX}, 1\ns_lshl_b32 s{S_OQ}, s{S_GRP}, 4\ns_add_u32 s{S_OQ}, s{S_OQ}, s{S_RB}")

    def touch():
        A(f"s_lshl_b32 s56, s{S_IDX}, 2\ns_add_u32 s56, s56, s{S_W}\nv_and_b32 v8, 1, v0\nv_lshl_add_u32 v8, v8, 7, s56")
        gen.code_touch(A, "Lpf", "Lcode_end", 8, 72, "Lpc", 56)
        A(f"global_load_dword v253, v[72:73], off {OPT.get('pfn', '')}\nLpf:")
    if OPT["pf"] == 1:
        touch()
    A("v_and_b32 v9, 15, v0\nv_lshrrev_b32 v10, 4, v0")
    A(f"v_lshlrev_b32 v{VDMA}, 4, v0")
    A(f"s_and_b32 s44, s{S_W}, 1\ns_lshl_b32 s56, s{S_NB}, 1\ns_add_u32 s44, s44, s56")
    A(f"s_lshr_b32 s45, s{S_W}, 1\ns_lshl_b32 s56, s{S_RB}, 1\ns_add_u32 s45, s45, s56")
    A(f"s_lshl_b32 s46, s{S_B}, 22\ns_lshl_b32 s56, s44, 18\ns_add_u32 s46, s46, s56")
    A(f"s_lshl_b32 s47, s45, 8\ns_add_u32 s47, s47, s46")
    gen.DSTEP = 4*OS
    A(f"v_lshlrev_b32 v11, {13 if OPT.get('xperm') else 16}, v10\nv_lshl_add_u32 v11, v9, 3, v11")
    A(f"s_cmp_eq_u32 s{S_W}, 3\ns_cselect_b32 s56, 128, 0\nv_add_u32 v{VX}, s56, v11\nv_xor_b32 v{VX+1}, 128, v{VX}")
    A(f"s_mov_b32 s{S_MASK}, 0xffff0000")
    A("s_waitcnt lgkmcnt(0)")
    st.mark(A, "karg", False)
    A(f"s_load_dword s{S_ASC}, s[26:27], {GEN}")
    srd(A, SX, 4, 0x800000)
    xf = OPT.get("xf", 1)
    if xf:
        A("\n".join(x_loads()).replace(f"s_mov_b32 s59, s{S_XO}", "s_mov_b32 s59, s47"))
        st.mark(A, "xis", False)
    srd(A, SO, 12, 512*9216)
    A(f"s_cmp_lt_u32 s{S_W}, 2\ns_cbranch_scc1 Lside0\ns_cmp_eq_u32 s{S_W}, 3\ns_cbranch_scc1 Lside3")
    for i, p in enumerate((8, 10, 16, 18)):
        A(f"global_load_dwordx4 {v(16+4*i,4)}, v{VDMA}, s[{p}:{p+1}]")
    A("s_branch Lside0\nLside3:")
    A(f"v_lshrrev_b32 v12, 3, v0\ns_mul_i32 s56, s{S_RB}, 24\nv_add_u32 v12, s56, v12")
    A(f"s_and_b32 s56, s{S_IDX}, 1\ns_mul_i32 s56, s56, 768\nv_lshl_add_u32 v13, v12, 1, s56")
    for i in range(3):
        A(f"global_load_ushort v{16+i}, v13, s[6:7] offset:{16*i}")
    A(f"v_and_b32 v13, 7, v0\nv_lshlrev_b32 v13, 4, v13\nv_lshl_add_u32 v13, v12, 10, v13\ns_lshl_b32 s56, s{S_GRP}, 7\nv_add_u32 v13, s56, v13")
    for i in range(3):
        A(f"global_load_dwordx4 {v(20+4*i,4)}, v13, s[14:15]")
        if i < 2:
            A("v_add_u32 v13, 8192, v13")
    A("Lside0:")
    A(f"s_mov_b32 s{S_XO}, s47")
    if not xf:
        A("\n".join(x_loads()))
        st.mark(A, "xis", False)
    npf = int(OPT["pf"] == 2)
    if npf:
        touch()
    srd(A, SWS, 26, WS_BYTES)
    A(f"s_mul_i32 s{S_SLOT}, s{S_GRP}, {GRPS}\ns_lshl_b32 s56, s{S_IDX}, 7\ns_add_u32 s{S_SLOT}, s{S_SLOT}, s56")
    def ftouch():
        A(f"v_min_u32 v11, 5, v0\nv_lshlrev_b32 v11, 16, v11\ns_cmp_eq_u32 s{S_W}, 1\ns_cselect_b32 s56, 0, {OOB:#x}")
        A(f"s_add_u32 s56, s56, s{S_SLOT}\ns_add_u32 s56, s56, {STAT:#x}")
        A(f"buffer_load_dword v{VT+1}, v11, s[{SWS}:{SWS+3}], s56 offen sc1")
    npf += 1
    if OPT.get("ft", 3) == 1:
        ftouch()
    A(f"s_cmp_eq_u32 s{S_W}, 0\ns_cselect_b32 s58, 5, 0")
    A(f"v_lshrrev_b32 v11, 3, v0\nv_min_u32 v11, s58, v11\nv_lshlrev_b32 v11, 16, v11\nv_and_b32 v14, 0x70, v{VDMA}\nv_add_u32 v11, v11, v14")
    A(f"v_mov_b32 v132, 0\nv_mov_b32 v133, -1\nv_mov_b32 v134, 0\nv_mov_b32 v135, 0")
    if OPT["tlb"]:
        A(f"s_mul_i32 s56, s{S_GRP}, {16*OS}\ns_add_u32 s56, s56, {D1 + 8*OS - 256}")
        A(f"s_mul_i32 s57, s{S_GRP}, {US}\ns_mul_i32 s58, s{S_IDX}, {US - 128}\ns_add_u32 s57, s57, s58\ns_add_u32 s57, s57, {U1 - 128}")
        A(f"s_cmp_eq_u32 s{S_IDX}, 2\ns_cselect_b32 s57, s56, s57\ns_cmp_gt_u32 s{S_IDX}, 2\ns_cselect_b32 s57, {OOB:#x}, s57")
        A(f"s_cmp_eq_u32 s{S_W}, 1\ns_cselect_b32 s57, s57, {OOB:#x}")
    else:
        A(f"s_mov_b32 s57, {OOB:#x}")
    A(f"s_add_u32 s56, s{S_SLOT}, {STAT:#x}\ns_cmp_eq_u32 s{S_W}, 0\ns_cselect_b32 s57, s56, s57")
    A(f"buffer_store_dwordx4 v[132:135], v11, s[{SWS}:{SWS+3}], s57 offen sc1")
    A(f"v_mul_u32_u24 v{VD}, {OS}, v10\nv_lshl_add_u32 v{VD}, v9, 4, v{VD}")
    A(f"s_mul_i32 s46, s{S_B}, {64*OS}\ns_add_u32 s56, s46, {D1 - 1024:#x}\ns_mul_i32 s57, s44, {4*OS}\ns_add_u32 s46, s46, s57")
    A(f"s_add_u32 s{SD}, s26, s56\ns_addc_u32 s{SD+1}, s27, 0\ns_mov_b32 s{SD+2}, {64*OS + 1024:#x}\ns_mov_b32 s{SD+3}, 0x20000")
    A(f"s_lshl_b32 s56, s45, 11\ns_add_u32 s{S_RA}, s46, s56\ns_add_u32 s{S_RA}, s{S_RA}, {D1:#x}")
    A(f"s_cmp_eq_u32 s{S_W}, 3\ns_cselect_b32 s56, 1024, 0\ns_cselect_b32 s57, 0, 1024\ns_add_u32 s{S_RB2}, s{S_RA}, s57\ns_add_u32 s{S_RA}, s{S_RA}, s56")
    A(f"s_lshl_b32 s56, s44, 6\nv_lshlrev_b32 v237, 4, v10\nv_add_u32 v237, s56, v237")
    A(f"v_add_u32 v{VDMA2}, 4096, v{VDMA}")
    A(f"s_cmp_eq_u32 s{S_RB}, 0\ns_cselect_b32 s56, {OOB:#x}, 0\nv_add_u32 v{VTOP}, s56, v{VDMA}")
    A(f"s_cmp_eq_u32 s{S_RB}, 15\ns_cselect_b32 s56, {OOB:#x}, 0\nv_add_u32 v{VBOT}, s56, v{VDMA2}")
    A(f"v_lshrrev_b32 v11, 2, v9\nv_lshlrev_b32 v11, 8, v11\nv_lshl_add_u32 v11, v10, 6, v11")
    A(f"v_and_b32 v14, 3, v9\nv_lshl_add_u32 v{VU}, v14, 4, v11")
    A(f"s_lshl_b32 s57, s{S_W}, 10\ns_lshr_b32 s56, s{S_W}, 1\ns_sub_u32 s58, 2, s56\ns_lshl_b32 s58, s58, 10\ns_lshl_b32 s56, s56, 11")
    A(f"v_mul_u32_u24 v11, 6144, v10\nv_lshl_add_u32 v11, v9, 4, v11")
    A(f"v_add_u32 v14, s56, v11\ns_xor_b32 s56, s56, 2048\nv_add_u32 v11, s56, v11")
    A(f"v_add_u32 v{VA}, s57, v14\nv_add_u32 v{VB}, s58, v14\nv_add_u32 v{VA1}, s57, v11\nv_add_u32 v{VB1}, s58, v11")
    A(f"s_mov_b32 s56, 0xbc00bc00\ns_cmp_eq_u32 s{S_W}, 1\ns_cselect_b32 s{S_SGN}, 0x3c003c00, s56")
    A(f"s_mul_i32 s{S_M0}, s{S_W}, 6144")
    for phi in (1, 2, 3):
        A(f"s_xor_b32 s56, s{S_W}, {phi}\ns_mul_i32 s56, s56, 3\ns_add_u32 s56, s56, {phi-1}\ns_lshl_b32 s56, s56, 13\nv_add_u32 v{VW[phi]}, s56, v{VDMA}")
    A(f"s_lshl_b32 s57, s{S_W}, 2\ns_mul_i32 s58, s{S_W}, 3")
    for r, tab in zip(VR, (0x1100, 0x0221, 0x2012)):
        A(f"s_lshr_b32 s56, {tab:#x}, s57\ns_and_b32 s56, s56, 15\ns_add_u32 s56, s56, s58\ns_lshl_b32 s56, s56, 13\nv_add_u32 v{r}, s56, v{VDMA}")
    A(f"s_cmp_eq_u32 s{S_W}, 3\ns_cselect_b32 s{S_AG}, -1.0, 1.0\ns_cmp_ge_u32 s{S_W}, 2\ns_cselect_b32 s{S_AG+1}, 1.0, -1.0")
    A(f"s_xor_b32 s{S_BB+1}, s{S_AG+1}, 0x80000000\ns_add_u32 s56, s{S_W}, 1\ns_bitcmp1_b32 s56, 1")
    A(f"s_cselect_b32 s{S_BB}, 0, 1.0\ns_cselect_b32 s{S_BB+1}, s{S_BB+1}, 0\ns_cselect_b64 s[{S_EX}:{S_EX+1}], -1, 0")
    A(f"v_cmp_eq_u32 vcc, 63, v0\nv_mov_b32 v11, {OOB:#x}\nv_mov_b32 v{VXL}, {XLDS}\nv_cndmask_b32 v{V63}, v11, 0, vcc")
    A(f"s_mov_b32 s{S_IT}, 0")
    A("v_and_b32 v35, 7, v0\nv_lshlrev_b32 v35, 5, v35\nv_lshl_add_u32 v35, v10, 3, v35")
    A(f"s_and_b32 s56, s{S_IDX}, 1\ns_lshl_b32 s56, s56, 7\ns_add_u32 s56, s56, s{S_OQ}\ns_lshl_b32 s56, s56, 8\ns_add_u32 s{S_E2}, s56, {EMBP:#x}")
    A(f"v_and_b32 v11, 3, v0\nv_lshrrev_b32 v14, 2, v0\nv_mul_u32_u24 v11, {WROW}, v11\nv_mul_u32_u24 v14, 144, v14")
    A(f"s_mul_i32 s58, s{S_W}, 2304\ns_add_u32 s58, s58, {WLDS}\nv_add3_u32 v{VJ}, v11, v14, s58")
    A(f"v_mul_u32_u24 v{VS}, 49152, v10\nv_lshl_add_u32 v{VS}, v9, 4, v{VS}")
    A(f"s_mul_i32 s56, s{S_GRP}, {US}\ns_add_u32 s56, s56, {U1:#x}")
    A(f"s_bfe_u32 s58, s{S_RB}, 0x10003\ns_lshl_b32 s58, s58, 11\ns_add_u32 s56, s56, s58")
    A(f"s_and_b32 s58, s{S_RB}, 1\ns_lshl_b32 s58, s58, 10\ns_add_u32 s56, s56, s58")
    A(f"s_bfe_u32 s58, s{S_RB}, 0x20001\ns_lshl_b32 s58, s58, 8\ns_add_u32 s56, s56, s58")
    A(f"s_mul_i32 s58, s{S_W}, {4*49152}\ns_add_u32 s56, s56, s58\ns_xor_b32 s58, s56, 2048")
    A(f"s_bitcmp1_b32 s{S_IDX}, 0\ns_cselect_b32 s{S_J0}, s58, s56\ns_cselect_b32 s{S_J1}, s56, s58")
    A(f"s_cselect_b32 s58, {3*12288}, 0\ns_cselect_b32 s59, 12288, 0")
    A(f"s_add_u32 s{S_J0}, s{S_J0}, s58\ns_add_u32 s{S_J1}, s{S_J1}, s59\ns_add_u32 s{S_J1}, s{S_J1}, 12288")
    wk = OPT.get("wk", 9)
    wsp = OPT.get("wsp", (3, 3, 3, 0, 0))
    nextw = f"s_mov_b32 s{SO}, s20\ns_mov_b32 s{SO+1}, s21"
    if wk < 0:
        A("\n".join(w_loads(WLDS, 56, 57)) + "\n" + nextw)
    st.mark(A, "wis", False)
    nlate = 0
    if OPT["pf"] == 3:
        touch(); nlate += 1; npf += 1
    if OPT.get("ft", 3) == 2 and wk < 0:
        ftouch(); nlate += 1
    if wk == 9 and OPT.get("ft", 3) == 2:
        npf -= 1
    w1l = w_loads(WLDS, 44, 46)
    def side_work():
        A(f"s_cmp_lt_u32 s{S_W}, 2\ns_cbranch_scc1 Lside1\n{'s_nop 0' if xf else 's_waitcnt vmcnt(%d)' % (16 + 9*(wk < 0) + npf)}\ns_cmp_eq_u32 s{S_W}, 3\ns_cbranch_scc1 Lside4")
        A("v_mov_b32 v12, 0\nv_mov_b32 v13, 0")
        for d in range(16):
            unpack_bf16(A, 16 + d, 14, 15)
            A(f"v_max3_f32 v{12 + d//8}, |v14|, |v15|, v{12 + d//8}")
        A("s_nop 0")
        wave_reduce(A, [12, 13], "v_max_f32")
        for r in (12, 13):
            A(f"v_frexp_exp_i32_f32 v{r}, v{r}\nv_min_i32 v{r}, 60, v{r}\nv_max_i32 v{r}, 0xffffffc4, v{r}")
        A(LANE63)
        A(f"ds_write_b64 v{VXL}, v[12:13] offset:72\ns_mov_b64 exec, -1\ns_branch Lside1")
        A("Lside4:")
        for i in range(3):
            A(f"v_lshlrev_b32 v{16+i}, 16, v{16+i}")
        for op in (f"v_mul_f32 v{{t}}, {NLOG2E:#x}, v{{x}}", "v_exp_f32 v{t}, v{t}", "v_add_f32 v{t}, 1.0, v{t}",
                   "v_rcp_f32 v{t}, v{t}", "v_mul_f32 v{x}, v{x}, v{t}"):
            for i in range(3):
                A(op.format(t=32+i, x=16+i))
        for i in range(3):
            for d in range(4):
                unpack_bf16(A, 20 + 4*i + d, 44 + 2*d, 45 + 2*d)
            for k in range(8):
                A(f"v_mul_f32 v{36+k}, v{44+k}, v{16+i}" if i == 0 else f"v_fmac_f32 v{36+k}, v{44+k}, v{16+i}")
        for k in range(8):
            A(f"v_add_f32_dpp v{36+k}, v{36+k}, v{36+k} row_ror:8 row_mask:0xf bank_mask:0xf")
        A("s_nop 1")
        for k in (0, 1, 4, 5):
            A(f"v_permlane16_swap_b32 v{36+k}, v{38+k}")
        for k in (0, 1, 4, 5):
            A(f"v_add_f32 v{36+k}, v{36+k}, v{38+k}")
        A("s_nop 1")
        for k in (0, 1):
            A(f"v_permlane32_swap_b32 v{36+k}, v{40+k}")
        for k in (0, 1):
            A(f"v_add_f32 v{36+k}, v{36+k}, v{40+k}")
        A("Lside1:")
    if not xf:
        side_work()
    st.mark(A, "side", False)
    P = 116

    def sums(A, x, a, first):
        if first:
            A(f"v_pk_mul_f32 {v(a+4,2)}, {v(x,2)}, {v(x,2)}\nv_pk_mul_f32 {v(a,2)}, {v(x,2)}, 1.0 op_sel_hi:[1,0]")
        else:
            A(f"v_pk_add_f32 {v(a,2)}, {v(a,2)}, {v(x,2)}\nv_pk_fma_f32 {v(a+4,2)}, {v(x,2)}, {v(x,2)}, {v(a+4,2)}")
    for k in range(0, 8, 2):
        if k == 0:
            st.mark(A, "set", False)
        if k == 2:
            st.mark(A, "x0", False)
        A(f"s_waitcnt vmcnt({12 + (sum(wsp[:k//2]) if wk == 9 else 9*(wk < k)) + (0 if k == 6 and OPT.get('ft', 3) == 3 else npf) - 2*k})")
        if k == 6:
            st.mark(A, "xin", False)
        B = Asm()
        for kk in (k, k+1):
            for rho in range(2):
                r = XR + (rho*8 + kk)*2
                unpack_bf16(B, r, H + (rho*4 + 0)*8 + kk, H + (rho*4 + 1)*8 + kk)
                unpack_bf16(B, r+1, H + (rho*4 + 2)*8 + kk, H + (rho*4 + 3)*8 + kk)
        for p in range(8):
            sums(B, H + p*8 + k, P + 2*(p & 1), k == 0 and p < 2)
        if k == wk:
            weave(A, B.L, w_loads(WLDS, 56, 57))
            A(nextw)
        else:
            A("\n".join(B.L))
        if wk == 9:
            A("\n".join(w1l[sum(wsp[:k//2]):sum(wsp[:k//2 + 1])]))

    A("Lstats:")
    A(f"v_pk_add_f32 {v(P,2)}, {v(P,2)}, {v(P+2,2)}")
    A(f"v_pk_add_f32 {v(P+4,2)}, {v(P+4,2)}, {v(P+6,2)}")
    A(f"v_add_f32 v{P}, v{P}, v{P+1}\nv_add_f32 v{P+1}, v{P+4}, v{P+5}")
    wave_reduce(A, [P, P+1])
    A(f"s_lshl_b32 s56, s{S_W}, 3\nv_add_u32 v{P+2}, s56, v{VXL}")
    A(LANE63)
    A(f"ds_write_b64 v{P+2}, {v(P,2)}")
    A("s_mov_b64 exec, -1")
    A(f"s_lshl_b32 s59, s{S_IT}, 16\ns_add_u32 s56, s59, s{S_SLOT}\ns_add_u32 s56, s56, {STAT:#x}")
    A(f"s_cmp_eq_u32 s{S_IT}, 0\ns_cbranch_scc1 Lb1\ns_waitcnt vmcnt(0)\nLb1:")
    A(f"s_waitcnt lgkmcnt(0)\ns_barrier\ns_add_u32 s{S_TAG}, s{S_ASC}, {TAGSTEP:#x}")
    A(f"s_cmp_lg_u32 s{S_W}, 0\ns_cbranch_scc1 Lnopub")
    A(f"ds_read_b128 {v(P,4)}, v{VXL}\nds_read_b128 {v(P+4,4)}, v{VXL} offset:16")
    A(f"v_mov_b32 v133, s{S_TAG}\nv_mov_b32 v135, s{S_TAG}\ns_waitcnt lgkmcnt(0)")
    A(f"v_pk_add_f32 {v(P,2)}, {v(P,2)}, {v(P+2,2)}\nv_pk_add_f32 {v(P+4,2)}, {v(P+4,2)}, {v(P+6,2)}")
    A(f"v_add_f32 v132, v{P}, v{P+4}\nv_add_f32 v134, v{P+1}, v{P+5}")
    if OPT.get("fl", 1):
        A(f"v_and_b32 v{P}, 0x70, v{VDMA}\nbuffer_store_dwordx4 v[132:135], v{P}, s[{SWS}:{SWS+3}], s56 offen sc1")
    else:
        A(f"buffer_store_dwordx4 v[132:135], v{V63}, s[{SWS}:{SWS+3}], s56 offen sc1")
    A("Lnopub:")
    st.mark(A, "pub")
    A(f"s_mul_i32 s{S_POLL}, s{S_GRP}, {GRPS}\ns_add_u32 s{S_POLL}, s{S_POLL}, s59\ns_add_u32 s{S_POLL}, s{S_POLL}, {STAT:#x}")
    A(f"v_cmp_gt_u32 vcc, 32, v0\nv_mov_b32 v{P}, {OOB:#x}\nv_lshlrev_b32 v{VPOLL}, 7, v0\nv_cndmask_b32 v{VPOLL}, v{P}, v{VPOLL}, vcc")
    A(f"s_cmp_lg_u32 s{S_IT}, 0\ns_cbranch_scc1 Ljob")
    if wk == 9:
        A("\n".join(w1l[sum(wsp[:4]):]) + "\n" + nextw)
        if OPT.get("ft", 3) == 2:
            ftouch(); nlate = 1
    A(f"global_load_dwordx4 {v(GR,4)}, v237, s[8:9]\nglobal_load_dwordx4 {v(BR,4)}, v237, s[10:11]")
    if xf:
        side_work()
    A(f"s_cmp_eq_u32 s{S_W}, 3\ns_cselect_b32 s56, s{S_E2}, {OOB:#x}")
    A(f"buffer_store_dwordx2 v[36:37], v35, s[{SWS}:{SWS+3}], s56 offen sc1")
    if wk == 9 and wsp[4]:
        A(f"s_waitcnt vmcnt({3 + nlate})\ns_barrier")
    else:
        A(f"s_cmp_eq_u32 s{S_W}, 0\ns_cbranch_scc1 Lw3\ns_waitcnt vmcnt({3 + nlate})\nLw3:\ns_waitcnt vmcnt({4 + nlate})\ns_barrier")
    A("Ljob:")
    st.mark(A, "win")
    def totals(first):
        spin(A, "Ls", POLL4, f"v_cmp_ne_u32 vcc, s{S_TAG}, v{PLD+1}\nv_cmp_ne_u32 s[56:57], s{S_TAG}, v{PLD+3}\ns_nop 1\ns_or_b32 s56, s56, vcc_lo", first)
        wave_reduce(A, [PLD, PLD+2])
        A(f"v_mul_f32 v{PLD}, 0xb6000000, v{PLD}\nv_mul_f32 v{PLD+2}, 0x36000000, v{PLD+2}")
        A(f"v_fma_f32 v{PLD+2}, -v{PLD}, v{PLD}, v{PLD+2}\nv_max_f32 v{PLD+2}, 0, v{PLD+2}")
        A(f"v_add_f32 v{PLD+2}, 0x3727c5ac, v{PLD+2}\nv_rsq_f32 v{PLD+1}, v{PLD+2}")
        A(LANE63)
        A(f"ds_write_b64 v{VXL}, {v(PLD,2)} offset:64")
        A("s_mov_b64 exec, -1")
    jpos, late = (), []
    if OPT.get("gate", 0):
        A1, B1, KK, TT, OUT = 96, 104, 112, 8, 24

        def gate():
            A(f"s_mov_b32 s56, {NLOG2E:#x}\ns_waitcnt vmcnt(2)\ns_cmp_eq_u32 s{S_W}, 0\ns_cbranch_scc1 Lg0\ns_waitcnt vmcnt(1)\nLg0:")
            for d in range(4):
                unpack_bf16(A, GR + d, A1 + 2*d, A1 + 2*d + 1)
                unpack_bf16(A, BR + d, B1 + 2*d, B1 + 2*d + 1)
            for k in range(0, 16, 2):
                A(f"v_pk_mul_f32 {v(A1+k,2)}, {v(A1+k,2)}, s[56:57] {LO2}")
            A(f"s_cmp_lg_u32 s{S_W}, 0\ns_cbranch_scc1 Ljoin")
            totals(True)
            A("Ljoin:")
        job(A, f"s_cmp_lg_u32 s{S_W}, 0\ns_cbranch_scc1 Ljob_mid\n{POLL4}\nLjob_mid:", job_stores(), gate)
        st.mark(A, "b4")
        A(f"s_cmp_lg_u32 s{S_IT}, 0\ns_cselect_b64 vcc, -1, 0\ns_mov_b32 s56, {NLOG2E:#x}")
        A(f"v_cndmask_b32 v{KK}, v{PLD+2}, v{PLD+3}, vcc")
        A(f"v_add_u32 v{KK}, 124, v{KK}\nv_lshlrev_b32 v{KK}, 23, v{KK}\nv_mul_f32 v{KK+1}, s56, v{KK}")
        A(f"v_readfirstlane_b32 s{S_INV}, v{KK}\nv_mul_f32 v{KK}, s56, v{KK}")
    else:
        scheck = f"v_cmp_ne_u32 vcc, s{S_TAG}, v{PLD+1}\nv_cmp_ne_u32 s[58:59], s{S_TAG}, v{PLD+3}\ns_nop 1\ns_or_b32 s58, s58, vcc_lo"
        g2 = OPT.get("g2", 1)
        if g2:
            who = f"s_or_b32 s57, s{S_W}, s{S_IT}" if g2 == 1 else f"s_cmp_lg_u32 s{S_W}, 0"

            def hold():
                st.mark(A, "ja")
                A(f"{who}\ns_cbranch_scc1 Le_ok")
                spin(A, "Le", POLL4, scheck, True, 57)
                st.mark(A, "held")
            job(A, f"s_cmp_ge_u32 s{S_W}, s{S_IT}\ns_cbranch_scc1 Ljob_mid\n{POLL4}\nLjob_mid:" if g2 == 1 else "", job_stores(),
                early=(f"{who}\ns_cbranch_scc1 Ljob_e\n{POLL4}\nLjob_e:", hold))
        else:
            job(A, f"s_cmp_lg_u32 s{S_W}, 0\ns_cbranch_scc1 Ljob_mid\n{POLL4}\nLjob_mid:", job_stores())
        st.mark(A, "job0")
        A1, B1, KK, TT, OUT = 8, 16, 24, 32, 80
        pre = Asm()
        pre(f"ds_read_b64 {v(KK,2)}, v{VXL} offset:72\ns_mov_b32 s56, {NLOG2E:#x}\ns_waitcnt vmcnt(6)")
        for d in range(4):
            unpack_bf16(pre, GR + d, A1 + 2*d, A1 + 2*d + 1)
            unpack_bf16(pre, BR + d, B1 + 2*d, B1 + 2*d + 1)
        A(f"s_cmp_lg_u32 s{S_W}, 0\ns_cbranch_scc1 Ljoin")
        A(f"s_mov_b32 s58, {SPIN_MAX}\ns_waitcnt vmcnt(6)\ns_branch Ls_chk")
        spin(A, "Ls", POLL4, f"v_cmp_ne_u32 vcc, s{S_TAG}, v{PLD+1}\nv_cmp_ne_u32 s[56:57], s{S_TAG}, v{PLD+3}\ns_nop 1\ns_or_b32 s56, s56, vcc_lo", None)
        wave_reduce(A, [PLD, PLD+2])
        A(f"v_mul_f32 v{PLD}, 0xb6000000, v{PLD}\nv_mul_f32 v{PLD+2}, 0x36000000, v{PLD+2}")
        A(f"v_fma_f32 v{PLD+2}, -v{PLD}, v{PLD}, v{PLD+2}\nv_max_f32 v{PLD+2}, 0, v{PLD+2}")
        A(f"v_add_f32 v{PLD+2}, 0x3727c5ac, v{PLD+2}\nv_rsq_f32 v{PLD+1}, v{PLD+2}")
        A(LANE63)
        A(f"ds_write_b64 v{VXL}, {v(PLD,2)} offset:64")
        A("s_mov_b64 exec, -1")
        A("Ljoin:")
        A("\n".join(pre.L))
        A(f"s_cmp_lg_u32 s{S_IT}, 0\ns_cselect_b64 vcc, -1, 0\ns_waitcnt lgkmcnt(0)\ns_barrier")
        st.mark(A, "b4")
        A(f"ds_read_b64 {v(PLD,2)}, v{VXL} offset:64")
        jpos = OPT.get("jpos", (-1, -1, 0, 0, 1, 1)) if OPT["jst"] == 2 else ()
        late = list(zip(jpos, job_stores()))
        if late:
            A(late.pop(0)[1])
        A(f"v_cndmask_b32 v{KK}, v{KK}, v{KK+1}, vcc")
        A(f"v_add_u32 v{KK}, 124, v{KK}\nv_lshlrev_b32 v{KK}, 23, v{KK}")
        for k in range(0, 16, 2):
            A(f"v_pk_mul_f32 {v(A1+k,2)}, {v(A1+k,2)}, s[56:57] {LO2}")
        A(f"v_readfirstlane_b32 s{S_INV}, v{KK}\nv_mul_f32 v{KK+1}, s56, v{KK}\nv_mul_f32 v{KK}, s56, v{KK}")
        while late and late[0][0] < 0:
            A(late.pop(0)[1])
        A("s_waitcnt lgkmcnt(0)")
        st.mark(A, "tot")
    for k in range(0, 8, 2):
        A(f"v_pk_mul_f32 {v(A1+k,2)}, {v(A1+k,2)}, {v(PLD,2)} {HI2}")
    for k in range(0, 8, 2):
        A(f"v_pk_fma_f32 {v(B1+k,2)}, {v(A1+k,2)}, {v(PLD,2)}, {v(B1+k,2)} {LO3}")
    A(f"v_mov_b32 v{VT}, s{S_TAG}\nv_mov_b32 v{VT+1}, s{S_TAG}")
    A(f"s_lshl_b32 s59, s{S_IT}, 16\ns_add_u32 s57, s59, s{S_SLOT}\ns_lshl_b32 s56, s{S_W}, 4\ns_add_u32 s56, s56, s57\ns_add_u32 s{S_E2}, s56, {UF:#x}")
    uflag = (f"v_mov_b32 v{BR}, s{S_TAG}\nv_mov_b32 v{BR+1}, s{S_TAG}\nv_mov_b32 v{BR+2}, s{S_WS}\ns_waitcnt vmcnt(%d)\n"
             f"buffer_store_dwordx4 {v(BR,4)}, v{V63}, s[{SWS}:{SWS+3}], s{S_E2} offen sc1")
    ufp = OPT.get("ufp", 3)
    for p in range(8):
        o = OUT + 4*p
        B = Asm()
        silu(B, H + p*8, A1, B1, KK, TT + 8*(p & 1), o)
        weave(A, B.L, [t for q, t in late if q == p] or [""], 8, 32)
        A(f"buffer_store_dwordx4 {v(o,4)}, v{VD}, s[{SWS}:{SWS+3}], s{S_RA + (p >> 2)} offen offset:{256*(p & 3)} sc1")
        if p == ufp:
            A(uflag % (ufp + 1 - max((0,) + jpos)))
    st.mark(A, "silu")
    VUP, S_UP = 239, S_RET
    A(f"v_lshrrev_b32 v8, 2, v0\nv_lshlrev_b32 v8, 8, v8\nv_and_b32 v9, 3, v0\nv_lshl_add_u32 v{VUP}, v9, 4, v8")
    A(f"s_mul_i32 s{S_UP}, s{S_NB}, {GRPS}\ns_lshr_b32 s56, s{S_W}, 1\ns_lshl_b32 s56, s56, 7\ns_add_u32 s{S_UP}, s{S_UP}, s56")
    A(f"s_add_u32 s{S_UP}, s{S_UP}, s59\ns_add_u32 s{S_UP}, s{S_UP}, {UF:#x}")
    A(f"s_add_u32 s57, s57, {DF:#x}")
    A(f"s_mul_i32 s{S_U0}, s{S_NB}, {US}\ns_mul_i32 s56, s{S_W}, 12288\ns_add_u32 s{S_U0}, s{S_U0}, s56")
    A(f"s_mul_i32 s56, s{S_IT}, {U2-U1}\ns_add_u32 s{S_U0}, s{S_U0}, s56")
    A(f"s_add_u32 s{S_U0}, s{S_U0}, {U1:#x}\ns_add_u32 s{S_U1}, s{S_U0}, 4096\ns_add_u32 s{S_U2}, s{S_U0}, 8192")
    A(f"s_mul_i32 s{S_DMA}, s{S_W}, {OS}\ns_lshl_b32 s56, s{S_RB}, 12\ns_add_u32 s{S_DMA}, s{S_DMA}, s56")
    A(f"v_lshrrev_b32 v8, 3, v0\nv_min_u32 v8, 2, v8\nv_add_u32 v8, s{S_RB}, v8\nv_add_u32 v8, -1, v8\nv_med3_i32 v8, v8, 0, 15")
    A(f"v_and_b32 v9, 1, v0\nv_lshl_add_u32 v8, v8, 1, v9\nv_lshlrev_b32 v8, 7, v8")
    A(f"v_bfe_u32 v9, v0, 1, 2\nv_mul_u32_u24 v9, {GRPS}, v9\nv_add_u32 v{VPOLL}, v8, v9")
    A(f"s_mul_i32 s{S_POLL}, s{S_B}, {4*GRPS}\ns_add_u32 s{S_POLL}, s{S_POLL}, s59\ns_add_u32 s{S_POLL}, s{S_POLL}, {DF:#x}")
    upoll = f"buffer_load_dwordx2 {v(GR,2)}, v{VUP}, s[{SWS}:{SWS+3}], s{S_UP} offen sc1"
    ucheck = f"v_cmp_ne_u32 vcc, s{S_TAG}, v{GR}\nv_cmp_ne_u32 s[56:57], s{S_TAG}, v{GR+1}\ns_nop 1\ns_or_b64 s[56:57], s[56:57], vcc"
    dflag = f"buffer_store_dwordx2 {v(VT,2)}, v{V63}, s[{SWS}:{SWS+3}], s57 offen sc1"
    zero = [f"v_accvgpr_write_b32 a{i}, 0" for i in range(256)]
    nz1 = OPT.get("nz1", 160)
    Q0, Q1 = Seq(), Seq()

    def ulist(Q, kj):
        L = []
        for k, j in kj:
            for nu in range(4):
                u_load(Q, k, j, nu)
                L.append(Seq.text(Q.take()))
        return L

    def dma_list(Q, k):
        L = []
        for p in range(6):
            if p in (0, 4):
                dma_m0(Q, k, p >> 2); Q.raw("s_nop 0")
            dma(Q, k, p)
            L.append(Seq.text(Q.take()))
        return L
    Q = Q1
    nz1 = OPT.get("nz1", 160)
    weave(A, zero[:nz1], [upoll], OPT.get("nz0", 100))
    A("s_waitcnt vmcnt(1)\ns_barrier")
    st.mark(A, "b5")
    A(f"s_cmp_lg_u32 s{S_W}, 0\ns_cbranch_scc1 Lnodf")
    A(f"{dflag}\nLnodf:")
    A("\n".join(zero[nz1:]))
    A(f"s_mov_b32 s58, {SPIN_MAX}\ns_waitcnt vmcnt(1)\ns_cmp_eq_u32 s{S_W}, 0\ns_cbranch_scc1 Lu_chk\ns_branch Lu_wait")
    spin(A, "Lu", upoll, ucheck, None)
    st.mark(A, "uok")
    ul = ulist(Q, ((0, 0), (0, 1), (0, 2), (1, 0)))
    dchk = lambda r: f"v_cmp_ne_u32 vcc, s{S_TAG}, v{r}\nv_cmp_ne_u32 s[56:57], s{S_TAG}, v{r+1}\ns_nop 1\ns_or_b64 s[56:57], s[56:57], vcc"
    dpol = lambda r: f"buffer_load_dwordx2 {v(r,2)}, v{VPOLL}, s[{SWS}:{SWS+3}], s{S_POLL} offen sc1"
    pp = OPT.get("pp", (4, 16))
    A(f"s_cmp_lg_u32 s{S_W}, 0\ns_cbranch_scc0 Lw0")
    A("\n".join(ul) + "\ns_branch Ld_ok\nLw0:")
    for i in range(17):
        if i in pp:
            A(dpol(8 + 2*pp.index(i)))
        if i < 16:
            A(ul[i])
    A(f"s_mov_b32 s58, {SPIN_MAX}")
    for n, i in enumerate(pp):
        A(f"s_waitcnt vmcnt({16 - i + len(pp) - 1 - n})\n{dchk(8 + 2*n)}\ns_cbranch_scc0 Ld_ok")
    spin(A, "Ld", dpol(8), dchk(8), None)
    A("s_barrier")
    st.mark(A, "b6")
    A("\n".join(dma_list(Q, 0) + dma_list(Q, 1)))
    A(f"s_xor_b32 s{S_M0}, s{S_M0}, 0x10000\ns_mov_b32 s{S_CNT}, 7")
    d2 = dma_list(Q, 2)
    nd2 = OPT.get("nd2", 2)
    A("\n".join(d2[:nd2]))
    A(f"s_lshl_b32 s56, s{S_W}, 5\nv_and_b32 v8, 31, v0\nv_add_u32 v8, s56, v8")
    gen.code_touch(A, "Ltail", "Lcode_end", 8, 234, "Lpc2", 56)
    if OPT.get("l2pf", 0):
        first = OPT.get("l2first", 4)
        A(f"s_and_b32 s56, s{S_IDX}, 1\ns_lshl_b32 s56, s56, 2\ns_add_u32 s56, s56, s{S_W}\ns_lshl_b32 s57, s{S_B}, 6\ns_add_u32 s56, s56, s57")
        A(f"s_mul_i32 s56, s56, {OS}\ns_lshl_b32 s57, s{S_RB}, 12\ns_add_u32 s56, s56, s57")
        A(f"s_mul_i32 s57, s{S_IT}, {D2-D1}\ns_add_u32 s56, s56, s57\ns_add_u32 s56, s56, {D1 + first*4*OS}")
        A(f"s_lshl_b32 s57, s{S_RB}, 2\ns_add_u32 s57, s57, s{S_W}\ns_mul_i32 s57, s57, 1536\ns_mul_i32 s58, s{S_NB}, 786432\ns_add_u32 s57, s57, s58")
        A(f"s_lshl_b32 s58, s{S_IT}, 23\ns_add_u32 s57, s57, s58\ns_add_u32 s57, s57, {U1 + first*49152 - 4096}")
        A(f"v_cmp_gt_u32 vcc, 32, v0\nv_mov_b32 v8, s57\nv_mov_b32 v9, s56\nv_min_u32 v10, 43, v0\nv_cndmask_b32 v8, v8, v9, vcc")
        if OPT.get("l2u", 1):
            A("v_mov_b32 v8, s57\nv_max_u32 v10, 32, v10\ns_mov_b64 vcc, 0")
        A(f"v_lshl_add_u32 v232, v10, 7, v8\nv_mov_b32 v8, {2*49152}\nv_mov_b32 v9, {8*OS}\nv_cndmask_b32 v233, v8, v9, vcc")
    A(f"s_waitcnt vmcnt({6 + nd2})\ns_barrier")
    st.mark(A, "b7")
    for par in range(2):
        for tb in range(4):
            raw_read(Q, 0, par, tb, 0); raw_read(Q, 0, par, tb, 1)
    for par in range(2):
        for tb in range(4):
            Q.wait(lg=[("rd", 0, par, tb)])
            for d in range(4):
                h_op(Q, 0, par, tb, d)
    main = Seq.text(Q.take()).split("\n")
    weave(A, main, d2[nd2:] + ulist(Q, ((1, 1),)), 12)
    l2 = OPT.get("l2pf", 0)
    pfl = f"buffer_load_dword v{VT+1}, v232, s[{SWS}:{SWS+3}], %s offen sc1"
    pfa = "v_add_u32 v232, v232, v233"
    Q.wait(vm=[("raw", 1)])
    A(Seq.text(Q.take()))
    if l2:
        for _ in range((l2 - OPT.get("l2first", 4))//2):
            A(pfl % "0" + "\n" + pfa)
    if OPT.get("sched", 1):
        A(f"s_mov_b32 s{S_USTEP}, 49152\ns_sub_u32 s{S_U1}, s{S_U1}, 49152")
    A(f"s_cmp_eq_u32 s{S_IT}, 0\ns_cbranch_scc1 Lgo")
    A(f"s_cmp_lg_u32 s2, 2\ns_cbranch_scc1 Lgo\ns_cmp_lg_u32 s{S_W}, 0\ns_cbranch_scc1 Lgo")
    A(f"buffer_store_dword v{VT}, v{V63}, s[{SWS}:{SWS+3}], 0 offen offset:{GEN} sc1")
    A("Lgo:")
    st.mark(A, "loop")
    bodies = []
    for Q in (Q1,):
        for n in range(7):
            ex = None
            if l2:
                g = OPT.get("l2gap", 56)
                ex = {g - 2: [lambda: Q.raw(f"s_cmp_gt_u32 s{S_CNT}, {l2//2 - 1}")], g - 1: [lambda: Q.raw(f"s_cselect_b32 s56, 0, {OOB:#x}")],
                      g: [lambda: Q.vmem(pfl % "s56", "pf")], g + 2: [lambda: Q.raw(pfa)]}
            step(Q, 2*n, None, ex)
            step(Q, 2*n + 1, None, {61: [lambda: Q.raw(f"s_sub_u32 s{S_CNT}, s{S_CNT}, 1")],
                                    62: [lambda: Q.raw(f"s_cmp_gt_u32 s{S_CNT}, 1")],
                                    63: [lambda: Q.raw("s_cbranch_scc1 Lloop")]})
            bodies.append(Q.take())
    A(".p2align 6\nLloop:")
    A(Seq.text(merge(bodies)))
    A(f"s_cmp_eq_u32 s{S_CNT}, 0\ns_cbranch_scc1 Ltail\nglobal_load_dword v{VT+1}, v[234:235], off\ns_branch Lloop\nLtail:")
    st.mark(A, "l14")
    gm = {9: 15, 11: 18, 17: 22, 19: 25, 22: 29, 26: 32, 33: 36, 35: 39, 38: 43, 42: 46, 49: 53, 63: 63}
    remap = lambda ex: {gm[g]: f for g, f in ex.items()} if OPT.get("sched", 1) else ex
    R = lambda t: [lambda: Q.raw(t)]
    M = lambda t: [lambda: Q.vmem(t, "ep")]
    sc_ld = [f"buffer_load_dword v{SCR+h}, v{VT}, s[{SWS}:{SWS+3}], s56 offen offset:{8 + 256*h} sc1" for h in range(2)]
    em_ld = [f"buffer_load_dwordx4 {v(EMR+4*h,4)}, v{VPOLL}, s[{SWS}:{SWS+3}], s57 offen offset:{16*h} sc1" for h in range(2)]
    gb_ld = [f"global_load_dwordx4 {v(GR,4)}, v237, s[16:17]", f"global_load_dwordx4 {v(BR,4)}, v237, s[18:19]"]
    unscale = f"v_pk_mul_f32 {v(SCR,2)}, {v(SCR,2)}, s[{S_ASC}:{S_INV}] op_sel:[0,1] op_sel_hi:[1,1]"
    red = [f"v_add_f32_dpp v{EMR+k}, v{EMR+k}, v{EMR+k} row_ror:{sh} row_mask:0xf bank_mask:0xf" for sh in (8, 4, 2, 1) for k in range(8)]
    wl = w_loads(WLDS, 58, 59)
    ex = {9: R(f"v_and_b32 v{VT}, 127, v237\nv_lshlrev_b32 v239, 1, v{VT}\nv_lshlrev_b32 v{VT}, 5, v{VT}"),
          11: M(wl[0]),
          17: R(f"s_mul_i32 s56, s{S_NB}, {GRPS}\ns_lshl_b32 s57, s{S_IT}, 16\ns_add_u32 s56, s56, s57\ns_add_u32 s56, s56, {UF:#x}"),
          19: R(f"s_lshl_b32 s57, s{S_B}, 3\ns_add_u32 s57, s57, s{S_NB}\ns_lshl_b32 s57, s57, 12\ns_add_u32 s57, s57, {EMBP:#x}"),
          22: R(f"v_and_b32 v{VPOLL}, 15, v0\nv_lshl_add_u32 v{VPOLL}, v{VPOLL}, 8, v239"),
          26: M(wl[1]),
          33: M(em_ld[0]), 35: M(em_ld[1]), 38: M(sc_ld[0]), 42: [lambda: Q.vmem(sc_ld[1], "sc")],
          49: M(wl[2]), 63: M(wl[3])}
    step(Q, 14, remap(ex))
    ex = {2: M(gb_ld[0]), 9: M(wl[4]), 5: M(gb_ld[1]), 22: M(wl[5]),
          33: M(wl[6]), 42: M(wl[7]), 55: M(wl[8]),
          39: [lambda: Q.wait(vm=["sc"]), lambda: Q.raw(unscale)]}
    slots = [43, 46, 49, 50, 51, 52, 53, 54, 56, 57, 58, 59, 60, 61, 62, 63]
    for i, g in enumerate(slots):
        ex[g] = R("\n".join(red[2*i:2*i + 2]))
    step(Q, 15, ex)
    A(Seq.text(Q.take()))
    A("Lepi:")
    st.mark(A, "end")
    RB_, ZB = [8, 40], [72, 88]
    XB = [8, 20, 72, 84]
    LO, HI = LO3, HI3
    ag, bb = f"s[{S_AG}:{S_AG+1}]", f"s[{S_BB}:{S_BB+1}]"
    XF, OUT = 40, 104
    for nul in range(2):
        stream, ready = [], []
        for n, phi in enumerate((2, 1, 3, 0)):
            sg, nup = phi >> 1, phi & 1
            nu = 2*nup + nul
            Rr = RB_[n & 1]
            Z = (lambda q, zb=ZB[n & 1]: zb + 4*q) if phi else (lambda q: H + q*8 + nul*4)
            m = lambda j, be, r=0: Rr + j*8 + be*4 + r
            E = stream.append

            def rdacc(*jb):
                for j, be in jb:
                    for r in range(4):
                        E(f"v_accvgpr_read_b32 v{m(j,be,r)}, a{j*64 + nu*16 + (2*sg + be)*4 + r}")

            def pk(q, x, y, neg, first=False):
                for r in (0, 2):
                    E(f"v_pk_add_f32 {v(Z(q)+r,2)}, {v((x if first else Z(q))+r,2)}, {v(y+r,2)} {NEG1 if neg else ''}")

            def done(q):
                if phi:
                    ready.append((len(stream), f"ds_write_b128 v{VW[phi]}, {v(Z(q),4)} offset:{(nul*4 + q)*1024}"))
            rdacc((0, 0), (0, 1), (1, 0), (2, 0))
            if n == 2:
                E("@war")
            pk(1, m(1,0), m(2,0), 0, True); pk(0, m(1,0), m(2,0), 1, True)
            pk(1, None, m(0,0), 1); pk(1, None, m(0,1), 0); done(1)
            rdacc((3, 1), (3, 0))
            for r in range(4):
                E(f"v_add_f32_dpp v{Z(0)+r}, v{m(3,1,r)}, v{Z(0)+r} row_shr:1 row_mask:0xf bank_mask:0xf bound_ctrl:1")
            pk(0, None, m(3,0), 1)
            done(0)
            rdacc((1, 1), (2, 1))
            pk(2, m(1,1), m(2,1), 1, True); pk(3, m(1,1), m(2,1), 0, True)
            pk(2, None, m(3,1), 1); pk(2, None, m(3,0), 0); done(2)
            for r in range(4):
                E(f"v_add_f32_dpp v{Z(3)+r}, v{m(0,0,r)}, v{Z(3)+r} row_shl:1 row_mask:0xf bank_mask:0xf bound_ctrl:1")
            pk(3, None, m(0,1), 1)
            done(3)
        where, last = {}, -99
        for pos, t in ready:
            last = max(pos, last + OPT.get("wgap", 13))
            where[last] = t
        bpos = last + OPT.get("bgap", 14)
        nw = 0
        rds = [f"ds_read_b128 {v(XB[q] + 4*k, 4)}, v{VR[k]} offset:{(nul*4 + q)*1024}" for q in range(4) for k in range(3)]
        for i, t in enumerate(stream):
            if i in where:
                A(where[i]); nw += 1
            if i == bpos:
                A("s_waitcnt lgkmcnt(0)\ns_barrier")
            if i >= bpos and (i - bpos) % OPT.get("rgap", 6) == 0 and rds:
                for _ in range(OPT.get("rnum", 3)):
                    A(rds.pop(0))
            A(f"s_waitcnt lgkmcnt({nw - 4})" if t == "@war" else t)
        assert nw == 12 and 181 <= bpos and not rds
        if OPT.get("hc4", 1):
            A(f"s_cmp_eq_u32 s{S_EX}, 0\ns_cbranch_scc1 Lhc{nul}")
            for var in range(2):
                for q in range(4):
                    if q in (0, 2):
                        A(f"s_waitcnt lgkmcnt({6 - 3*q})")
                    x = XB[q]
                    ha, hb = H + q*8 + nul*4, H + 32 + q*8 + nul*4
                    for r in (0, 2):
                        A(f"v_pk_fma_f32 {v(hb+r,2)}, {v(x+4+r,2)}, {ag}, {v(x+8+r,2)} {HI}")
                    for r in (0, 2):
                        A(f"v_pk_fma_f32 {v(x+4+r,2)}, {v(x+4+r,2)}, {ag}, {v(x+r,2)} {LO}")
                    for r in (0, 2):
                        A(f"v_pk_add_f32 {v(hb+r,2)}, {v(hb+r,2)}, {v(x+r,2)}" if var else
                          f"v_pk_fma_f32 {v(hb+r,2)}, {v(ha+r,2)}, {bb}, {v(hb+r,2)} {HI}")
                    for r in (0, 2):
                        A(f"v_pk_add_f32 {v(ha+r,2)}, {v(ha+r,2)}, {v(x+4+r,2)}")
                A(f"Lhd{nul}:" if var else f"s_branch Lhd{nul}\nLhc{nul}:")
        else:
            for q in range(4):
                if q in (0, 2):
                    A(f"s_waitcnt lgkmcnt({6 - 3*q})")
                x = XB[q]
                ha, hb = H + q*8 + nul*4, H + 32 + q*8 + nul*4
                for r in (0, 2):
                    A(f"v_pk_fma_f32 {v(hb+r,2)}, {v(x+4+r,2)}, {ag}, {v(x+8+r,2)} {HI}")
                for r in (0, 2):
                    A(f"v_pk_fma_f32 {v(x+4+r,2)}, {v(x+4+r,2)}, {ag}, {v(x+r,2)} {LO}")
                for r in (0, 2):
                    A(f"v_pk_fma_f32 {v(hb+r,2)}, {v(x+r,2)}, {bb}, {v(hb+r,2)} {LO}")
                for r in (0, 2):
                    A(f"v_pk_fma_f32 {v(hb+r,2)}, {v(ha+r,2)}, {bb}, {v(hb+r,2)} {HI}")
                for r in (0, 2):
                    A(f"v_pk_add_f32 {v(ha+r,2)}, {v(ha+r,2)}, {v(x+4+r,2)}")
        if nul:
            st.mark(A, "hh")
        sel = HI if nul else LO
        A(f"s_cmp_lg_u32 s{S_IT}, 0\ns_cbranch_scc1 Lfinal{nul}")
        for p0 in range(0, 8, 2):
            xs = [(H + p*8 + k, k) for p in (p0, p0 + 1) for k in (4*nul, 4*nul + 2)]
            for x, k in xs:
                A(f"v_pk_fma_f32 {v(x,2)}, {v(x,2)}, {v(SCR,2)}, {v(EMR+k,2)} {sel}")
            for i, (x, k) in enumerate(xs):
                sums(A, x, P + (k & 2), nul == 0 and p0 == 0 and i < 2)
        if nul == 0:
            A("s_branch Lhalf")
        else:
            st.flush(A, 0, 7)
            st.mark(A, "start")
            A(f"s_mov_b32 s{S_IT}, 1\ns_mov_b32 s{SO+2}, 0")
            A(f"s_add_u32 s{S_RA}, s{S_RA}, {D2-D1:#x}\ns_add_u32 s{S_RB2}, s{S_RB2}, {D2-D1:#x}")
            A(f"s_add_u32 s{SD}, s{SD}, {D2-D1:#x}\ns_addc_u32 s{SD+1}, s{SD+1}, 0")
            A("s_branch Lstats")
        A(f"Lfinal{nul}:")
        if nul == 0:
            A(f"s_mov_b32 s{SO}, s22\ns_mov_b32 s{SO+1}, s23\ns_mov_b32 s{SO+2}, 0x800000\ns_waitcnt vmcnt(0)")
            if OPT.get("wide", 0):
                A(f"s_mov_b32 vcc_lo, 0xaaaaaaaa\ns_mov_b32 vcc_hi, 0xaaaaaaaa\nv_add_u32 v{VX+1}, -8, v{VX+1}\nv_cndmask_b32 v{VX}, v{VX}, v{VX+1}, vcc")
        for k in (4*nul, 4*nul + 2):
            xf = lambda p, kk: XF + p*4 + (kk & 3)
            for rho in range(2):
                for kk in (k, k+1):
                    r = XR + (rho*8 + kk)*2
                    unpack_bf16(A, r, xf(rho*4, kk), xf(rho*4 + 1, kk))
                    unpack_bf16(A, r+1, xf(rho*4 + 2, kk), xf(rho*4 + 3, kk))
            for p in range(8):
                x = H + p*8 + k
                A(f"v_pk_fma_f32 {v(x,2)}, {v(x,2)}, {v(SCR,2)}, {v(xf(p, k),2)} {sel}")
            if OPT.get("wide", 0):
                t = XF + (k & 2)
                cv = lambda kk, rho, d: XF + (kk & 1)*16 + rho*8 + d*4 + (k & 2)
                for kk in (k, k+1):
                    for rho in range(2):
                        h = H + rho*32 + kk
                        A(f"v_cvt_pk_bf16_f32 v{cv(kk,rho,0)}, v{h}, v{h+8}\nv_cvt_pk_bf16_f32 v{cv(kk,rho,1)}, v{h+16}, v{h+24}")
                for half in range(2):
                    A("s_not_b64 vcc, vcc")
                    for kk in (k, k+1):
                        for d in range(2):
                            A(f"v_cndmask_b32_dpp v{OUT + kk*4 + 2*half + d}, v{cv(kk,1-half,d)}, v{cv(kk,half,d)}, vcc quad_perm:[1,0,3,2] row_mask:0xf bank_mask:0xf")
                for kk in (k, k+1):
                    A(f"buffer_store_dwordx4 {v(OUT + kk*4,4)}, v{VX}, s[{SO}:{SO+3}], s{S_XO} offen {OPT['sto']}")
                    A(f"s_add_u32 s{S_XO}, s{S_XO}, 8192")
                continue
            for kk in (k, k+1):
                for rho in range(2):
                    o = OUT + (rho*8 + kk)*2
                    h = H + rho*32 + kk
                    A(f"v_cvt_pk_bf16_f32 v{o}, v{h}, v{h+8}")
                    A(f"v_cvt_pk_bf16_f32 v{o+1}, v{h+16}, v{h+24}")
                    A(f"buffer_store_dwordx2 {v(o,2)}, v{VX+rho}, s[{SO}:{SO+3}], s{S_XO} offen {OPT['sto']}")
                A(f"s_add_u32 s{S_XO}, s{S_XO}, 8192")
        if nul == 0:
            A("Lhalf:")
    if stamps:
        A("s_waitcnt vmcnt(0)")
        A("s_memrealtime s[20:21]\ns_memtime s[22:23]\ns_waitcnt lgkmcnt(0)")
        st.flush(A, 1, 7)
        A("s_mov_b32 s72, s20\ns_mov_b32 s74, s22")
        st.flush(A, 2, 1)
    A("Lexit:\ns_endpgm")
    A("Lcode_end:")
    descriptor(A, NAME, 512, 256)
    return A


HEAD = """; ADM ResBlock: GN+SiLU -> conv3x3 -> +emb -> GN+SiLU -> conv3x3 -> +x   (B=2, C=512, 64x64, bf16 in / out)
;
;   convolution -> output transform -> H           (after round 1: out = H + x, x stays in registers)
; from max(|gamma|,|beta|), that are undone after the convolution, so no value range is assumed.
%s
.amdgcn_target "amdgcn-amd-amdhsa--gfx950"
"""

if __name__ == "__main__":
    for a in sys.argv[2:]:
        if "=" in a:
            k, val = a.split("=")
            OPT[k] = int(val) if val.lstrip("-").isdigit() else (eval(val) if val.startswith("(") else val.replace("+", " "))
    D1 += OPT.get("base", 0) << 20; D2 += (OPT.get("base", 0) + OPT.get("d2", 0)) << 20
    U1 += OPT.get("base", 0) << 20; U2 += OPT.get("base", 0) << 20
    if OPT.get("same", 0) & 1:
        D2 = D1
    if OPT.get("same", 0) & 2:
        U2 = U1
    stamps = "stamps" in sys.argv[2:]
    launch = "; @launch " + (f"kernel={NAME} " if "list" in sys.argv[2:] else "") + "grid=(256,1,1) block=(256,1,1) lds=152064"
    text = HEAD % launch + kernel(stamps).text()
    open(sys.argv[1], "w").write(align_pass(text) if OPT["align"] else text)
```

```python
import sys
sys.path.insert(0, "tools")
import gen
from gen import (Asm, v, acc, NEG1, srd, wave_reduce, header, descriptor, gn_coeffs, silu8, unpack_bf16, trim,
                 align_pass, OPT, OOB, NLOG2E, SPIN_MAX, TAGSTEP, S_MASK, WS_BYTES, WROW, STAMP,
                 SLOT, VDMA, VDMA2, VTOP, VBOT, VU, VA, VB, VA1, VB1, WLDS, XLDS, C, PP, TMP, UU,
                 SWS, SD, SX, SO, S_W, S_DMA, S_M0, S_U0, S_U1, S_U2, S_SGN, S_CNT, S_GRP, S_IDX, S_B, S_NB, S_RB,
                 u_load, dma_m0, dma, raw_read, h_op, D1, D2, U1, U2, SC1, SC2)

NAME = "standalone__adm_resblock__diffusion_kernel"
GEN, EMBP = 0x0, 0x10000
STAT, UF, DF = 0x40000, 0x60000, 0x80000
GRPS = 4352
OS, US = 65536 + 256, 786432 + 4096
D1 = 0x100000
D2 = D1 + 128*OS
U1 = D2 + 128*OS
U2 = U1 + 8*US
OPT.update(tlb=0, g2=0, ldx="nt", ldw="nt", jst=1, wpos=(2, 8, 14, 20), ldu="sc1", ldd="sc1", trimU=3, trimD=3, pf=1, delay=0, delayd=6, slp=0)

S_IT, S_TAG, S_ASC, S_INV, S_WS, S_E2, S_RA, S_RB2, S_J0, S_J1, S_OQ = 60, 61, 62, 63, 64, 65, 66, 67, 68, 69, 71
S_RET, S_POLL, S_SLOT, S_XO, S_USTEP, S_EX = 24, 25, 12, 13, 101, 4
S_AG, S_BB = 6, 14
VW, VR = (None, 240, 241, 242), (243, 244, 245)
VD, VX, V63, VXL, VPOLL, VT = 246, 247, 249, 250, 251, 252
H, XR, SCR, EMR, GR, BR, PLD, VS, VJ = 136, 200, 232, 104, 124, 128, 232, 236, 238

LANE63 = "s_mov_b32 exec_lo, 0\ns_mov_b32 exec_hi, 0x80000000"


class Seq(gen.Seq):
    def wait(self, vm=(), lg=()):
        a = [n for n in (self._n(self.vm, t) for t in vm) if n is not None]
        b = [n for n in (self._n(self.lg, t) for t in lg) if n is not None]
        self.out.append(("wait", min(a) if a else None, min(b) if b else None))

    @staticmethod
    def text(out):
        L = []
        for x in out:
            if isinstance(x, tuple):
                p = ([f"vmcnt({x[1]})"] if x[1] is not None else []) + ([f"lgkmcnt({x[2]})"] if x[2] is not None else [])
                assert (x[1] or 0) < 64 and (x[2] or 0) < 16
                if p:
                    L.append("s_waitcnt " + " ".join(p))
            else:
                L.append(x)
        return "\n".join(L)

    def take(self):
        o, self.out = self.out, []
        return o


def merge(bodies):
    res = []
    for items in zip(*bodies):
        if isinstance(items[0], tuple):
            f = lambda i: min([x[i] for x in items if x[i] is not None], default=None)
            res.append(("wait", f(1), f(2)))
            if res[-1] != bodies[3][len(res) - 1]:
                print("note: wait tightened", res[-1], items, file=sys.stderr)
        else:
            assert all(x == items[0] for x in items), items
            res.append(items[0])
    return res


class Stamps:
    def __init__(self, on):
        self.on = on

    def mark(self, A, name, wait=True):
        sel = OPT.get("marks", "start,pub,tot,silu,loop,end,hh").split(",")
        if self.on and name in sel:
            i = sel.index(name)
            A(f"s_memrealtime s[{72+4*i}:{73+4*i}]\ns_memtime s[{74+4*i}:{75+4*i}]")
            if wait:
                A("s_waitcnt lgkmcnt(0)")

    def flush(self, A, kid, n):
        if self.on:
            A(f"s_lshl_b32 s100, s2, 2\ns_add_u32 s100, s100, s{S_W}\ns_lshl_b32 s100, s100, 6")
            A(f"s_add_u32 s100, s100, {STAMP + kid*0x20000:#x}")
            for i in range(n):
                A(f"v_mov_b32 v{VT}, s{72+4*i}\nv_mov_b32 v{VT+1}, s{74+4*i}")
                A(f"buffer_store_dwordx2 {v(VT,2)}, v{V63}, s[{SWS}:{SWS+3}], s100 offen offset:{8*i}")
                A("s_nop 1")


def weave(A, main, side, first=0, last=None):
    last = len(main) if last is None else last
    pos = {}
    for i, t in enumerate(side):
        pos.setdefault(first + (i*(last - first))//len(side), []).append(t)
    for i, m in enumerate(main):
        for t in pos.get(i, []):
            A(t)
        A(m)


def w_loads(base, so, sm):
    ld = []
    for k in range(9):
        t = ""
        if k == 0:
            t = (f"s_mul_i32 s{sm}, s{S_W}, {WROW}\ns_add_u32 m0, s{sm}, {base}\n"
                 f"s_lshl_b32 s{so}, s{S_OQ}, 2\ns_add_u32 s{so}, s{so}, s{S_W}\ns_mul_i32 s{so}, s{so}, 9216\n")
        elif k in (4, 8):
            t = f"s_add_u32 m0, s{sm}, {base + 1024*k}\ns_add_u32 s{so}, s{so}, 4096\n"
        ld.append(t + f"buffer_load_dwordx4 v{VDMA}, s[{SO}:{SO+3}], s{so} offen offset:{1024*(k & 3)} {OPT.get('ldw', '')} lds")
    return ld


def spin(A, L, load, check, first_in_flight=False, c=58):
    if first_in_flight is not None:
        A(f"s_mov_b32 s{c}, {SPIN_MAX}")
    if first_in_flight:
        A(f"s_branch {L}_wait")
    A(f"{L}_poll:\n{load}\n{L}_wait:\ns_waitcnt vmcnt(0)\n{L}_chk:")
    A(check)
    A(f"s_cbranch_scc0 {L}_ok")
    if OPT["slp"]:
        A(f"s_sleep {OPT['slp']}")
    A(f"s_sub_u32 s{c}, s{c}, 1\ns_cmp_lg_u32 s{c}, 0\ns_cbranch_scc1 {L}_poll")
    A(f"{L}_ok:")


POLL4 = f"buffer_load_dwordx4 {v(PLD,4)}, v{VPOLL}, s[{SWS}:{SWS+3}], s{S_POLL} offen sc1"


JG, JM, JRW, JOUT = 8, 80, 80, 56
LO2, HI2 = "op_sel_hi:[1,0]", "op_sel:[0,1] op_sel_hi:[1,1]"
LO3, HI3 = "op_sel_hi:[1,0,1]", "op_sel:[0,1,0] op_sel_hi:[1,1,1]"


def job(A, hook, stores, gate=None, early=None):
    G, M, RW, T = JG, 116, JRW, 80

    def greg(e):
        return G + (e % 9)*8 + e//9
    for k in range(9):
        A(f"ds_read_b128 {v(RW+4*k,4)}, v{VJ} offset:{16*k}")
    A(f"s_bitcmp1_b32 s{S_IDX}, 0\ns_cselect_b32 s56, -1.0, 1.0\ns_lshl_b32 s58, s{S_W}, 2\nv_add_u32 v{M+1}, s58, v{VXL}")
    for k in range(9):
        if k in (0, 1, 3, 6):
            A(f"s_waitcnt lgkmcnt({(8, 6, 0, 3, 0, 0, 0)[k]})")
        for d in range(4):
            e = 8*k + 2*d
            unpack_bf16(A, RW + 4*k + d, greg(e), greg(e+1))
        for d in range(4):
            e = 8*k + 2*d
            A(f"v_max3_f32 v{M}, |v{greg(e)}|, |v{greg(e+1)}|, {'0' if e == 0 else f'v{M}'}")
        if gate and k == OPT.get("hk", 3):
            A(hook)
        if early and k == OPT.get("hk", 3):
            A(early[0])
    B = Asm()
    for x in range(0, 24, 2):
        B(f"v_pk_fma_f32 {v(G+24+x,2)}, {v(G+24+x,2)}, s[56:57], {v(G+x,2)} {LO3}")
    for x in range(0, 24, 2):
        B(f"v_pk_add_f32 {v(G+24+x,2)}, {v(G+24+x,2)}, {v(G+48+x,2)}")
    red = [f"v_max_f32_dpp v{M}, v{M}, v{M} row_shr:{n} row_mask:0xf bank_mask:0xf bound_ctrl:1" for n in (1, 2, 4, 8)]
    red += [f"v_max_f32_dpp v{M}, v{M}, v{M} row_bcast:{n} row_mask:{m} bank_mask:0xf" for n, m in ((15, "0xa"), (31, "0xc"))]
    red += [f"{LANE63}\nds_write_b32 v{M+1}, v{M} offset:128\ns_mov_b64 exec, -1"]
    weave(A, B.L, red, 2, 16)

    def wsum(dst, src):
        for cp in range(0, 8, 2):
            A(f"v_pk_add_f32 {v(T+cp,2)}, {v(src+cp,2)}, {v(src+16+cp,2)}")
        for cp in range(0, 8, 2):
            A(f"v_pk_add_f32 {v(dst+cp,2)}, {v(T+cp,2)}, {v(src+8+cp,2)}")
            A(f"v_pk_add_f32 {v(dst+8+cp,2)}, {v(T+cp,2)}, {v(src+8+cp,2)} {NEG1}")
        if dst != src:
            for cp in range(0, 8, 2):
                A(f"v_pk_mul_f32 {v(dst+16+cp,2)}, {v(src+16+cp,2)}, 1.0 {LO2}")
    def sums():
        wsum(G + 24, G + 24)
        A(f"s_bitcmp1_b32 s{S_IDX}, 0\ns_cbranch_scc1 Ljp1")
        wsum(G, G)
        A("s_branch Ljp2\nLjp1:")
        wsum(G, G + 48)
        A("Ljp2:")
    if gate:
        sums()
        gate()
    if early:
        early[1]()
    A("s_waitcnt lgkmcnt(0)\ns_barrier")
    A(f"ds_read_b128 {v(M+4,4)}, v{VXL} offset:128")
    if gate:
        A(f"ds_read_b128 {v(PLD,4)}, v{VXL} offset:64")
    else:
        sums()
        A(hook)
    A("s_waitcnt lgkmcnt(0)")
    K = 88
    A(f"v_max3_f32 v{M+4}, v{M+4}, v{M+5}, v{M+6}\nv_max_f32 v{M+4}, v{M+4}, v{M+7}")
    A(f"v_frexp_exp_i32_f32 v{M+4}, v{M+4}\nv_min_i32 v{M+4}, 60, v{M+4}\nv_max_i32 v{M+4}, 0xffffffc4, v{M+4}")
    A(f"v_add_u32 v{M}, 119, v{M+4}\nv_lshlrev_b32 v{M}, 23, v{M}")
    A(f"v_sub_u32 v{K}, 135, v{M+4}\nv_lshlrev_b32 v{K}, 23, v{K}\nv_readfirstlane_b32 s{S_WS}, v{M}")
    A(f"v_mul_f32 v{K+2}, 0x47000080, v{K}\nv_mul_f32 v{K+3}, 0xc7000000, v{K}")
    A(f"v_pk_mul_f32 {v(K+4,2)}, {v(K+2,2)}, 0.5 {LO2}")
    for i, r in enumerate((G, G + 24)):
        for j, src in enumerate((r+16, r, r+8)):
            o = JOUT + (i*3 + j)*4
            kk = K + 2*(i + (j > 0))
            for cp in range(0, 8, 2):
                A(f"v_pk_mul_f32 {v(T+cp,2)}, {v(src+cp,2)}, {v(kk,2)} {LO2}")
            if i or j:
                for cp in range(0, 8, 2):
                    A(f"v_pk_fma_f32 {v(T+cp,2)}, {v(src+cp,2)}, {v(kk,2)}, {v(T+cp,2)} {HI3}")
            for d in range(4):
                A(f"v_cvt_pk_f16_f32 v{o+d}, v{T+2*d}, v{T+2*d+1}")
            A(stores[i*3 + j])


def job_stores(VS=VS):
    st = []
    for i in range(2):
        for j in range(3):
            st.append(f"buffer_store_dwordx4 {v(JOUT + (i*3 + j)*4, 4)}, v{VS}, s[{SWS}:{SWS+3}], s{S_J0+i} offen sc1\n"
                      f"s_add_u32 s{S_J0+i}, s{S_J0+i}, {(4096 if j < 2 else U2 - U1 - 8192) & 0xffffffff:#x}")
    return st


def silu(A, x, A1, B1, kk, t, out):
    for k in range(0, 8, 2):
        A(f"v_pk_fma_f32 {v(x+k,2)}, {v(x+k,2)}, {v(A1+k,2)}, {v(B1+k,2)}")
    for k in range(8):
        A(f"v_exp_f32 v{t+k}, v{x+k}")
    for k in range(0, 8, 2):
        A(f"v_pk_fma_f32 {v(t+k,2)}, {v(t+k,2)}, {v(kk,2)}, {v(kk,2)}")
    for k in range(8):
        A(f"v_rcp_f32 v{t+k}, v{t+k}")
    for k in range(0, 8, 2):
        A(f"v_pk_mul_f32 {v(x+k,2)}, {v(x+k,2)}, {v(t+k,2)}")
    for k in range(0, 8, 2):
        A(f"v_cvt_pk_f16_f32 v{out+k//2}, v{x+k}, v{x+k+1}")
    if OPT.get("t1"):
        for d in range(4):
            A(f"v_and_b32 v{out+d}, 0xfff8fff8, v{out+d}")
    else:
        trim(A, out, 4, OPT["trimD"])


def x_loads():
    ld = []
    for k in range(8):
        for rho in range(2):
            t = f"buffer_load_dwordx2 {v(XR + (rho*8 + k)*2, 2)}, v{VX+rho}, s[{SX}:{SX+3}], s59 offen {OPT['ldx']}"
            if rho == 1 and k < 7:
                t += f"\ns_add_u32 s59, s59, {32768 if OPT.get('xperm') else 8192}"
            ld.append(t)
    ld[0] = f"s_mov_b32 s59, s{S_XO}\n" + ld[0]
    return ld


VG = (1, 4, 8, 11, 15, 18, 22, 25, 29, 32, 36, 39, 43, 46, 50, 53, 57, 60)


def step(Q, k, extra=None, scal=None):
    if OPT.get("sched", 1) == 0:
        return gen.step(Q, k, extra)
    cs = k & 1
    c0, c1 = C[cs]
    u0, u1, u2 = UU[cs]
    ld_u2, ld_u, ld_d, rd = k + 1 <= 15, k + 2 <= 15, k + 3 <= 16, k + 1 <= 15
    G = [[] for _ in range(64)]
    at = lambda g, f: G[g].append(f)
    R = lambda t: (lambda: Q.raw(t))

    def put(lst, gaps):
        it = iter(lst)
        for g, n in gaps:
            for _ in range(n):
                at(g, next(it))
        assert next(it, None) is None

    def uld(kk, j, nu):
        r = UU[kk & 1][j] + 4*nu
        return lambda: Q.vmem(f"buffer_load_dwordx4 {v(r,4)}, v{VU}, s[{SWS}:{SWS+3}], s{S_U0+j} offen offset:{1024*nu} {OPT['ldu']}", ("u", kk, j))

    def dld(kk, p):
        vo = (VTOP, VDMA, VDMA, VDMA, VDMA2, VBOT)[p]
        return lambda: Q.vmem(f"buffer_load_dwordx4 v{vo}, s[{SD}:{SD+3}], s{S_DMA} offen offset:{1024*(p & 3)} {OPT['ldd']} lds", ("raw", kk))
    w4 = OPT.get("w4", 1)
    uinc = lambda j: R(f"s_add_u32 s{S_U0+j}, s{S_U0+j}, " + (f"s{S_USTEP}" if w4 else "49152"))
    rr = lambda par, tb, w: (lambda: raw_read(Q, k+1, par, tb, w))
    mix = OPT.get("vmix", 0)
    if mix:
        gu2, gd, gu0, gu1 = (((1, 8, 11, 18), (4, 15, 25, 36, 46, 57), (22, 29, 32, 39), (43, 50, 53, 60)),
                             ((1, 8, 15, 22), (4, 11, 18, 25, 32, 43), (29, 36, 39, 46), (50, 53, 57, 60)))[mix - 1]
        if ld_u2:
            put([uld(k+1, 2, nu) for nu in range(4)], [(g, 1) for g in gu2])
        if ld_d:
            put([dld(k+3, p) for p in range(6)], [(g, 1) for g in gd])
            at(3, lambda: dma_m0(Q, k+3, 0))
            at((40, 28)[mix - 1], lambda: dma_m0(Q, k+3, 1))
            at(58, R(f"s_add_u32 s{S_DMA}, s{S_DMA}, {gen.DSTEP:#x}"))
            if cs == 0:
                at(59, R(f"s_xor_b32 s{S_M0}, s{S_M0}, 0x10000"))
        if ld_u:
            put([uld(k+2, 0, nu) for nu in range(4)], [(g, 1) for g in gu0])
            put([uld(k+2, 1, nu) for nu in range(4)], [(g, 1) for g in gu1])
        at(13, uinc(1))
        at(14, lambda: Q.wait(vm=[("u", k, 1)]))
        at(30, uinc(2))
    else:
        if ld_u2:
            put([uld(k+1, 2, nu) for nu in range(4)], [(g, 1) for g in VG[0:4]])
        if ld_d:
            put([dld(k+3, p) for p in range(6)], [(g, 1) for g in VG[4:10]])
            at(12, lambda: dma_m0(Q, k+3, 0))
            at(27, lambda: dma_m0(Q, k+3, 1))
            at(40, R(f"s_add_u32 s{S_DMA}, s{S_DMA}, {gen.DSTEP:#x}"))
            if cs == 0:
                at(41, R(f"s_xor_b32 s{S_M0}, s{S_M0}, 0x10000"))
        if ld_u:
            put([uld(k+2, 0, nu) for nu in range(4)], [(g, 1) for g in VG[10:14]])
            put([uld(k+2, 1, nu) for nu in range(4)], [(g, 1) for g in VG[14:18]])
        at(13, uinc(2))
        at(14, lambda: Q.wait(vm=[("u", k, 1)]))
        at(30, uinc(1))
    at(31, lambda: Q.wait(vm=[("u", k, 2)], lg=[("rd", k+1, 1, 3)]))
    share = OPT.get("share", 1) and rd
    if share:
        kn = k + 1

        def rs(dst, areg, par, be):
            off = (kn & 1)*SLOT + (2*be + par)*256
            return lambda: Q.lds(f"ds_read_b128 {v(dst,4)}, v{areg} offset:{off}", ("rd", kn, 1, 3))
        cn = lambda par, tb: C[kn & 1][par] + 4*tb
        tn = lambda par, be: TMP + 8*par + 4*be
        pb = [(par, be) for par in range(2) for be in range(2)]
        put([f for par, be in pb for f in (rs(cn(par, be), VA, par, be), rs(tn(par, be), VB, par, be))] +
            [rs(cn(par, 2 + be), VB1, par, be) for par, be in pb],
            [(0, 2), (2, 2), (3, 2), (5, 2), (6, 1), (7, 1), (9, 1), (10, 1)])
        for g, two in ((47, pb[:2]), (48, pb[2:])):
            at(g, R(f"s_mov_b64 exec, s[{S_EX}:{S_EX+1}]"))
            for par, be in two:
                at(g, rs(tn(par, be), VA1, par, be))
            at(g, R("s_mov_b64 exec, -1"))
        at(52, uinc(0))
        at(54, lambda: Q.wait(lg=[("rd", kn, 1, 3)]))
    elif rd:
        at(51, uinc(0))
        at(52, lambda: Q.wait(lg=[("rd", k+1, 1, 3)]))
        put([rr(0, tb, w) for tb in range(4) for w in range(2)] + [rr(1, tb, 0) for tb in range(4)],
            [(0, 2), (2, 2), (3, 2), (5, 2), (6, 1), (7, 1), (9, 1), (10, 1)])
        put([rr(1, tb, 1) for tb in range(4)], [(33, 1), (34, 1), (35, 1), (37, 1)])
    if scal:
        for g, fs in scal.items():
            G[g] += fs
    put([R(f"v_pk_add_f16 v{PP+i}, v{c0+i}, v{c1+i}") for i in range(16)],
        [(0, 1), (2, 1), (5, 1), (6, 2), (7, 1), (9, 2), (10, 1), (12, 2), (13, 3), (14, 2)] if rd else
        [(g, 2) for g in (0, 3, 6, 7, 10, 12, 13, 14)])
    put([R(f"v_pk_add_f16 v{c0+i}, v{c0+i}, v{c1+i} {NEG1}") for i in range(16)],
        [(16, 3), (17, 3), (19, 1), (21, 2), (23, 1), (26, 2), (27, 1), (30, 3)] if rd else
        [(g, 2) for g in (16, 17, 18, 21, 25, 26, 29, 30)])
    put([R(f"v_pk_add_f16 v{u1+i}, v{u1+i}, v{u0+i} {NEG1}") for i in range(16)],
        [(19, 2), (20, 2), (23, 2), (24, 2), (27, 2), (28, 2), (31, 2), (33, 1), (34, 1)] if rd else
        [(g, 2) for g in (19, 20, 23, 24, 27, 28, 31, 32)])
    put([R(f"v_pk_add_f16 v{u2+i}, v{u1+i}, v{u2+i}") for i in range(16)],
        [(35, 1), (37, 1), (40, 2), (42, 2), (45, 2), (49, 3), (51, 3), (52, 2)] if share else
        [(35, 2), (37, 2), (40, 2), (41, 2), (44, 2), (45, 2), (47, 2), (48, 2)])
    if share:
        put([R(f"v_pk_fma_f16 v{cn(par, be)+d}, v{tn(par, be)+d}, s{S_SGN}, v{cn(par, be)+d}") for par, be in pb for d in range(4)],
            [(33, 2), (34, 2), (35, 2), (37, 2), (38, 3), (41, 2), (44, 3)])
        put([R(f"v_pk_fma_f16 v{cn(par, 2+be)+d}, v{cn(par, 2+be)+d}, s{S_SGN}, v{tn(par, be)+d}") for par, be in pb for d in range(4)],
            [(54, 2), (55, 3), (56, 2), (58, 3), (59, 2), (61, 2), (62, 2)])
        if cs == 0:
            at(21, R(f"v_xor_b32 v{VA}, 0x10000, v{VA}")); at(26, R(f"v_xor_b32 v{VB}, 0x10000, v{VB}"))
            at(41, R(f"v_xor_b32 v{VB1}, 0x10000, v{VB1}")); at(56, R(f"v_xor_b32 v{VA1}, 0x10000, v{VA1}"))
    elif rd:
        put([(lambda i=i: h_op(Q, k+1, 0, i >> 2, i & 3)) for i in range(16)],
            [(33, 1), (34, 1), (38, 3), (42, 3), (44, 1), (45, 1), (47, 1), (49, 3), (51, 2)])
        put([(lambda i=i: h_op(Q, k+1, 1, i >> 2, i & 3)) for i in range(16)],
            [(52, 2), (54, 2), (55, 2), (56, 2), (58, 2), (59, 2), (61, 2), (62, 2)])
        if cs == 0:
            at(21, R(f"v_xor_b32 v{VA}, 0x10000, v{VA}")); at(26, R(f"v_xor_b32 v{VA1}, 0x10000, v{VA1}"))
            at(55, R(f"v_xor_b32 v{VB}, 0x10000, v{VB}")); at(59, R(f"v_xor_b32 v{VB1}, 0x10000, v{VB1}"))
    if extra:
        for g, fs in extra.items():
            G[g] += fs
    Q.wait(vm=[("raw", k+1), ("u", k, 0)])
    Q.raw("s_barrier")
    for g in range(64):
        j, nu, tb = g >> 4, (g >> 2) & 3, g & 3
        if nu & 1:
            tb = 3 - tb
        a = (u0, u1, u2, u2)[j] + 4*nu
        b = (c0, PP, c0, c1)[j] + 4*tb
        d = j*64 + nu*16 + tb*4
        Q.raw(f"v_mfma_f32_16x16x32_f16 {acc(d,4)}, {v(a,4)}, {v(b,4)}, {acc(d,4)}")
        for f in G[g]:
            f()


def kernel(stamps):
    A = Asm()
    st = Stamps(stamps)
    header(A, NAME)
    st.mark(A, "start", False)
    A("s_cmp_ge_u32 s2, 256\ns_cbranch_scc1 Lexit")
    A("s_load_dwordx16 s[4:19], s[0:1], 0")
    A("s_load_dwordx8 s[20:27], s[0:1], 64")
    A("v_lshrrev_b32 v8, 6, v0\nv_and_b32 v0, 63, v0")
    A(f"v_readfirstlane_b32 s{S_W}, v8")
    A("s_lshr_b32 s48, s2, 3")
    if OPT.get("map") == 1:
        A("s_and_b32 s56, s2, 4\ns_bfe_u32 s57, s2, 0x10000\ns_lshl_b32 s57, s57, 1\ns_or_b32 s56, s56, s57\ns_bfe_u32 s57, s2, 0x10003\ns_or_b32 s56, s56, s57")
        A("s_lshr_b32 s57, s2, 4\ns_bfe_u32 s58, s2, 0x10001\ns_lshl_b32 s58, s58, 4\ns_or_b32 s57, s57, s58\ns_lshl_b32 s57, s57, 3\ns_or_b32 s2, s56, s57")
    A(f"s_and_b32 s{S_GRP}, s2, 7\ns_lshr_b32 s{S_IDX}, s2, 3\ns_lshr_b32 s{S_B}, s{S_GRP}, 2")
    A(f"s_and_b32 s{S_NB}, s{S_GRP}, 3\ns_lshl_b32 s{S_NB}, s{S_NB}, 1\ns_and_b32 s56, s{S_IDX}, 1\ns_add_u32 s{S_NB}, s{S_NB}, s56")
    A(f"s_lshr_b32 s{S_RB}, s{S_IDX}, 1\ns_lshl_b32 s{S_OQ}, s{S_GRP}, 4\ns_add_u32 s{S_OQ}, s{S_OQ}, s{S_RB}")

    def touch():
        A(f"s_lshl_b32 s56, s48, 2\ns_add_u32 s56, s56, s{S_W}\nv_and_b32 v8, 1, v0\nv_lshl_add_u32 v8, v8, 7, s56")
        gen.code_touch(A, "Lpf", "Lcode_end", 8, 72, "Lpc", 56)
        A(f"global_load_dword v253, v[72:73], off {OPT.get('pfn', '')}\nLpf:")
    if OPT["pf"] == 1:
        touch()
    A("v_and_b32 v9, 15, v0\nv_lshrrev_b32 v10, 4, v0")
    A(f"v_lshlrev_b32 v{VDMA}, 4, v0")
    A(f"s_and_b32 s44, s{S_W}, 1\ns_lshl_b32 s56, s{S_NB}, 1\ns_add_u32 s44, s44, s56")
    A(f"s_lshr_b32 s45, s{S_W}, 1\ns_lshl_b32 s56, s{S_RB}, 1\ns_add_u32 s45, s45, s56")
    A(f"s_lshl_b32 s46, s{S_B}, 22\ns_lshl_b32 s56, s44, 18\ns_add_u32 s46, s46, s56")
    A(f"s_lshl_b32 s47, s45, 8\ns_add_u32 s47, s47, s46")
    gen.DSTEP = 4*OS
    A(f"v_lshlrev_b32 v11, {13 if OPT.get('xperm') else 16}, v10\nv_lshl_add_u32 v11, v9, 3, v11")
    A(f"s_cmp_eq_u32 s{S_W}, 3\ns_cselect_b32 s56, 128, 0\nv_add_u32 v{VX}, s56, v11\nv_xor_b32 v{VX+1}, 128, v{VX}")
    A(f"s_mov_b32 s{S_MASK}, 0xffff0000")
    A("s_waitcnt lgkmcnt(0)")
    st.mark(A, "karg", False)
    A(f"s_load_dword s{S_ASC}, s[26:27], {GEN}")
    srd(A, SX, 4, 0x800000)
    xf = OPT.get("xf", 1)
    if xf:
        A("\n".join(x_loads()).replace(f"s_mov_b32 s59, s{S_XO}", "s_mov_b32 s59, s47"))
        st.mark(A, "xis", False)
    srd(A, SO, 12, 512*9216)
    A(f"s_cmp_lt_u32 s{S_W}, 2\ns_cbranch_scc1 Lside0\ns_cmp_eq_u32 s{S_W}, 3\ns_cbranch_scc1 Lside3")
    for i, p in enumerate((8, 10, 16, 18)):
        A(f"global_load_dwordx4 {v(16+4*i,4)}, v{VDMA}, s[{p}:{p+1}]")
    A("s_branch Lside0\nLside3:")
    A(f"v_lshrrev_b32 v12, 3, v0\ns_mul_i32 s56, s{S_RB}, 24\nv_add_u32 v12, s56, v12")
    A(f"s_and_b32 s56, s{S_IDX}, 1\ns_mul_i32 s56, s56, 768\nv_lshl_add_u32 v13, v12, 1, s56")
    for i in range(3):
        A(f"global_load_ushort v{16+i}, v13, s[6:7] offset:{16*i}")
    A(f"v_and_b32 v13, 7, v0\nv_lshlrev_b32 v13, 4, v13\nv_lshl_add_u32 v13, v12, 10, v13\ns_lshl_b32 s56, s{S_GRP}, 7\nv_add_u32 v13, s56, v13")
    for i in range(3):
        A(f"global_load_dwordx4 {v(20+4*i,4)}, v13, s[14:15]")
        if i < 2:
            A("v_add_u32 v13, 8192, v13")
    A("Lside0:")
    A(f"s_mov_b32 s{S_XO}, s47")
    if not xf:
        A("\n".join(x_loads()))
        st.mark(A, "xis", False)
    npf = int(OPT["pf"] == 2)
    if npf:
        touch()
    srd(A, SWS, 26, WS_BYTES)
    A(f"s_mul_i32 s{S_SLOT}, s{S_GRP}, {GRPS}\ns_lshl_b32 s56, s{S_IDX}, 7\ns_add_u32 s{S_SLOT}, s{S_SLOT}, s56")
    def ftouch():
        A(f"v_min_u32 v11, 5, v0\nv_lshlrev_b32 v11, 16, v11\ns_cmp_eq_u32 s{S_W}, 1\ns_cselect_b32 s56, 0, {OOB:#x}")
        A(f"s_add_u32 s56, s56, s{S_SLOT}\ns_add_u32 s56, s56, {STAT:#x}")
        A(f"buffer_load_dword v{VT+1}, v11, s[{SWS}:{SWS+3}], s56 offen sc1")
    npf += 1
    if OPT.get("ft", 3) == 1:
        ftouch()
    A(f"s_cmp_eq_u32 s{S_W}, 0\ns_cselect_b32 s58, 5, 0")
    A(f"v_lshrrev_b32 v11, 3, v0\nv_min_u32 v11, s58, v11\nv_lshlrev_b32 v11, 16, v11\nv_and_b32 v14, 0x70, v{VDMA}\nv_add_u32 v11, v11, v14")
    A(f"v_mov_b32 v132, 0\nv_mov_b32 v133, -1\nv_mov_b32 v134, 0\nv_mov_b32 v135, 0")
    if OPT["tlb"]:
        A(f"s_mul_i32 s56, s{S_GRP}, {16*OS}\ns_add_u32 s56, s56, {D1 + 8*OS - 256}")
        A(f"s_mul_i32 s57, s{S_GRP}, {US}\ns_mul_i32 s58, s{S_IDX}, {US - 128}\ns_add_u32 s57, s57, s58\ns_add_u32 s57, s57, {U1 - 128}")
        A(f"s_cmp_eq_u32 s{S_IDX}, 2\ns_cselect_b32 s57, s56, s57\ns_cmp_gt_u32 s{S_IDX}, 2\ns_cselect_b32 s57, {OOB:#x}, s57")
        A(f"s_cmp_eq_u32 s{S_W}, 1\ns_cselect_b32 s57, s57, {OOB:#x}")
    else:
        A(f"s_mov_b32 s57, {OOB:#x}")
    A(f"s_add_u32 s56, s{S_SLOT}, {STAT:#x}\ns_cmp_eq_u32 s{S_W}, 0\ns_cselect_b32 s57, s56, s57")
    A(f"buffer_store_dwordx4 v[132:135], v11, s[{SWS}:{SWS+3}], s57 offen sc1")
    A(f"v_mul_u32_u24 v{VD}, {OS}, v10\nv_lshl_add_u32 v{VD}, v9, 4, v{VD}")
    A(f"s_mul_i32 s46, s{S_B}, {64*OS}\ns_add_u32 s56, s46, {D1 - 1024:#x}\ns_mul_i32 s57, s44, {4*OS}\ns_add_u32 s46, s46, s57")
    A(f"s_add_u32 s{SD}, s26, s56\ns_addc_u32 s{SD+1}, s27, 0\ns_mov_b32 s{SD+2}, {64*OS + 1024:#x}\ns_mov_b32 s{SD+3}, 0x20000")
    A(f"s_lshl_b32 s56, s45, 11\ns_add_u32 s{S_RA}, s46, s56\ns_add_u32 s{S_RA}, s{S_RA}, {D1:#x}")
    A(f"s_cmp_eq_u32 s{S_W}, 3\ns_cselect_b32 s56, 1024, 0\ns_cselect_b32 s57, 0, 1024\ns_add_u32 s{S_RB2}, s{S_RA}, s57\ns_add_u32 s{S_RA}, s{S_RA}, s56")
    A(f"s_lshl_b32 s56, s44, 6\nv_lshlrev_b32 v237, 4, v10\nv_add_u32 v237, s56, v237")
    A(f"v_add_u32 v{VDMA2}, 4096, v{VDMA}")
    A(f"s_cmp_eq_u32 s{S_RB}, 0\ns_cselect_b32 s56, {OOB:#x}, 0\nv_add_u32 v{VTOP}, s56, v{VDMA}")
    A(f"s_cmp_eq_u32 s{S_RB}, 15\ns_cselect_b32 s56, {OOB:#x}, 0\nv_add_u32 v{VBOT}, s56, v{VDMA2}")
    A(f"v_lshrrev_b32 v11, 2, v9\nv_lshlrev_b32 v11, 8, v11\nv_lshl_add_u32 v11, v10, 6, v11")
    A(f"v_and_b32 v14, 3, v9\nv_lshl_add_u32 v{VU}, v14, 4, v11")
    A(f"s_lshl_b32 s57, s{S_W}, 10\ns_lshr_b32 s56, s{S_W}, 1\ns_sub_u32 s58, 2, s56\ns_lshl_b32 s58, s58, 10\ns_lshl_b32 s56, s56, 11")
    A(f"v_mul_u32_u24 v11, 6144, v10\nv_lshl_add_u32 v11, v9, 4, v11")
    A(f"v_add_u32 v14, s56, v11\ns_xor_b32 s56, s56, 2048\nv_add_u32 v11, s56, v11")
    A(f"v_add_u32 v{VA}, s57, v14\nv_add_u32 v{VB}, s58, v14\nv_add_u32 v{VA1}, s57, v11\nv_add_u32 v{VB1}, s58, v11")
    A(f"s_mov_b32 s56, 0xbc00bc00\ns_cmp_eq_u32 s{S_W}, 1\ns_cselect_b32 s{S_SGN}, 0x3c003c00, s56")
    A(f"s_mul_i32 s{S_M0}, s{S_W}, 6144")
    for phi in (1, 2, 3):
        A(f"s_xor_b32 s56, s{S_W}, {phi}\ns_mul_i32 s56, s56, 3\ns_add_u32 s56, s56, {phi-1}\ns_lshl_b32 s56, s56, 13\nv_add_u32 v{VW[phi]}, s56, v{VDMA}")
    A(f"s_lshl_b32 s57, s{S_W}, 2\ns_mul_i32 s58, s{S_W}, 3")
    for r, tab in zip(VR, (0x1100, 0x0221, 0x2012)):
        A(f"s_lshr_b32 s56, {tab:#x}, s57\ns_and_b32 s56, s56, 15\ns_add_u32 s56, s56, s58\ns_lshl_b32 s56, s56, 13\nv_add_u32 v{r}, s56, v{VDMA}")
    A(f"s_cmp_eq_u32 s{S_W}, 3\ns_cselect_b32 s{S_AG}, -1.0, 1.0\ns_cmp_ge_u32 s{S_W}, 2\ns_cselect_b32 s{S_AG+1}, 1.0, -1.0")
    A(f"s_xor_b32 s{S_BB+1}, s{S_AG+1}, 0x80000000\ns_add_u32 s56, s{S_W}, 1\ns_bitcmp1_b32 s56, 1")
    A(f"s_cselect_b32 s{S_BB}, 0, 1.0\ns_cselect_b32 s{S_BB+1}, s{S_BB+1}, 0\ns_cselect_b64 s[{S_EX}:{S_EX+1}], -1, 0")
    A(f"v_cmp_eq_u32 vcc, 63, v0\nv_mov_b32 v11, {OOB:#x}\nv_mov_b32 v{VXL}, {XLDS}\nv_cndmask_b32 v{V63}, v11, 0, vcc")
    A(f"s_mov_b32 s{S_IT}, 0")
    A("v_and_b32 v35, 7, v0\nv_lshlrev_b32 v35, 5, v35\nv_lshl_add_u32 v35, v10, 3, v35")
    A(f"s_and_b32 s56, s{S_IDX}, 1\ns_lshl_b32 s56, s56, 7\ns_add_u32 s56, s56, s{S_OQ}\ns_lshl_b32 s56, s56, 8\ns_add_u32 s{S_E2}, s56, {EMBP:#x}")
    A(f"v_and_b32 v11, 3, v0\nv_lshrrev_b32 v14, 2, v0\nv_mul_u32_u24 v11, {WROW}, v11\nv_mul_u32_u24 v14, 144, v14")
    A(f"s_mul_i32 s58, s{S_W}, 2304\ns_add_u32 s58, s58, {WLDS}\nv_add3_u32 v{VJ}, v11, v14, s58")
    A(f"v_mul_u32_u24 v{VS}, 49152, v10\nv_lshl_add_u32 v{VS}, v9, 4, v{VS}")
    A(f"s_mul_i32 s56, s{S_GRP}, {US}\ns_add_u32 s56, s56, {U1:#x}")
    A(f"s_bfe_u32 s58, s{S_RB}, 0x10003\ns_lshl_b32 s58, s58, 11\ns_add_u32 s56, s56, s58")
    A(f"s_and_b32 s58, s{S_RB}, 1\ns_lshl_b32 s58, s58, 10\ns_add_u32 s56, s56, s58")
    A(f"s_bfe_u32 s58, s{S_RB}, 0x20001\ns_lshl_b32 s58, s58, 8\ns_add_u32 s56, s56, s58")
    A(f"s_mul_i32 s58, s{S_W}, {4*49152}\ns_add_u32 s56, s56, s58\ns_xor_b32 s58, s56, 2048")
    A(f"s_bitcmp1_b32 s{S_IDX}, 0\ns_cselect_b32 s{S_J0}, s58, s56\ns_cselect_b32 s{S_J1}, s56, s58")
    A(f"s_cselect_b32 s58, {3*12288}, 0\ns_cselect_b32 s59, 12288, 0")
    A(f"s_add_u32 s{S_J0}, s{S_J0}, s58\ns_add_u32 s{S_J1}, s{S_J1}, s59\ns_add_u32 s{S_J1}, s{S_J1}, 12288")
    wk = OPT.get("wk", 9)
    wsp = OPT.get("wsp", (3, 3, 3, 0, 0))
    nextw = f"s_mov_b32 s{SO}, s20\ns_mov_b32 s{SO+1}, s21"
    if wk < 0:
        A("\n".join(w_loads(WLDS, 56, 57)) + "\n" + nextw)
    st.mark(A, "wis", False)
    nlate = 0
    if OPT["pf"] == 3:
        touch(); nlate += 1; npf += 1
    if OPT.get("ft", 3) == 2 and wk < 0:
        ftouch(); nlate += 1
    if wk == 9 and OPT.get("ft", 3) == 2:
        npf -= 1
    w1l = w_loads(WLDS, 44, 46)
    def side_work():
        A(f"s_cmp_lt_u32 s{S_W}, 2\ns_cbranch_scc1 Lside1\n{'s_nop 0' if xf else 's_waitcnt vmcnt(%d)' % (16 + 9*(wk < 0) + npf)}\ns_cmp_eq_u32 s{S_W}, 3\ns_cbranch_scc1 Lside4")
        A("v_mov_b32 v12, 0\nv_mov_b32 v13, 0")
        for d in range(16):
            unpack_bf16(A, 16 + d, 14, 15)
            A(f"v_max3_f32 v{12 + d//8}, |v14|, |v15|, v{12 + d//8}")
        A("s_nop 0")
        wave_reduce(A, [12, 13], "v_max_f32")
        for r in (12, 13):
            A(f"v_frexp_exp_i32_f32 v{r}, v{r}\nv_min_i32 v{r}, 60, v{r}\nv_max_i32 v{r}, 0xffffffc4, v{r}")
        A(LANE63)
        A(f"ds_write_b64 v{VXL}, v[12:13] offset:72\ns_mov_b64 exec, -1\ns_branch Lside1")
        A("Lside4:")
        for i in range(3):
            A(f"v_lshlrev_b32 v{16+i}, 16, v{16+i}")
        for op in (f"v_mul_f32 v{{t}}, {NLOG2E:#x}, v{{x}}", "v_exp_f32 v{t}, v{t}", "v_add_f32 v{t}, 1.0, v{t}",
                   "v_rcp_f32 v{t}, v{t}", "v_mul_f32 v{x}, v{x}, v{t}"):
            for i in range(3):
                A(op.format(t=32+i, x=16+i))
        for i in range(3):
            for d in range(4):
                unpack_bf16(A, 20 + 4*i + d, 44 + 2*d, 45 + 2*d)
            for k in range(8):
                A(f"v_mul_f32 v{36+k}, v{44+k}, v{16+i}" if i == 0 else f"v_fmac_f32 v{36+k}, v{44+k}, v{16+i}")
        for k in range(8):
            A(f"v_add_f32_dpp v{36+k}, v{36+k}, v{36+k} row_ror:8 row_mask:0xf bank_mask:0xf")
        A("s_nop 1")
        for k in (0, 1, 4, 5):
            A(f"v_permlane16_swap_b32 v{36+k}, v{38+k}")
        for k in (0, 1, 4, 5):
            A(f"v_add_f32 v{36+k}, v{36+k}, v{38+k}")
        A("s_nop 1")
        for k in (0, 1):
            A(f"v_permlane32_swap_b32 v{36+k}, v{40+k}")
        for k in (0, 1):
            A(f"v_add_f32 v{36+k}, v{36+k}, v{40+k}")
        A("Lside1:")
    if not xf:
        side_work()
    st.mark(A, "side", False)
    P = 116

    def sums(A, x, a, first):
        if first:
            A(f"v_pk_mul_f32 {v(a+4,2)}, {v(x,2)}, {v(x,2)}\nv_pk_mul_f32 {v(a,2)}, {v(x,2)}, 1.0 op_sel_hi:[1,0]")
        else:
            A(f"v_pk_add_f32 {v(a,2)}, {v(a,2)}, {v(x,2)}\nv_pk_fma_f32 {v(a+4,2)}, {v(x,2)}, {v(x,2)}, {v(a+4,2)}")
    for k in range(0, 8, 2):
        if k == 0:
            st.mark(A, "set", False)
        if k == 2:
            st.mark(A, "x0", False)
        A(f"s_waitcnt vmcnt({12 + (sum(wsp[:k//2]) if wk == 9 else 9*(wk < k)) + (0 if k == 6 and OPT.get('ft', 3) == 3 else npf) - 2*k})")
        if k == 6:
            st.mark(A, "xin", False)
        B = Asm()
        for kk in (k, k+1):
            for rho in range(2):
                r = XR + (rho*8 + kk)*2
                unpack_bf16(B, r, H + (rho*4 + 0)*8 + kk, H + (rho*4 + 1)*8 + kk)
                unpack_bf16(B, r+1, H + (rho*4 + 2)*8 + kk, H + (rho*4 + 3)*8 + kk)
        for p in range(8):
            sums(B, H + p*8 + k, P + 2*(p & 1), k == 0 and p < 2)
        if k == wk:
            weave(A, B.L, w_loads(WLDS, 56, 57))
            A(nextw)
        else:
            A("\n".join(B.L))
        if wk == 9:
            A("\n".join(w1l[sum(wsp[:k//2]):sum(wsp[:k//2 + 1])]))

    A("Lstats:")
    A(f"v_pk_add_f32 {v(P,2)}, {v(P,2)}, {v(P+2,2)}")
    A(f"v_pk_add_f32 {v(P+4,2)}, {v(P+4,2)}, {v(P+6,2)}")
    A(f"v_add_f32 v{P}, v{P}, v{P+1}\nv_add_f32 v{P+1}, v{P+4}, v{P+5}")
    wave_reduce(A, [P, P+1])
    A(f"s_lshl_b32 s56, s{S_W}, 3\nv_add_u32 v{P+2}, s56, v{VXL}")
    A(LANE63)
    A(f"ds_write_b64 v{P+2}, {v(P,2)}")
    A("s_mov_b64 exec, -1")
    A(f"s_lshl_b32 s59, s{S_IT}, 16\ns_add_u32 s56, s59, s{S_SLOT}\ns_add_u32 s56, s56, {STAT:#x}")
    A(f"s_cmp_eq_u32 s{S_IT}, 0\ns_cbranch_scc1 Lb1\ns_waitcnt vmcnt(0)\nLb1:")
    A(f"s_waitcnt lgkmcnt(0)\ns_barrier\ns_add_u32 s{S_TAG}, s{S_ASC}, {TAGSTEP:#x}")
    A(f"s_cmp_lg_u32 s{S_W}, 0\ns_cbranch_scc1 Lnopub")
    A(f"ds_read_b128 {v(P,4)}, v{VXL}\nds_read_b128 {v(P+4,4)}, v{VXL} offset:16")
    A(f"v_mov_b32 v133, s{S_TAG}\nv_mov_b32 v135, s{S_TAG}\ns_waitcnt lgkmcnt(0)")
    A(f"v_pk_add_f32 {v(P,2)}, {v(P,2)}, {v(P+2,2)}\nv_pk_add_f32 {v(P+4,2)}, {v(P+4,2)}, {v(P+6,2)}")
    A(f"v_add_f32 v132, v{P}, v{P+4}\nv_add_f32 v134, v{P+1}, v{P+5}")
    if OPT.get("fl", 1):
        A(f"v_and_b32 v{P}, 0x70, v{VDMA}\nbuffer_store_dwordx4 v[132:135], v{P}, s[{SWS}:{SWS+3}], s56 offen sc1")
    else:
        A(f"buffer_store_dwordx4 v[132:135], v{V63}, s[{SWS}:{SWS+3}], s56 offen sc1")
    A("Lnopub:")
    st.mark(A, "pub")
    A(f"s_mul_i32 s{S_POLL}, s{S_GRP}, {GRPS}\ns_add_u32 s{S_POLL}, s{S_POLL}, s59\ns_add_u32 s{S_POLL}, s{S_POLL}, {STAT:#x}")
    A(f"v_cmp_gt_u32 vcc, 32, v0\nv_mov_b32 v{P}, {OOB:#x}\nv_lshlrev_b32 v{VPOLL}, 7, v0\nv_cndmask_b32 v{VPOLL}, v{P}, v{VPOLL}, vcc")
    A(f"s_cmp_lg_u32 s{S_IT}, 0\ns_cbranch_scc1 Ljob")
    if wk == 9:
        A("\n".join(w1l[sum(wsp[:4]):]) + "\n" + nextw)
        if OPT.get("ft", 3) == 2:
            ftouch(); nlate = 1
    A(f"global_load_dwordx4 {v(GR,4)}, v237, s[8:9]\nglobal_load_dwordx4 {v(BR,4)}, v237, s[10:11]")
    if xf:
        side_work()
    A(f"s_cmp_eq_u32 s{S_W}, 3\ns_cselect_b32 s56, s{S_E2}, {OOB:#x}")
    A(f"buffer_store_dwordx2 v[36:37], v35, s[{SWS}:{SWS+3}], s56 offen sc1")
    if wk == 9 and wsp[4]:
        A(f"s_waitcnt vmcnt({3 + nlate})\ns_barrier")
    else:
        A(f"s_cmp_eq_u32 s{S_W}, 0\ns_cbranch_scc1 Lw3\ns_waitcnt vmcnt({3 + nlate})\nLw3:\ns_waitcnt vmcnt({4 + nlate})\ns_barrier")
    A("Ljob:")
    st.mark(A, "win")
    def totals(first):
        spin(A, "Ls", POLL4, f"v_cmp_ne_u32 vcc, s{S_TAG}, v{PLD+1}\nv_cmp_ne_u32 s[56:57], s{S_TAG}, v{PLD+3}\ns_nop 1\ns_or_b32 s56, s56, vcc_lo", first)
        wave_reduce(A, [PLD, PLD+2])
        A(f"v_mul_f32 v{PLD}, 0xb6000000, v{PLD}\nv_mul_f32 v{PLD+2}, 0x36000000, v{PLD+2}")
        A(f"v_fma_f32 v{PLD+2}, -v{PLD}, v{PLD}, v{PLD+2}\nv_max_f32 v{PLD+2}, 0, v{PLD+2}")
        A(f"v_add_f32 v{PLD+2}, 0x3727c5ac, v{PLD+2}\nv_rsq_f32 v{PLD+1}, v{PLD+2}")
        A(LANE63)
        A(f"ds_write_b64 v{VXL}, {v(PLD,2)} offset:64")
        A("s_mov_b64 exec, -1")
    jpos, late = (), []
    if OPT.get("gate", 0):
        A1, B1, KK, TT, OUT = 96, 104, 112, 8, 24

        def gate():
            A(f"s_mov_b32 s56, {NLOG2E:#x}\ns_waitcnt vmcnt(2)\ns_cmp_eq_u32 s{S_W}, 0\ns_cbranch_scc1 Lg0\ns_waitcnt vmcnt(1)\nLg0:")
            for d in range(4):
                unpack_bf16(A, GR + d, A1 + 2*d, A1 + 2*d + 1)
                unpack_bf16(A, BR + d, B1 + 2*d, B1 + 2*d + 1)
            for k in range(0, 16, 2):
                A(f"v_pk_mul_f32 {v(A1+k,2)}, {v(A1+k,2)}, s[56:57] {LO2}")
            A(f"s_cmp_lg_u32 s{S_W}, 0\ns_cbranch_scc1 Ljoin")
            totals(True)
            A("Ljoin:")
        job(A, f"s_cmp_lg_u32 s{S_W}, 0\ns_cbranch_scc1 Ljob_mid\n{POLL4}\nLjob_mid:", job_stores(), gate)
        st.mark(A, "b4")
        A(f"s_cmp_lg_u32 s{S_IT}, 0\ns_cselect_b64 vcc, -1, 0\ns_mov_b32 s56, {NLOG2E:#x}")
        A(f"v_cndmask_b32 v{KK}, v{PLD+2}, v{PLD+3}, vcc")
        A(f"v_add_u32 v{KK}, 124, v{KK}\nv_lshlrev_b32 v{KK}, 23, v{KK}\nv_mul_f32 v{KK+1}, s56, v{KK}")
        A(f"v_readfirstlane_b32 s{S_INV}, v{KK}\nv_mul_f32 v{KK}, s56, v{KK}")
    else:
        scheck = f"v_cmp_ne_u32 vcc, s{S_TAG}, v{PLD+1}\nv_cmp_ne_u32 s[58:59], s{S_TAG}, v{PLD+3}\ns_nop 1\ns_or_b32 s58, s58, vcc_lo"
        g2 = OPT.get("g2", 1)
        if g2:
            who = f"s_or_b32 s57, s{S_W}, s{S_IT}" if g2 == 1 else f"s_cmp_lg_u32 s{S_W}, 0"

            def hold():
                st.mark(A, "ja")
                A(f"{who}\ns_cbranch_scc1 Le_ok")
                spin(A, "Le", POLL4, scheck, True, 57)
                st.mark(A, "held")
            job(A, f"s_cmp_ge_u32 s{S_W}, s{S_IT}\ns_cbranch_scc1 Ljob_mid\n{POLL4}\nLjob_mid:" if g2 == 1 else "", job_stores(),
                early=(f"{who}\ns_cbranch_scc1 Ljob_e\n{POLL4}\nLjob_e:", hold))
        else:
            job(A, f"s_cmp_lg_u32 s{S_W}, 0\ns_cbranch_scc1 Ljob_mid\n{POLL4}\nLjob_mid:", job_stores())
        st.mark(A, "job0")
        A1, B1, KK, TT, OUT = 8, 16, 24, 32, 80
        pre = Asm()
        pre(f"ds_read_b64 {v(KK,2)}, v{VXL} offset:72\ns_mov_b32 s56, {NLOG2E:#x}\ns_waitcnt vmcnt(6)")
        for d in range(4):
            unpack_bf16(pre, GR + d, A1 + 2*d, A1 + 2*d + 1)
            unpack_bf16(pre, BR + d, B1 + 2*d, B1 + 2*d + 1)
        A(f"s_cmp_lg_u32 s{S_W}, 0\ns_cbranch_scc1 Ljoin")
        A(f"s_mov_b32 s58, {SPIN_MAX}\ns_waitcnt vmcnt(6)\ns_branch Ls_chk")
        spin(A, "Ls", POLL4, f"v_cmp_ne_u32 vcc, s{S_TAG}, v{PLD+1}\nv_cmp_ne_u32 s[56:57], s{S_TAG}, v{PLD+3}\ns_nop 1\ns_or_b32 s56, s56, vcc_lo", None)
        wave_reduce(A, [PLD, PLD+2])
        A(f"v_mul_f32 v{PLD}, 0xb6000000, v{PLD}\nv_mul_f32 v{PLD+2}, 0x36000000, v{PLD+2}")
        A(f"v_fma_f32 v{PLD+2}, -v{PLD}, v{PLD}, v{PLD+2}\nv_max_f32 v{PLD+2}, 0, v{PLD+2}")
        A(f"v_add_f32 v{PLD+2}, 0x3727c5ac, v{PLD+2}\nv_rsq_f32 v{PLD+1}, v{PLD+2}")
        A(LANE63)
        A(f"ds_write_b64 v{VXL}, {v(PLD,2)} offset:64")
        A("s_mov_b64 exec, -1")
        A("Ljoin:")
        A("\n".join(pre.L))
        A(f"s_cmp_lg_u32 s{S_IT}, 0\ns_cselect_b64 vcc, -1, 0\ns_waitcnt lgkmcnt(0)\ns_barrier")
        st.mark(A, "b4")
        A(f"ds_read_b64 {v(PLD,2)}, v{VXL} offset:64")
        jpos = OPT.get("jpos", (-1, -1, 0, 0, 1, 1)) if OPT["jst"] == 2 else ()
        late = list(zip(jpos, job_stores()))
        if late:
            A(late.pop(0)[1])
        A(f"v_cndmask_b32 v{KK}, v{KK}, v{KK+1}, vcc")
        A(f"v_add_u32 v{KK}, 124, v{KK}\nv_lshlrev_b32 v{KK}, 23, v{KK}")
        for k in range(0, 16, 2):
            A(f"v_pk_mul_f32 {v(A1+k,2)}, {v(A1+k,2)}, s[56:57] {LO2}")
        A(f"v_readfirstlane_b32 s{S_INV}, v{KK}\nv_mul_f32 v{KK+1}, s56, v{KK}\nv_mul_f32 v{KK}, s56, v{KK}")
        while late and late[0][0] < 0:
            A(late.pop(0)[1])
        A("s_waitcnt lgkmcnt(0)")
        st.mark(A, "tot")
    for k in range(0, 8, 2):
        A(f"v_pk_mul_f32 {v(A1+k,2)}, {v(A1+k,2)}, {v(PLD,2)} {HI2}")
    for k in range(0, 8, 2):
        A(f"v_pk_fma_f32 {v(B1+k,2)}, {v(A1+k,2)}, {v(PLD,2)}, {v(B1+k,2)} {LO3}")
    A(f"v_mov_b32 v{VT}, s{S_TAG}\nv_mov_b32 v{VT+1}, s{S_TAG}")
    A(f"s_lshl_b32 s59, s{S_IT}, 16\ns_add_u32 s57, s59, s{S_SLOT}\ns_lshl_b32 s56, s{S_W}, 4\ns_add_u32 s56, s56, s57\ns_add_u32 s{S_E2}, s56, {UF:#x}")
    uflag = (f"v_mov_b32 v{BR}, s{S_TAG}\nv_mov_b32 v{BR+1}, s{S_TAG}\nv_mov_b32 v{BR+2}, s{S_WS}\ns_waitcnt vmcnt(%d)\n"
             f"buffer_store_dwordx4 {v(BR,4)}, v{V63}, s[{SWS}:{SWS+3}], s{S_E2} offen sc1")
    ufp = OPT.get("ufp", 3)
    for p in range(8):
        o = OUT + 4*p
        B = Asm()
        silu(B, H + p*8, A1, B1, KK, TT + 8*(p & 1), o)
        weave(A, B.L, [t for q, t in late if q == p] or [""], 8, 32)
        A(f"buffer_store_dwordx4 {v(o,4)}, v{VD}, s[{SWS}:{SWS+3}], s{S_RA + (p >> 2)} offen offset:{256*(p & 3)} sc1")
        if p == ufp:
            A(uflag % (ufp + 1 - max((0,) + jpos)))
    st.mark(A, "silu")
    VUP, S_UP = 239, S_RET
    A(f"v_lshrrev_b32 v8, 2, v0\nv_lshlrev_b32 v8, 8, v8\nv_and_b32 v9, 3, v0\nv_lshl_add_u32 v{VUP}, v9, 4, v8")
    A(f"s_mul_i32 s{S_UP}, s{S_NB}, {GRPS}\ns_lshr_b32 s56, s{S_W}, 1\ns_lshl_b32 s56, s56, 7\ns_add_u32 s{S_UP}, s{S_UP}, s56")
    A(f"s_add_u32 s{S_UP}, s{S_UP}, s59\ns_add_u32 s{S_UP}, s{S_UP}, {UF:#x}")
    A(f"s_add_u32 s57, s57, {DF:#x}")
    A(f"s_mul_i32 s{S_U0}, s{S_NB}, {US}\ns_mul_i32 s56, s{S_W}, 12288\ns_add_u32 s{S_U0}, s{S_U0}, s56")
    A(f"s_mul_i32 s56, s{S_IT}, {U2-U1}\ns_add_u32 s{S_U0}, s{S_U0}, s56")
    A(f"s_add_u32 s{S_U0}, s{S_U0}, {U1:#x}\ns_add_u32 s{S_U1}, s{S_U0}, 4096\ns_add_u32 s{S_U2}, s{S_U0}, 8192")
    A(f"s_mul_i32 s{S_DMA}, s{S_W}, {OS}\ns_lshl_b32 s56, s{S_RB}, 12\ns_add_u32 s{S_DMA}, s{S_DMA}, s56")
    A(f"v_lshrrev_b32 v8, 3, v0\nv_min_u32 v8, 2, v8\nv_add_u32 v8, s{S_RB}, v8\nv_add_u32 v8, -1, v8\nv_med3_i32 v8, v8, 0, 15")
    A(f"v_and_b32 v9, 1, v0\nv_lshl_add_u32 v8, v8, 1, v9\nv_lshlrev_b32 v8, 7, v8")
    A(f"v_bfe_u32 v9, v0, 1, 2\nv_mul_u32_u24 v9, {GRPS}, v9\nv_add_u32 v{VPOLL}, v8, v9")
    A(f"s_mul_i32 s{S_POLL}, s{S_B}, {4*GRPS}\ns_add_u32 s{S_POLL}, s{S_POLL}, s59\ns_add_u32 s{S_POLL}, s{S_POLL}, {DF:#x}")
    upoll = f"buffer_load_dwordx2 {v(GR,2)}, v{VUP}, s[{SWS}:{SWS+3}], s{S_UP} offen sc1"
    ucheck = f"v_cmp_ne_u32 vcc, s{S_TAG}, v{GR}\nv_cmp_ne_u32 s[56:57], s{S_TAG}, v{GR+1}\ns_nop 1\ns_or_b64 s[56:57], s[56:57], vcc"
    dflag = f"buffer_store_dwordx2 {v(VT,2)}, v{V63}, s[{SWS}:{SWS+3}], s57 offen sc1"
    zero = [f"v_accvgpr_write_b32 a{i}, 0" for i in range(256)]
    nz1 = OPT.get("nz1", 160)
    Q0, Q1 = Seq(), Seq()

    def ulist(Q, kj):
        L = []
        for k, j in kj:
            for nu in range(4):
                u_load(Q, k, j, nu)
                L.append(Seq.text(Q.take()))
        return L

    def dma_list(Q, k):
        L = []
        for p in range(6):
            if p in (0, 4):
                dma_m0(Q, k, p >> 2); Q.raw("s_nop 0")
            dma(Q, k, p)
            L.append(Seq.text(Q.take()))
        return L
    Q = Q1
    nz1 = OPT.get("nz1", 160)
    weave(A, zero[:nz1], [upoll], OPT.get("nz0", 100))
    A("s_waitcnt vmcnt(1)\ns_barrier")
    st.mark(A, "b5")
    A(f"s_cmp_lg_u32 s{S_W}, 0\ns_cbranch_scc1 Lnodf")
    A(f"{dflag}\nLnodf:")
    A("\n".join(zero[nz1:]))
    A(f"s_mov_b32 s58, {SPIN_MAX}\ns_waitcnt vmcnt(1)\ns_cmp_eq_u32 s{S_W}, 0\ns_cbranch_scc1 Lu_chk\ns_branch Lu_wait")
    spin(A, "Lu", upoll, ucheck, None)
    st.mark(A, "uok")
    u5 = OPT.get("u5", 0)
    npre = OPT.get("npre", 4)
    ul = ulist(Q, ((0, 0), (0, 1), (0, 2), (1, 0))[:npre] + ((1, 1),)*u5)
    NU = len(ul)
    dchk = lambda r: f"v_cmp_ne_u32 vcc, s{S_TAG}, v{r}\nv_cmp_ne_u32 s[56:57], s{S_TAG}, v{r+1}\ns_nop 1\ns_or_b64 s[56:57], s[56:57], vcc"
    dpol = lambda r: f"buffer_load_dwordx2 {v(r,2)}, v{VPOLL}, s[{SWS}:{SWS+3}], s{S_POLL} offen sc1"
    pp = OPT.get("pp", (4, 16))
    A(f"s_cmp_lg_u32 s{S_W}, 0\ns_cbranch_scc0 Lw0")
    A("\n".join(ul) + "\ns_branch Ld_ok\nLw0:")
    for i in range(NU + 1):
        if i in pp:
            A(dpol(8 + 2*pp.index(i)))
        if i < NU:
            A(ul[i])
    A(f"s_mov_b32 s58, {SPIN_MAX}")
    for n, i in enumerate(pp):
        A(f"s_waitcnt vmcnt({NU - i + len(pp) - 1 - n})\n{dchk(8 + 2*n)}\ns_cbranch_scc0 Ld_ok")
    spin(A, "Ld", dpol(8), dchk(8), None)
    A("s_barrier")
    st.mark(A, "b6")
    A("\n".join(dma_list(Q, 0) + dma_list(Q, 1)))
    A(f"s_xor_b32 s{S_M0}, s{S_M0}, 0x10000\ns_mov_b32 s{S_CNT}, 7")
    d2 = ulist(Q, ((0, 0), (0, 1), (0, 2))[npre:]) + dma_list(Q, 2) + ulist(Q, ((1, 0),)[max(npre - 3, 0):])
    nd2 = OPT.get("nd2", 2)
    A("\n".join(d2[:nd2]))
    A(f"s_lshl_b32 s56, s{S_W}, 5\nv_and_b32 v8, 31, v0\nv_add_u32 v8, s56, v8")
    gen.code_touch(A, "Ltail", "Lcode_end", 8, 234, "Lpc2", 56)
    if OPT.get("l2pf", 0):
        first = OPT.get("l2first", 4)
        A(f"s_and_b32 s56, s{S_IDX}, 1\ns_lshl_b32 s56, s56, 2\ns_add_u32 s56, s56, s{S_W}\ns_lshl_b32 s57, s{S_B}, 6\ns_add_u32 s56, s56, s57")
        A(f"s_mul_i32 s56, s56, {OS}\ns_lshl_b32 s57, s{S_RB}, 12\ns_add_u32 s56, s56, s57")
        A(f"s_mul_i32 s57, s{S_IT}, {D2-D1}\ns_add_u32 s56, s56, s57\ns_add_u32 s56, s56, {D1 + first*4*OS}")
        A(f"s_lshl_b32 s57, s{S_RB}, 2\ns_add_u32 s57, s57, s{S_W}\ns_mul_i32 s57, s57, 1536\ns_mul_i32 s58, s{S_NB}, 786432\ns_add_u32 s57, s57, s58")
        A(f"s_lshl_b32 s58, s{S_IT}, 23\ns_add_u32 s57, s57, s58\ns_add_u32 s57, s57, {U1 + first*49152 - 4096}")
        A(f"v_cmp_gt_u32 vcc, 32, v0\nv_mov_b32 v8, s57\nv_mov_b32 v9, s56\nv_min_u32 v10, 43, v0\nv_cndmask_b32 v8, v8, v9, vcc")
        if OPT.get("l2u", 1):
            A("v_mov_b32 v8, s57\nv_max_u32 v10, 32, v10\ns_mov_b64 vcc, 0")
        A(f"v_lshl_add_u32 v232, v10, 7, v8\nv_mov_b32 v8, {2*49152}\nv_mov_b32 v9, {8*OS}\nv_cndmask_b32 v233, v8, v9, vcc")
    A(f"s_waitcnt vmcnt({6 + nd2})\ns_barrier")
    st.mark(A, "b7")
    for par in range(2):
        for tb in range(4):
            raw_read(Q, 0, par, tb, 0); raw_read(Q, 0, par, tb, 1)
    for par in range(2):
        for tb in range(4):
            Q.wait(lg=[("rd", 0, par, tb)])
            for d in range(4):
                h_op(Q, 0, par, tb, d)
    main = Seq.text(Q.take()).split("\n")
    if u5:
        A(f"s_mov_b32 s56, {OOB:#x}")
        Q.vm += ["pad"]*4
        weave(A, main, d2[nd2:] + [f"buffer_load_dword v{VT+1}, off, s[{SWS}:{SWS+3}], s56"]*4, 12)
    else:
        weave(A, main, d2[nd2:] + ulist(Q, ((1, 1),)), 12)
    l2 = OPT.get("l2pf", 0)
    pfl = f"buffer_load_dword v{VT+1}, v232, s[{SWS}:{SWS+3}], %s offen sc1"
    pfa = "v_add_u32 v232, v232, v233"
    Q.wait(vm=[("raw", 1)])
    A(Seq.text(Q.take()))
    if l2:
        for _ in range((l2 - OPT.get("l2first", 4))//2):
            A(pfl % "0" + "\n" + pfa)
    if OPT.get("sched", 1):
        A(f"s_mov_b32 s{S_USTEP}, 49152\ns_sub_u32 s{S_U1}, s{S_U1}, 49152")
    A(f"s_cmp_eq_u32 s{S_IT}, 0\ns_cbranch_scc1 Lgo")
    A(f"s_cmp_lg_u32 s2, 2\ns_cbranch_scc1 Lgo\ns_cmp_lg_u32 s{S_W}, 0\ns_cbranch_scc1 Lgo")
    A(f"buffer_store_dword v{VT}, v{V63}, s[{SWS}:{SWS+3}], 0 offen offset:{GEN} sc1")
    A("Lgo:")
    st.mark(A, "loop")
    bodies = []
    for Q in (Q1,):
        for n in range(7):
            ex = None
            if l2:
                g = OPT.get("l2gap", 56)
                ex = {g - 2: [lambda: Q.raw(f"s_cmp_gt_u32 s{S_CNT}, {l2//2 - 1}")], g - 1: [lambda: Q.raw(f"s_cselect_b32 s56, 0, {OOB:#x}")],
                      g: [lambda: Q.vmem(pfl % "s56", "pf")], g + 2: [lambda: Q.raw(pfa)]}
            step(Q, 2*n, None, ex)
            step(Q, 2*n + 1, None, {61: [lambda: Q.raw(f"s_sub_u32 s{S_CNT}, s{S_CNT}, 1")],
                                    62: [lambda: Q.raw(f"s_cmp_gt_u32 s{S_CNT}, 1")],
                                    63: [lambda: Q.raw("s_cbranch_scc1 Lloop")]})
            bodies.append(Q.take())
    A(".p2align 6\nLloop:")
    body = Seq.text(merge(bodies))
    if stamps and "i2" in OPT.get("marks", ""):
        B = Asm()
        for n in (2, 4, 6):
            B(f"s_cmp_lg_u32 s{S_CNT}, {7-n}\ns_cbranch_scc1 Lni{n}")
            st.mark(B, f"i{n}")
            B(f"Lni{n}:")
        B(f"s_cmp_gt_u32 s{S_CNT}, 1")
        body = body.replace("s_cbranch_scc1 Lloop", "\n".join(B.L) + "\ns_cbranch_scc1 Lloop")
    A(body)
    A(f"s_cmp_eq_u32 s{S_CNT}, 0\ns_cbranch_scc1 Ltail\nglobal_load_dword v{VT+1}, v[234:235], off\ns_branch Lloop\nLtail:")
    st.mark(A, "l14")
    gm = {9: 15, 11: 18, 17: 22, 19: 25, 22: 29, 26: 32, 33: 36, 35: 39, 38: 43, 42: 46, 49: 53, 63: 63}
    remap = lambda ex: {gm[g]: f for g, f in ex.items()} if OPT.get("sched", 1) else ex
    R = lambda t: [lambda: Q.raw(t)]
    M = lambda t: [lambda: Q.vmem(t, "ep")]
    sc_ld = [f"buffer_load_dword v{SCR+h}, v{VT}, s[{SWS}:{SWS+3}], s56 offen offset:{8 + 256*h} sc1" for h in range(2)]
    em_ld = [f"buffer_load_dwordx4 {v(EMR+4*h,4)}, v{VPOLL}, s[{SWS}:{SWS+3}], s57 offen offset:{16*h} sc1" for h in range(2)]
    gb_ld = [f"global_load_dwordx4 {v(GR,4)}, v237, s[16:17]", f"global_load_dwordx4 {v(BR,4)}, v237, s[18:19]"]
    unscale = f"v_pk_mul_f32 {v(SCR,2)}, {v(SCR,2)}, s[{S_ASC}:{S_INV}] op_sel:[0,1] op_sel_hi:[1,1]"
    red = [f"v_add_f32_dpp v{EMR+k}, v{EMR+k}, v{EMR+k} row_ror:{sh} row_mask:0xf bank_mask:0xf" for sh in (8, 4, 2, 1) for k in range(8)]
    wl = w_loads(WLDS, 58, 59)
    ex = {9: R(f"v_and_b32 v{VT}, 127, v237\nv_lshlrev_b32 v239, 1, v{VT}\nv_lshlrev_b32 v{VT}, 5, v{VT}"),
          11: M(wl[0]),
          17: R(f"s_mul_i32 s56, s{S_NB}, {GRPS}\ns_lshl_b32 s57, s{S_IT}, 16\ns_add_u32 s56, s56, s57\ns_add_u32 s56, s56, {UF:#x}"),
          19: R(f"s_lshl_b32 s57, s{S_B}, 3\ns_add_u32 s57, s57, s{S_NB}\ns_lshl_b32 s57, s57, 12\ns_add_u32 s57, s57, {EMBP:#x}"),
          22: R(f"v_and_b32 v{VPOLL}, 15, v0\nv_lshl_add_u32 v{VPOLL}, v{VPOLL}, 8, v239"),
          26: M(wl[1]),
          33: M(em_ld[0]), 35: M(em_ld[1]), 38: M(sc_ld[0]), 42: [lambda: Q.vmem(sc_ld[1], "sc")],
          49: M(wl[2]), 63: M(wl[3])}
    step(Q, 14, remap(ex))
    ex = {2: M(gb_ld[0]), 9: M(wl[4]), 5: M(gb_ld[1]), 22: M(wl[5]),
          33: M(wl[6]), 42: M(wl[7]), 55: M(wl[8]),
          39: [lambda: Q.wait(vm=["sc"]), lambda: Q.raw(unscale)]}
    slots = [43, 46, 49, 50, 51, 52, 53, 54, 56, 57, 58, 59, 60, 61, 62, 63]
    for i, g in enumerate(slots):
        ex[g] = R("\n".join(red[2*i:2*i + 2]))
    step(Q, 15, ex)
    A(Seq.text(Q.take()))
    A("Lepi:")
    st.mark(A, "end")
    RB_, ZB = [8, 40], [72, 88]
    XB = [8, 20, 72, 84]
    LO, HI = LO3, HI3
    ag, bb = f"s[{S_AG}:{S_AG+1}]", f"s[{S_BB}:{S_BB+1}]"
    XF, OUT = 40, 104
    for nul in range(2):
        stream, ready = [], []
        for n, phi in enumerate((2, 1, 3, 0)):
            sg, nup = phi >> 1, phi & 1
            nu = 2*nup + nul
            Rr = RB_[n & 1]
            Z = (lambda q, zb=ZB[n & 1]: zb + 4*q) if phi else (lambda q: H + q*8 + nul*4)
            m = lambda j, be, r=0: Rr + j*8 + be*4 + r
            E = stream.append

            def rdacc(*jb):
                for j, be in jb:
                    for r in range(4):
                        E(f"v_accvgpr_read_b32 v{m(j,be,r)}, a{j*64 + nu*16 + (2*sg + be)*4 + r}")

            def pk(q, x, y, neg, first=False):
                for r in (0, 2):
                    E(f"v_pk_add_f32 {v(Z(q)+r,2)}, {v((x if first else Z(q))+r,2)}, {v(y+r,2)} {NEG1 if neg else ''}")

            def done(q):
                if phi:
                    ready.append((len(stream), f"ds_write_b128 v{VW[phi]}, {v(Z(q),4)} offset:{(nul*4 + q)*1024}"))
            rdacc((0, 0), (0, 1), (1, 0), (2, 0))
            if n == 2:
                E("@war")
            pk(1, m(1,0), m(2,0), 0, True); pk(0, m(1,0), m(2,0), 1, True)
            pk(1, None, m(0,0), 1); pk(1, None, m(0,1), 0); done(1)
            rdacc((3, 1), (3, 0))
            for r in range(4):
                E(f"v_add_f32_dpp v{Z(0)+r}, v{m(3,1,r)}, v{Z(0)+r} row_shr:1 row_mask:0xf bank_mask:0xf bound_ctrl:1")
            pk(0, None, m(3,0), 1)
            done(0)
            rdacc((1, 1), (2, 1))
            pk(2, m(1,1), m(2,1), 1, True); pk(3, m(1,1), m(2,1), 0, True)
            pk(2, None, m(3,1), 1); pk(2, None, m(3,0), 0); done(2)
            for r in range(4):
                E(f"v_add_f32_dpp v{Z(3)+r}, v{m(0,0,r)}, v{Z(3)+r} row_shl:1 row_mask:0xf bank_mask:0xf bound_ctrl:1")
            pk(3, None, m(0,1), 1)
            done(3)
        where, last = {}, -99
        for pos, t in ready:
            last = max(pos, last + OPT.get("wgap", 13))
            where[last] = t
        bpos = last + OPT.get("bgap", 14)
        nw = 0
        rds = [f"ds_read_b128 {v(XB[q] + 4*k, 4)}, v{VR[k]} offset:{(nul*4 + q)*1024}" for q in range(4) for k in range(3)]
        for i, t in enumerate(stream):
            if i in where:
                A(where[i]); nw += 1
            if i == bpos:
                A("s_waitcnt lgkmcnt(0)\ns_barrier")
            if i >= bpos and (i - bpos) % OPT.get("rgap", 6) == 0 and rds:
                for _ in range(OPT.get("rnum", 3)):
                    A(rds.pop(0))
            A(f"s_waitcnt lgkmcnt({nw - 4})" if t == "@war" else t)
        assert nw == 12 and 181 <= bpos and not rds
        if OPT.get("hc4", 1):
            A(f"s_cmp_eq_u32 s{S_EX}, 0\ns_cbranch_scc1 Lhc{nul}")
            for var in range(2):
                for q in range(4):
                    if q in (0, 2):
                        A(f"s_waitcnt lgkmcnt({6 - 3*q})")
                    x = XB[q]
                    ha, hb = H + q*8 + nul*4, H + 32 + q*8 + nul*4
                    for r in (0, 2):
                        A(f"v_pk_fma_f32 {v(hb+r,2)}, {v(x+4+r,2)}, {ag}, {v(x+8+r,2)} {HI}")
                    for r in (0, 2):
                        A(f"v_pk_fma_f32 {v(x+4+r,2)}, {v(x+4+r,2)}, {ag}, {v(x+r,2)} {LO}")
                    for r in (0, 2):
                        A(f"v_pk_add_f32 {v(hb+r,2)}, {v(hb+r,2)}, {v(x+r,2)}" if var else
                          f"v_pk_fma_f32 {v(hb+r,2)}, {v(ha+r,2)}, {bb}, {v(hb+r,2)} {HI}")
                    for r in (0, 2):
                        A(f"v_pk_add_f32 {v(ha+r,2)}, {v(ha+r,2)}, {v(x+4+r,2)}")
                A(f"Lhd{nul}:" if var else f"s_branch Lhd{nul}\nLhc{nul}:")
        else:
            for q in range(4):
                if q in (0, 2):
                    A(f"s_waitcnt lgkmcnt({6 - 3*q})")
                x = XB[q]
                ha, hb = H + q*8 + nul*4, H + 32 + q*8 + nul*4
                for r in (0, 2):
                    A(f"v_pk_fma_f32 {v(hb+r,2)}, {v(x+4+r,2)}, {ag}, {v(x+8+r,2)} {HI}")
                for r in (0, 2):
                    A(f"v_pk_fma_f32 {v(x+4+r,2)}, {v(x+4+r,2)}, {ag}, {v(x+r,2)} {LO}")
                for r in (0, 2):
                    A(f"v_pk_fma_f32 {v(hb+r,2)}, {v(x+r,2)}, {bb}, {v(hb+r,2)} {LO}")
                for r in (0, 2):
                    A(f"v_pk_fma_f32 {v(hb+r,2)}, {v(ha+r,2)}, {bb}, {v(hb+r,2)} {HI}")
                for r in (0, 2):
                    A(f"v_pk_add_f32 {v(ha+r,2)}, {v(ha+r,2)}, {v(x+4+r,2)}")
        if nul:
            st.mark(A, "hh")
        sel = HI if nul else LO
        A(f"s_cmp_lg_u32 s{S_IT}, 0\ns_cbranch_scc1 Lfinal{nul}")
        for p0 in range(0, 8, 2):
            xs = [(H + p*8 + k, k) for p in (p0, p0 + 1) for k in (4*nul, 4*nul + 2)]
            for x, k in xs:
                A(f"v_pk_fma_f32 {v(x,2)}, {v(x,2)}, {v(SCR,2)}, {v(EMR+k,2)} {sel}")
            for i, (x, k) in enumerate(xs):
                sums(A, x, P + (k & 2), nul == 0 and p0 == 0 and i < 2)
        if nul == 0:
            A("s_branch Lhalf")
        else:
            st.flush(A, 0, 7)
            st.mark(A, "start")
            A(f"s_mov_b32 s{S_IT}, 1\ns_mov_b32 s{SO+2}, 0")
            A(f"s_add_u32 s{S_RA}, s{S_RA}, {D2-D1:#x}\ns_add_u32 s{S_RB2}, s{S_RB2}, {D2-D1:#x}")
            A(f"s_add_u32 s{SD}, s{SD}, {D2-D1:#x}\ns_addc_u32 s{SD+1}, s{SD+1}, 0")
            A("s_branch Lstats")
        A(f"Lfinal{nul}:")
        if nul == 0:
            A(f"s_mov_b32 s{SO}, s22\ns_mov_b32 s{SO+1}, s23\ns_mov_b32 s{SO+2}, 0x800000\ns_waitcnt vmcnt(0)")
            if OPT.get("wide", 0):
                A(f"s_mov_b32 vcc_lo, 0xaaaaaaaa\ns_mov_b32 vcc_hi, 0xaaaaaaaa\nv_add_u32 v{VX+1}, -8, v{VX+1}\nv_cndmask_b32 v{VX}, v{VX}, v{VX+1}, vcc")
        for k in (4*nul, 4*nul + 2):
            xf = lambda p, kk: XF + p*4 + (kk & 3)
            for rho in range(2):
                for kk in (k, k+1):
                    r = XR + (rho*8 + kk)*2
                    unpack_bf16(A, r, xf(rho*4, kk), xf(rho*4 + 1, kk))
                    unpack_bf16(A, r+1, xf(rho*4 + 2, kk), xf(rho*4 + 3, kk))
            for p in range(8):
                x = H + p*8 + k
                A(f"v_pk_fma_f32 {v(x,2)}, {v(x,2)}, {v(SCR,2)}, {v(xf(p, k),2)} {sel}")
            if OPT.get("wide", 0):
                t = XF + (k & 2)
                cv = lambda kk, rho, d: XF + (kk & 1)*16 + rho*8 + d*4 + (k & 2)
                for kk in (k, k+1):
                    for rho in range(2):
                        h = H + rho*32 + kk
                        A(f"v_cvt_pk_bf16_f32 v{cv(kk,rho,0)}, v{h}, v{h+8}\nv_cvt_pk_bf16_f32 v{cv(kk,rho,1)}, v{h+16}, v{h+24}")
                for half in range(2):
                    A("s_not_b64 vcc, vcc")
                    for kk in (k, k+1):
                        for d in range(2):
                            A(f"v_cndmask_b32_dpp v{OUT + kk*4 + 2*half + d}, v{cv(kk,1-half,d)}, v{cv(kk,half,d)}, vcc quad_perm:[1,0,3,2] row_mask:0xf bank_mask:0xf")
                for kk in (k, k+1):
                    A(f"buffer_store_dwordx4 {v(OUT + kk*4,4)}, v{VX}, s[{SO}:{SO+3}], s{S_XO} offen {OPT['sto']}")
                    A(f"s_add_u32 s{S_XO}, s{S_XO}, 8192")
                continue
            for kk in (k, k+1):
                for rho in range(2):
                    o = OUT + (rho*8 + kk)*2
                    h = H + rho*32 + kk
                    A(f"v_cvt_pk_bf16_f32 v{o}, v{h}, v{h+8}")
                    A(f"v_cvt_pk_bf16_f32 v{o+1}, v{h+16}, v{h+24}")
                    A(f"buffer_store_dwordx2 {v(o,2)}, v{VX+rho}, s[{SO}:{SO+3}], s{S_XO} offen {OPT['sto']}")
                A(f"s_add_u32 s{S_XO}, s{S_XO}, 8192")
        if nul == 0:
            A("Lhalf:")
    if stamps:
        A("s_waitcnt vmcnt(0)")
        A("s_memrealtime s[20:21]\ns_memtime s[22:23]\ns_waitcnt lgkmcnt(0)")
        st.flush(A, 1, 7)
        A("s_mov_b32 s72, s20\ns_mov_b32 s74, s22")
        st.flush(A, 2, 1)
    A("Lexit:\ns_endpgm")
    A("Lcode_end:")
    descriptor(A, NAME, 512, 256)
    return A


HEAD = """; ADM ResBlock: GN+SiLU -> conv3x3 -> +emb -> GN+SiLU -> conv3x3 -> +x   (B=2, C=512, 64x64, bf16 in / out)
;
;   convolution -> output transform -> H           (after round 1: out = H + x, x stays in registers)
; from max(|gamma|,|beta|), that are undone after the convolution, so no value range is assumed.
%s
.amdgcn_target "amdgcn-amd-amdhsa--gfx950"
"""

if __name__ == "__main__":
    for a in sys.argv[2:]:
        if "=" in a:
            k, val = a.split("=")
            OPT[k] = int(val) if val.lstrip("-").isdigit() else (eval(val) if val.startswith("(") else val.replace("+", " "))
    D1 += OPT.get("base", 0) << 20; D2 += (OPT.get("base", 0) + OPT.get("d2", 0)) << 20
    U1 += OPT.get("base", 0) << 20; U2 += OPT.get("base", 0) << 20
    if OPT.get("same", 0) & 1:
        D2 = D1
    if OPT.get("same", 0) & 2:
        U2 = U1
    stamps = "stamps" in sys.argv[2:]
    launch = "; @launch " + (f"kernel={NAME} " if "list" in sys.argv[2:] else "") + "grid=(256,1,1) block=(256,1,1) lds=152064"
    text = HEAD % launch + kernel(stamps).text()
    open(sys.argv[1], "w").write(align_pass(text) if OPT["align"] else text)
```
